```python
import torch

def _softmax(x, axis=-1):
    return torch.softmax(x, dim=axis)
def _gelu(x):
    return torch.nn.functional.gelu(x, approximate="tanh")
def _silu(x):
    return torch.nn.functional.silu(x)
def _sigmoid(x):
    return torch.sigmoid(x)
def _layernorm(x, axis=-1, eps=1e-5):
    m = x.mean(dim=axis, keepdim=True)
    v = x.var(dim=axis, keepdim=True, unbiased=False)
    return (x - m) / torch.sqrt(v + eps)
def _scatter_add(tgt, idx, src, axis=0):
    return tgt.clone().index_add_(axis, idx, src)
def _segment_sum(src, seg, n):
    out = torch.zeros((n,) + src.shape[1:], dtype=src.dtype)
    return out.index_add_(0, seg, src)
def _pad(x, pw):
    flat = tuple(v for pair in reversed(pw) for v in pair)
    return torch.nn.functional.pad(x, flat)

kernel_name = 'recurrent_scan__ssm_conv_s4__mixer_channel_mlp__prompt'

def setup_inputs():

    _w = (lambda a: (lambda t: t.to(torch.bfloat16) if t.is_floating_point() else t)(torch.as_tensor(a)))
    def _A_setup():
        B, L, D, N = 1, 2048, 512, 128
        A_re = -(lambda _x: torch.exp(torch.as_tensor(_x)))((lambda *s: torch.randn(*s, dtype=torch.bfloat16) * 3.2)(D, N))
        A_im = torch.pi * (lambda *s: torch.randn(*s, dtype=torch.bfloat16) * 0.05)(D, N)
        B_re = (lambda *s: torch.randn(*s, dtype=torch.bfloat16) * 0.1)(D, N)
        B_im = (lambda *s: torch.randn(*s, dtype=torch.bfloat16) * 0.1)(D, N)
        C_re = (lambda *s: torch.randn(*s, dtype=torch.bfloat16) * 0.1)(D, N)
        C_im = (lambda *s: torch.randn(*s, dtype=torch.bfloat16) * 0.2)(D, N)
        log_dt = (lambda *s: torch.randn(*s, dtype=torch.bfloat16) * 0.05)(D) * 0.5 - 4.0
        Dskip = (lambda *s: torch.randn(*s, dtype=torch.bfloat16) * 0.05)(D)
        return {
            "u": _w((lambda *s: torch.randn(*s, dtype=torch.bfloat16) * 0.05)(B, L, D)),
            "A_re": _w(A_re),
            "A_im": _w(A_im),
            "B_re": _w(B_re),
            "B_im": _w(B_im),
            "C_re": _w(C_re),
            "C_im": _w(C_im),
            "log_dt": _w(log_dt),
            "Dskip": _w(Dskip),
        }
    _A_in = _A_setup()

    def _B_setup():
        B, S, D, F = 1, 2048, 512, 1792
        return {
            "x": _w((lambda *s: torch.randn(*s, dtype=torch.bfloat16) * 0.05)(B, S, D)),
            "w1": _w((lambda *s: torch.randn(*s, dtype=torch.bfloat16) * 1.6)(D, F) * (D ** -0.5)),
            "b1": _w((lambda *s: torch.randn(*s, dtype=torch.bfloat16) * 0.8)(F)),
            "w2": _w((lambda *s: torch.randn(*s, dtype=torch.bfloat16) * 0.05)(F, D) * (F ** -0.5)),
            "b2": _w((lambda *s: torch.randn(*s, dtype=torch.bfloat16) * 0.05)(D)),
        }
    _B_in = _B_setup()

    return {
        "A_u": _A_in["u"],
        "A_A_re": _A_in["A_re"],
        "A_A_im": _A_in["A_im"],
        "A_B_re": _A_in["B_re"],
        "A_B_im": _A_in["B_im"],
        "A_C_re": _A_in["C_re"],
        "A_C_im": _A_in["C_im"],
        "A_log_dt": _A_in["log_dt"],
        "A_Dskip": _A_in["Dskip"],
        "B_x": _B_in["x"],
        "B_w1": _B_in["w1"],
        "B_b1": _B_in["b1"],
        "B_w2": _B_in["w2"],
        "B_b2": _B_in["b2"],
    }

def reference(A_u, A_A_re, A_A_im, A_B_re, A_B_im, A_C_re, A_C_im, A_log_dt, A_Dskip, B_x, B_w1, B_b1, B_w2, B_b2):
    def _A_ref(u, A_re, A_im, B_re, B_im, C_re, C_im, log_dt, Dskip):
        Bsz, L, D = u.shape
        dt = torch.exp(log_dt)[:, None]
        A = A_re + 1j * A_im
        Bc = B_re + 1j * B_im
        Cc = C_re + 1j * C_im
        logdA = dt * A
        dB = dt * Bc
        l = (lambda x, dt: x.to(dt))(torch.arange(L), A_re.dtype)
        P = torch.exp(logdA[:, :, None] * l[None, None, :])
        K = torch.einsum("dn,dnl,dn->dl", Cc, P, dB).real
        L2 = 2 * L
        Kp = _pad(K, ((0, 0), (0, L)))
        up = (lambda x, *d: x.permute(*d))(u, 0, 2, 1)
        up = _pad(up, ((0, 0), (0, 0), (0, L)))
        Kf = (lambda x, axes=(-2,-1): torch.fft.rfft2(x.float(), dim=axes))(Kp[:, None, :], axes=(-2, -1))
        Uf = (lambda x, axes=(-2,-1): torch.fft.rfft2(x.float(), dim=axes))(up[:, :, None, :], axes=(-2, -1))
        Yf = Uf * Kf[None, :, :, :]
        y = (lambda x, s, axes=(-2,-1): torch.fft.irfft2(x, s=s, dim=axes).to(torch.bfloat16))(Yf, (1, L2), axes=(-2, -1))[:, :, 0, :L]
        y = (lambda x, *d: x.permute(*d))(y, 0, 2, 1) + u * Dskip[None, None, :]
        return y

    def _B_ref(x, w1, b1, w2, b2):
        y = _layernorm(x, axis=-1)
        h = _gelu(torch.einsum("bsd,df->bsf", y, w1) + b1)
        return torch.einsum("bsf,fd->bsd", h, w2) + b2

    x = A_u
    xn = _layernorm(x, axis=-1)
    s = _A_ref(xn, A_A_re, A_A_im, A_B_re, A_B_im, A_C_re, A_C_im, A_log_dt, A_Dskip)
    g = _silu(_B_ref(xn, B_w1, B_b1, B_w2, B_b2))
    return x + s * g
```

```python
import re

REG_RE = re.compile(r'\b([vsa])(\d+)\b|\b([vsa])\[(\d+):(\d+)\]|\b(vcc|exec|m0)\b')
TRANS = ('v_exp_f32', 'v_log_f32', 'v_rcp_f32', 'v_rsq_f32', 'v_sqrt_f32', 'v_sin_f32', 'v_cos_f32', 'v_rcp_iflag_f32')

def regs_of(tok):
    out = set()
    for m in REG_RE.finditer(tok):
        if m.group(1):
            out.add((m.group(1), int(m.group(2))))
        elif m.group(3):
            for i in range(int(m.group(4)), int(m.group(5)) + 1):
                out.add((m.group(3), i))
        else:
            out.add((m.group(6), 0))
    return out

def split_ops(s):
    ops, depth, cur = [], 0, ''
    for ch in s:
        if ch == '[': depth += 1
        if ch == ']': depth -= 1
        if ch == ',' and depth == 0:
            ops.append(cur.strip()); cur = ''
        else:
            cur += ch
    if cur.strip(): ops.append(cur.strip())
    return ops

class Ins:
    def __init__(self, text):
        self.text = text
        t = text.split(';')[0].strip()
        parts = t.split(None, 1)
        self.mn = parts[0]
        rest = parts[1] if len(parts) > 1 else ''
        ops = split_ops(rest)
        mods = ''
        if ops:
            lp = ops[-1].split(None, 1)
            if len(lp) > 1 and not lp[0].startswith('abs') :
                ops[-1] = lp[0]; mods = lp[1]
        self.ops, self.mods = ops, mods
        mn = self.mn
        self.w, self.r = set(), set()
        self.kind = 'other'
        self.mfma_passes = 0
        self.srcC = set(); self.srcAB = set()
        self.dpp = ('row_' in mods or 'quad_perm' in mods or 'wave_' in mods or mn.endswith('_dpp'))
        self.states = 1
        R = [regs_of(o) for o in ops]
        if mn == 's_nop':
            self.states = int(ops[0], 0) + 1; self.kind = 'nop'
        elif mn.startswith('v_mfma'):
            self.kind = 'mfma'
            self.mfma_passes = 8 if '32x32x16' in mn else 4 if '16x16x32' in mn else 16
            self.w = R[0]; self.srcAB = R[1] | R[2]; self.srcC = R[3]; self.r = self.srcAB | self.srcC
        elif mn.startswith('v_'):
            self.kind = 'valu'
            if mn.startswith('v_cmp'):
                self.w = R[0]; self.r = set().union(*R[1:])
            elif mn.startswith('v_permlane'):
                self.w = R[0] | R[1]; self.r = R[0] | R[1]; self.kind = 'valu'; self.perm = True
            elif mn.startswith(('v_add_co', 'v_sub_co', 'v_addc_co', 'v_subb_co', 'v_subrev_co')):
                self.w = R[0] | R[1]; self.r = set().union(*R[2:])
            else:
                self.w = R[0]; self.r = set().union(*R[1:]) if len(R) > 1 else set()
                if mn.startswith(('v_fmac', 'v_dot2c', 'v_pk_fmac', 'v_writelane')) or self.dpp:
                    self.r |= R[0]
        elif mn.startswith('ds_'):
            self.kind = 'ds'
            if mn.startswith(('ds_read', 'ds_bpermute', 'ds_permute', 'ds_swizzle')) or '_rtn' in mn:
                self.w = R[0]; self.r = set().union(*R[1:])
            else:
                self.r = set().union(*R)
        elif mn.startswith(('buffer_', 'global_')):
            self.kind = 'vmem'
            self.lds = bool(re.search(r'\blds\b', mods))
            if mn.startswith(('buffer_load', 'global_load')) and not self.lds:
                self.w = R[0]; self.r = set().union(*R[1:])
            else:
                self.r = set().union(*R) if R else set()
                if self.lds: self.r.add(('m0', 0))
            self.wide_store = ('store' in mn and ('x4' in mn or 'x3' in mn))
            self.data = R[0] if mn.startswith('buffer_store') else (R[1] if mn.startswith('global_store') else set())
        elif mn.startswith('s_'):
            self.kind = 'salu'
            if mn.startswith(('s_cmp', 's_cbranch', 's_branch', 's_waitcnt', 's_barrier', 's_setprio', 's_endpgm', 's_sleep', 's_bitcmp')):
                self.r = set().union(*R) if R else set()
            else:
                self.w = R[0] if R else set(); self.r = set().union(*R[1:]) if len(R) > 1 else set()
                if 'saveexec' in mn: self.w = self.w | {('exec', 0)}
        self.trans = mn.replace('_e32', '').replace('_e64', '') in TRANS
        self.perm = mn.startswith('v_permlane')
        self.rdlane = mn.startswith(('v_readlane', 'v_readfirstlane'))

def is_v(r): return r[0] in ('v', 'a')
def is_s(r): return r[0] in ('s', 'vcc')

def need(prod, cons):
    n = 0
    pw, cr, cw = prod.w, cons.r, cons.w
    if prod.kind == 'valu':
        vw = {r for r in pw if is_v(r)}
        sw = {r for r in pw if is_s(r)}
        if cons.kind == 'mfma' and vw & cr: n = max(n, 2)
        if cons.kind == 'valu':
            if cons.rdlane and vw & cr: n = max(n, 1)
            if cons.dpp and vw & cr: n = max(n, 2)
            if cons.perm and vw & cr: n = max(n, 2)
            if prod.trans and vw & cr: n = max(n, 1)
            if sw & cr: n = max(n, 4 if cons.rdlane else 2)
            if ('op_sel' in prod.mods and not prod.mn.startswith('v_pk')) or 'dst_sel' in prod.mods:
                if vw & (cr | cw): n = max(n, 1)
        if prod.mn.startswith('v_dot') and cons.kind in ('valu', 'mfma', 'ds', 'vmem') and vw & (cr | cw):
            same_acc = cons.mn == prod.mn and not (vw & set().union(*[regs_of(o) for o in cons.ops[1:3]]))
            if not same_acc: n = max(n, 3)
        if cons.kind == 'vmem' and sw & cr: n = max(n, 5)
        if cons.kind == 'salu' and sw & cr: n = max(n, 1)
    if prod.kind == 'mfma':
        p = prod.mfma_passes
        big = {4: 8, 8: 12, 16: 20}[p]
        if cons.kind == 'mfma':
            if pw & cons.srcAB: n = max(n, big)
            if pw & cons.srcC:
                if not (cons.srcC == pw and cons.mfma_passes == p): n = max(n, {4: 6, 8: 10, 16: 18}[p])
            if pw & cw and not (cw == pw and cons.srcC == pw): n = max(n, big)
        elif cons.kind in ('valu', 'ds', 'vmem'):
            if pw & (cr | cw): n = max(n, big)
        if cons.kind == 'valu' and prod.srcC & cw: n = max(n, {4: 3, 8: 7, 16: 15}[p])
    if prod.kind == 'salu' and ('m0', 0) in pw and ('m0', 0) in cr and cons.kind in ('vmem', 'ds'): n = max(n, 1)
    if prod.kind == 'vmem' and getattr(prod, 'wide_store', False) and prod.data & cw:
        n = max(n, 2)
    if prod.kind == 'ds' and prod.mn.startswith(('ds_write_b128', 'ds_write_b96', 'ds_write2_b64')) and cons.kind == 'valu' and (prod.r & cw):
        n = max(n, 1)
    return n

class Asm:
    def __init__(self):
        self.items = []
        self.vm = []
        self.lg = []
        self.uid = 0
    def __call__(self, text, tag=None):
        for line in text.split('\n'):
            line = line.strip()
            if not line: continue
            if line.startswith(';') or line.startswith('.'):
                self.items.append(('t', line)); continue
            if line.endswith(':'):
                self.items.append(('l', line[:-1])); continue
            ins = Ins(line)
            self.items.append(('i', ins))
            if ins.kind == 'vmem': self.vm.append(tag)
            if ins.kind == 'ds': self.lg.append(tag)
    def newlabel(self, p='L'):
        self.uid += 1
        return f'{p}_{self.uid}'
    def wait_vm(self, *tags):
        idx = [i for i, t in enumerate(self.vm) if t in tags]
        if not idx: return
        n = len(self.vm) - 1 - max(idx)
        assert n <= 63, n
        self(f's_waitcnt vmcnt({n})')
        self.vm = self.vm[max(idx) + 1:]
    def wait_lg(self, *tags):
        idx = [i for i, t in enumerate(self.lg) if t in tags]
        if not idx: return
        n = len(self.lg) - 1 - max(idx)
        n = min(n, 15)
        self(f's_waitcnt lgkmcnt({n})')
        self.lg = self.lg[len(self.lg) - n:] if n else []
    def wait_vm0(self):
        self('s_waitcnt vmcnt(0)'); self.vm = []
    def wait_lg0(self):
        self('s_waitcnt lgkmcnt(0)'); self.lg = []
    def reset_counters(self):
        self.vm = []; self.lg = []
    def text(self):
        items = self.items
        labelpos = {it[1]: i for i, it in enumerate(items) if it[0] == 'l'}
        out = []
        hist = []
        pend = {}
        MAXAGE = 21
        def deficit(hist, ins):
            d = 0
            for p, age in hist:
                d = max(d, need(p, ins) - age)
            return d
        def advance(hist, ins):
            h = [[p, a + ins.states] for p, a in hist if a + ins.states < MAXAGE]
            if ins.kind != 'nop': h.append([ins, 0])
            return h
        def nops(d):
            res = []
            while d > 0:
                k = min(d, 16)
                res.append(Ins(f's_nop {k-1}')); d -= k
            return res
        for i, it in enumerate(items):
            if it[0] == 't':
                out.append(it[1]); continue
            if it[0] == 'l':
                for snap in pend.pop(it[1], []):
                    hist = hist + snap
                out.append(it[1] + ':'); continue
            ins = it[1]
            d = deficit(hist, ins)
            isbr = ins.mn.startswith(('s_cbranch', 's_branch'))
            if isbr:
                tgt = ins.ops[0]
                if tgt in labelpos and labelpos[tgt] < i:
                    h = advance(hist, ins)
                    extra = 0
                    j = labelpos[tgt]; tot = 0
                    while j < len(items) and tot < MAXAGE:
                        if items[j][0] == 'i':
                            x = items[j][1]
                            extra = max(extra, deficit(h, x))
                            h = [[p, a + x.states] for p, a in h]
                            tot += x.states
                        j += 1
                    d = max(d, extra)
            for n in nops(d):
                out.append('    ' + n.text); hist = advance(hist, n)
            out.append('    ' + ins.text)
            hist = advance(hist, ins)
            if isbr:
                tgt = ins.ops[0]
                if tgt in labelpos and labelpos[tgt] > i:
                    pend.setdefault(tgt, []).append([[p, a] for p, a in hist])
                if ins.mn == 's_branch': hist = []
            if ins.mn == 's_endpgm': hist = []
        return '\n'.join(out) + '\n'
```

```python
from gen import *
import gen

NR = 6
LB_RING = 0
LB_CONV = 4 * NR * 4096
CV_STRIDE = 2 * 4160 + 4576
LB_XCH = LB_CONV + 2 * CV_STRIDE
LB_STAGE = LB_XCH + 16384
LB_FLAG = LB_STAGE + 8192
LB_SIZE = LB_FLAG + 64

def launch_lines():
    return f"; @launch kernel=kb_kernel grid=(256,1,1) block=(512,1,1) lds={LB_SIZE}\n"

def wait_flags(A, areg, off, n, treg):
    L1 = A.newlabel('wf')
    A(f"{L1}:")
    if n == 1:
        A(f"ds_read_b32 v{treg}, v{areg} offset:{off}")
        A("s_waitcnt lgkmcnt(0)")
    else:
        A(f"ds_read_b128 {v(treg,4)}, v{areg} offset:{off}")
        A("s_waitcnt lgkmcnt(0)")
        A(f"v_and_b32 v{treg}, v{treg}, v{treg+1}")
        A(f"v_and_b32 v{treg+2}, v{treg+2}, v{treg+3}")
        A(f"v_and_b32 v{treg}, v{treg}, v{treg+2}")
    A(f"v_cmp_eq_u32 vcc, 1, v{treg}")
    A(f"s_cbranch_vccz {L1}")
    A.lg = []

def kb_prologue(A):
    A("s_cmp_ge_u32 s2, 256")
    A("s_cbranch_scc1 KB_end")
    stamp(A, True); stamp(A)
    A("s_load_dwordx2 s[4:5], s[0:1], 0")
    A("s_load_dwordx2 s[6:7], s[0:1], 64")
    A("s_load_dwordx4 s[8:11], s[0:1], 96")
    A("s_load_dwordx2 s[12:13], s[0:1], 112")
    A("s_load_dwordx2 s[24:25], s[0:1], 128")
    A("v_lshrrev_b32 v2, 6, v0")
    A("v_and_b32 v1, 63, v0")
    A("v_mov_b32 v3, 0")
    A("v_readfirstlane_b32 s3, v2")
    A("v_and_b32 v4, 15, v1")
    A("v_lshlrev_b32 v4, 2, v4")
    A(f"v_add_u32 v4, {LB_FLAG}, v4")
    A("ds_write_b32 v4, v3")
    A("s_and_b32 s26, s2, 7")
    A("s_lshr_b32 s27, s2, 3")
    A("s_lshl_b32 s28, s26, 5")
    A("s_add_u32 s28, s28, s27")
    A("s_lshr_b32 s29, s26, 1")
    A("s_lshl_b32 s29, s29, 3")
    A("s_and_b32 s30, s27, 7")
    A("s_add_u32 s29, s29, s30")
    A("s_and_b32 s30, s26, 1")
    A("s_lshl_b32 s30, s30, 2")
    A("s_lshr_b32 s31, s27, 3")
    A("s_add_u32 s30, s30, s31")
    A("v_and_b32 v2, 15, v1")
    A("v_lshrrev_b32 v3, 4, v1")
    A("s_waitcnt lgkmcnt(0)")
    A("s_barrier")
    stamp(A)
    A.reset_counters()
    A("s_cmp_ge_u32 s3, 4")
    A("s_cbranch_scc1 KB_conv")

def kb_gemm(A):
    LA = int(OPT.get('LA', 4))
    A.reset_counters(); A.nst = 3
    srd(A, 32, 24, 7340032, WS_H)
    srd(A, 36, 8, 1835008)
    A("v_lshlrev_b32 v4, 4, v1")
    for nt in range(1, 4): A(f"v_add_u32 v{4+nt}, {57344*nt}, v4")
    A(f"s_mul_i32 s48, s29, {4*57344}")
    A("s_lshl_b32 s49, s3, 10")
    A("s_add_u32 s48, s48, s49")
    A("v_lshrrev_b32 v12, 3, v1")
    A("v_and_b32 v13, 7, v1")
    A("v_bfe_u32 v14, v1, 4, 1")
    A("v_lshlrev_b32 v14, 1, v14")
    A("v_xor_b32 v13, v13, v14")
    A("v_lshlrev_b32 v12, 10, v12")
    A("s_lshl_b32 s49, s30, 7")
    A("v_add_u32 v12, s49, v12")
    for q in range(4):
        A(f"v_xor_b32 v14, {4*(q&1)}, v13")
        A(f"v_lshl_add_u32 v{8+q}, v14, 4, v12")
        if q: A(f"v_add_u32 v{8+q}, {q*(8192-1024)}, v{8+q}")
    A("s_lshl_b32 s50, s3, 15")
    A(f"s_mul_i32 s51, s3, {NR*4096}")
    HB, NH = 112, LA + 2
    assert HB + 16 * NH <= 240
    def loads(j):
        hb = HB + 16 * (j % NH)
        def first():
            A(f"s_add_u32 m0, s51, {(j % NR)*4096}")
            A(f"buffer_load_dwordx4 v8, s[36:39], s50 offen lds", tag=('ld', j))
        fs = [first]
        for q in range(1, 4):
            fs.append(lambda q=q: A(f"buffer_load_dwordx4 v{8+q}, s[36:39], s50 offen offset:{1024*q} lds", tag=('ld', j)))
        for nt in range(4):
            fs.append(lambda nt=nt: A(f"buffer_load_dwordx4 {v(hb+4*nt,4)}, v{4+nt}, s[32:35], s48 offen", tag=('ld', j)))
        def last():
            A("s_add_u32 s48, s48, 4096")
            A("s_add_u32 s50, s50, 131072")
        fs.append(last)
        return fs
    for j in range(2):
        for f in loads(j): f()
    A("v_bfe_u32 v16, v1, 2, 2")
    A("v_lshrrev_b32 v17, 1, v16")
    A("v_and_b32 v18, 1, v3")
    A("v_lshl_or_b32 v17, v18, 1, v17")
    A("v_lshl_add_u32 v18, v3, 3, v16")
    A("v_lshlrev_b32 v18, 7, v18")
    A("v_and_b32 v19, 3, v1")
    A("v_lshl_add_u32 v18, v19, 3, v18")
    A("v_add_u32 v18, s51, v18")
    for mt in range(4):
        A(f"v_xor_b32 v19, {mt}, v17")
        A(f"v_lshl_add_u32 v{12+mt}, v19, 5, v18")
    for j in range(2, LA + 1):
        for f in loads(j): f()
    srd(A, 40, 4, 2097152)
    srd(A, 44, 10, 1024)
    srd(A, 52, 12, 2097152)
    A("s_lshl_b32 s49, s29, 6")
    A("s_lshl_b32 s56, s3, 4")
    A("s_add_u32 s49, s49, s56")
    A("v_add_u32 v16, s49, v2")
    A("v_lshlrev_b32 v16, 10, v16")
    A("v_and_b32 v17, 1, v3")
    A("v_lshl_add_u32 v16, v17, 5, v16")
    A("v_lshrrev_b32 v17, 1, v3")
    A("v_lshl_add_u32 v16, v17, 4, v16")
    A("s_lshl_b32 s49, s30, 7")
    A("v_add_u32 v16, s49, v16")
    A("v_lshlrev_b32 v17, 3, v3")
    AF, ACC = 28, 48
    def trread(j, mt):
        for hh in range(2):
            A(f"ds_read_b64_tr_b16 {v(AF+4*mt+2*hh,2)}, v{12+mt} offset:{(j % NR)*4096 + hh*512}", tag=('a', j, mt))
    A.wait_vm(('ld', 0))
    stamp(A)
    if DEBUG: A("s_waitcnt lgkmcnt(0)")
    for mt in range(4): trread(0, mt)
    NSTEP = 14
    for j in range(NSTEP):
        if j in (4, 9) and DEBUG:
            A.wait_lg0(); stamp(A); A("s_waitcnt lgkmcnt(0)")
        fs = loads(j + LA + 1) if j + LA + 1 < NSTEP else []
        if j == NSTEP - LA - 1:
            fs = [lambda: A("buffer_load_dwordx4 v[20:23], v16, s[40:43], 0 offen", tag='ep'),
                  lambda: A("buffer_load_dwordx4 v[24:27], v16, s[40:43], 0 offen offset:64", tag='ep')]
            for mt in range(4):
                fs.append(lambda mt=mt: A(f"buffer_load_dwordx2 {v(240+2*mt,2)}, v17, s[44:47], s49 offen offset:{32*mt}", tag='ep'))
        if j + 1 < NSTEP: A.wait_vm(('ld', j + 1))
        hb = HB + 16 * (j % NH)
        for mt in range(4):
            A.wait_lg(('a', j, mt))
            for nt in range(4):
                acc = ACC + 16*nt + 4*mt
                A(f"v_mfma_f32_16x16x32_bf16 {v(acc,4)}, {v(AF+4*mt,4)}, {v(hb+4*nt,4)}, {'0' if j == 0 else v(acc,4)}")
                if fs and nt < 3: fs.pop(0)()
            if j + 1 < NSTEP: trread(j + 1, mt)
        while fs: fs.pop(0)()
    stamp(A)
    if DEBUG: A("s_waitcnt lgkmcnt(0)")
    A("v_lshlrev_b32 v4, 4, v1")
    A("v_add_u32 v5, s51, v4")
    for nt in range(4):
        L = A.newlabel('sk')
        A(f"s_cmp_eq_u32 s3, {nt}")
        A(f"s_cbranch_scc1 {L}")
        for mt in range(4):
            A(f"ds_write_b128 v5, {v(ACC+16*nt+4*mt,4)} offset:{(4*nt+mt)*1024}")
        A(f"s_branch {L}_e")
        A(f"{L}:")
        for r in range(16):
            A(f"v_mov_b32 v{HB+r}, v{ACC+16*nt+r}")
        A(f"{L}_e:")
    A("s_waitcnt lgkmcnt(0)")
    A("v_mov_b32 v6, 1")
    A("s_lshl_b32 s56, s3, 2")
    A(f"s_add_u32 s56, s56, {LB_FLAG}")
    A("v_mov_b32 v7, s56")
    A("ds_write_b32 v7, v6 offset:48")
    A(f"v_mov_b32 v7, {LB_FLAG}")
    wait_flags(A, 7, 48, 4, 8)
    stamp(A)
    if DEBUG: A("s_waitcnt lgkmcnt(0)")
    A("s_lshl_b32 s56, s3, 12")
    A("v_add_u32 v4, s56, v4")
    PR = 128
    for k in range(1, 4):
        A(f"s_add_u32 s56, s3, {k}")
        A("s_and_b32 s56, s56, 3")
        A(f"s_mul_i32 s56, s56, {NR*4096}")
        A(f"v_add_u32 v{8+k}, s56, v4")
        for mt in range(4):
            A(f"ds_read_b128 {v(PR+16*(k-1)+4*mt,4)}, v{8+k} offset:{mt*1024}", tag=('p', k))
    A.wait_vm('ep')
    BB = 176
    for mt in range(4):
        for k in range(2):
            A(f"v_lshlrev_b32 v{BB+4*mt+2*k}, 16, v{240+2*mt+k}")
            A(f"v_and_b32 v{BB+4*mt+2*k+1}, 0xffff0000, v{240+2*mt+k}")
    for r in range(0, 16, 2):
        A(f"v_pk_add_f32 {v(HB+r,2)}, {v(HB+r,2)}, {v(BB+r,2)}")
    for k in range(1, 4):
        A.wait_lg(('p', k))
        for r in range(0, 16, 2):
            A(f"v_pk_add_f32 {v(HB+r,2)}, {v(HB+r,2)}, {v(PR+16*(k-1)+r,2)}")
    T = 128
    A(f"v_mov_b32 v192, {f2u(-LOG2E)}")
    A(f"v_mov_b32 v194, 1.0")
    for r in range(0, 16, 2):
        A(f"v_pk_mul_f32 {v(T+r,2)}, {v(HB+r,2)}, {v(192,2)} op_sel_hi:[1,0]")
    for r in range(16): A(f"v_exp_f32 v{T+r}, v{T+r}")
    for r in range(0, 16, 2):
        A(f"v_pk_add_f32 {v(T+r,2)}, {v(T+r,2)}, {v(194,2)} op_sel_hi:[1,0]")
    for r in range(16): A(f"v_rcp_f32 v{T+r}, v{T+r}")
    for r in range(0, 16, 2):
        A(f"v_pk_mul_f32 {v(HB+r,2)}, {v(HB+r,2)}, {v(T+r,2)}")
    wait_flags(A, 7, 32, 4, 8)
    stamp(A)
    if DEBUG: A("s_waitcnt lgkmcnt(0)")
    A("v_bfe_u32 v8, v1, 2, 2")
    A("v_lshl_add_u32 v9, v3, 2, v8")
    A("v_bfe_u32 v10, v9, 1, 2")
    A("v_xor_b32 v10, s3, v10")
    A("v_lshlrev_b32 v9, 7, v9")
    A("v_lshl_add_u32 v9, v10, 5, v9")
    A("v_and_b32 v10, 3, v1")
    A("v_lshl_add_u32 v9, v10, 3, v9")
    A(f"v_add_u32 v9, {LB_STAGE}, v9")
    SS = 144
    for mt in range(4):
        A(f"ds_read_b64_tr_b16 {v(SS+2*mt,2)}, v9 offset:{mt*2048}", tag='s')
    A.wait_lg('s')
    for mt in range(4):
        for k in range(2):
            A(f"v_lshlrev_b32 v{T+4*mt+2*k}, 16, v{SS+2*mt+k}")
            A(f"v_and_b32 v{T+4*mt+2*k+1}, 0xffff0000, v{SS+2*mt+k}")
    for r in range(0, 16, 2):
        A(f"v_pk_mul_f32 {v(HB+r,2)}, {v(HB+r,2)}, {v(T+r,2)}")
    O = 160
    for r in range(0, 16, 2):
        A(f"v_cvt_pk_bf16_f32 v{O+r//2}, v{HB+r}, v{HB+r+1}")
    for pr in range(2):
        A(f"v_permlane16_swap_b32 v{O+4*pr}, v{O+4*pr+2}")
        A(f"v_permlane16_swap_b32 v{O+4*pr+1}, v{O+4*pr+3}")
    for k in range(8):
        A(f"v_lshlrev_b32 v{T+2*k}, 16, v{O+k}")
        A(f"v_and_b32 v{T+2*k+1}, 0xffff0000, v{O+k}")
        A(f"v_lshlrev_b32 v{HB+2*k}, 16, v{20+k}")
        A(f"v_and_b32 v{HB+2*k+1}, 0xffff0000, v{20+k}")
    for k in range(8):
        A(f"v_pk_add_f32 {v(T+2*k,2)}, {v(T+2*k,2)}, {v(HB+2*k,2)}")
    for k in range(8):
        A(f"v_cvt_pk_bf16_f32 v{O+k}, v{T+2*k}, v{T+2*k+1}")
    A(f"buffer_store_dwordx4 {v(O,4)}, v16, s[52:55], 0 offen")
    A(f"buffer_store_dwordx4 {v(O+4,4)}, v16, s[52:55], 0 offen offset:64")
    stamp(A)
    if DEBUG: A.wait_vm0()
    dump_stamps(A, 24, 1)
    A("s_endpgm")

def kb_conv(A):
    A("KB_conv:")
    A.reset_counters(); A.nst = 3
    A("s_setprio 1")
    A("s_sub_u32 s48, s3, 4")
    A("s_lshr_b32 s49, s48, 1")
    A("s_and_b32 s50, s48, 1")
    A("s_lshl_b32 s51, s28, 1")
    A("s_add_u32 s51, s51, s49")
    A("s_lshl_b32 s52, s28, 2")
    A("s_load_dword s53, s[6:7], s52")
    srd(A, 32, 24, 512*KG_ROW, WS_KG)
    srd(A, 36, 24, 2097152, WS_XNB)
    A(f"s_mul_i32 s54, s49, {CV_STRIDE}")
    A(f"s_add_u32 s54, s54, {LB_CONV}")
    A("v_lshlrev_b32 v4, 4, v1")
    A(f"s_mul_i32 s55, s51, {KG_ROW}")
    A("s_add_u32 s55, s55, 64")
    A("s_lshl_b32 s56, s50, 1")
    A("s_sub_u32 s55, s55, s56")
    A("s_mul_i32 s56, s50, 4160")
    A("s_add_u32 s56, s56, s54")
    A("s_add_u32 m0, s56, 32")
    for q in range(4):
        A(f"buffer_load_dwordx4 v4, s[32:35], s55 offen offset:{1024*q} lds", tag='c')
    A("v_sub_u32 v5, 63, v1")
    A("v_lshlrev_b32 v5, 13, v5")
    A("s_and_b32 s56, s51, 7")
    A("s_lshl_b32 s56, s56, 10")
    A("s_lshr_b32 s57, s51, 3")
    A("s_lshl_b32 s57, s57, 4")
    A("s_add_u32 s56, s56, s57")
    A("v_add_u32 v5, s56, v5")
    for k in range(2):
        A(f"s_lshl_b32 s56, s50, 1")
        A(f"s_add_u32 s56, s56, {k}")
        A(f"s_lshl_b32 s57, s56, 10")
        A(f"s_add_u32 s57, s57, s54")
        A(f"s_add_u32 m0, s57, {2*4160}")
        A(f"s_sub_u32 s56, 3, s56")
        A(f"s_lshl_b32 s56, s56, 19")
        A(f"buffer_load_dwordx4 v5, s[36:39], s56 offen lds", tag='c')
    A("v_mov_b32 v8, 0\nv_mov_b32 v9, 0\nv_mov_b32 v10, 0\nv_mov_b32 v11, 0")
    A("v_min_u32 v6, 31, v1")
    A("v_lshlrev_b32 v6, 4, v6")
    A("s_mul_i32 s56, s50, 4160")
    A("v_add_u32 v7, s56, v6")
    A(f"v_add_u32 v6, {2*4160 + 4096 - 32}, v6")
    A("v_cmp_gt_u32 vcc, 2, v1")
    A("v_cndmask_b32 v6, v6, v7, vcc")
    A("v_add_u32 v6, s54, v6")
    A("ds_write_b128 v6, v[8:11]")
    A("v_lshrrev_b32 v6, 1, v2")
    A("v_lshlrev_b32 v6, 2, v6")
    A("v_lshl_add_u32 v6, v3, 4, v6")
    A("v_and_b32 v7, 1, v2")
    A("v_sub_u32 v7, 1, v7")
    A("v_mul_u32_u24 v7, 4160, v7")
    A("v_add_u32 v6, v6, v7")
    A("s_lshl_b32 s56, s50, 8")
    A("s_add_u32 s56, s56, s54")
    A("s_add_u32 s57, s56, 4")
    A("v_add_u32 v12, s57, v6")
    for qq in range(1, 4): A(f"v_add_u32 v{12+qq}, {1024*qq}, v12")
    A("v_lshlrev_b32 v6, 4, v3")
    A("v_lshlrev_b32 v7, 5, v2")
    A("v_sub_u32 v6, v6, v7")
    A(f"s_add_u32 s57, s56, {2*4160 + 480}")
    A("v_add_u32 v16, s57, v6")
    A("v_mov_b32 v17, 1")
    A("s_lshl_b32 s56, s48, 2")
    A(f"s_add_u32 s56, s56, {LB_FLAG}")
    A("v_mov_b32 v18, s56")
    A("v_xor_b32 v19, 4, v18")
    A("s_waitcnt vmcnt(0) lgkmcnt(0)")
    A.reset_counters()
    A("ds_write_b32 v18, v17")
    wait_flags(A, 19, 0, 1, 20)
    stamp(A)
    if DEBUG: A("s_waitcnt lgkmcnt(0)")
    ACC, FR = 24, 64
    def reads(pl):
        b = FR + 64 * (pl % 2)
        fs = []
        for k in range(8):
            o = 128*(k & 1) + 16*pl
            fs.append(lambda k=k, o=o: A(f"ds_read2_b32 {v(b+4*k,2)}, v{12+k//2} offset0:{o} offset1:{o+1}", tag=('f', pl)))
            fs.append(lambda k=k, o=o: A(f"ds_read2_b32 {v(b+4*k+2,2)}, v{12+k//2} offset0:{o+2} offset1:{o+3}", tag=('f', pl)))
            fs.append(lambda k=k: A(f"ds_read_b128 {v(b+32+4*k,4)}, v16 offset:{3584 - 512*k + 64*pl}", tag=('f', pl)))
        return fs
    for f in reads(0): f()
    for pl in range(4):
        A.wait_lg0()
        fs = reads(pl + 1) if pl < 3 else []
        b = FR + 64 * (pl % 2)
        first = set()
        for q in range(8):
            for w in range(8 - q):
                ib = q + w
                c = '0' if (pl == 0 and ib not in first) else v(ACC+4*ib, 4)
                first.add(ib)
                A(f"v_mfma_f32_16x16x32_bf16 {v(ACC+4*ib,4)}, {v(b+4*q,4)}, {v(b+32+4*w,4)}, {c}")
                if fs: fs.pop(0)()
    stamp(A)
    if DEBUG: A("s_waitcnt lgkmcnt(0)")
    A("s_lshl_b32 s56, s48, 12")
    A(f"s_add_u32 s56, s56, {LB_XCH}")
    A("v_add_u32 v6, s56, v4")
    A("v_xor_b32 v7, v6, v6")
    A("s_xor_b32 s57, s48, 1")
    A("s_lshl_b32 s57, s57, 12")
    A(f"s_add_u32 s57, s57, {LB_XCH}")
    A("v_add_u32 v7, s57, v4")
    F = 64
    A("s_cmp_eq_u32 s50, 0")
    A("s_cbranch_scc1 KB_x0")
    for ph, lab in ((1, None), (0, 'KB_x0')):
        if lab: A(f"{lab}:")
        send, keep = (4, 0) if ph == 0 else (0, 4)
        for a in range(4):
            A(f"ds_write_b128 v6, {v(ACC+4*(send+a),4)} offset:{1024*a}")
        for r in range(16):
            A(f"v_mov_b32 v{F+r}, v{ACC+4*keep+r}")
        if not lab: A("s_branch KB_x1")
    A("KB_x1:")
    A("s_waitcnt lgkmcnt(0)")
    A("ds_write_b32 v18, v17 offset:16")
    A("v_lshlrev_b32 v8, 5, v2")
    A("v_lshl_add_u32 v8, v3, 3, v8")
    A("s_lshl_b32 s56, s50, 11")
    A(f"s_add_u32 s57, s54, {2*4160 + 4088 - 1536}")
    A("s_sub_u32 s57, s57, s56")
    A("v_sub_u32 v8, s57, v8")
    XN = 96
    for a in range(4):
        A(f"ds_read_b64 {v(XN+2*a,2)}, v8 offset:{1536 - 512*a}")
    A("s_lshl_b32 s56, s49, 4")
    A("s_lshr_b32 s53, s53, s56")
    A("s_lshl_b32 s53, s53, 16")
    wait_flags(A, 19, 16, 1, 20)
    R = 80
    for a in range(4):
        A(f"ds_read_b128 {v(R+4*a,4)}, v7 offset:{1024*a}", tag='r')
    T = 104
    for a in range(4):
        A(f"v_and_b32 v{T+4*a}, 0xffff0000, v{XN+2*a+1}")
        A(f"v_lshlrev_b32 v{T+4*a+1}, 16, v{XN+2*a+1}")
        A(f"v_and_b32 v{T+4*a+2}, 0xffff0000, v{XN+2*a}")
        A(f"v_lshlrev_b32 v{T+4*a+3}, 16, v{XN+2*a}")
    for r in range(16): A(f"v_mul_f32 v{T+r}, s53, v{T+r}")
    P1 = 120
    for k in range(8): A(f"v_cvt_pk_bf16_f32 v{P1+k}, v{T+2*k}, v{T+2*k+1}")
    for k in range(8):
        A(f"v_lshlrev_b32 v{T+2*k}, 16, v{P1+k}")
        A(f"v_and_b32 v{T+2*k+1}, 0xffff0000, v{P1+k}")
    A.wait_lg('r')
    for r in range(0, 16, 2):
        A(f"v_pk_add_f32 {v(F+r,2)}, {v(F+r,2)}, {v(R+r,2)}")
    for k in range(8): A(f"v_cvt_pk_bf16_f32 v{P1+k}, v{F+2*k}, v{F+2*k+1}")
    for k in range(8):
        A(f"v_lshlrev_b32 v{F+2*k}, 16, v{P1+k}")
        A(f"v_and_b32 v{F+2*k+1}, 0xffff0000, v{P1+k}")
    for r in range(0, 16, 2):
        A(f"v_pk_add_f32 {v(F+r,2)}, {v(F+r,2)}, {v(T+r,2)}")
    for k in range(8): A(f"v_cvt_pk_bf16_f32 v{P1+k}, v{F+2*k}, v{F+2*k+1}")
    for pr in range(2):
        A(f"v_permlane16_swap_b32 v{P1+4*pr}, v{P1+4*pr+2}")
        A(f"v_permlane16_swap_b32 v{P1+4*pr+1}, v{P1+4*pr+3}")
    srd(A, 40, 24, 2097152, WS_ST)
    srd(A, 44, 24, 4096, WS_FLAG)
    A("v_and_b32 v8, 1, v3")
    A("v_lshlrev_b32 v8, 9, v8")
    A("v_lshl_add_u32 v8, v2, 5, v8")
    A("v_lshrrev_b32 v9, 1, v3")
    A("v_lshl_add_u32 v8, v9, 4, v8")
    A("s_lshl_b32 s56, s51, 12")
    A("s_lshl_b32 s57, s50, 11")
    A("s_add_u32 s56, s56, s57")
    for pr in range(2):
        A(f"buffer_store_dwordx4 {v(P1+4*pr,4)}, v8, s[40:43], s56 offen offset:{1024*pr} sc1")
    A("s_lshl_b32 s56, s28, 4")
    A("s_lshl_b32 s57, s48, 2")
    A("s_add_u32 s56, s56, s57")
    A("v_mov_b32 v9, s56")
    A("s_waitcnt vmcnt(0)")
    A("buffer_store_dword v17, v9, s[44:47], 0 offen sc1")
    stamp(A)
    A("v_and_b32 v9, 31, v1")
    A("v_lshlrev_b32 v9, 2, v9")
    A("s_lshl_b32 s56, s30, 9")
    A("s_lshl_b32 s57, s48, 7")
    A("s_add_u32 s56, s56, s57")
    A("s_mov_b32 s58, 0")
    A("KB_poll:")
    A("buffer_load_dword v10, v9, s[44:47], s56 offen sc1")
    A("s_waitcnt vmcnt(0)")
    A("v_cmp_ne_u32 vcc, 1, v10")
    A("s_cbranch_vccz KB_polled")
    A("s_sleep 2")
    A("s_add_u32 s58, s58, 1")
    A("s_cmp_lt_u32 s58, 0x40000")
    A("s_cbranch_scc1 KB_poll")
    A("KB_polled:")
    stamp(A)
    A("v_lshrrev_b32 v8, 3, v1")
    A("v_and_b32 v9, 7, v1")
    A("v_lshlrev_b32 v10, 12, v8")
    A("v_lshl_add_u32 v10, v9, 4, v10")
    A("s_lshl_b32 s56, s30, 6")
    A("s_lshl_b32 s57, s48, 4")
    A("s_add_u32 s56, s56, s57")
    A("s_lshl_b32 s56, s56, 12")
    A("s_lshl_b32 s57, s29, 7")
    A("s_add_u32 s56, s56, s57")
    A("buffer_load_dwordx4 v[64:67], v10, s[40:43], s56 offen sc1")
    A("s_add_u32 s56, s56, 32768")
    A("buffer_load_dwordx4 v[68:71], v10, s[40:43], s56 offen sc1")
    A("v_bfe_u32 v11, v8, 1, 2")
    A("v_lshlrev_b32 v11, 1, v11")
    A("v_xor_b32 v11, v11, v9")
    A("v_lshlrev_b32 v11, 4, v11")
    A("v_lshl_add_u32 v11, v8, 7, v11")
    A("s_lshl_b32 s57, s48, 11")
    A(f"s_add_u32 s57, s57, {LB_STAGE}")
    A("v_add_u32 v11, s57, v11")
    A("s_waitcnt vmcnt(1)")
    A("ds_write_b128 v11, v[64:67]")
    A("s_waitcnt vmcnt(0)")
    A("ds_write_b128 v11, v[68:71] offset:1024")
    A("s_waitcnt lgkmcnt(0)")
    A("ds_write_b32 v18, v17 offset:32")
    dump_stamps(A, 24, 1)
    A("s_endpgm")

def kernel_b():
    A = Asm()
    A.uid = 1000
    A(".globl kb_kernel\n.p2align 8\n.type kb_kernel,@function")
    A("kb_kernel:")
    kb_prologue(A)
    kb_gemm(A)
    kb_conv(A)
    A("KB_end:")
    A("s_endpgm")
    return A.text()

def kds():
    return kd('kb_kernel')
```

```python
import sys, os
sys.path.insert(0, os.path.dirname(__file__))
from asmlib import Asm

NAME = 'recurrent_scan__ssm_conv_s4__mixer_channel_mlp__prompt'
WS_XNB = 0
WS_KG = 0x200000
KG_ROW = 4160
WS_H = 0x800000
WS_ST = 0x1000000
WS_FLAG = 0x1400000
SRD3 = '0x00020000'
OOB = 0x40000000

def v(a, n=1): return f'v{a}' if n == 1 else f'v[{a}:{a+n-1}]'
def s(a, n=1): return f's{a}' if n == 1 else f's[{a}:{a+n-1}]'

def srd(A, d, base, size, off=0):
    if off:
        A(f's_add_u32 s{d}, s{base}, {off}')
        A(f's_addc_u32 s{d+1}, s{base+1}, 0')
    else:
        A(f's_mov_b32 s{d}, s{base}')
        A(f's_mov_b32 s{d+1}, s{base+1}')
    A(f's_mov_b32 s{d+2}, {size}')
    A(f's_mov_b32 s{d+3}, {SRD3}')

def bf16r(A, d, x, t):
    A(f'v_cvt_pk_bf16_f32 v{t}, v{x}, v{x}')
    A(f'v_lshlrev_b32 v{d}, 16, v{t}')

def f2u(x):
    import struct
    return '0x%08x' % struct.unpack('<I', struct.pack('<f', x))[0]

LOG2E = 1.4426950408889634
DEBUG = os.environ.get('KDEBUG', '0') == '1'
WS_DBG = 0x1800000
OPT = dict(kv.split('=') for kv in os.environ.get('KOPT', '').split(',') if kv)
class Stamps:
    n = 0
def stamp(A, real=False):
    if not DEBUG: return
    i = A.nst = getattr(A, 'nst', 0)
    assert i < 12
    A(f"{'s_memrealtime' if real else 's_memtime'} s[{70+2*i}:{71+2*i}]")
    A.nst = i + 1
def dump_stamps(A, wsreg, kidx):
    if not DEBUG: return
    stamp(A); stamp(A, True)
    A("s_waitcnt lgkmcnt(0)")
    srd(A, 96, wsreg, 0x100000, WS_DBG + kidx * 0x40000)
    A("s_lshl_b32 s94, s2, 3")
    A("s_add_u32 s94, s94, s3")
    A("s_lshl_b32 s94, s94, 6")
    A("v_mov_b32 v250, s94")
    for i in range(A.nst):
        A(f"v_mov_b32 v251, s{70+2*i}")
        A(f"buffer_store_dword v251, v250, s[96:99], 0 offen offset:{4*i}")
LA_W1 = 0
LA_KT = [131072, 131072 + 15520]
LA_FLAG = 162112
LA_CSF = LA_FLAG + 128
LA_CS = LA_FLAG + 144
LA_SIZE = LA_CS + 448

def ka_prologue(A):
    A("s_cmp_ge_u32 s2, 256")
    A("s_cbranch_scc1 KA_end")
    stamp(A, True); stamp(A)
    A("s_load_dwordx16 s[4:19], s[0:1], 0")
    A("s_load_dwordx4 s[20:23], s[0:1], 80")
    A("s_load_dwordx2 s[24:25], s[0:1], 128")
    A("v_lshrrev_b32 v2, 6, v0")
    A("v_and_b32 v1, 63, v0")
    A("v_mov_b32 v3, 0")
    A("v_readfirstlane_b32 s3, v2")
    A(f"v_lshlrev_b32 v4, 2, v1")
    A(f"v_min_u32 v4, 140, v4")
    A(f"ds_write_b32 v4, v3 offset:{LA_FLAG - 131072}", tag='z') if False else None
    A(f"v_add_u32 v4, {LA_FLAG}, v4")
    A(f"ds_write_b32 v4, v3")
    A("s_and_b32 s26, s2, 7")
    A("s_lshr_b32 s27, s2, 3")
    A("s_lshl_b32 s28, s26, 5")
    A("s_add_u32 s28, s28, s27")
    A("s_waitcnt lgkmcnt(0)")
    A("s_barrier")
    stamp(A)
    A.reset_counters()
    A("s_cmp_lt_u32 s3, 4")
    A("s_cbranch_scc1 KA_gemm")
    A("s_cmp_eq_u32 s3, 7")
    A("s_cbranch_scc1 KA_loader")
    if OPT.get('nohelp'): A("s_endpgm")
    A("s_cmp_eq_u32 s3, 4")
    A("s_cbranch_scc1 KA_ln")
    A("s_cmp_lt_u32 s3, 7")
    A("s_cbranch_scc1 KA_kgen")
    A("s_branch KA_loader")

def ka_ln(A):
    A("KA_ln:")
    A.reset_counters(); A.nst = 3
    srd(A, 32, 4, 2097152)
    srd(A, 36, 24, 2097152, WS_XNB)
    A("s_lshl_b32 s29, s28, 13")
    A("v_lshlrev_b32 v2, 4, v1")
    A("v_add_u32 v3, 4096, v2")
    X = 8
    for t in range(8):
        A(f"buffer_load_dwordx4 {v(X+4*t,4)}, v{2 + t//4}, s[32:35], s29 offen offset:{(t%4)*1024}", tag=('x', t))
    A("v_mov_b32 v4, 0x3f803f80")
    S, Q = 40, 48
    for t in range(8):
        A.wait_vm(('x', t))
        for k in range(4):
            if k == 0:
                A(f"v_dot2_f32_bf16 v{S+t}, v{X+4*t}, v4, 0")
                A(f"v_dot2_f32_bf16 v{Q+t}, v{X+4*t}, v{X+4*t}, 0")
            else:
                A(f"v_dot2_f32_bf16 v{S+t}, v{X+4*t+k}, v4, v{S+t}")
                A(f"v_dot2_f32_bf16 v{Q+t}, v{X+4*t+k}, v{X+4*t+k}, v{Q+t}")
    stamp(A)
    for B in (S, Q):
        for t in range(4):
            A(f"v_permlane32_swap_b32 v{B+t}, v{B+t+4}")
    for B in (S, Q):
        for t in range(4):
            A(f"v_add_f32 v{B+t}, v{B+t}, v{B+t+4}")
    for B in (S, Q):
        for t in range(2):
            A(f"v_permlane16_swap_b32 v{B+t}, v{B+t+2}")
    for B in (S, Q):
        for t in range(2):
            A(f"v_add_f32 v{B+t}, v{B+t}, v{B+t+2}")
    for sh in (8, 4, 2, 1):
        for r in (S, S+1, Q, Q+1):
            A(f"v_add_f32_dpp v{r}, v{r}, v{r} row_ror:{sh} row_mask:0xf bank_mask:0xf")
    for t in range(2):
        m, q, tmp = S+t, Q+t, 56+t
        A(f"v_mul_f32 v{m}, {f2u(1/512)}, v{m}")
        A(f"v_mul_f32 v{q}, {f2u(1/512)}, v{q}")
        A(f"v_fma_f32 v{q}, -v{m}, v{m}, v{q}")
        A(f"v_max_f32 v{q}, 0, v{q}")
        bf16r(A, m, m, tmp)
        bf16r(A, q, q, tmp)
        A(f"v_add_f32 v{q}, {f2u(1e-5)}, v{q}")
        bf16r(A, q, q, tmp)
        A(f"v_sqrt_f32 v{q}, v{q}")
        bf16r(A, q, q, tmp)
        A(f"v_rcp_f32 v{q}, v{q}")
    for t in range(2):
        for rho in range(4):
            A(f"v_readlane_b32 s{40 + t + 2*rho}, v{S+t}, {16*rho}")
            A(f"v_readlane_b32 s{48 + t + 2*rho}, v{Q+t}, {16*rho}")
    F, O = 64, 96
    for i in range(4):
        for h, t in enumerate((7 - 2*i, 6 - 2*i)):
            for k in range(4):
                lo, hi, x = F + 8*h + 2*k, F + 8*h + 2*k + 1, X + 4*t + k
                A(f"v_lshlrev_b32 v{lo}, 16, v{x}")
                A(f"v_and_b32 v{hi}, 0xffff0000, v{x}")
                A(f"v_subrev_f32 v{lo}, s{40+t}, v{lo}")
                A(f"v_subrev_f32 v{hi}, s{40+t}, v{hi}")
                A(f"v_cvt_pk_bf16_f32 v{x}, v{lo}, v{hi}")
                A(f"v_lshlrev_b32 v{lo}, 16, v{x}")
                A(f"v_and_b32 v{hi}, 0xffff0000, v{x}")
                A(f"v_mul_f32 v{lo}, s{48+t}, v{lo}")
                A(f"v_mul_f32 v{hi}, s{48+t}, v{hi}")
        for dl in range(8):
            A(f"v_cvt_pk_bf16_f32 v{O+4*dl+i}, v{F+dl}, v{F+8+dl}")
    for dl in range(8):
        A(f"buffer_store_dwordx4 {v(O+4*dl,4)}, v{2 + dl//4}, s[36:39], s29 offen offset:{1024*(dl%4)}")
    stamp(A)
    if DEBUG: A.wait_vm0()
    dump_stamps(A, 24, 0)
    A("s_endpgm")

XROWS = [(0,0),(0,1),(0,2),(0,3),(1,0),(1,1),(1,2),(1,3),(2,0),(2,2),(4,0),(6,0),(3,0),(3,2),(5,0),(7,0),
         (8,0),(10,0),(12,0),(14,0),(9,0),(11,0),(13,0),(15,0),(16,0)]
KT_STRIDE = 272

def ka_kgen(A):
    A("KA_kgen:")
    A.reset_counters(); A.nst = 3
    A("s_sub_u32 s29, s3, 5")
    A("s_lshl_b32 s30, s28, 1")
    A("s_add_u32 s30, s30, s29")
    A("s_lshl_b32 s31, s28, 2")
    A("s_load_dword s60, s[18:19], s31")
    A("s_lshl_b32 s31, s30, 8")
    A("v_lshlrev_b32 v2, 2, v1")
    for i in range(6):
        srd(A, 32 + 4*i, 6 + 2*i, 131072)
        A(f"buffer_load_dword v{8+i}, v2, s[{32+4*i}:{35+4*i}], s31 offen", tag='p')
    srd(A, 56, 24, 512*KG_ROW, WS_KG)
    A(f"s_mul_i32 s61, s29, {LA_KT[1]-LA_KT[0]}")
    A(f"s_add_u32 s61, s61, {LA_KT[0]}")
    A("v_add_u32 v3, s61, v2")
    A("v_and_b32 v4, 31, v1")
    A(f"v_mul_u32_u24 v4, {KT_STRIDE}, v4")
    A("v_lshrrev_b32 v5, 5, v1")
    A("v_lshl_add_u32 v4, v5, 4, v4")
    A("v_add_u32 v4, s61, v4")
    A("s_waitcnt lgkmcnt(0)")
    A("s_lshl_b32 s62, s29, 4")
    A("s_lshr_b32 s60, s60, s62")
    A("s_lshl_b32 s60, s60, 16")
    A(f"v_mov_b32 v6, {f2u(LOG2E)}")
    A("v_mul_f32 v6, s60, v6")
    A("v_exp_f32 v6, v6")
    bf16r(A, 6, 6, 7)
    A.wait_vm0()
    D = 128
    for ps in range(2):
        stamp(A)
        if DEBUG: A("s_waitcnt lgkmcnt(0)")
        for i in range(6):
            if ps == 0: A(f"v_lshlrev_b32 v{16+i}, 16, v{8+i}")
            else: A(f"v_and_b32 v{16+i}, 0xffff0000, v{8+i}")
        for i in range(4):
            A(f"v_mul_f32 v{16+i}, v6, v{16+i}")
        A(f"v_mul_f32 v16, {f2u(LOG2E)}, v16")
        A(f"v_mul_f32 v17, 0.15915494, v17")
        for base, o in ((22, 1.0), (25, 4.0), (28, 128.0)):
            if o == 1.0:
                A(f"v_exp_f32 v31, v16")
                A(f"v_fract_f32 v32, v17")
            else:
                A(f"v_mul_f32 v31, {f2u(o)}, v16")
                A(f"v_mul_f32 v32, {f2u(o)}, v17")
                A(f"v_exp_f32 v31, v31")
                A(f"v_fract_f32 v32, v32")
            A(f"v_cos_f32 v{base}, v32")
            A(f"v_sin_f32 v{base+1}, v32")
            A(f"v_mul_f32 v{base}, v31, v{base}")
            A(f"v_mul_f32 v{base+1}, v31, v{base+1}")
            A(f"v_sub_f32 v{base+2}, 0, v{base+1}")
        def cmul(d, a, b):
            A(f"v_mul_f32 v{d}, v{a}, v{b}")
            A(f"v_mul_f32 v{d+1}, v{a}, v{b+1}")
            A(f"v_fmac_f32 v{d}, v{a+1}, v{b+2}")
            A(f"v_fmac_f32 v{d+1}, v{a+1}, v{b}")
        cmul(33, 22, 22); A("v_sub_f32 v35, 0, v34")
        cmul(36, 33, 22); A("v_sub_f32 v38, 0, v37")
        ZE = {1: 22, 2: 33, 3: 36}
        A("v_mul_f32 v40, v20, v18")
        A("v_mul_f32 v41, v20, v19")
        A("v_fma_f32 v40, -v21, v19, v40")
        A("v_fmac_f32 v41, v21, v18")
        pk = [46, 47, 48, 49]; pki = 0
        def put(row, re, im, neg):
            nonlocal pki
            p = pk[pki % 4]; pki += 1
            A(f"v_cvt_pk_bf16_f32 v{p}, v{re}, {'-' if neg else ''}v{im}")
            A(f"ds_write_b32 v3, v{p} offset:{row*KT_STRIDE}", tag='w')
        cur = 40
        for a in range(17):
            for row, (ra, e) in enumerate(XROWS):
                if ra != a: continue
                if e == 0: put(row, cur, cur+1, True)
                else:
                    cmul(44, cur, ZE[e]); put(row, 44, 45, True)
            if a < 16:
                nxt = 42 if cur == 40 else 40
                cmul(nxt, cur, 28); cur = nxt
        A("v_mov_b32 v50, 0x00003f80")
        A(f"ds_write_b32 v3, v50 offset:{25*KT_STRIDE}", tag='w')
        put(26, 25, 26, False)
        cur = 25
        for b in range(2, 32):
            nxt = 42 if cur != 42 else 40
            cmul(nxt, cur, 25); cur = nxt
            put(25 + b, cur, cur+1, False)
        FA, FB = 64, 96
        for st in range(8):
            A(f"ds_read_b128 {v(FA+4*st,4)}, v4 offset:{st*32}", tag=('f', st))
            A(f"ds_read_b128 {v(FB+4*st,4)}, v4 offset:{25*KT_STRIDE + st*32}", tag=('f', st))
            if st >= 4: A.wait_lg(('f', st-4))
            if st >= 4:
                q = st - 4
                A(f"v_mfma_f32_32x32x16_bf16 {v(D,16)}, {v(FA+4*q,4)}, {v(FB+4*q,4)}, {'0' if (ps==0 and q==0) else v(D,16)}")
        for q in range(4, 8):
            A.wait_lg(('f', q))
            A(f"v_mfma_f32_32x32x16_bf16 {v(D,16)}, {v(FA+4*q,4)}, {v(FB+4*q,4)}, {v(D,16)}")
    A("v_and_b32 v7, 31, v1")
    A("v_lshlrev_b32 v7, 3, v7")
    A("v_lshl_add_u32 v7, v5, 8, v7")
    A("v_add_u32 v7, s61, v7")
    T = 16
    def dup(dst, r):
        A(f"v_cvt_pk_bf16_f32 v{dst}, v{r}, v{r}")
    A("s_mov_b32 s64, 0x55555555\ns_mov_b32 s65, 0x55555555")
    A("s_mov_b32 s66, 0x11111111\ns_mov_b32 s67, 0x11111111")
    for r in range(8, 13):
        dup(T + 2*(r-8), D + r); A(f"v_mov_b32 v{T+2*(r-8)+1}, v{T+2*(r-8)}")
    for r in (6, 7): dup(T + 10 + (r-6), D + r)
    for r in (4, 5): dup(T + 12 + (r-4), D + r)
    A(f"v_cvt_pk_bf16_f32 v{T+14}, v{D}, v{D+1}")
    A(f"v_cvt_pk_bf16_f32 v{T+15}, v{D+2}, v{D+3}")
    A("s_mov_b64 exec, 1")
    A(f"ds_write_b64 v7, {v(T+8,2)} offset:{2*(2048-4)}")
    A("s_mov_b64 exec, s[64:65]")
    for r in range(8, 12):
        o = 1024 + 256*(r-8)
        A(f"ds_write_b64 v7, {v(T+2*(r-8),2)} offset:{2*(o-4)}")
        A(f"ds_write_b64 v7, {v(T+2*(r-8),2)} offset:{2*o}")
    A("s_mov_b64 exec, s[66:67]")
    for r in range(8, 12):
        o = 1024 + 256*(r-8)
        A(f"ds_write_b16 v7, v{T+2*(r-8)} offset:{2*(o+4)}")
    A("s_mov_b64 exec, -1")
    for r in (6, 7):
        o = 512 + 256*(r-6)
        A(f"ds_write_b32 v7, v{T+10+(r-6)} offset:{2*(o-2)}")
        A(f"ds_write_b32 v7, v{T+10+(r-6)} offset:{2*o}")
    A("s_mov_b64 exec, s[64:65]")
    for r in (6, 7):
        o = 512 + 256*(r-6)
        A(f"ds_write_b16 v7, v{T+10+(r-6)} offset:{2*(o+2)}")
    A("s_mov_b64 exec, -1")
    A(f"ds_write_b16 v7, v{T+12} offset:{2*(256-1)}")
    A(f"ds_write_b32 v7, v{T+12} offset:{2*256}")
    A(f"ds_write_b16 v7, v{T+13} offset:{2*(256+2)}")
    A(f"ds_write_b64 v7, {v(T+14,2)}")
    A("v_lshlrev_b32 v2, 4, v1")
    A("v_add_u32 v3, s61, v2")
    for i in range(4):
        A(f"ds_read_b128 {v(64+4*i,4)}, v3 offset:{1024*i}", tag=('k', i))
    A(f"s_mul_i32 s31, s30, {KG_ROW}")
    A("v_mov_b32 v80, 0\nv_mov_b32 v81, 0\nv_mov_b32 v82, 0\nv_mov_b32 v83, 0")
    A("v_mov_b32 v84, 48")
    A("buffer_store_dwordx4 v[80:83], v84, s[56:59], s31 offen")
    for i in range(4):
        A.wait_lg(('k', i))
        A(f"buffer_store_dwordx4 {v(64+4*i,4)}, v2, s[56:59], s31 offen offset:{64 + 1024*i}")
    stamp(A)
    if DEBUG: A.wait_vm0()
    dump_stamps(A, 24, 0)
    A("s_endpgm")

def ka_map(A):
    mapping = OPT.get('map', '8x4')
    if mapping == '16x2':
        A("s_and_b32 s48, s27, 1")
        A("s_lshl_b32 s49, s26, 1")
        A("s_add_u32 s49, s49, s48")
        A("s_lshr_b32 s50, s27, 1")
        A("s_lshl_b32 s51, s48, 2")
        A("s_add_u32 s51, s51, s50")
    else:
        A("s_and_b32 s48, s27, 3")
        A("s_lshr_b32 s49, s26, 1")
        A("s_lshl_b32 s49, s49, 2")
        A("s_add_u32 s49, s49, s48")
        A("s_lshr_b32 s52, s27, 2")
        A("s_and_b32 s50, s26, 1")
        A("s_lshl_b32 s50, s50, 3")
        A("s_add_u32 s50, s50, s52")
        A("s_lshl_b32 s51, s48, 1")
        A("s_add_u32 s51, s51, s52")
    if OPT.get('order') == 'same': A("s_mov_b32 s51, 0")
    if OPT.get('order') == 'half': A("s_and_b32 s51, s51, 1")
    if OPT.get('order') == 'quarter': A("s_and_b32 s51, s51, 3")

LA_FULL = LA_FLAG
LA_DONE = LA_FLAG + 32

def ka_loader(A):
    A("KA_loader:")
    A.reset_counters(); A.nst = 3
    A("s_setprio 3")
    srd(A, 32, 4, 2097152)
    srd(A, 36, 20, 1835008)
    ka_map(A)
    A("v_and_b32 v2, 15, v1")
    A("v_lshrrev_b32 v3, 4, v1")
    A("s_mul_i32 s53, s50, 224")
    A("s_and_b32 s53, s53, 0xffffffc0")
    A("v_mul_u32_u24 v4, 3584, v3")
    A("v_add_u32 v4, s53, v4")
    A("v_lshlrev_b32 v5, 1, v3")
    A("v_xor_b32 v5, v5, v2")
    for q in range(4):
        A(f"v_xor_b32 v6, {8*((q>>1)&1)}, v5")
        A(f"v_lshl_add_u32 v{8+q}, v6, 4, v4")
        if q: A(f"v_add_u32 v{8+q}, {q*(4*3584-1024)}, v{8+q}")
    A("v_lshrrev_b32 v4, 3, v1")
    A("v_lshrrev_b32 v5, 4, v1")
    A("v_and_b32 v6, 7, v1")
    A("v_xor_b32 v5, v5, v6")
    A("s_lshl_b32 s52, s49, 7")
    A("v_add_u32 v4, s52, v4")
    A("v_lshlrev_b32 v4, 10, v4")
    for q in range(4):
        A(f"v_xor_b32 v6, {4*(q&1)}, v5")
        A(f"v_lshl_add_u32 v{12+q}, v6, 4, v4")
        if q: A(f"v_add_u32 v{12+q}, {q*(8192-1024)}, v{12+q}")
    A("v_mov_b32 v16, 1")
    A(f"v_mov_b32 v17, {LA_FLAG}")
    def issue(u):
        A(f"s_add_u32 s55, s51, {u}")
        A("s_and_b32 s55, s55, 7")
        A("s_lshl_b32 s56, s55, 7")
        A(f"s_mul_i32 s57, s55, {64*3584}")
        base = LA_W1 + (u % 4) * 32768
        for part in range(8):
            qq = part // 2
            if part % 2 == 0:
                A(f"s_mov_b32 m0, {base + qq*4096}")
                if qq: A(f"s_add_u32 s57, s57, {16*3584}")
                for q in range(4):
                    A(f"buffer_load_dwordx4 v{8+q}, s[36:39], s57 offen offset:{1024*q} lds", tag=('u', u))
            else:
                A(f"s_mov_b32 m0, {base + 16384 + qq*4096}")
                if qq: A(f"s_add_u32 s56, s56, 32768")
                for q in range(4):
                    A(f"buffer_load_dwordx4 v{12+q}, s[32:35], s56 offen offset:{1024*q} lds", tag=('u', u))
    def post(u):
        A.wait_vm(('u', u))
        A(f"ds_write_b32 v17, v16 offset:{4*u}")
    issue(0);
    for u in range(1, 8):
        if u >= 4:
            L1 = A.newlabel('fr')
            A(f"{L1}:")
            A(f"ds_read_b128 v[20:23], v17 offset:32")
            A("s_waitcnt lgkmcnt(0)")
            A("v_min_u32 v20, v20, v21")
            A("v_min3_u32 v20, v20, v22, v23")
            A(f"v_cmp_le_u32 vcc, {u-3}, v20")
            A(f"s_cbranch_vccz {L1}")
        issue(u)
        post(u-1)
        if u in (1, 4): stamp(A)
    post(7)
    stamp(A)
    srd(A, 32, 24, 4096, WS_FLAG)
    A("s_lshl_b32 s29, s28, 4")
    A("v_mov_b32 v4, s29")
    A("v_mov_b32 v8, 0\nv_mov_b32 v9, 0\nv_mov_b32 v10, 0\nv_mov_b32 v11, 0")
    A("buffer_store_dwordx4 v[8:11], v4, s[32:35], 0 offen")
    dump_stamps(A, 24, 0)
    A("s_endpgm")

def ka_gemm(A):
    A("KA_gemm:")
    A.reset_counters(); A.nst = 3
    A("s_setprio 2")
    ka_map(A)
    A("v_and_b32 v2, 15, v1")
    A("v_lshrrev_b32 v3, 4, v1")
    srd(A, 40, 22, 3584)
    srd(A, 44, 24, 7340032, WS_H)
    A("v_bfe_u32 v6, v1, 2, 2")
    A("v_and_b32 v9, 1, v3")
    A("v_lshl_or_b32 v9, v9, 2, v6")
    A("v_lshl_add_u32 v10, v3, 3, v6")
    A("v_lshlrev_b32 v10, 8, v10")
    A("v_and_b32 v11, 3, v1")
    A("v_lshl_add_u32 v10, v11, 3, v10")
    A("s_and_b32 s68, s50, 1")
    AB = 12
    for tau in range(7):
        A(f"s_lshl_b32 s59, s3, 1")
        A(f"s_add_u32 s59, s59, {tau}")
        A(f"s_sub_u32 s67, s59, 7")
        A(f"s_cmp_ge_u32 s59, 7")
        A(f"s_cselect_b32 s{60+tau}, s67, s59")
        A(f"s_add_u32 s59, s{60+tau}, s68")
        A(f"v_xor_b32 v11, s59, v9")
        A(f"v_lshl_add_u32 v{AB+tau}, v11, 5, v10")
    A("v_lshrrev_b32 v6, 1, v2")
    A("v_xor_b32 v6, v6, v3")
    A("v_lshlrev_b32 v6, 4, v6")
    A("v_lshl_add_u32 v6, v2, 7, v6")
    A("s_lshl_b32 s59, s3, 12")
    A("s_add_u32 s59, s59, 16384")
    A("v_add_u32 v4, s59, v6")
    A("v_xor_b32 v5, 64, v4")
    A("s_mul_i32 s53, s50, 224")
    A("v_lshlrev_b32 v6, 3, v3")
    B1 = 20
    for tau in range(7):
        A(f"s_lshl_b32 s59, s{60+tau}, 5")
        A(f"s_add_u32 s59, s59, s53")
        A(f"buffer_load_dwordx2 {v(B1+2*tau,2)}, v6, s[40:43], s59 offen", tag='b1')
    ONES = 36
    for i in range(4): A(f"v_mov_b32 v{ONES+i}, 0x3f803f80")
    A("v_mov_b32 v34, 1")
    A(f"s_lshl_b32 s59, s3, 2")
    A(f"s_add_u32 s59, s59, {LA_FLAG}")
    A("v_mov_b32 v35, s59")
    A(f"v_mov_b32 v2, {LA_FLAG}")
    FL = 40
    AF = 44
    ACC = 72
    XR = 128
    ACS, ARS, AQS = 192, 200, 208
    def check_issue(off):
        A(f"ds_read_b128 {v(FL,4)}, v2 offset:{off}", tag='fr')
    def check_eval(off):
        L1, L2 = A.newlabel('chk'), A.newlabel('chk')
        A(f"{L1}:")
        A.wait_lg0()
        A(f"v_add3_u32 v{FL}, v{FL}, v{FL+1}, v{FL+2}")
        A(f"v_add_u32 v{FL}, v{FL}, v{FL+3}")
        A(f"v_cmp_eq_u32 vcc, 4, v{FL}")
        A(f"s_cbranch_vccnz {L2}")
        A(f"ds_read_b128 {v(FL,4)}, v2 offset:{off}")
        A(f"s_branch {L1}")
        A(f"{L2}:")
        A.lg = []
    def full_issue(u):
        A(f"ds_read_b32 v{FL}, v2 offset:{4*u}", tag=('fu', u))
    def full_eval(u):
        L1, L2 = A.newlabel('fu'), A.newlabel('fu')
        A.wait_lg(('fu', u))
        A(f"v_cmp_eq_u32 vcc, 1, v{FL}")
        A(f"s_cbranch_vccnz {L2}")
        A(f"{L1}:")
        A(f"ds_read_b32 v{FL}, v2 offset:{4*u}")
        A.lg.pop()
        A("s_waitcnt lgkmcnt(0)")
        A(f"v_cmp_eq_u32 vcc, 1, v{FL}")
        A(f"s_cbranch_vccz {L1}")
        A(f"{L2}:")
    def trread(j, tau, hh):
        if OPT.get('noread') and j > 0: return
        off = ((j//2) % 2) * 32768 + (j % 2) * 8192 + hh * 1024
        A(f"ds_read_b64_tr_b16 {v(AF+4*tau+2*hh,2)}, v{AB+tau} offset:{off}", tag=('a', j, tau))
    def xread(j, nt):
        if OPT.get('noread') and j > 0: return
        off = ((j//2) % 2) * 32768 + nt * 2048
        A(f"ds_read_b128 {v(XR+8*(j%2)+4*nt,4)}, v{4 + j%2} offset:{off}", tag=('x', j))
    full_issue(0); full_eval(0)
    stamp(A)
    if DEBUG: A("s_waitcnt lgkmcnt(0)")
    xread(0, 0); xread(0, 1)
    for tau in range(7):
        for hh in range(2): trread(0, tau, hh)
    for j in range(16):
        if j in (4, 8, 12) and DEBUG:
            A.wait_lg0(); stamp(A); A("s_waitcnt lgkmcnt(0)")
        sl = XR + 8*(j % 2)
        c0 = (j == 0)
        def mf(acc, a, b):
            if OPT.get('nomfma') and not c0: return
            A(f"v_mfma_f32_16x16x32_bf16 {v(acc,4)}, {v(a,4)}, {v(b,4)}, {'0' if c0 else v(acc,4)}")
        A.wait_lg(('x', j))
        mf(ARS, ONES, sl)
        if j % 2 == 1 and j < 15: full_eval((j+1)//2)
        mf(AQS, sl, sl)
        flip = (j < 15 and (j + 1) % 4 == 0)
        if j < 15 and flip:
            A(f"v_xor_b32 v4, 0x10000, v4"); A(f"v_xor_b32 v5, 0x10000, v5")
        mf(ARS+4, ONES, sl+4)
        if j < 15: xread(j+1, 0); xread(j+1, 1)
        mf(AQS+4, sl+4, sl+4)
        for tau in range(7):
            if tau % 2 == 0: A.wait_lg(('a', j, tau), ('a', j, min(tau+1, 6)))
            mf(ACC + 8*tau, AF + 4*tau, sl)
            if j < 15 and flip: A(f"v_xor_b32 v{AB+tau}, 0x10000, v{AB+tau}")
            if tau == 6 and j % 2 == 1 and j < 8:
                A(f"v_mov_b32 v6, {j//2 + 1}")
                A(f"ds_write_b32 v35, v6 offset:32", tag='dn')
            if tau == 5 and j % 2 == 0 and j < 14: full_issue(j//2 + 1)
            mf(ACC + 8*tau + 4, AF + 4*tau, sl + 4)
            if tau < 2: mf(ACS + 4*tau, AF + 4*tau, ONES)
            if j < 15:
                trread(j+1, tau, 0); trread(j+1, tau, 1)
    T0 = 144
    stamp(A)
    if DEBUG: A("s_waitcnt lgkmcnt(0)")
    for tau in range(2):
        A(f"s_lshl_b32 s59, s{60+tau}, 6")
        A(f"s_add_u32 s59, s59, {LA_CS}")
        A(f"v_lshl_add_u32 v{T0+tau}, v3, 4, s59")
        A(f"ds_write_b128 v{T0+tau}, {v(ACS+4*tau,4)}", tag='cw')
    A.wait_lg0()
    A(f"ds_write_b32 v35, v34 offset:128", tag='fl')
    A("v_and_b32 v6, 15, v1")
    A("v_and_b32 v8, 3, v1")
    A("v_lshrrev_b32 v9, 2, v6")
    A("v_lshl_add_u32 v9, v9, 4, v6")
    A("v_lshlrev_b32 v9, 2, v9")
    MN, RE = 132, 136
    A("v_cmp_eq_u32 s[52:53], 1, v8")
    A("v_cmp_eq_u32 s[54:55], 2, v8")
    A("v_cmp_eq_u32 s[56:57], 3, v8")
    for k in range(3):
        for nt in range(2):
            q = AQS + 4*nt
            A(f"v_cndmask_b32 v{q}, v{q}, v{q+1+k}, s[{52+2*k}:{53+2*k}]")
    for nt in range(2):
        q = AQS + 4*nt
        A(f"ds_bpermute_b32 v{q+1}, v9, v{q}", tag=('bp', nt))
    BF = 164
    A.wait_vm('b1')
    for tau in range(7):
        for k in range(2):
            A(f"v_lshlrev_b32 v{BF+4*tau+2*k}, 16, v{B1+2*tau+k}")
            A(f"v_and_b32 v{BF+4*tau+2*k+1}, 0xffff0000, v{B1+2*tau+k}")
    A.wait_lg(('bp', 0), ('bp', 1))
    check_issue(128)
    seqs = []
    for nt in range(2):
        m, q = ARS + 4*nt, AQS + 4*nt + 1
        t1, t2, t3, t4 = m+1, m+2, m+3, q+1
        S = []
        def br(d, x): S.extend([f'v_cvt_pk_bf16_f32 v{t4}, v{x}, v{x}', f'v_lshlrev_b32 v{d}, 16, v{t4}'])
        S.append(f"v_mul_f32 v{m}, {f2u(1/512)}, v{m}")
        S.append(f"v_mul_f32 v{q}, {f2u(1/512)}, v{q}")
        S.append(f"v_fma_f32 v{q}, -v{m}, v{m}, v{q}")
        S.append(f"v_max_f32 v{q}, 0, v{q}")
        br(t1, q)
        S.append(f"v_add_f32 v{t1}, {f2u(1e-5)}, v{t1}")
        br(t1, t1)
        S.append(f"v_sqrt_f32 v{t1}, v{t1}")
        br(t1, t1)
        S.append(f"v_rcp_f32 v{t2}, v{t1}")
        br(t3, m)
        S.append(f"v_sub_f32 v{m}, v{m}, v{t3}")
        S.append(f"v_mul_f32 v{m}, v{m}, v{t2}")
        br(m, m)
        S.append(f"v_fmac_f32 v{t3}, v{m}, v{t1}")
        S.append(f"v_sub_f32 v{MN+2*nt}, 0, v{t3}")
        S.append(f"v_mul_f32 v{q}, v{q}, v{t2}")
        S.append(f"v_mul_f32 v{q}, v{q}, v{t2}")
        br(q, q)
        S.append(f"v_add_f32 v{q}, {f2u(1e-5)}, v{q}")
        br(q, q)
        S.append(f"v_sqrt_f32 v{q}, v{q}")
        br(q, q)
        S.append(f"v_rcp_f32 v{q}, v{q}")
        S.append(f"v_mul_f32 v{RE+2*nt}, v{q}, v{t2}")
        seqs.append(S)
    for x, y in zip(*seqs): A(x); A(y)
    check_eval(128)
    stamp(A)
    if DEBUG: A("s_waitcnt lgkmcnt(0)")
    CS = 44
    for tau in range(7):
        A(f"s_lshl_b32 s59, s{60+tau}, 6")
        A(f"s_add_u32 s59, s59, {LA_CS}")
        A(f"v_lshl_add_u32 v{T0+tau}, v3, 4, s59")
        A(f"ds_read_b128 {v(CS+4*tau,4)}, v{T0+tau}", tag=('cs', tau))
    C1, C2, C3 = 196, 198, 200
    k0 = -2.0 * LOG2E * 0.7978845608028654
    A(f"v_mov_b32 v{C1}, {f2u(k0*0.044715)}")
    A(f"v_mov_b32 v{C2}, {f2u(k0)}")
    A(f"v_mov_b32 v{C3}, 1.0")
    A("s_lshl_b32 s52, s49, 3")
    A("s_lshl_b32 s53, s3, 1")
    A("s_add_u32 s52, s52, s53")
    A("s_mul_i32 s52, s52, 57344")
    A("s_mul_i32 s53, s50, 3584")
    A("s_add_u32 s52, s52, s53")
    A("v_lshrrev_b32 v8, 1, v3")
    A("v_lshlrev_b32 v8, 8, v8")
    A("v_lshl_add_u32 v8, v6, 4, v8")
    A("v_add_u32 v8, s52, v8")
    A("v_and_b32 v10, 1, v3")
    A("v_cmp_eq_u32 vcc, 1, v10")
    SA = 10
    for pr in range(4):
        A(f"s_lshl_b32 s59, s{60+2*pr}, 9")
        if pr < 3: A(f"s_lshl_b32 s67, s{60+2*pr+1}, 9")
        else: A(f"s_add_u32 s67, s59, 57344")
        A(f"v_mov_b32 v14, s59")
        A(f"v_mov_b32 v15, s67")
        A(f"v_cndmask_b32 v14, v14, v15, vcc")
        A(f"v_add_u32 v{SA+pr}, v14, v8")
    A(f"s_mov_b32 s59, 57344")
    TM = 202
    OUT = 224
    oi = 0
    bc = "op_sel_hi:[1,0,1]"
    groups = [((0,0),(1,0)), ((2,0),(3,0)), ((4,0),(5,0)), ((6,0),(6,1)), ((0,1),(1,1)), ((2,1),(3,1)), ((4,1),(5,1))]
    for grp in groups:
        o = OUT + 4 * (oi % 4); oi += 1
        chains = []
        for ti, (tau, nt) in enumerate(grp):
            A.wait_lg(('cs', tau))
            for pr in range(2):
                a = ACC + 8*tau + 4*nt + 2*pr
                t = TM + 2*(2*ti + pr)
                chains.append([
                    f"v_pk_fma_f32 {v(a,2)}, {v(CS+4*tau+2*pr,2)}, {v(MN+2*nt,2)}, {v(a,2)} {bc}",
                    f"v_pk_fma_f32 {v(a,2)}, {v(a,2)}, {v(RE+2*nt,2)}, {v(BF+4*tau+2*pr,2)} {bc}",
                    f"v_pk_mul_f32 {v(t,2)}, {v(a,2)}, {v(a,2)}",
                    f"v_pk_fma_f32 {v(t,2)}, {v(t,2)}, {v(C1,2)}, {v(C2,2)} op_sel_hi:[1,0,0]",
                    f"v_pk_mul_f32 {v(t,2)}, {v(t,2)}, {v(a,2)}",
                    f"v_exp_f32 v{t}, v{t}",
                    f"v_exp_f32 v{t+1}, v{t+1}",
                    f"v_pk_add_f32 {v(t,2)}, {v(t,2)}, {v(C3,2)} op_sel_hi:[1,0]",
                    f"v_rcp_f32 v{t}, v{t}",
                    f"v_rcp_f32 v{t+1}, v{t+1}",
                    f"v_pk_mul_f32 {v(t,2)}, {v(t,2)}, {v(a,2)}",
                    f"v_cvt_pk_bf16_f32 v{o+2*ti+pr}, v{t}, v{t+1}"])
        for ins in zip(*chains):
            for x in ins: A(x)
        A(f"v_permlane16_swap_b32 v{o}, v{o+2}")
        A(f"v_permlane16_swap_b32 v{o+1}, v{o+3}")
        so = 's59' if (grp[0][1] == 1) else '0'
        A(f"buffer_store_dwordx4 {v(o,4)}, v{SA+grp[0][0]//2}, s[44:47], {so} offen")
    stamp(A)
    if DEBUG: A.wait_vm0()
    dump_stamps(A, 24, 0)
    A("s_endpgm")

def kernel_a():
    A = Asm()
    A(".globl ka_kernel\n.p2align 8\n.type ka_kernel,@function")
    A("ka_kernel:")
    ka_prologue(A)
    ka_loader(A)
    ka_gemm(A)
    ka_ln(A)
    ka_kgen(A)
    A("KA_end:")
    A("s_endpgm")
    return A.text()

def kd(name, vgpr=256, sgpr=102):
    return f""".p2align 6
.amdhsa_kernel {name}
  .amdhsa_next_free_vgpr {vgpr}
  .amdhsa_next_free_sgpr {sgpr}
  .amdhsa_accum_offset {vgpr}
  .amdhsa_group_segment_fixed_size 0
  .amdhsa_kernarg_size 136
  .amdhsa_user_sgpr_count 2
  .amdhsa_user_sgpr_kernarg_segment_ptr 1
  .amdhsa_system_sgpr_workgroup_id_x 1
.end_amdhsa_kernel
"""

if __name__ == '__main__':
    out = sys.argv[1] if len(sys.argv) > 1 else f'cdna_kernels/{NAME}.s'
    txt = f"; @launch kernel=ka_kernel grid=(256,1,1) block=(512,1,1) lds={LA_SIZE}\n"
    body = kernel_a()
    kds = kd('ka_kernel')
    try:
        import genb
        txt += genb.launch_lines()
        body += genb.kernel_b()
        kds += genb.kds()
    except ImportError:
        pass
    txt += '.amdgcn_target "amdgcn-amd-amdhsa--gfx950"\n.text\n' + body + '.section .rodata,"a"\n' + kds
    open(out, 'w').write(txt)
```

```python
from gen import *
import gen

NR = 6
LB_RING = 0
LB_CONV = 4 * NR * 4096
CV_STRIDE = 2 * 4160 + 4576
LB_XCH = LB_CONV + 2 * CV_STRIDE
LB_STAGE = LB_XCH + 16384
LB_FLAG = LB_STAGE + 8192
LB_SIZE = LB_FLAG + 128

def launch_lines():
    return f"; @launch kernel=kb_kernel grid=(256,1,1) block=(512,1,1) lds={LB_SIZE}\n"

def wait_flags(A, areg, off, n, treg):
    L1 = A.newlabel('wf')
    A(f"{L1}:")
    if n == 1:
        A(f"ds_read_b32 v{treg}, v{areg} offset:{off}")
        A("s_waitcnt lgkmcnt(0)")
    else:
        A(f"ds_read_b128 {v(treg,4)}, v{areg} offset:{off}")
        A("s_waitcnt lgkmcnt(0)")
        A(f"v_and_b32 v{treg}, v{treg}, v{treg+1}")
        A(f"v_and_b32 v{treg+2}, v{treg+2}, v{treg+3}")
        A(f"v_and_b32 v{treg}, v{treg}, v{treg+2}")
    A(f"v_cmp_eq_u32 vcc, 1, v{treg}")
    A(f"s_cbranch_vccz {L1}")
    A.lg = []

def kb_prologue(A):
    A("s_cmp_ge_u32 s2, 256")
    A("s_cbranch_scc1 KB_end")
    stamp(A, True); stamp(A)
    A("s_load_dwordx2 s[4:5], s[0:1], 0")
    A("s_load_dwordx2 s[6:7], s[0:1], 64")
    A("s_load_dwordx4 s[8:11], s[0:1], 96")
    A("s_load_dwordx2 s[12:13], s[0:1], 112")
    A("s_load_dwordx2 s[24:25], s[0:1], 128")
    A("v_lshrrev_b32 v2, 6, v0")
    A("v_and_b32 v1, 63, v0")
    A("v_mov_b32 v3, 0")
    A("v_readfirstlane_b32 s3, v2")
    A("v_and_b32 v4, 31, v1")
    A("v_lshlrev_b32 v4, 2, v4")
    A(f"v_add_u32 v4, {LB_FLAG}, v4")
    A("ds_write_b32 v4, v3")
    A("s_and_b32 s26, s2, 7")
    A("s_lshr_b32 s27, s2, 3")
    A("s_lshl_b32 s28, s26, 5")
    A("s_add_u32 s28, s28, s27")
    A("s_lshr_b32 s29, s26, 1")
    A("s_lshl_b32 s29, s29, 3")
    A("s_and_b32 s30, s27, 7")
    A("s_add_u32 s29, s29, s30")
    A("s_and_b32 s30, s26, 1")
    A("s_lshl_b32 s30, s30, 2")
    A("s_lshr_b32 s31, s27, 3")
    A("s_add_u32 s30, s30, s31")
    A("v_and_b32 v2, 15, v1")
    A("v_lshrrev_b32 v3, 4, v1")
    A("s_waitcnt lgkmcnt(0)")
    A("s_barrier")
    stamp(A)
    A.reset_counters()
    A("s_cmp_ge_u32 s3, 4")
    A("s_cbranch_scc1 KB_conv")

def kb_gemm(A):
    LA = int(OPT.get('LA', 4))
    A.reset_counters(); A.nst = 3
    srd(A, 32, 24, 7340032, WS_H)
    srd(A, 36, 8, 1835008)
    A("v_lshlrev_b32 v4, 4, v1")
    for nt in range(1, 4): A(f"v_add_u32 v{4+nt}, {57344*nt}, v4")
    A(f"s_mul_i32 s48, s29, {4*57344}")
    A("s_lshl_b32 s49, s3, 10")
    A("s_add_u32 s48, s48, s49")
    A("v_lshrrev_b32 v12, 3, v1")
    A("v_and_b32 v13, 7, v1")
    A("v_bfe_u32 v14, v1, 4, 1")
    A("v_lshlrev_b32 v14, 1, v14")
    A("v_xor_b32 v13, v13, v14")
    A("v_lshlrev_b32 v12, 10, v12")
    A("s_lshl_b32 s49, s30, 7")
    A("v_add_u32 v12, s49, v12")
    for q in range(4):
        A(f"v_xor_b32 v14, {4*(q&1)}, v13")
        A(f"v_lshl_add_u32 v{8+q}, v14, 4, v12")
        if q: A(f"v_add_u32 v{8+q}, {q*(8192-1024)}, v{8+q}")
    A("s_lshl_b32 s50, s3, 15")
    A(f"s_mul_i32 s51, s3, {NR*4096}")
    HB, NH = 112, LA + 2
    assert HB + 16 * NH <= 240
    def loads(j):
        hb = HB + 16 * (j % NH)
        def first():
            A(f"s_add_u32 m0, s51, {(j % NR)*4096}")
            A(f"buffer_load_dwordx4 v8, s[36:39], s50 offen lds", tag=('ld', j))
        fs = [first]
        for q in range(1, 4):
            fs.append(lambda q=q: A(f"buffer_load_dwordx4 v{8+q}, s[36:39], s50 offen offset:{1024*q} lds", tag=('ld', j)))
        for nt in range(4):
            fs.append(lambda nt=nt: A(f"buffer_load_dwordx4 {v(hb+4*nt,4)}, v{4+nt}, s[32:35], s48 offen", tag=('ld', j)))
        def last():
            A("s_add_u32 s48, s48, 4096")
            A("s_add_u32 s50, s50, 131072")
        fs.append(last)
        return fs
    for j in range(2):
        for f in loads(j): f()
    A("v_bfe_u32 v16, v1, 2, 2")
    A("v_lshrrev_b32 v17, 1, v16")
    A("v_and_b32 v18, 1, v3")
    A("v_lshl_or_b32 v17, v18, 1, v17")
    A("v_lshl_add_u32 v18, v3, 3, v16")
    A("v_lshlrev_b32 v18, 7, v18")
    A("v_and_b32 v19, 3, v1")
    A("v_lshl_add_u32 v18, v19, 3, v18")
    A("v_add_u32 v18, s51, v18")
    for mt in range(4):
        A(f"v_xor_b32 v19, {mt}, v17")
        A(f"v_lshl_add_u32 v{12+mt}, v19, 5, v18")
    for j in range(2, LA + 1):
        for f in loads(j): f()
    srd(A, 40, 4, 2097152)
    srd(A, 44, 10, 1024)
    srd(A, 52, 12, 2097152)
    A("s_lshl_b32 s49, s29, 6")
    A("s_lshl_b32 s56, s3, 4")
    A("s_add_u32 s49, s49, s56")
    A("v_add_u32 v16, s49, v2")
    A("v_lshlrev_b32 v16, 10, v16")
    A("v_and_b32 v17, 1, v3")
    A("v_lshl_add_u32 v16, v17, 5, v16")
    A("v_lshrrev_b32 v17, 1, v3")
    A("v_lshl_add_u32 v16, v17, 4, v16")
    A("s_lshl_b32 s49, s30, 7")
    A("v_add_u32 v16, s49, v16")
    A("v_lshlrev_b32 v17, 3, v3")
    AF, ACC = 28, 48
    def trread(j, mt):
        for hh in range(2):
            A(f"ds_read_b64_tr_b16 {v(AF+4*mt+2*hh,2)}, v{12+mt} offset:{(j % NR)*4096 + hh*512}", tag=('a', j, mt))
    A.wait_vm(('ld', 0))
    stamp(A)
    if DEBUG: A("s_waitcnt lgkmcnt(0)")
    for mt in range(4): trread(0, mt)
    NSTEP = 14
    for j in range(NSTEP):
        if j in (4, 9) and DEBUG:
            A.wait_lg0(); stamp(A); A("s_waitcnt lgkmcnt(0)")
        fs = loads(j + LA + 1) if j + LA + 1 < NSTEP else []
        if j == NSTEP - LA - 1:
            fs = [lambda: A("buffer_load_dwordx4 v[20:23], v16, s[40:43], 0 offen", tag='ep'),
                  lambda: A("buffer_load_dwordx4 v[24:27], v16, s[40:43], 0 offen offset:64", tag='ep')]
            for mt in range(4):
                fs.append(lambda mt=mt: A(f"buffer_load_dwordx2 {v(240+2*mt,2)}, v17, s[44:47], s49 offen offset:{32*mt}", tag='ep'))
        if j == int(OPT.get('GO', 9)):
            A("v_mov_b32 v18, 1")
            A("s_lshl_b32 s56, s3, 2")
            A(f"s_add_u32 s56, s56, {LB_FLAG + 64}")
            A("v_mov_b32 v19, s56")
            A("ds_write_b32 v19, v18", tag='go')
        if j + 1 < NSTEP: A.wait_vm(('ld', j + 1))
        hb = HB + 16 * (j % NH)
        for mt in range(4):
            A.wait_lg(('a', j, mt))
            for nt in range(4):
                acc = ACC + 16*nt + 4*mt
                A(f"v_mfma_f32_16x16x32_bf16 {v(acc,4)}, {v(AF+4*mt,4)}, {v(hb+4*nt,4)}, {'0' if j == 0 else v(acc,4)}")
                if fs and nt < 3: fs.pop(0)()
            if j + 1 < NSTEP: trread(j + 1, mt)
        while fs: fs.pop(0)()
    stamp(A)
    if DEBUG: A("s_waitcnt lgkmcnt(0)")
    A("v_lshlrev_b32 v4, 4, v1")
    A("v_add_u32 v5, s51, v4")
    for nt in range(4):
        L = A.newlabel('sk')
        A(f"s_cmp_eq_u32 s3, {nt}")
        A(f"s_cbranch_scc1 {L}")
        for mt in range(4):
            A(f"ds_write_b128 v5, {v(ACC+16*nt+4*mt,4)} offset:{(4*nt+mt)*1024}")
        A(f"s_branch {L}_e")
        A(f"{L}:")
        for r in range(16):
            A(f"v_mov_b32 v{HB+r}, v{ACC+16*nt+r}")
        A(f"{L}_e:")
    A("s_waitcnt lgkmcnt(0)")
    A("v_mov_b32 v6, 1")
    A("s_lshl_b32 s56, s3, 2")
    A(f"s_add_u32 s56, s56, {LB_FLAG}")
    A("v_mov_b32 v7, s56")
    A("ds_write_b32 v7, v6 offset:48")
    A(f"v_mov_b32 v7, {LB_FLAG}")
    wait_flags(A, 7, 48, 4, 8)
    stamp(A)
    if DEBUG: A("s_waitcnt lgkmcnt(0)")
    A("s_lshl_b32 s56, s3, 12")
    A("v_add_u32 v4, s56, v4")
    PR = 128
    for k in range(1, 4):
        A(f"s_add_u32 s56, s3, {k}")
        A("s_and_b32 s56, s56, 3")
        A(f"s_mul_i32 s56, s56, {NR*4096}")
        A(f"v_add_u32 v{8+k}, s56, v4")
        for mt in range(4):
            A(f"ds_read_b128 {v(PR+16*(k-1)+4*mt,4)}, v{8+k} offset:{mt*1024}", tag=('p', k))
    A.wait_vm('ep')
    BB = 176
    for mt in range(4):
        for k in range(2):
            A(f"v_lshlrev_b32 v{BB+4*mt+2*k}, 16, v{240+2*mt+k}")
            A(f"v_and_b32 v{BB+4*mt+2*k+1}, 0xffff0000, v{240+2*mt+k}")
    for r in range(0, 16, 2):
        A(f"v_pk_add_f32 {v(HB+r,2)}, {v(HB+r,2)}, {v(BB+r,2)}")
    for k in range(1, 4):
        A.wait_lg(('p', k))
        for r in range(0, 16, 2):
            A(f"v_pk_add_f32 {v(HB+r,2)}, {v(HB+r,2)}, {v(PR+16*(k-1)+r,2)}")
    T = 128
    A(f"v_mov_b32 v192, {f2u(-LOG2E)}")
    A(f"v_mov_b32 v194, 1.0")
    for r in range(0, 16, 2):
        A(f"v_pk_mul_f32 {v(T+r,2)}, {v(HB+r,2)}, {v(192,2)} op_sel_hi:[1,0]")
    for r in range(16): A(f"v_exp_f32 v{T+r}, v{T+r}")
    for r in range(0, 16, 2):
        A(f"v_pk_add_f32 {v(T+r,2)}, {v(T+r,2)}, {v(194,2)} op_sel_hi:[1,0]")
    for r in range(16): A(f"v_rcp_f32 v{T+r}, v{T+r}")
    for r in range(0, 16, 2):
        A(f"v_pk_mul_f32 {v(HB+r,2)}, {v(HB+r,2)}, {v(T+r,2)}")
    if not (OPT.get('noconv') or OPT.get('nopoll')): wait_flags(A, 7, 32, 4, 8)
    stamp(A)
    if DEBUG: A("s_waitcnt lgkmcnt(0)")
    A("v_bfe_u32 v8, v1, 2, 2")
    A("v_lshl_add_u32 v9, v3, 2, v8")
    A("v_bfe_u32 v10, v9, 1, 2")
    A("v_xor_b32 v10, s3, v10")
    A("v_lshlrev_b32 v9, 7, v9")
    A("v_lshl_add_u32 v9, v10, 5, v9")
    A("v_and_b32 v10, 3, v1")
    A("v_lshl_add_u32 v9, v10, 3, v9")
    A(f"v_add_u32 v9, {LB_STAGE}, v9")
    SS = 144
    for mt in range(4):
        A(f"ds_read_b64_tr_b16 {v(SS+2*mt,2)}, v9 offset:{mt*2048}", tag='s')
    A.wait_lg('s')
    for mt in range(4):
        for k in range(2):
            A(f"v_lshlrev_b32 v{T+4*mt+2*k}, 16, v{SS+2*mt+k}")
            A(f"v_and_b32 v{T+4*mt+2*k+1}, 0xffff0000, v{SS+2*mt+k}")
    for r in range(0, 16, 2):
        A(f"v_pk_mul_f32 {v(HB+r,2)}, {v(HB+r,2)}, {v(T+r,2)}")
    O = 160
    for r in range(0, 16, 2):
        A(f"v_cvt_pk_bf16_f32 v{O+r//2}, v{HB+r}, v{HB+r+1}")
    for pr in range(2):
        A(f"v_permlane16_swap_b32 v{O+4*pr}, v{O+4*pr+2}")
        A(f"v_permlane16_swap_b32 v{O+4*pr+1}, v{O+4*pr+3}")
    for k in range(8):
        A(f"v_lshlrev_b32 v{T+2*k}, 16, v{O+k}")
        A(f"v_and_b32 v{T+2*k+1}, 0xffff0000, v{O+k}")
        A(f"v_lshlrev_b32 v{HB+2*k}, 16, v{20+k}")
        A(f"v_and_b32 v{HB+2*k+1}, 0xffff0000, v{20+k}")
    for k in range(8):
        A(f"v_pk_add_f32 {v(T+2*k,2)}, {v(T+2*k,2)}, {v(HB+2*k,2)}")
    for k in range(8):
        A(f"v_cvt_pk_bf16_f32 v{O+k}, v{T+2*k}, v{T+2*k+1}")
    A(f"buffer_store_dwordx4 {v(O,4)}, v16, s[52:55], 0 offen")
    A(f"buffer_store_dwordx4 {v(O+4,4)}, v16, s[52:55], 0 offen offset:64")
    stamp(A)
    if DEBUG: A.wait_vm0()
    dump_stamps(A, 24, 1)
    A("s_endpgm")

def kb_conv(A):
    A("KB_conv:")
    A.reset_counters(); A.nst = 3
    if OPT.get('noconv'): A("s_endpgm")
    A("s_setprio 1")
    A("s_sub_u32 s48, s3, 4")
    A("s_lshr_b32 s49, s48, 1")
    A("s_and_b32 s50, s48, 1")
    A("s_lshl_b32 s51, s28, 1")
    A("s_add_u32 s51, s51, s49")
    A("s_lshl_b32 s52, s28, 2")
    A("s_load_dword s53, s[6:7], s52")
    srd(A, 32, 24, 512*KG_ROW, WS_KG)
    srd(A, 36, 24, 2097152, WS_XNB)
    A(f"s_mul_i32 s54, s49, {CV_STRIDE}")
    A(f"s_add_u32 s54, s54, {LB_CONV}")
    A("v_lshlrev_b32 v4, 4, v1")
    A(f"s_mul_i32 s55, s51, {KG_ROW}")
    A("s_add_u32 s55, s55, 64")
    A("s_lshl_b32 s56, s50, 1")
    A("s_sub_u32 s55, s55, s56")
    A("s_mul_i32 s56, s50, 4160")
    A("s_add_u32 s56, s56, s54")
    A("s_add_u32 m0, s56, 32")
    for q in range(4):
        A(f"buffer_load_dwordx4 v4, s[32:35], s55 offen offset:{1024*q} lds", tag='c')
    A("v_sub_u32 v5, 63, v1")
    A("v_lshlrev_b32 v5, 13, v5")
    A("s_and_b32 s56, s51, 7")
    A("s_lshl_b32 s56, s56, 10")
    A("s_lshr_b32 s57, s51, 3")
    A("s_lshl_b32 s57, s57, 4")
    A("s_add_u32 s56, s56, s57")
    A("v_add_u32 v5, s56, v5")
    for k in range(2):
        A(f"s_lshl_b32 s56, s50, 1")
        A(f"s_add_u32 s56, s56, {k}")
        A(f"s_lshl_b32 s57, s56, 10")
        A(f"s_add_u32 s57, s57, s54")
        A(f"s_add_u32 m0, s57, {2*4160}")
        A(f"s_sub_u32 s56, 3, s56")
        A(f"s_lshl_b32 s56, s56, 19")
        A(f"buffer_load_dwordx4 v5, s[36:39], s56 offen lds", tag='c')
    A("v_mov_b32 v8, 0\nv_mov_b32 v9, 0\nv_mov_b32 v10, 0\nv_mov_b32 v11, 0")
    A("v_min_u32 v6, 31, v1")
    A("v_lshlrev_b32 v6, 4, v6")
    A("s_mul_i32 s56, s50, 4160")
    A("v_add_u32 v7, s56, v6")
    A(f"v_add_u32 v6, {2*4160 + 4096 - 32}, v6")
    A("v_cmp_gt_u32 vcc, 2, v1")
    A("v_cndmask_b32 v6, v6, v7, vcc")
    A("v_add_u32 v6, s54, v6")
    A("ds_write_b128 v6, v[8:11]")
    A("v_lshrrev_b32 v6, 1, v2")
    A("v_lshlrev_b32 v6, 2, v6")
    A("v_lshl_add_u32 v6, v3, 4, v6")
    A("v_and_b32 v7, 1, v2")
    A("v_sub_u32 v7, 1, v7")
    A("v_mul_u32_u24 v7, 4160, v7")
    A("v_add_u32 v6, v6, v7")
    A("s_lshl_b32 s56, s50, 8")
    A("s_add_u32 s56, s56, s54")
    A("s_add_u32 s57, s56, 4")
    A("v_add_u32 v12, s57, v6")
    for qq in range(1, 4): A(f"v_add_u32 v{12+qq}, {1024*qq}, v12")
    A("v_lshlrev_b32 v6, 4, v3")
    A("v_lshlrev_b32 v7, 5, v2")
    A("v_sub_u32 v6, v6, v7")
    A(f"s_add_u32 s57, s56, {2*4160 + 480}")
    A("v_add_u32 v16, s57, v6")
    A("v_mov_b32 v17, 1")
    A("s_lshl_b32 s56, s48, 2")
    A(f"s_add_u32 s56, s56, {LB_FLAG}")
    A("v_mov_b32 v18, s56")
    A("v_xor_b32 v19, 4, v18")
    A("s_waitcnt vmcnt(0) lgkmcnt(0)")
    A.reset_counters()
    A("ds_write_b32 v18, v17")
    wait_flags(A, 19, 0, 1, 20)
    stamp(A)
    if DEBUG: A("s_waitcnt lgkmcnt(0)")
    ACC, FR = 24, 64
    def reads(pl):
        b = FR + 64 * (pl % 2)
        fs = []
        for k in range(8):
            o = 128*(k & 1) + 16*pl
            fs.append(lambda k=k, o=o: A(f"ds_read2_b32 {v(b+4*k,2)}, v{12+k//2} offset0:{o} offset1:{o+1}", tag=('f', pl)))
            fs.append(lambda k=k, o=o: A(f"ds_read2_b32 {v(b+4*k+2,2)}, v{12+k//2} offset0:{o+2} offset1:{o+3}", tag=('f', pl)))
            fs.append(lambda k=k: A(f"ds_read_b128 {v(b+32+4*k,4)}, v16 offset:{3584 - 512*k + 64*pl}", tag=('f', pl)))
        return fs
    for f in reads(0): f()
    for pl in range(4):
        A.wait_lg0()
        fs = reads(pl + 1) if pl < 3 else []
        b = FR + 64 * (pl % 2)
        first = set()
        for q in range(8):
            for w in range(8 - q):
                ib = q + w
                c = '0' if (pl == 0 and ib not in first) else v(ACC+4*ib, 4)
                first.add(ib)
                A(f"v_mfma_f32_16x16x32_bf16 {v(ACC+4*ib,4)}, {v(b+4*q,4)}, {v(b+32+4*w,4)}, {c}")
                if fs: fs.pop(0)()
    stamp(A)
    if DEBUG: A("s_waitcnt lgkmcnt(0)")
    A("s_lshl_b32 s56, s48, 12")
    A(f"s_add_u32 s56, s56, {LB_XCH}")
    A("v_add_u32 v6, s56, v4")
    A("v_xor_b32 v7, v6, v6")
    A("s_xor_b32 s57, s48, 1")
    A("s_lshl_b32 s57, s57, 12")
    A(f"s_add_u32 s57, s57, {LB_XCH}")
    A("v_add_u32 v7, s57, v4")
    F = 64
    A("s_cmp_eq_u32 s50, 0")
    A("s_cbranch_scc1 KB_x0")
    for ph, lab in ((1, None), (0, 'KB_x0')):
        if lab: A(f"{lab}:")
        send, keep = (4, 0) if ph == 0 else (0, 4)
        for a in range(4):
            A(f"ds_write_b128 v6, {v(ACC+4*(send+a),4)} offset:{1024*a}")
        for r in range(16):
            A(f"v_mov_b32 v{F+r}, v{ACC+4*keep+r}")
        if not lab: A("s_branch KB_x1")
    A("KB_x1:")
    A("s_waitcnt lgkmcnt(0)")
    A("ds_write_b32 v18, v17 offset:16")
    A("v_lshlrev_b32 v8, 5, v2")
    A("v_lshl_add_u32 v8, v3, 3, v8")
    A("s_lshl_b32 s56, s50, 11")
    A(f"s_add_u32 s57, s54, {2*4160 + 4088 - 1536}")
    A("s_sub_u32 s57, s57, s56")
    A("v_sub_u32 v8, s57, v8")
    XN = 96
    for a in range(4):
        A(f"ds_read_b64 {v(XN+2*a,2)}, v8 offset:{1536 - 512*a}")
    A("s_lshl_b32 s56, s49, 4")
    A("s_lshr_b32 s53, s53, s56")
    A("s_lshl_b32 s53, s53, 16")
    wait_flags(A, 19, 16, 1, 20)
    R = 80
    for a in range(4):
        A(f"ds_read_b128 {v(R+4*a,4)}, v7 offset:{1024*a}", tag='r')
    T = 104
    for a in range(4):
        A(f"v_and_b32 v{T+4*a}, 0xffff0000, v{XN+2*a+1}")
        A(f"v_lshlrev_b32 v{T+4*a+1}, 16, v{XN+2*a+1}")
        A(f"v_and_b32 v{T+4*a+2}, 0xffff0000, v{XN+2*a}")
        A(f"v_lshlrev_b32 v{T+4*a+3}, 16, v{XN+2*a}")
    for r in range(16): A(f"v_mul_f32 v{T+r}, s53, v{T+r}")
    P1 = 120
    for k in range(8): A(f"v_cvt_pk_bf16_f32 v{P1+k}, v{T+2*k}, v{T+2*k+1}")
    for k in range(8):
        A(f"v_lshlrev_b32 v{T+2*k}, 16, v{P1+k}")
        A(f"v_and_b32 v{T+2*k+1}, 0xffff0000, v{P1+k}")
    A.wait_lg('r')
    for r in range(0, 16, 2):
        A(f"v_pk_add_f32 {v(F+r,2)}, {v(F+r,2)}, {v(R+r,2)}")
    for k in range(8): A(f"v_cvt_pk_bf16_f32 v{P1+k}, v{F+2*k}, v{F+2*k+1}")
    for k in range(8):
        A(f"v_lshlrev_b32 v{F+2*k}, 16, v{P1+k}")
        A(f"v_and_b32 v{F+2*k+1}, 0xffff0000, v{P1+k}")
    for r in range(0, 16, 2):
        A(f"v_pk_add_f32 {v(F+r,2)}, {v(F+r,2)}, {v(T+r,2)}")
    for k in range(8): A(f"v_cvt_pk_bf16_f32 v{P1+k}, v{F+2*k}, v{F+2*k+1}")
    for pr in range(2):
        A(f"v_permlane16_swap_b32 v{P1+4*pr}, v{P1+4*pr+2}")
        A(f"v_permlane16_swap_b32 v{P1+4*pr+1}, v{P1+4*pr+3}")
    srd(A, 40, 24, 2097152, WS_ST)
    A("v_and_b32 v8, 1, v3")
    A("v_lshlrev_b32 v8, 9, v8")
    A("v_lshl_add_u32 v8, v2, 5, v8")
    A("v_lshrrev_b32 v9, 1, v3")
    A("v_lshl_add_u32 v8, v9, 4, v8")
    A("s_lshl_b32 s56, s51, 12")
    A("s_lshl_b32 s57, s50, 11")
    A("s_add_u32 s56, s56, s57")
    for pr in range(2):
        A(f"buffer_store_dwordx4 {v(P1+4*pr,4)}, v8, s[40:43], s56 offen offset:{1024*pr} sc1")
    stamp(A)
    if OPT.get('nopoll'):
        dump_stamps(A, 24, 1); A("s_endpgm"); A.nst = 6
    A("v_lshrrev_b32 v8, 3, v1")
    A("v_and_b32 v9, 7, v1")
    A("v_lshlrev_b32 v10, 12, v8")
    A("v_lshl_add_u32 v10, v9, 4, v10")
    A("s_lshl_b32 s56, s30, 6")
    A("s_lshl_b32 s57, s48, 4")
    A("s_add_u32 s56, s56, s57")
    A("s_lshl_b32 s56, s56, 12")
    A("s_lshl_b32 s57, s29, 7")
    A("s_add_u32 s56, s56, s57")
    A("s_add_u32 s59, s56, 32768")
    A("v_bfe_u32 v11, v8, 1, 2")
    A("v_lshlrev_b32 v11, 1, v11")
    A("v_xor_b32 v11, v11, v9")
    A("v_lshlrev_b32 v11, 4, v11")
    A("v_lshl_add_u32 v11, v8, 7, v11")
    A("s_lshl_b32 s57, s48, 11")
    A(f"s_add_u32 s57, s57, {LB_STAGE}")
    A("v_add_u32 v11, s57, v11")
    A("KB_go:")
    A("s_sleep 4")
    A("ds_read_b32 v20, v18 offset:64")
    A("s_waitcnt lgkmcnt(0)")
    A("v_cmp_eq_u32 vcc, 1, v20")
    A("s_cbranch_vccz KB_go")
    A("s_mov_b32 s58, 0")
    A("KB_poll:")
    A("buffer_load_dwordx4 v[64:67], v10, s[40:43], s56 offen sc1")
    A("buffer_load_dwordx4 v[68:71], v10, s[40:43], s59 offen sc1")
    A("s_waitcnt vmcnt(0)")
    A("v_max3_u32 v12, v64, v65, v66")
    A("v_max3_u32 v13, v67, v68, v69")
    A("v_max3_u32 v12, v12, v70, v71")
    A("v_max_u32 v12, v12, v13")
    A("v_cmp_eq_u32 vcc, -1, v12")
    A("s_cbranch_vccz KB_polled")
    A(f"s_sleep {OPT.get('sleep', 8)}")
    A("s_add_u32 s58, s58, 1")
    A("s_cmp_lt_u32 s58, 0x8000")
    A("s_cbranch_scc1 KB_poll")
    A("KB_polled:")
    stamp(A)
    A("ds_write_b128 v11, v[64:67]")
    A("ds_write_b128 v11, v[68:71] offset:1024")
    A("s_waitcnt lgkmcnt(0)")
    A("ds_write_b32 v18, v17 offset:32")
    dump_stamps(A, 24, 1)
    A("s_endpgm")

def kernel_b():
    A = Asm()
    A.uid = 1000
    A(".globl kb_kernel\n.p2align 8\n.type kb_kernel,@function")
    A("kb_kernel:")
    kb_prologue(A)
    kb_gemm(A)
    kb_conv(A)
    A("KB_end:")
    A("s_endpgm")
    return A.text()

def kds():
    return kd('kb_kernel')
```

```python
import sys, os
sys.path.insert(0, os.path.dirname(__file__))
from asmlib import Asm

NAME = 'recurrent_scan__ssm_conv_s4__mixer_channel_mlp__prompt'
WS_XNB = 0
WS_KG = 0x200000
KG_ROW = 4160
WS_H = 0x800000
WS_ST = 0x1000000
WS_FLAG = 0x1400000
SRD3 = '0x00020000'
OOB = 0x40000000

def v(a, n=1): return f'v{a}' if n == 1 else f'v[{a}:{a+n-1}]'
def s(a, n=1): return f's{a}' if n == 1 else f's[{a}:{a+n-1}]'

def srd(A, d, base, size, off=0):
    if off:
        A(f's_add_u32 s{d}, s{base}, {off}')
        A(f's_addc_u32 s{d+1}, s{base+1}, 0')
    else:
        A(f's_mov_b32 s{d}, s{base}')
        A(f's_mov_b32 s{d+1}, s{base+1}')
    A(f's_mov_b32 s{d+2}, {size}')
    A(f's_mov_b32 s{d+3}, {SRD3}')

def bf16r(A, d, x, t):
    A(f'v_cvt_pk_bf16_f32 v{t}, v{x}, v{x}')
    A(f'v_lshlrev_b32 v{d}, 16, v{t}')

def f2u(x):
    import struct
    return '0x%08x' % struct.unpack('<I', struct.pack('<f', x))[0]

LOG2E = 1.4426950408889634
DEBUG = os.environ.get('KDEBUG', '0') == '1'
WS_DBG = 0x1800000
OPT = dict(kv.split('=') for kv in os.environ.get('KOPT', '').split(',') if kv)
class Stamps:
    n = 0
def stamp(A, real=False):
    if not DEBUG: return
    i = A.nst = getattr(A, 'nst', 0)
    assert i < 12
    A(f"{'s_memrealtime' if real else 's_memtime'} s[{70+2*i}:{71+2*i}]")
    A.nst = i + 1
def dump_stamps(A, wsreg, kidx):
    if not DEBUG: return
    stamp(A); stamp(A, True)
    A("s_waitcnt lgkmcnt(0)")
    srd(A, 96, wsreg, 0x100000, WS_DBG + kidx * 0x40000)
    A("s_lshl_b32 s94, s2, 3")
    A("s_add_u32 s94, s94, s3")
    A("s_lshl_b32 s94, s94, 6")
    A("v_mov_b32 v250, s94")
    for i in range(A.nst):
        A(f"v_mov_b32 v251, s{70+2*i}")
        A(f"buffer_store_dword v251, v250, s[96:99], 0 offen offset:{4*i}")
LA_W1 = 0
LA_KT = [131072, 131072 + 15520]
LA_FLAG = 162112
LA_CSF = LA_FLAG + 128
LA_CS = LA_FLAG + 144
LA_SIZE = LA_CS + 448

def ka_prologue(A):
    A("s_cmp_ge_u32 s2, 256")
    A("s_cbranch_scc1 KA_end")
    stamp(A, True); stamp(A)
    A("s_load_dwordx16 s[4:19], s[0:1], 0")
    A("s_load_dwordx4 s[20:23], s[0:1], 80")
    A("s_load_dwordx2 s[24:25], s[0:1], 128")
    A("s_load_dwordx2 s[58:59], s[0:1], 96")
    A("v_lshrrev_b32 v2, 6, v0")
    A("v_and_b32 v1, 63, v0")
    A("v_mov_b32 v3, 0")
    A("v_readfirstlane_b32 s3, v2")
    A(f"v_lshlrev_b32 v4, 2, v1")
    A(f"v_min_u32 v4, 140, v4")
    A(f"ds_write_b32 v4, v3 offset:{LA_FLAG - 131072}", tag='z') if False else None
    A(f"v_add_u32 v4, {LA_FLAG}, v4")
    A(f"ds_write_b32 v4, v3")
    A("s_and_b32 s26, s2, 7")
    A("s_lshr_b32 s27, s2, 3")
    A("s_lshl_b32 s28, s26, 5")
    A("s_add_u32 s28, s28, s27")
    A("s_waitcnt lgkmcnt(0)")
    A("s_barrier")
    stamp(A)
    A.reset_counters()
    A("s_cmp_lt_u32 s3, 4")
    A("s_cbranch_scc1 KA_gemm")
    A("s_cmp_eq_u32 s3, 7")
    A("s_cbranch_scc1 KA_loader")
    if OPT.get('nohelp'): A("s_endpgm")
    A("s_cmp_eq_u32 s3, 4")
    A("s_cbranch_scc1 KA_ln")
    A("s_cmp_lt_u32 s3, 7")
    A("s_cbranch_scc1 KA_kgen")
    A("s_branch KA_loader")

def ka_ln(A):
    A("KA_ln:")
    A.reset_counters(); A.nst = 3
    srd(A, 32, 4, 2097152)
    srd(A, 36, 24, 2097152, WS_XNB)
    A("s_lshl_b32 s29, s28, 13")
    A("v_lshlrev_b32 v2, 4, v1")
    A("v_add_u32 v3, 4096, v2")
    X = 8
    for t in range(8):
        A(f"buffer_load_dwordx4 {v(X+4*t,4)}, v{2 + t//4}, s[32:35], s29 offen offset:{(t%4)*1024}", tag=('x', t))
    A("v_mov_b32 v4, 0x3f803f80")
    S, Q = 40, 48
    for t in range(8):
        A.wait_vm(('x', t))
        for k in range(4):
            if k == 0:
                A(f"v_dot2_f32_bf16 v{S+t}, v{X+4*t}, v4, 0")
                A(f"v_dot2_f32_bf16 v{Q+t}, v{X+4*t}, v{X+4*t}, 0")
            else:
                A(f"v_dot2_f32_bf16 v{S+t}, v{X+4*t+k}, v4, v{S+t}")
                A(f"v_dot2_f32_bf16 v{Q+t}, v{X+4*t+k}, v{X+4*t+k}, v{Q+t}")
    stamp(A)
    for B in (S, Q):
        for t in range(4):
            A(f"v_permlane32_swap_b32 v{B+t}, v{B+t+4}")
    for B in (S, Q):
        for t in range(4):
            A(f"v_add_f32 v{B+t}, v{B+t}, v{B+t+4}")
    for B in (S, Q):
        for t in range(2):
            A(f"v_permlane16_swap_b32 v{B+t}, v{B+t+2}")
    for B in (S, Q):
        for t in range(2):
            A(f"v_add_f32 v{B+t}, v{B+t}, v{B+t+2}")
    for sh in (8, 4, 2, 1):
        for r in (S, S+1, Q, Q+1):
            A(f"v_add_f32_dpp v{r}, v{r}, v{r} row_ror:{sh} row_mask:0xf bank_mask:0xf")
    for t in range(2):
        m, q, tmp = S+t, Q+t, 56+t
        A(f"v_mul_f32 v{m}, {f2u(1/512)}, v{m}")
        A(f"v_mul_f32 v{q}, {f2u(1/512)}, v{q}")
        A(f"v_fma_f32 v{q}, -v{m}, v{m}, v{q}")
        A(f"v_max_f32 v{q}, 0, v{q}")
        bf16r(A, m, m, tmp)
        bf16r(A, q, q, tmp)
        A(f"v_add_f32 v{q}, {f2u(1e-5)}, v{q}")
        bf16r(A, q, q, tmp)
        A(f"v_sqrt_f32 v{q}, v{q}")
        bf16r(A, q, q, tmp)
        A(f"v_rcp_f32 v{q}, v{q}")
    for t in range(2):
        for rho in range(4):
            A(f"v_readlane_b32 s{40 + t + 2*rho}, v{S+t}, {16*rho}")
            A(f"v_readlane_b32 s{48 + t + 2*rho}, v{Q+t}, {16*rho}")
    F, O = 64, 96
    for i in range(4):
        for h, t in enumerate((7 - 2*i, 6 - 2*i)):
            for k in range(4):
                lo, hi, x = F + 8*h + 2*k, F + 8*h + 2*k + 1, X + 4*t + k
                A(f"v_lshlrev_b32 v{lo}, 16, v{x}")
                A(f"v_and_b32 v{hi}, 0xffff0000, v{x}")
                A(f"v_subrev_f32 v{lo}, s{40+t}, v{lo}")
                A(f"v_subrev_f32 v{hi}, s{40+t}, v{hi}")
                A(f"v_cvt_pk_bf16_f32 v{x}, v{lo}, v{hi}")
                A(f"v_lshlrev_b32 v{lo}, 16, v{x}")
                A(f"v_and_b32 v{hi}, 0xffff0000, v{x}")
                A(f"v_mul_f32 v{lo}, s{48+t}, v{lo}")
                A(f"v_mul_f32 v{hi}, s{48+t}, v{hi}")
        for dl in range(8):
            A(f"v_cvt_pk_bf16_f32 v{O+4*dl+i}, v{F+dl}, v{F+8+dl}")
    for dl in range(8):
        A(f"buffer_store_dwordx4 {v(O+4*dl,4)}, v{2 + dl//4}, s[36:39], s29 offen offset:{1024*(dl%4)}")
    stamp(A)
    if DEBUG: A.wait_vm0()
    dump_stamps(A, 24, 0)
    A("s_endpgm")

XROWS = [(0,0),(0,1),(0,2),(0,3),(1,0),(1,1),(1,2),(1,3),(2,0),(2,2),(4,0),(6,0),(3,0),(3,2),(5,0),(7,0),
         (8,0),(10,0),(12,0),(14,0),(9,0),(11,0),(13,0),(15,0),(16,0)]
KT_STRIDE = 272

def ka_kgen(A):
    A("KA_kgen:")
    A.reset_counters(); A.nst = 3
    A("s_sub_u32 s29, s3, 5")
    A("s_lshl_b32 s30, s28, 1")
    A("s_add_u32 s30, s30, s29")
    A("s_lshl_b32 s31, s28, 2")
    A("s_load_dword s60, s[18:19], s31")
    A("s_lshl_b32 s31, s30, 8")
    A("v_lshlrev_b32 v2, 2, v1")
    for i in range(6):
        srd(A, 32 + 4*i, 6 + 2*i, 131072)
        A(f"buffer_load_dword v{8+i}, v2, s[{32+4*i}:{35+4*i}], s31 offen", tag='p')
    srd(A, 56, 24, 512*KG_ROW, WS_KG)
    A(f"s_mul_i32 s61, s29, {LA_KT[1]-LA_KT[0]}")
    A(f"s_add_u32 s61, s61, {LA_KT[0]}")
    A("v_add_u32 v3, s61, v2")
    A("v_and_b32 v4, 31, v1")
    A(f"v_mul_u32_u24 v4, {KT_STRIDE}, v4")
    A("v_lshrrev_b32 v5, 5, v1")
    A("v_lshl_add_u32 v4, v5, 4, v4")
    A("v_add_u32 v4, s61, v4")
    A("s_waitcnt lgkmcnt(0)")
    A("s_lshl_b32 s62, s29, 4")
    A("s_lshr_b32 s60, s60, s62")
    A("s_lshl_b32 s60, s60, 16")
    A(f"v_mov_b32 v6, {f2u(LOG2E)}")
    A("v_mul_f32 v6, s60, v6")
    A("v_exp_f32 v6, v6")
    bf16r(A, 6, 6, 7)
    A.wait_vm0()
    D = 128
    for ps in range(2):
        stamp(A)
        if DEBUG: A("s_waitcnt lgkmcnt(0)")
        for i in range(6):
            if ps == 0: A(f"v_lshlrev_b32 v{16+i}, 16, v{8+i}")
            else: A(f"v_and_b32 v{16+i}, 0xffff0000, v{8+i}")
        for i in range(4):
            A(f"v_mul_f32 v{16+i}, v6, v{16+i}")
        A(f"v_mul_f32 v16, {f2u(LOG2E)}, v16")
        A(f"v_mul_f32 v17, 0.15915494, v17")
        for base, o in ((22, 1.0), (25, 4.0), (28, 128.0)):
            if o == 1.0:
                A(f"v_exp_f32 v31, v16")
                A(f"v_fract_f32 v32, v17")
            else:
                A(f"v_mul_f32 v31, {f2u(o)}, v16")
                A(f"v_mul_f32 v32, {f2u(o)}, v17")
                A(f"v_exp_f32 v31, v31")
                A(f"v_fract_f32 v32, v32")
            A(f"v_cos_f32 v{base}, v32")
            A(f"v_sin_f32 v{base+1}, v32")
            A(f"v_mul_f32 v{base}, v31, v{base}")
            A(f"v_mul_f32 v{base+1}, v31, v{base+1}")
            A(f"v_sub_f32 v{base+2}, 0, v{base+1}")
        def cmul(d, a, b):
            A(f"v_mul_f32 v{d}, v{a}, v{b}")
            A(f"v_mul_f32 v{d+1}, v{a}, v{b+1}")
            A(f"v_fmac_f32 v{d}, v{a+1}, v{b+2}")
            A(f"v_fmac_f32 v{d+1}, v{a+1}, v{b}")
        cmul(33, 22, 22); A("v_sub_f32 v35, 0, v34")
        cmul(36, 33, 22); A("v_sub_f32 v38, 0, v37")
        ZE = {1: 22, 2: 33, 3: 36}
        A("v_mul_f32 v40, v20, v18")
        A("v_mul_f32 v41, v20, v19")
        A("v_fma_f32 v40, -v21, v19, v40")
        A("v_fmac_f32 v41, v21, v18")
        pk = [46, 47, 48, 49]; pki = 0
        def put(row, re, im, neg):
            nonlocal pki
            p = pk[pki % 4]; pki += 1
            A(f"v_cvt_pk_bf16_f32 v{p}, v{re}, {'-' if neg else ''}v{im}")
            A(f"ds_write_b32 v3, v{p} offset:{row*KT_STRIDE}", tag='w')
        cur = 40
        for a in range(17):
            for row, (ra, e) in enumerate(XROWS):
                if ra != a: continue
                if e == 0: put(row, cur, cur+1, True)
                else:
                    cmul(44, cur, ZE[e]); put(row, 44, 45, True)
            if a < 16:
                nxt = 42 if cur == 40 else 40
                cmul(nxt, cur, 28); cur = nxt
        A("v_mov_b32 v50, 0x00003f80")
        A(f"ds_write_b32 v3, v50 offset:{25*KT_STRIDE}", tag='w')
        put(26, 25, 26, False)
        cur = 25
        for b in range(2, 32):
            nxt = 42 if cur != 42 else 40
            cmul(nxt, cur, 25); cur = nxt
            put(25 + b, cur, cur+1, False)
        FA, FB = 64, 96
        for st in range(8):
            A(f"ds_read_b128 {v(FA+4*st,4)}, v4 offset:{st*32}", tag=('f', st))
            A(f"ds_read_b128 {v(FB+4*st,4)}, v4 offset:{25*KT_STRIDE + st*32}", tag=('f', st))
            if st >= 4: A.wait_lg(('f', st-4))
            if st >= 4:
                q = st - 4
                A(f"v_mfma_f32_32x32x16_bf16 {v(D,16)}, {v(FA+4*q,4)}, {v(FB+4*q,4)}, {'0' if (ps==0 and q==0) else v(D,16)}")
        for q in range(4, 8):
            A.wait_lg(('f', q))
            A(f"v_mfma_f32_32x32x16_bf16 {v(D,16)}, {v(FA+4*q,4)}, {v(FB+4*q,4)}, {v(D,16)}")
    A("v_and_b32 v7, 31, v1")
    A("v_lshlrev_b32 v7, 3, v7")
    A("v_lshl_add_u32 v7, v5, 8, v7")
    A("v_add_u32 v7, s61, v7")
    T = 16
    def dup(dst, r):
        A(f"v_cvt_pk_bf16_f32 v{dst}, v{r}, v{r}")
    A("s_mov_b32 s64, 0x55555555\ns_mov_b32 s65, 0x55555555")
    A("s_mov_b32 s66, 0x11111111\ns_mov_b32 s67, 0x11111111")
    for r in range(8, 13):
        dup(T + 2*(r-8), D + r); A(f"v_mov_b32 v{T+2*(r-8)+1}, v{T+2*(r-8)}")
    for r in (6, 7): dup(T + 10 + (r-6), D + r)
    for r in (4, 5): dup(T + 12 + (r-4), D + r)
    A(f"v_cvt_pk_bf16_f32 v{T+14}, v{D}, v{D+1}")
    A(f"v_cvt_pk_bf16_f32 v{T+15}, v{D+2}, v{D+3}")
    A("s_mov_b64 exec, 1")
    A(f"ds_write_b64 v7, {v(T+8,2)} offset:{2*(2048-4)}")
    A("s_mov_b64 exec, s[64:65]")
    for r in range(8, 12):
        o = 1024 + 256*(r-8)
        A(f"ds_write_b64 v7, {v(T+2*(r-8),2)} offset:{2*(o-4)}")
        A(f"ds_write_b64 v7, {v(T+2*(r-8),2)} offset:{2*o}")
    A("s_mov_b64 exec, s[66:67]")
    for r in range(8, 12):
        o = 1024 + 256*(r-8)
        A(f"ds_write_b16 v7, v{T+2*(r-8)} offset:{2*(o+4)}")
    A("s_mov_b64 exec, -1")
    for r in (6, 7):
        o = 512 + 256*(r-6)
        A(f"ds_write_b32 v7, v{T+10+(r-6)} offset:{2*(o-2)}")
        A(f"ds_write_b32 v7, v{T+10+(r-6)} offset:{2*o}")
    A("s_mov_b64 exec, s[64:65]")
    for r in (6, 7):
        o = 512 + 256*(r-6)
        A(f"ds_write_b16 v7, v{T+10+(r-6)} offset:{2*(o+2)}")
    A("s_mov_b64 exec, -1")
    A(f"ds_write_b16 v7, v{T+12} offset:{2*(256-1)}")
    A(f"ds_write_b32 v7, v{T+12} offset:{2*256}")
    A(f"ds_write_b16 v7, v{T+13} offset:{2*(256+2)}")
    A(f"ds_write_b64 v7, {v(T+14,2)}")
    A("v_lshlrev_b32 v2, 4, v1")
    A("v_add_u32 v3, s61, v2")
    for i in range(4):
        A(f"ds_read_b128 {v(64+4*i,4)}, v3 offset:{1024*i}", tag=('k', i))
    A(f"s_mul_i32 s31, s30, {KG_ROW}")
    A("v_mov_b32 v80, 0\nv_mov_b32 v81, 0\nv_mov_b32 v82, 0\nv_mov_b32 v83, 0")
    A("v_mov_b32 v84, 48")
    A("buffer_store_dwordx4 v[80:83], v84, s[56:59], s31 offen")
    for i in range(4):
        A.wait_lg(('k', i))
        A(f"buffer_store_dwordx4 {v(64+4*i,4)}, v2, s[56:59], s31 offen offset:{64 + 1024*i}")
    stamp(A)
    if DEBUG: A.wait_vm0()
    dump_stamps(A, 24, 0)
    A("s_endpgm")

def ka_map(A):
    mapping = OPT.get('map', '8x4')
    if mapping == '16x2':
        A("s_and_b32 s48, s27, 1")
        A("s_lshl_b32 s49, s26, 1")
        A("s_add_u32 s49, s49, s48")
        A("s_lshr_b32 s50, s27, 1")
        A("s_lshl_b32 s51, s48, 2")
        A("s_add_u32 s51, s51, s50")
    else:
        A("s_and_b32 s48, s27, 3")
        A("s_lshr_b32 s49, s26, 1")
        A("s_lshl_b32 s49, s49, 2")
        A("s_add_u32 s49, s49, s48")
        A("s_lshr_b32 s52, s27, 2")
        A("s_and_b32 s50, s26, 1")
        A("s_lshl_b32 s50, s50, 3")
        A("s_add_u32 s50, s50, s52")
        A("s_lshl_b32 s51, s48, 1")
        A("s_add_u32 s51, s51, s52")
    if OPT.get('order', 'same') == 'same': A("s_mov_b32 s51, 0")
    if OPT.get('order') == 'half': A("s_and_b32 s51, s51, 1")
    if OPT.get('order') == 'quarter': A("s_and_b32 s51, s51, 3")

LA_FULL = LA_FLAG
LA_DONE = LA_FLAG + 32

def ka_loader(A):
    A("KA_loader:")
    A.reset_counters(); A.nst = 3
    A("s_setprio 3")
    srd(A, 32, 4, 2097152)
    srd(A, 36, 20, 1835008)
    ka_map(A)
    A("v_and_b32 v2, 15, v1")
    A("v_lshrrev_b32 v3, 4, v1")
    A("s_mul_i32 s53, s50, 224")
    A("s_and_b32 s53, s53, 0xffffffc0")
    A("v_mul_u32_u24 v4, 3584, v3")
    A("v_add_u32 v4, s53, v4")
    A("v_lshlrev_b32 v5, 1, v3")
    A("v_xor_b32 v5, v5, v2")
    for q in range(4):
        A(f"v_xor_b32 v6, {8*((q>>1)&1)}, v5")
        A(f"v_lshl_add_u32 v{8+q}, v6, 4, v4")
        if q: A(f"v_add_u32 v{8+q}, {q*(4*3584-1024)}, v{8+q}")
    A("v_lshrrev_b32 v4, 3, v1")
    A("v_lshrrev_b32 v5, 4, v1")
    A("v_and_b32 v6, 7, v1")
    A("v_xor_b32 v5, v5, v6")
    A("s_lshl_b32 s52, s49, 7")
    A("v_add_u32 v4, s52, v4")
    A("v_lshlrev_b32 v4, 10, v4")
    for q in range(4):
        A(f"v_xor_b32 v6, {4*(q&1)}, v5")
        A(f"v_lshl_add_u32 v{12+q}, v6, 4, v4")
        if q: A(f"v_add_u32 v{12+q}, {q*(8192-1024)}, v{12+q}")
    A("v_mov_b32 v16, 1")
    A(f"v_mov_b32 v17, {LA_FLAG}")
    def issue(u, parts):
        if 0 in parts:
            A(f"s_add_u32 s55, s51, {u}")
            A("s_and_b32 s55, s55, 7")
            A("s_lshl_b32 s56, s55, 7")
            A(f"s_mul_i32 s57, s55, {64*3584}")
        base = LA_W1 + (u % 4) * 32768
        for part in parts:
            qq = part // 2
            if part % 2 == 0:
                A(f"s_mov_b32 m0, {base + qq*4096}")
                if qq: A(f"s_add_u32 s57, s57, {16*3584}")
                for q in range(4):
                    A(f"buffer_load_dwordx4 v{8+q}, s[36:39], s57 offen offset:{1024*q} lds", tag=('u', u))
            else:
                A(f"s_mov_b32 m0, {base + 16384 + qq*4096}")
                if qq: A(f"s_add_u32 s56, s56, 32768")
                for q in range(4):
                    A(f"buffer_load_dwordx4 v{12+q}, s[32:35], s56 offen offset:{1024*q} lds", tag=('u', u))
    def post(u):
        A.wait_vm(('u', u))
        A(f"ds_write_b32 v17, v16 offset:{4*u}")
    PP = int(OPT.get('PP', 4))
    issue(0, range(8))
    for u in range(1, 8):
        if u >= 4:
            L1 = A.newlabel('fr')
            A(f"{L1}:")
            A(f"ds_read_b128 v[20:23], v17 offset:32")
            A("s_waitcnt lgkmcnt(0)")
            A("v_min_u32 v20, v20, v21")
            A("v_min3_u32 v20, v20, v22, v23")
            A(f"v_cmp_le_u32 vcc, {u-3}, v20")
            A(f"s_cbranch_vccz {L1}")
        issue(u, range(PP))
        post(u-1)
        issue(u, range(PP, 8))
        if u in (1, 4): stamp(A)
    post(7)
    stamp(A)
    if not OPT.get('nopf'):
        srd(A, 40, 58, 1835008)
        A("v_lshrrev_b32 v4, 5, v1")
        A("v_lshlrev_b32 v4, 10, v4")
        A("v_and_b32 v5, 31, v1")
        A("v_lshl_add_u32 v4, v5, 4, v4")
        A("s_mul_i32 s52, s27, 57344")
        A("s_and_b32 s53, s26, 1")
        A("s_lshl_b32 s53, s53, 9")
        A("s_add_u32 s52, s52, s53")
        for i in range(28):
            A(f"buffer_load_dwordx4 {v(24+4*(i%8),4)}, v4, s[40:43], s52 offen offset:{2048*(i%2)}")
            if i % 2: A("s_add_u32 s52, s52, 4096")
    srd(A, 32, 24, 2097152, WS_ST)
    A("s_lshl_b32 s29, s28, 13")
    A("v_lshlrev_b32 v4, 4, v1")
    A("v_mov_b32 v8, -1\nv_mov_b32 v9, -1\nv_mov_b32 v10, -1\nv_mov_b32 v11, -1")
    for i in range(8):
        A(f"buffer_store_dwordx4 v[8:11], v4, s[32:35], s29 offen offset:{1024*(i%4)}")
        if i == 3: A("s_add_u32 s29, s29, 4096")
    dump_stamps(A, 24, 0)
    A("s_endpgm")

def ka_gemm(A):
    A("KA_gemm:")
    A.reset_counters(); A.nst = 3
    A("s_setprio 2")
    ka_map(A)
    A("v_and_b32 v2, 15, v1")
    A("v_lshrrev_b32 v3, 4, v1")
    srd(A, 40, 22, 3584)
    srd(A, 44, 24, 7340032, WS_H)
    A("v_bfe_u32 v6, v1, 2, 2")
    A("v_and_b32 v9, 1, v3")
    A("v_lshl_or_b32 v9, v9, 2, v6")
    A("v_lshl_add_u32 v10, v3, 3, v6")
    A("v_lshlrev_b32 v10, 8, v10")
    A("v_and_b32 v11, 3, v1")
    A("v_lshl_add_u32 v10, v11, 3, v10")
    A("s_and_b32 s68, s50, 1")
    AB = 12
    for tau in range(7):
        A(f"s_lshl_b32 s59, s3, 1")
        A(f"s_add_u32 s59, s59, {tau}")
        A(f"s_sub_u32 s67, s59, 7")
        A(f"s_cmp_ge_u32 s59, 7")
        A(f"s_cselect_b32 s{60+tau}, s67, s59")
        A(f"s_add_u32 s59, s{60+tau}, s68")
        A(f"v_xor_b32 v11, s59, v9")
        A(f"v_lshl_add_u32 v{AB+tau}, v11, 5, v10")
    A("v_lshrrev_b32 v6, 1, v2")
    A("v_xor_b32 v6, v6, v3")
    A("v_lshlrev_b32 v6, 4, v6")
    A("v_lshl_add_u32 v6, v2, 7, v6")
    A("s_lshl_b32 s59, s3, 12")
    A("s_add_u32 s59, s59, 16384")
    A("v_add_u32 v4, s59, v6")
    A("v_xor_b32 v5, 64, v4")
    A("s_mul_i32 s53, s50, 224")
    A("v_lshlrev_b32 v6, 3, v3")
    B1 = 20
    for tau in range(7):
        A(f"s_lshl_b32 s59, s{60+tau}, 5")
        A(f"s_add_u32 s59, s59, s53")
        A(f"buffer_load_dwordx2 {v(B1+2*tau,2)}, v6, s[40:43], s59 offen", tag='b1')
    ONES = 36
    for i in range(4): A(f"v_mov_b32 v{ONES+i}, 0x3f803f80")
    A("v_mov_b32 v34, 1")
    A(f"s_lshl_b32 s59, s3, 2")
    A(f"s_add_u32 s59, s59, {LA_FLAG}")
    A("v_mov_b32 v35, s59")
    A(f"v_mov_b32 v2, {LA_FLAG}")
    FL = 40
    AF = 44
    ACC = 72
    XR = 128
    ACS, ARS, AQS = 192, 200, 208
    def check_issue(off):
        A(f"ds_read_b128 {v(FL,4)}, v2 offset:{off}", tag='fr')
    def check_eval(off):
        L1, L2 = A.newlabel('chk'), A.newlabel('chk')
        A(f"{L1}:")
        A.wait_lg0()
        A(f"v_add3_u32 v{FL}, v{FL}, v{FL+1}, v{FL+2}")
        A(f"v_add_u32 v{FL}, v{FL}, v{FL+3}")
        A(f"v_cmp_eq_u32 vcc, 4, v{FL}")
        A(f"s_cbranch_vccnz {L2}")
        A(f"ds_read_b128 {v(FL,4)}, v2 offset:{off}")
        A(f"s_branch {L1}")
        A(f"{L2}:")
        A.lg = []
    def full_issue(u):
        A(f"ds_read_b32 v{FL}, v2 offset:{4*u}", tag=('fu', u))
    def full_eval(u):
        L1, L2 = A.newlabel('fu'), A.newlabel('fu')
        A.wait_lg(('fu', u))
        A(f"v_cmp_eq_u32 vcc, 1, v{FL}")
        A(f"s_cbranch_vccnz {L2}")
        A(f"{L1}:")
        A(f"ds_read_b32 v{FL}, v2 offset:{4*u}")
        A.lg.pop()
        A("s_waitcnt lgkmcnt(0)")
        A(f"v_cmp_eq_u32 vcc, 1, v{FL}")
        A(f"s_cbranch_vccz {L1}")
        A(f"{L2}:")
    def trread(j, tau, hh):
        if OPT.get('noread') and j > 0: return
        off = ((j//2) % 2) * 32768 + (j % 2) * 8192 + hh * 1024
        A(f"ds_read_b64_tr_b16 {v(AF+4*tau+2*hh,2)}, v{AB+tau} offset:{off}", tag=('a', j, tau))
    def xread(j, nt):
        if OPT.get('noread') and j > 0: return
        off = ((j//2) % 2) * 32768 + nt * 2048
        A(f"ds_read_b128 {v(XR+8*(j%2)+4*nt,4)}, v{4 + j%2} offset:{off}", tag=('x', j))
    full_issue(0); full_eval(0)
    stamp(A)
    if DEBUG: A("s_waitcnt lgkmcnt(0)")
    xread(0, 0); xread(0, 1)
    for tau in range(7):
        for hh in range(2): trread(0, tau, hh)
    for j in range(16):
        if j in (4, 8, 12) and DEBUG:
            A.wait_lg0(); stamp(A); A("s_waitcnt lgkmcnt(0)")
        sl = XR + 8*(j % 2)
        c0 = (j == 0)
        def mf(acc, a, b):
            if OPT.get('nomfma') and not c0: return
            A(f"v_mfma_f32_16x16x32_bf16 {v(acc,4)}, {v(a,4)}, {v(b,4)}, {'0' if c0 else v(acc,4)}")
        A.wait_lg(('x', j))
        mf(ARS, ONES, sl)
        if j % 2 == 1 and j < 15: full_eval((j+1)//2)
        mf(AQS, sl, sl)
        flip = (j < 15 and (j + 1) % 4 == 0)
        if j < 15 and flip:
            A(f"v_xor_b32 v4, 0x10000, v4"); A(f"v_xor_b32 v5, 0x10000, v5")
        mf(ARS+4, ONES, sl+4)
        if j < 15: xread(j+1, 0); xread(j+1, 1)
        mf(AQS+4, sl+4, sl+4)
        for tau in range(7):
            if tau % 2 == 0: A.wait_lg(('a', j, tau), ('a', j, min(tau+1, 6)))
            mf(ACC + 8*tau, AF + 4*tau, sl)
            if j < 15 and flip: A(f"v_xor_b32 v{AB+tau}, 0x10000, v{AB+tau}")
            if tau == 6 and j % 2 == 1 and j < 8:
                A(f"v_mov_b32 v6, {j//2 + 1}")
                A(f"ds_write_b32 v35, v6 offset:32", tag='dn')
            if tau == 5 and j % 2 == 0 and j < 14: full_issue(j//2 + 1)
            mf(ACC + 8*tau + 4, AF + 4*tau, sl + 4)
            if tau < 2: mf(ACS + 4*tau, AF + 4*tau, ONES)
            if j < 15:
                trread(j+1, tau, 0); trread(j+1, tau, 1)
    T0 = 144
    stamp(A)
    if DEBUG: A("s_waitcnt lgkmcnt(0)")
    for tau in range(2):
        A(f"s_lshl_b32 s59, s{60+tau}, 6")
        A(f"s_add_u32 s59, s59, {LA_CS}")
        A(f"v_lshl_add_u32 v{T0+tau}, v3, 4, s59")
        A(f"ds_write_b128 v{T0+tau}, {v(ACS+4*tau,4)}", tag='cw')
    A.wait_lg0()
    A(f"ds_write_b32 v35, v34 offset:128", tag='fl')
    A("v_and_b32 v6, 15, v1")
    A("v_and_b32 v8, 3, v1")
    A("v_lshrrev_b32 v9, 2, v6")
    A("v_lshl_add_u32 v9, v9, 4, v6")
    A("v_lshlrev_b32 v9, 2, v9")
    MN, RE = 132, 136
    A("v_cmp_eq_u32 s[52:53], 1, v8")
    A("v_cmp_eq_u32 s[54:55], 2, v8")
    A("v_cmp_eq_u32 s[56:57], 3, v8")
    for k in range(3):
        for nt in range(2):
            q = AQS + 4*nt
            A(f"v_cndmask_b32 v{q}, v{q}, v{q+1+k}, s[{52+2*k}:{53+2*k}]")
    for nt in range(2):
        q = AQS + 4*nt
        A(f"ds_bpermute_b32 v{q+1}, v9, v{q}", tag=('bp', nt))
    BF = 164
    A.wait_vm('b1')
    for tau in range(7):
        for k in range(2):
            A(f"v_lshlrev_b32 v{BF+4*tau+2*k}, 16, v{B1+2*tau+k}")
            A(f"v_and_b32 v{BF+4*tau+2*k+1}, 0xffff0000, v{B1+2*tau+k}")
    A.wait_lg(('bp', 0), ('bp', 1))
    check_issue(128)
    seqs = []
    for nt in range(2):
        m, q = ARS + 4*nt, AQS + 4*nt + 1
        t1, t2, t3, t4 = m+1, m+2, m+3, q+1
        S = []
        def br(d, x): S.extend([f'v_cvt_pk_bf16_f32 v{t4}, v{x}, v{x}', f'v_lshlrev_b32 v{d}, 16, v{t4}'])
        S.append(f"v_mul_f32 v{m}, {f2u(1/512)}, v{m}")
        S.append(f"v_mul_f32 v{q}, {f2u(1/512)}, v{q}")
        S.append(f"v_fma_f32 v{q}, -v{m}, v{m}, v{q}")
        S.append(f"v_max_f32 v{q}, 0, v{q}")
        br(t1, q)
        S.append(f"v_add_f32 v{t1}, {f2u(1e-5)}, v{t1}")
        br(t1, t1)
        S.append(f"v_sqrt_f32 v{t1}, v{t1}")
        br(t1, t1)
        S.append(f"v_rcp_f32 v{t2}, v{t1}")
        br(t3, m)
        S.append(f"v_sub_f32 v{m}, v{m}, v{t3}")
        S.append(f"v_mul_f32 v{m}, v{m}, v{t2}")
        br(m, m)
        S.append(f"v_fmac_f32 v{t3}, v{m}, v{t1}")
        S.append(f"v_sub_f32 v{MN+2*nt}, 0, v{t3}")
        S.append(f"v_mul_f32 v{q}, v{q}, v{t2}")
        S.append(f"v_mul_f32 v{q}, v{q}, v{t2}")
        br(q, q)
        S.append(f"v_add_f32 v{q}, {f2u(1e-5)}, v{q}")
        br(q, q)
        S.append(f"v_sqrt_f32 v{q}, v{q}")
        br(q, q)
        S.append(f"v_rcp_f32 v{q}, v{q}")
        S.append(f"v_mul_f32 v{RE+2*nt}, v{q}, v{t2}")
        seqs.append(S)
    for x, y in zip(*seqs): A(x); A(y)
    check_eval(128)
    stamp(A)
    if DEBUG: A("s_waitcnt lgkmcnt(0)")
    CS = 44
    for tau in range(7):
        A(f"s_lshl_b32 s59, s{60+tau}, 6")
        A(f"s_add_u32 s59, s59, {LA_CS}")
        A(f"v_lshl_add_u32 v{T0+tau}, v3, 4, s59")
        A(f"ds_read_b128 {v(CS+4*tau,4)}, v{T0+tau}", tag=('cs', tau))
    C1, C2, C3 = 196, 198, 200
    k0 = -2.0 * LOG2E * 0.7978845608028654
    A(f"v_mov_b32 v{C1}, {f2u(k0*0.044715)}")
    A(f"v_mov_b32 v{C2}, {f2u(k0)}")
    A(f"v_mov_b32 v{C3}, 1.0")
    A("s_lshl_b32 s52, s49, 3")
    A("s_lshl_b32 s53, s3, 1")
    A("s_add_u32 s52, s52, s53")
    A("s_mul_i32 s52, s52, 57344")
    A("s_mul_i32 s53, s50, 3584")
    A("s_add_u32 s52, s52, s53")
    A("v_lshrrev_b32 v8, 1, v3")
    A("v_lshlrev_b32 v8, 8, v8")
    A("v_lshl_add_u32 v8, v6, 4, v8")
    A("v_add_u32 v8, s52, v8")
    A("v_and_b32 v10, 1, v3")
    A("v_cmp_eq_u32 vcc, 1, v10")
    SA = 10
    for pr in range(4):
        A(f"s_lshl_b32 s59, s{60+2*pr}, 9")
        if pr < 3: A(f"s_lshl_b32 s67, s{60+2*pr+1}, 9")
        else: A(f"s_add_u32 s67, s59, 57344")
        A(f"v_mov_b32 v14, s59")
        A(f"v_mov_b32 v15, s67")
        A(f"v_cndmask_b32 v14, v14, v15, vcc")
        A(f"v_add_u32 v{SA+pr}, v14, v8")
    A(f"s_mov_b32 s59, 57344")
    TM = 202
    OUT = 224
    oi = 0
    bc = "op_sel_hi:[1,0,1]"
    groups = [((0,0),(1,0)), ((2,0),(3,0)), ((4,0),(5,0)), ((6,0),(6,1)), ((0,1),(1,1)), ((2,1),(3,1)), ((4,1),(5,1))]
    for grp in groups:
        o = OUT + 4 * (oi % 4); oi += 1
        chains = []
        for ti, (tau, nt) in enumerate(grp):
            A.wait_lg(('cs', tau))
            for pr in range(2):
                a = ACC + 8*tau + 4*nt + 2*pr
                t = TM + 2*(2*ti + pr)
                chains.append([
                    f"v_pk_fma_f32 {v(a,2)}, {v(CS+4*tau+2*pr,2)}, {v(MN+2*nt,2)}, {v(a,2)} {bc}",
                    f"v_pk_fma_f32 {v(a,2)}, {v(a,2)}, {v(RE+2*nt,2)}, {v(BF+4*tau+2*pr,2)} {bc}",
                    f"v_pk_mul_f32 {v(t,2)}, {v(a,2)}, {v(a,2)}",
                    f"v_pk_fma_f32 {v(t,2)}, {v(t,2)}, {v(C1,2)}, {v(C2,2)} op_sel_hi:[1,0,0]",
                    f"v_pk_mul_f32 {v(t,2)}, {v(t,2)}, {v(a,2)}",
                    f"v_exp_f32 v{t}, v{t}",
                    f"v_exp_f32 v{t+1}, v{t+1}",
                    f"v_pk_add_f32 {v(t,2)}, {v(t,2)}, {v(C3,2)} op_sel_hi:[1,0]",
                    f"v_rcp_f32 v{t}, v{t}",
                    f"v_rcp_f32 v{t+1}, v{t+1}",
                    f"v_pk_mul_f32 {v(t,2)}, {v(t,2)}, {v(a,2)}",
                    f"v_cvt_pk_bf16_f32 v{o+2*ti+pr}, v{t}, v{t+1}"])
        for ins in zip(*chains):
            for x in ins: A(x)
        A(f"v_permlane16_swap_b32 v{o}, v{o+2}")
        A(f"v_permlane16_swap_b32 v{o+1}, v{o+3}")
        so = 's59' if (grp[0][1] == 1) else '0'
        A(f"buffer_store_dwordx4 {v(o,4)}, v{SA+grp[0][0]//2}, s[44:47], {so} offen")
    stamp(A)
    if DEBUG: A.wait_vm0()
    dump_stamps(A, 24, 0)
    A("s_endpgm")

def kernel_a():
    A = Asm()
    A(".globl ka_kernel\n.p2align 8\n.type ka_kernel,@function")
    A("ka_kernel:")
    ka_prologue(A)
    ka_loader(A)
    ka_gemm(A)
    ka_ln(A)
    ka_kgen(A)
    A("KA_end:")
    A("s_endpgm")
    return A.text()

def kd(name, vgpr=256, sgpr=102):
    return f""".p2align 6
.amdhsa_kernel {name}
  .amdhsa_next_free_vgpr {vgpr}
  .amdhsa_next_free_sgpr {sgpr}
  .amdhsa_accum_offset {vgpr}
  .amdhsa_group_segment_fixed_size 0
  .amdhsa_kernarg_size 136
  .amdhsa_user_sgpr_count 2
  .amdhsa_user_sgpr_kernarg_segment_ptr 1
  .amdhsa_system_sgpr_workgroup_id_x 1
.end_amdhsa_kernel
"""

if __name__ == '__main__':
    out = sys.argv[1] if len(sys.argv) > 1 else f'cdna_kernels/{NAME}.s'
    txt = f"; @launch kernel=ka_kernel grid=(256,1,1) block=(512,1,1) lds={LA_SIZE}\n"
    body = kernel_a()
    kds = kd('ka_kernel')
    try:
        import genb
        txt += genb.launch_lines()
        body += genb.kernel_b()
        kds += genb.kds()
    except ImportError:
        pass
    txt += '.amdgcn_target "amdgcn-amd-amdhsa--gfx950"\n.text\n' + body + '.section .rodata,"a"\n' + kds
    open(out, 'w').write(txt)
```

```python
import sys, os
sys.path.insert(0, os.path.dirname(__file__))
from asmlib import Asm

NAME = 'recurrent_scan__ssm_conv_s4__mixer_channel_mlp__prompt'
WS_XNB = 0
WS_KG = 0x200000
KG_ROW = 4160
WS_H = 0x800000
WS_ST = 0x1000000
WS_FLAG = 0x1400000
SRD3 = '0x00020000'
OOB = 0x40000000

def v(a, n=1): return f'v{a}' if n == 1 else f'v[{a}:{a+n-1}]'
def s(a, n=1): return f's{a}' if n == 1 else f's[{a}:{a+n-1}]'

def srd(A, d, base, size, off=0):
    if off:
        A(f's_add_u32 s{d}, s{base}, {off}')
        A(f's_addc_u32 s{d+1}, s{base+1}, 0')
    else:
        A(f's_mov_b32 s{d}, s{base}')
        A(f's_mov_b32 s{d+1}, s{base+1}')
    A(f's_mov_b32 s{d+2}, {size}')
    A(f's_mov_b32 s{d+3}, {SRD3}')

def bf16r(A, d, x, t):
    A(f'v_cvt_pk_bf16_f32 v{t}, v{x}, v{x}')
    A(f'v_lshlrev_b32 v{d}, 16, v{t}')

def f2u(x):
    import struct
    return '0x%08x' % struct.unpack('<I', struct.pack('<f', x))[0]

LOG2E = 1.4426950408889634
DEBUG = os.environ.get('KDEBUG', '0') == '1'
WS_DBG = 0x1800000
OPT = dict(kv.split('=') for kv in os.environ.get('KOPT', '').split(',') if kv)
class Stamps:
    n = 0
def stamp(A, real=False):
    if not DEBUG: return
    i = A.nst = getattr(A, 'nst', 0)
    assert i < 12
    A(f"{'s_memrealtime' if real else 's_memtime'} s[{70+2*i}:{71+2*i}]")
    A.nst = i + 1
def dump_stamps(A, wsreg, kidx):
    if not DEBUG: return
    stamp(A); stamp(A, True)
    A("s_waitcnt lgkmcnt(0)")
    if OPT.get('dbgout'):
        n = A.nst
        A("s_load_dwordx2 s[94:95], s[0:1], 120")
        A("s_waitcnt lgkmcnt(0)")
        srd(A, 96, 94, 256)
        A("s_min_u32 s94, s3, 6")
        A("s_lshl_b32 s94, s94, 3")
        A("v_mov_b32 v250, s94")
        A(f"v_mov_b32 v251, s{70+2*(n-1)}")
        A(f"s_sub_u32 s95, s{70+2*(n-2)}, s72")
        A("v_mov_b32 v252, s95")
        A("s_not_b32 s95, s70")
        A("v_mov_b32 v253, s95")
        A("v_mov_b32 v254, 60")
        A("s_mov_b64 exec, 1")
        A("buffer_atomic_umax v251, v250, s[96:99], 0 offen")
        A("buffer_atomic_umax v252, v250, s[96:99], 0 offen offset:4")
        A("buffer_atomic_umax v253, v254, s[96:99], 0 offen")
        A("v_mov_b32 v253, s70")
        A("v_mov_b32 v254, 56")
        A("buffer_atomic_umax v253, v254, s[96:99], 0 offen")
        return
    srd(A, 96, wsreg, 0x100000, WS_DBG + kidx * 0x40000)
    A("s_lshl_b32 s94, s2, 3")
    A("s_add_u32 s94, s94, s3")
    A("s_lshl_b32 s94, s94, 6")
    A("v_mov_b32 v250, s94")
    for i in range(A.nst):
        A(f"v_mov_b32 v251, s{70+2*i}")
        A(f"buffer_store_dword v251, v250, s[96:99], 0 offen offset:{4*i}")
LA_W1 = 0
LA_KT = [131072, 131072 + 15520]
LA_FLAG = 162112
LA_CSF = LA_FLAG + 128
LA_CS = LA_FLAG + 144
LA_SIZE = LA_CS + 448

def ka_prologue(A):
    A("s_cmp_ge_u32 s2, 256")
    A("s_cbranch_scc1 KA_end")
    stamp(A, True); stamp(A)
    A("s_load_dwordx16 s[4:19], s[0:1], 0")
    A("s_load_dwordx4 s[20:23], s[0:1], 80")
    A("s_load_dwordx2 s[24:25], s[0:1], 128")
    A("s_load_dwordx2 s[58:59], s[0:1], 96")
    A("v_lshrrev_b32 v2, 6, v0")
    A("v_and_b32 v1, 63, v0")
    A("v_mov_b32 v3, 0")
    A("v_readfirstlane_b32 s3, v2")
    A(f"v_lshlrev_b32 v4, 2, v1")
    A(f"v_min_u32 v4, 140, v4")
    A(f"ds_write_b32 v4, v3 offset:{LA_FLAG - 131072}", tag='z') if False else None
    A(f"v_add_u32 v4, {LA_FLAG}, v4")
    A(f"ds_write_b32 v4, v3")
    A("s_and_b32 s26, s2, 7")
    A("s_lshr_b32 s27, s2, 3")
    A("s_lshl_b32 s28, s26, 5")
    A("s_add_u32 s28, s28, s27")
    A("s_waitcnt lgkmcnt(0)")
    A("s_barrier")
    stamp(A)
    A.reset_counters()
    A("s_cmp_lt_u32 s3, 4")
    A("s_cbranch_scc1 KA_gemm")
    A("s_cmp_eq_u32 s3, 7")
    A("s_cbranch_scc1 KA_loader")
    if OPT.get('nohelp'): A("s_endpgm")
    A("s_cmp_eq_u32 s3, 4")
    A("s_cbranch_scc1 KA_ln")
    A("s_cmp_lt_u32 s3, 7")
    A("s_cbranch_scc1 KA_kgen")
    A("s_branch KA_loader")

def ka_ln(A):
    A("KA_ln:")
    A.reset_counters(); A.nst = 3
    srd(A, 32, 4, 2097152)
    srd(A, 36, 24, 2097152, WS_XNB)
    A("s_lshl_b32 s29, s28, 13")
    A("v_lshlrev_b32 v2, 4, v1")
    A("v_add_u32 v3, 4096, v2")
    X = 8
    for t in range(8):
        A(f"buffer_load_dwordx4 {v(X+4*t,4)}, v{2 + t//4}, s[32:35], s29 offen offset:{(t%4)*1024}", tag=('x', t))
    A("v_mov_b32 v4, 0x3f803f80")
    S, Q = 40, 48
    for t in range(8):
        A.wait_vm(('x', t))
        for k in range(4):
            if k == 0:
                A(f"v_dot2_f32_bf16 v{S+t}, v{X+4*t}, v4, 0")
                A(f"v_dot2_f32_bf16 v{Q+t}, v{X+4*t}, v{X+4*t}, 0")
            else:
                A(f"v_dot2_f32_bf16 v{S+t}, v{X+4*t+k}, v4, v{S+t}")
                A(f"v_dot2_f32_bf16 v{Q+t}, v{X+4*t+k}, v{X+4*t+k}, v{Q+t}")
    stamp(A)
    for B in (S, Q):
        for t in range(4):
            A(f"v_permlane32_swap_b32 v{B+t}, v{B+t+4}")
    for B in (S, Q):
        for t in range(4):
            A(f"v_add_f32 v{B+t}, v{B+t}, v{B+t+4}")
    for B in (S, Q):
        for t in range(2):
            A(f"v_permlane16_swap_b32 v{B+t}, v{B+t+2}")
    for B in (S, Q):
        for t in range(2):
            A(f"v_add_f32 v{B+t}, v{B+t}, v{B+t+2}")
    for sh in (8, 4, 2, 1):
        for r in (S, S+1, Q, Q+1):
            A(f"v_add_f32_dpp v{r}, v{r}, v{r} row_ror:{sh} row_mask:0xf bank_mask:0xf")
    for t in range(2):
        m, q, tmp = S+t, Q+t, 56+t
        A(f"v_mul_f32 v{m}, {f2u(1/512)}, v{m}")
        A(f"v_mul_f32 v{q}, {f2u(1/512)}, v{q}")
        A(f"v_fma_f32 v{q}, -v{m}, v{m}, v{q}")
        A(f"v_max_f32 v{q}, 0, v{q}")
        bf16r(A, m, m, tmp)
        bf16r(A, q, q, tmp)
        A(f"v_add_f32 v{q}, {f2u(1e-5)}, v{q}")
        bf16r(A, q, q, tmp)
        A(f"v_sqrt_f32 v{q}, v{q}")
        bf16r(A, q, q, tmp)
        A(f"v_rcp_f32 v{q}, v{q}")
    for t in range(2):
        for rho in range(4):
            A(f"v_readlane_b32 s{40 + t + 2*rho}, v{S+t}, {16*rho}")
            A(f"v_readlane_b32 s{48 + t + 2*rho}, v{Q+t}, {16*rho}")
    F, O = 64, 96
    for i in range(4):
        for h, t in enumerate((7 - 2*i, 6 - 2*i)):
            for k in range(4):
                lo, hi, x = F + 8*h + 2*k, F + 8*h + 2*k + 1, X + 4*t + k
                A(f"v_lshlrev_b32 v{lo}, 16, v{x}")
                A(f"v_and_b32 v{hi}, 0xffff0000, v{x}")
                A(f"v_subrev_f32 v{lo}, s{40+t}, v{lo}")
                A(f"v_subrev_f32 v{hi}, s{40+t}, v{hi}")
                A(f"v_cvt_pk_bf16_f32 v{x}, v{lo}, v{hi}")
                A(f"v_lshlrev_b32 v{lo}, 16, v{x}")
                A(f"v_and_b32 v{hi}, 0xffff0000, v{x}")
                A(f"v_mul_f32 v{lo}, s{48+t}, v{lo}")
                A(f"v_mul_f32 v{hi}, s{48+t}, v{hi}")
        for dl in range(8):
            A(f"v_cvt_pk_bf16_f32 v{O+4*dl+i}, v{F+dl}, v{F+8+dl}")
    for dl in range(8):
        A(f"buffer_store_dwordx4 {v(O+4*dl,4)}, v{2 + dl//4}, s[36:39], s29 offen offset:{1024*(dl%4)}")
    stamp(A)
    if DEBUG: A.wait_vm0()
    dump_stamps(A, 24, 0)
    A("s_endpgm")

XROWS = [(0,0),(0,1),(0,2),(0,3),(1,0),(1,1),(1,2),(1,3),(2,0),(2,2),(4,0),(6,0),(3,0),(3,2),(5,0),(7,0),
         (8,0),(10,0),(12,0),(14,0),(9,0),(11,0),(13,0),(15,0),(16,0)]
KT_STRIDE = 272

def ka_kgen(A):
    A("KA_kgen:")
    A.reset_counters(); A.nst = 3
    A("s_sub_u32 s29, s3, 5")
    A("s_lshl_b32 s30, s28, 1")
    A("s_add_u32 s30, s30, s29")
    A("s_lshl_b32 s31, s28, 2")
    A("s_load_dword s60, s[18:19], s31")
    A("s_lshl_b32 s31, s30, 8")
    A("v_lshlrev_b32 v2, 2, v1")
    for i in range(6):
        srd(A, 32 + 4*i, 6 + 2*i, 131072)
        A(f"buffer_load_dword v{8+i}, v2, s[{32+4*i}:{35+4*i}], s31 offen", tag='p')
    srd(A, 56, 24, 512*KG_ROW, WS_KG)
    A(f"s_mul_i32 s61, s29, {LA_KT[1]-LA_KT[0]}")
    A(f"s_add_u32 s61, s61, {LA_KT[0]}")
    A("v_add_u32 v3, s61, v2")
    A("v_and_b32 v4, 31, v1")
    A(f"v_mul_u32_u24 v4, {KT_STRIDE}, v4")
    A("v_lshrrev_b32 v5, 5, v1")
    A("v_lshl_add_u32 v4, v5, 4, v4")
    A("v_add_u32 v4, s61, v4")
    A("s_waitcnt lgkmcnt(0)")
    A("s_lshl_b32 s62, s29, 4")
    A("s_lshr_b32 s60, s60, s62")
    A("s_lshl_b32 s60, s60, 16")
    A(f"v_mov_b32 v6, {f2u(LOG2E)}")
    A("v_mul_f32 v6, s60, v6")
    A("v_exp_f32 v6, v6")
    bf16r(A, 6, 6, 7)
    A.wait_vm0()
    D = 128
    for ps in range(2):
        stamp(A)
        if DEBUG: A("s_waitcnt lgkmcnt(0)")
        for i in range(6):
            if ps == 0: A(f"v_lshlrev_b32 v{16+i}, 16, v{8+i}")
            else: A(f"v_and_b32 v{16+i}, 0xffff0000, v{8+i}")
        for i in range(4):
            A(f"v_mul_f32 v{16+i}, v6, v{16+i}")
        A(f"v_mul_f32 v16, {f2u(LOG2E)}, v16")
        A(f"v_mul_f32 v17, 0.15915494, v17")
        for base, o in ((22, 1.0), (25, 4.0), (28, 128.0)):
            if o == 1.0:
                A(f"v_exp_f32 v31, v16")
                A(f"v_fract_f32 v32, v17")
            else:
                A(f"v_mul_f32 v31, {f2u(o)}, v16")
                A(f"v_mul_f32 v32, {f2u(o)}, v17")
                A(f"v_exp_f32 v31, v31")
                A(f"v_fract_f32 v32, v32")
            A(f"v_cos_f32 v{base}, v32")
            A(f"v_sin_f32 v{base+1}, v32")
            A(f"v_mul_f32 v{base}, v31, v{base}")
            A(f"v_mul_f32 v{base+1}, v31, v{base+1}")
            A(f"v_sub_f32 v{base+2}, 0, v{base+1}")
        def cmul(d, a, b):
            A(f"v_mul_f32 v{d}, v{a}, v{b}")
            A(f"v_mul_f32 v{d+1}, v{a}, v{b+1}")
            A(f"v_fmac_f32 v{d}, v{a+1}, v{b+2}")
            A(f"v_fmac_f32 v{d+1}, v{a+1}, v{b}")
        cmul(33, 22, 22); A("v_sub_f32 v35, 0, v34")
        cmul(36, 33, 22); A("v_sub_f32 v38, 0, v37")
        ZE = {1: 22, 2: 33, 3: 36}
        A("v_mul_f32 v40, v20, v18")
        A("v_mul_f32 v41, v20, v19")
        A("v_fma_f32 v40, -v21, v19, v40")
        A("v_fmac_f32 v41, v21, v18")
        pk = [46, 47, 48, 49]; pki = 0
        def put(row, re, im, neg):
            nonlocal pki
            p = pk[pki % 4]; pki += 1
            A(f"v_cvt_pk_bf16_f32 v{p}, v{re}, {'-' if neg else ''}v{im}")
            A(f"ds_write_b32 v3, v{p} offset:{row*KT_STRIDE}", tag='w')
        cur = 40
        for a in range(17):
            for row, (ra, e) in enumerate(XROWS):
                if ra != a: continue
                if e == 0: put(row, cur, cur+1, True)
                else:
                    cmul(44, cur, ZE[e]); put(row, 44, 45, True)
            if a < 16:
                nxt = 42 if cur == 40 else 40
                cmul(nxt, cur, 28); cur = nxt
        A("v_mov_b32 v50, 0x00003f80")
        A(f"ds_write_b32 v3, v50 offset:{25*KT_STRIDE}", tag='w')
        put(26, 25, 26, False)
        cur = 25
        for b in range(2, 32):
            nxt = 42 if cur != 42 else 40
            cmul(nxt, cur, 25); cur = nxt
            put(25 + b, cur, cur+1, False)
        FA, FB = 64, 96
        for st in range(8):
            A(f"ds_read_b128 {v(FA+4*st,4)}, v4 offset:{st*32}", tag=('f', st))
            A(f"ds_read_b128 {v(FB+4*st,4)}, v4 offset:{25*KT_STRIDE + st*32}", tag=('f', st))
            if st >= 4: A.wait_lg(('f', st-4))
            if st >= 4:
                q = st - 4
                A(f"v_mfma_f32_32x32x16_bf16 {v(D,16)}, {v(FA+4*q,4)}, {v(FB+4*q,4)}, {'0' if (ps==0 and q==0) else v(D,16)}")
        for q in range(4, 8):
            A.wait_lg(('f', q))
            A(f"v_mfma_f32_32x32x16_bf16 {v(D,16)}, {v(FA+4*q,4)}, {v(FB+4*q,4)}, {v(D,16)}")
    A("v_and_b32 v7, 31, v1")
    A("v_lshlrev_b32 v7, 3, v7")
    A("v_lshl_add_u32 v7, v5, 8, v7")
    A("v_add_u32 v7, s61, v7")
    T = 16
    def dup(dst, r):
        A(f"v_cvt_pk_bf16_f32 v{dst}, v{r}, v{r}")
    A("s_mov_b32 s64, 0x55555555\ns_mov_b32 s65, 0x55555555")
    A("s_mov_b32 s66, 0x11111111\ns_mov_b32 s67, 0x11111111")
    for r in range(8, 13):
        dup(T + 2*(r-8), D + r); A(f"v_mov_b32 v{T+2*(r-8)+1}, v{T+2*(r-8)}")
    for r in (6, 7): dup(T + 10 + (r-6), D + r)
    for r in (4, 5): dup(T + 12 + (r-4), D + r)
    A(f"v_cvt_pk_bf16_f32 v{T+14}, v{D}, v{D+1}")
    A(f"v_cvt_pk_bf16_f32 v{T+15}, v{D+2}, v{D+3}")
    A("s_mov_b64 exec, 1")
    A(f"ds_write_b64 v7, {v(T+8,2)} offset:{2*(2048-4)}")
    A("s_mov_b64 exec, s[64:65]")
    for r in range(8, 12):
        o = 1024 + 256*(r-8)
        A(f"ds_write_b64 v7, {v(T+2*(r-8),2)} offset:{2*(o-4)}")
        A(f"ds_write_b64 v7, {v(T+2*(r-8),2)} offset:{2*o}")
    A("s_mov_b64 exec, s[66:67]")
    for r in range(8, 12):
        o = 1024 + 256*(r-8)
        A(f"ds_write_b16 v7, v{T+2*(r-8)} offset:{2*(o+4)}")
    A("s_mov_b64 exec, -1")
    for r in (6, 7):
        o = 512 + 256*(r-6)
        A(f"ds_write_b32 v7, v{T+10+(r-6)} offset:{2*(o-2)}")
        A(f"ds_write_b32 v7, v{T+10+(r-6)} offset:{2*o}")
    A("s_mov_b64 exec, s[64:65]")
    for r in (6, 7):
        o = 512 + 256*(r-6)
        A(f"ds_write_b16 v7, v{T+10+(r-6)} offset:{2*(o+2)}")
    A("s_mov_b64 exec, -1")
    A(f"ds_write_b16 v7, v{T+12} offset:{2*(256-1)}")
    A(f"ds_write_b32 v7, v{T+12} offset:{2*256}")
    A(f"ds_write_b16 v7, v{T+13} offset:{2*(256+2)}")
    A(f"ds_write_b64 v7, {v(T+14,2)}")
    A("v_lshlrev_b32 v2, 4, v1")
    A("v_add_u32 v3, s61, v2")
    for i in range(4):
        A(f"ds_read_b128 {v(64+4*i,4)}, v3 offset:{1024*i}", tag=('k', i))
    A(f"s_mul_i32 s31, s30, {KG_ROW}")
    A("v_mov_b32 v80, 0\nv_mov_b32 v81, 0\nv_mov_b32 v82, 0\nv_mov_b32 v83, 0")
    A("v_mov_b32 v84, 48")
    A("buffer_store_dwordx4 v[80:83], v84, s[56:59], s31 offen")
    for i in range(4):
        A.wait_lg(('k', i))
        A(f"buffer_store_dwordx4 {v(64+4*i,4)}, v2, s[56:59], s31 offen offset:{64 + 1024*i}")
    stamp(A)
    if DEBUG: A.wait_vm0()
    dump_stamps(A, 24, 0)
    A("s_endpgm")

def ka_map(A):
    mapping = OPT.get('map', '8x4')
    if mapping == '16x2':
        A("s_and_b32 s48, s27, 1")
        A("s_lshl_b32 s49, s26, 1")
        A("s_add_u32 s49, s49, s48")
        A("s_lshr_b32 s50, s27, 1")
        A("s_lshl_b32 s51, s48, 2")
        A("s_add_u32 s51, s51, s50")
    else:
        A("s_and_b32 s48, s27, 3")
        A("s_lshr_b32 s49, s26, 1")
        A("s_lshl_b32 s49, s49, 2")
        A("s_add_u32 s49, s49, s48")
        A("s_lshr_b32 s52, s27, 2")
        A("s_and_b32 s50, s26, 1")
        A("s_lshl_b32 s50, s50, 3")
        A("s_add_u32 s50, s50, s52")
        A("s_lshl_b32 s51, s48, 1")
        A("s_add_u32 s51, s51, s52")
    if OPT.get('order', 'same') == 'same': A("s_mov_b32 s51, 0")
    if OPT.get('order') == 'half': A("s_and_b32 s51, s51, 1")
    if OPT.get('order') == 'quarter': A("s_and_b32 s51, s51, 3")

LA_FULL = LA_FLAG
LA_DONE = LA_FLAG + 32

def ka_loader(A):
    A("KA_loader:")
    A.reset_counters(); A.nst = 3
    A("s_setprio 3")
    srd(A, 32, 4, 2097152)
    srd(A, 36, 20, 1835008)
    ka_map(A)
    A("v_and_b32 v2, 15, v1")
    A("v_lshrrev_b32 v3, 4, v1")
    A("s_mul_i32 s53, s50, 224")
    A("s_and_b32 s53, s53, 0xffffffc0")
    A("v_mul_u32_u24 v4, 3584, v3")
    A("v_add_u32 v4, s53, v4")
    A("v_lshlrev_b32 v5, 1, v3")
    A("v_xor_b32 v5, v5, v2")
    for q in range(4):
        A(f"v_xor_b32 v6, {8*((q>>1)&1)}, v5")
        A(f"v_lshl_add_u32 v{8+q}, v6, 4, v4")
        if q: A(f"v_add_u32 v{8+q}, {q*(4*3584-1024)}, v{8+q}")
    A("v_lshrrev_b32 v4, 3, v1")
    A("v_lshrrev_b32 v5, 4, v1")
    A("v_and_b32 v6, 7, v1")
    A("v_xor_b32 v5, v5, v6")
    A("s_lshl_b32 s52, s49, 7")
    A("v_add_u32 v4, s52, v4")
    A("v_lshlrev_b32 v4, 10, v4")
    for q in range(4):
        A(f"v_xor_b32 v6, {4*(q&1)}, v5")
        A(f"v_lshl_add_u32 v{12+q}, v6, 4, v4")
        if q: A(f"v_add_u32 v{12+q}, {q*(8192-1024)}, v{12+q}")
    A("v_mov_b32 v16, 1")
    A(f"v_mov_b32 v17, {LA_FLAG}")
    def issue(u, parts):
        if 0 in parts:
            A(f"s_add_u32 s55, s51, {u}")
            A("s_and_b32 s55, s55, 7")
            A("s_lshl_b32 s56, s55, 7")
            A(f"s_mul_i32 s57, s55, {64*3584}")
        base = LA_W1 + (u % 4) * 32768
        for part in parts:
            qq = part // 2
            if part % 2 == 0:
                A(f"s_mov_b32 m0, {base + qq*4096}")
                if qq: A(f"s_add_u32 s57, s57, {16*3584}")
                for q in range(4):
                    A(f"buffer_load_dwordx4 v{8+q}, s[36:39], s57 offen offset:{1024*q} lds", tag=('u', u))
            else:
                A(f"s_mov_b32 m0, {base + 16384 + qq*4096}")
                if qq: A(f"s_add_u32 s56, s56, 32768")
                for q in range(4):
                    A(f"buffer_load_dwordx4 v{12+q}, s[32:35], s56 offen offset:{1024*q} lds", tag=('u', u))
    def post(u):
        A.wait_vm(('u', u))
        A(f"ds_write_b32 v17, v16 offset:{4*u}")
    PP = int(OPT.get('PP', 4))
    issue(0, range(8))
    for u in range(1, 8):
        if u >= 4:
            L1 = A.newlabel('fr')
            A(f"{L1}:")
            A(f"ds_read_b128 v[20:23], v17 offset:32")
            A("s_waitcnt lgkmcnt(0)")
            A("v_min_u32 v20, v20, v21")
            A("v_min3_u32 v20, v20, v22, v23")
            A(f"v_cmp_le_u32 vcc, {u-3}, v20")
            A(f"s_cbranch_vccz {L1}")
        issue(u, range(PP))
        post(u-1)
        issue(u, range(PP, 8))
        if u in (1, 4): stamp(A)
    post(7)
    stamp(A)
    if not OPT.get('nopf'):
        srd(A, 40, 58, 1835008)
        A("v_lshrrev_b32 v4, 5, v1")
        A("v_lshlrev_b32 v4, 10, v4")
        A("v_and_b32 v5, 31, v1")
        A("v_lshl_add_u32 v4, v5, 4, v4")
        A("s_mul_i32 s52, s27, 57344")
        A("s_and_b32 s53, s26, 1")
        A("s_lshl_b32 s53, s53, 9")
        A("s_add_u32 s52, s52, s53")
        for i in range(28):
            A(f"buffer_load_dwordx4 {v(24+4*(i%8),4)}, v4, s[40:43], s52 offen offset:{2048*(i%2)}")
            if i % 2: A("s_add_u32 s52, s52, 4096")
    srd(A, 32, 24, 2097152, WS_ST)
    A("s_lshl_b32 s29, s28, 13")
    A("v_lshlrev_b32 v4, 4, v1")
    A("v_mov_b32 v8, -1\nv_mov_b32 v9, -1\nv_mov_b32 v10, -1\nv_mov_b32 v11, -1")
    for i in range(8):
        A(f"buffer_store_dwordx4 v[8:11], v4, s[32:35], s29 offen offset:{1024*(i%4)}")
        if i == 3: A("s_add_u32 s29, s29, 4096")
    dump_stamps(A, 24, 0)
    A("s_endpgm")

def ka_gemm(A):
    A("KA_gemm:")
    A.reset_counters(); A.nst = 3
    A("s_setprio 2")
    ka_map(A)
    A("v_and_b32 v2, 15, v1")
    A("v_lshrrev_b32 v3, 4, v1")
    srd(A, 40, 22, 3584)
    srd(A, 44, 24, 7340032, WS_H)
    A("v_bfe_u32 v6, v1, 2, 2")
    A("v_and_b32 v9, 1, v3")
    A("v_lshl_or_b32 v9, v9, 2, v6")
    A("v_lshl_add_u32 v10, v3, 3, v6")
    A("v_lshlrev_b32 v10, 8, v10")
    A("v_and_b32 v11, 3, v1")
    A("v_lshl_add_u32 v10, v11, 3, v10")
    A("s_and_b32 s68, s50, 1")
    AB = 12
    for tau in range(7):
        A(f"s_lshl_b32 s59, s3, 1")
        A(f"s_add_u32 s59, s59, {tau}")
        A(f"s_sub_u32 s67, s59, 7")
        A(f"s_cmp_ge_u32 s59, 7")
        A(f"s_cselect_b32 s{60+tau}, s67, s59")
        A(f"s_add_u32 s59, s{60+tau}, s68")
        A(f"v_xor_b32 v11, s59, v9")
        A(f"v_lshl_add_u32 v{AB+tau}, v11, 5, v10")
    A("v_lshrrev_b32 v6, 1, v2")
    A("v_xor_b32 v6, v6, v3")
    A("v_lshlrev_b32 v6, 4, v6")
    A("v_lshl_add_u32 v6, v2, 7, v6")
    A("s_lshl_b32 s59, s3, 12")
    A("s_add_u32 s59, s59, 16384")
    A("v_add_u32 v4, s59, v6")
    A("v_xor_b32 v5, 64, v4")
    A("s_mul_i32 s53, s50, 224")
    A("v_lshlrev_b32 v6, 3, v3")
    B1 = 20
    for tau in range(7):
        A(f"s_lshl_b32 s59, s{60+tau}, 5")
        A(f"s_add_u32 s59, s59, s53")
        A(f"buffer_load_dwordx2 {v(B1+2*tau,2)}, v6, s[40:43], s59 offen", tag='b1')
    ONES = 36
    for i in range(4): A(f"v_mov_b32 v{ONES+i}, 0x3f803f80")
    A("v_mov_b32 v34, 1")
    A(f"s_lshl_b32 s59, s3, 2")
    A(f"s_add_u32 s59, s59, {LA_FLAG}")
    A("v_mov_b32 v35, s59")
    A(f"v_mov_b32 v2, {LA_FLAG}")
    FL = 40
    AF = 44
    ACC = 72
    XR = 128
    ACS, ARS, AQS = 192, 200, 208
    def check_issue(off):
        A(f"ds_read_b128 {v(FL,4)}, v2 offset:{off}", tag='fr')
    def check_eval(off):
        L1, L2 = A.newlabel('chk'), A.newlabel('chk')
        A(f"{L1}:")
        A.wait_lg0()
        A(f"v_add3_u32 v{FL}, v{FL}, v{FL+1}, v{FL+2}")
        A(f"v_add_u32 v{FL}, v{FL}, v{FL+3}")
        A(f"v_cmp_eq_u32 vcc, 4, v{FL}")
        A(f"s_cbranch_vccnz {L2}")
        A(f"ds_read_b128 {v(FL,4)}, v2 offset:{off}")
        A(f"s_branch {L1}")
        A(f"{L2}:")
        A.lg = []
    def full_issue(u):
        A(f"ds_read_b32 v{FL}, v2 offset:{4*u}", tag=('fu', u))
    def full_eval(u):
        L1, L2 = A.newlabel('fu'), A.newlabel('fu')
        A.wait_lg(('fu', u))
        A(f"v_cmp_eq_u32 vcc, 1, v{FL}")
        A(f"s_cbranch_vccnz {L2}")
        A(f"{L1}:")
        A(f"ds_read_b32 v{FL}, v2 offset:{4*u}")
        A.lg.pop()
        A("s_waitcnt lgkmcnt(0)")
        A(f"v_cmp_eq_u32 vcc, 1, v{FL}")
        A(f"s_cbranch_vccz {L1}")
        A(f"{L2}:")
    def trread(j, tau, hh):
        if OPT.get('noread') and j > 0: return
        off = ((j//2) % 2) * 32768 + (j % 2) * 8192 + hh * 1024
        A(f"ds_read_b64_tr_b16 {v(AF+4*tau+2*hh,2)}, v{AB+tau} offset:{off}", tag=('a', j, tau))
    def xread(j, nt):
        if OPT.get('noread') and j > 0: return
        off = ((j//2) % 2) * 32768 + nt * 2048
        A(f"ds_read_b128 {v(XR+8*(j%2)+4*nt,4)}, v{4 + j%2} offset:{off}", tag=('x', j))
    full_issue(0); full_eval(0)
    stamp(A)
    if DEBUG: A("s_waitcnt lgkmcnt(0)")
    xread(0, 0); xread(0, 1)
    for tau in range(7):
        for hh in range(2): trread(0, tau, hh)
    for j in range(16):
        if j in (4, 8, 12) and DEBUG:
            A.wait_lg0(); stamp(A); A("s_waitcnt lgkmcnt(0)")
        sl = XR + 8*(j % 2)
        c0 = (j == 0)
        def mf(acc, a, b):
            if OPT.get('nomfma') and not c0: return
            A(f"v_mfma_f32_16x16x32_bf16 {v(acc,4)}, {v(a,4)}, {v(b,4)}, {'0' if c0 else v(acc,4)}")
        A.wait_lg(('x', j))
        mf(ARS, ONES, sl)
        if j % 2 == 1 and j < 15: full_eval((j+1)//2)
        mf(AQS, sl, sl)
        flip = (j < 15 and (j + 1) % 4 == 0)
        if j < 15 and flip:
            A(f"v_xor_b32 v4, 0x10000, v4"); A(f"v_xor_b32 v5, 0x10000, v5")
        mf(ARS+4, ONES, sl+4)
        if j < 15: xread(j+1, 0); xread(j+1, 1)
        mf(AQS+4, sl+4, sl+4)
        for tau in range(7):
            if tau % 2 == 0: A.wait_lg(('a', j, tau), ('a', j, min(tau+1, 6)))
            mf(ACC + 8*tau, AF + 4*tau, sl)
            if j < 15 and flip: A(f"v_xor_b32 v{AB+tau}, 0x10000, v{AB+tau}")
            if tau == 6 and j % 2 == 1 and j < 8:
                A(f"v_mov_b32 v6, {j//2 + 1}")
                A(f"ds_write_b32 v35, v6 offset:32", tag='dn')
            if tau == 5 and j % 2 == 0 and j < 14: full_issue(j//2 + 1)
            mf(ACC + 8*tau + 4, AF + 4*tau, sl + 4)
            if tau < 2: mf(ACS + 4*tau, AF + 4*tau, ONES)
            if j < 15:
                trread(j+1, tau, 0); trread(j+1, tau, 1)
    T0 = 144
    stamp(A)
    if DEBUG: A("s_waitcnt lgkmcnt(0)")
    for tau in range(2):
        A(f"s_lshl_b32 s59, s{60+tau}, 6")
        A(f"s_add_u32 s59, s59, {LA_CS}")
        A(f"v_lshl_add_u32 v{T0+tau}, v3, 4, s59")
        A(f"ds_write_b128 v{T0+tau}, {v(ACS+4*tau,4)}", tag='cw')
    A.wait_lg0()
    A(f"ds_write_b32 v35, v34 offset:128", tag='fl')
    A("v_and_b32 v6, 15, v1")
    A("v_and_b32 v8, 3, v1")
    A("v_lshrrev_b32 v9, 2, v6")
    A("v_lshl_add_u32 v9, v9, 4, v6")
    A("v_lshlrev_b32 v9, 2, v9")
    MN, RE = 132, 136
    A("v_cmp_eq_u32 s[52:53], 1, v8")
    A("v_cmp_eq_u32 s[54:55], 2, v8")
    A("v_cmp_eq_u32 s[56:57], 3, v8")
    for k in range(3):
        for nt in range(2):
            q = AQS + 4*nt
            A(f"v_cndmask_b32 v{q}, v{q}, v{q+1+k}, s[{52+2*k}:{53+2*k}]")
    for nt in range(2):
        q = AQS + 4*nt
        A(f"ds_bpermute_b32 v{q+1}, v9, v{q}", tag=('bp', nt))
    BF = 164
    A.wait_vm('b1')
    for tau in range(7):
        for k in range(2):
            A(f"v_lshlrev_b32 v{BF+4*tau+2*k}, 16, v{B1+2*tau+k}")
            A(f"v_and_b32 v{BF+4*tau+2*k+1}, 0xffff0000, v{B1+2*tau+k}")
    A.wait_lg(('bp', 0), ('bp', 1))
    check_issue(128)
    seqs = []
    for nt in range(2):
        m, q = ARS + 4*nt, AQS + 4*nt + 1
        t1, t2, t3, t4 = m+1, m+2, m+3, q+1
        S = []
        def br(d, x): S.extend([f'v_cvt_pk_bf16_f32 v{t4}, v{x}, v{x}', f'v_lshlrev_b32 v{d}, 16, v{t4}'])
        S.append(f"v_mul_f32 v{m}, {f2u(1/512)}, v{m}")
        S.append(f"v_mul_f32 v{q}, {f2u(1/512)}, v{q}")
        S.append(f"v_fma_f32 v{q}, -v{m}, v{m}, v{q}")
        S.append(f"v_max_f32 v{q}, 0, v{q}")
        br(t1, q)
        S.append(f"v_add_f32 v{t1}, {f2u(1e-5)}, v{t1}")
        br(t1, t1)
        S.append(f"v_sqrt_f32 v{t1}, v{t1}")
        br(t1, t1)
        S.append(f"v_rcp_f32 v{t2}, v{t1}")
        br(t3, m)
        S.append(f"v_sub_f32 v{m}, v{m}, v{t3}")
        S.append(f"v_mul_f32 v{m}, v{m}, v{t2}")
        br(m, m)
        S.append(f"v_fmac_f32 v{t3}, v{m}, v{t1}")
        S.append(f"v_sub_f32 v{MN+2*nt}, 0, v{t3}")
        S.append(f"v_mul_f32 v{q}, v{q}, v{t2}")
        S.append(f"v_mul_f32 v{q}, v{q}, v{t2}")
        br(q, q)
        S.append(f"v_add_f32 v{q}, {f2u(1e-5)}, v{q}")
        br(q, q)
        S.append(f"v_sqrt_f32 v{q}, v{q}")
        br(q, q)
        S.append(f"v_rcp_f32 v{q}, v{q}")
        S.append(f"v_mul_f32 v{RE+2*nt}, v{q}, v{t2}")
        seqs.append(S)
    for x, y in zip(*seqs): A(x); A(y)
    check_eval(128)
    stamp(A)
    if DEBUG: A("s_waitcnt lgkmcnt(0)")
    CS = 44
    for tau in range(7):
        A(f"s_lshl_b32 s59, s{60+tau}, 6")
        A(f"s_add_u32 s59, s59, {LA_CS}")
        A(f"v_lshl_add_u32 v{T0+tau}, v3, 4, s59")
        A(f"ds_read_b128 {v(CS+4*tau,4)}, v{T0+tau}", tag=('cs', tau))
    C1, C2, C3 = 196, 198, 200
    k0 = -2.0 * LOG2E * 0.7978845608028654
    A(f"v_mov_b32 v{C1}, {f2u(k0*0.044715)}")
    A(f"v_mov_b32 v{C2}, {f2u(k0)}")
    A(f"v_mov_b32 v{C3}, 1.0")
    A("s_lshl_b32 s52, s49, 3")
    A("s_lshl_b32 s53, s3, 1")
    A("s_add_u32 s52, s52, s53")
    A("s_mul_i32 s52, s52, 57344")
    A("s_mul_i32 s53, s50, 3584")
    A("s_add_u32 s52, s52, s53")
    A("v_lshrrev_b32 v8, 1, v3")
    A("v_lshlrev_b32 v8, 8, v8")
    A("v_lshl_add_u32 v8, v6, 4, v8")
    A("v_add_u32 v8, s52, v8")
    A("v_and_b32 v10, 1, v3")
    A("v_cmp_eq_u32 vcc, 1, v10")
    SA = 10
    for pr in range(4):
        A(f"s_lshl_b32 s59, s{60+2*pr}, 9")
        if pr < 3: A(f"s_lshl_b32 s67, s{60+2*pr+1}, 9")
        else: A(f"s_add_u32 s67, s59, 57344")
        A(f"v_mov_b32 v14, s59")
        A(f"v_mov_b32 v15, s67")
        A(f"v_cndmask_b32 v14, v14, v15, vcc")
        A(f"v_add_u32 v{SA+pr}, v14, v8")
    A(f"s_mov_b32 s59, 57344")
    TM = 202
    OUT = 224
    oi = 0
    bc = "op_sel_hi:[1,0,1]"
    groups = [((0,0),(1,0)), ((2,0),(3,0)), ((4,0),(5,0)), ((6,0),(6,1)), ((0,1),(1,1)), ((2,1),(3,1)), ((4,1),(5,1))]
    for grp in groups:
        o = OUT + 4 * (oi % 4); oi += 1
        chains = []
        for ti, (tau, nt) in enumerate(grp):
            A.wait_lg(('cs', tau))
            for pr in range(2):
                a = ACC + 8*tau + 4*nt + 2*pr
                t = TM + 2*(2*ti + pr)
                chains.append([
                    f"v_pk_fma_f32 {v(a,2)}, {v(CS+4*tau+2*pr,2)}, {v(MN+2*nt,2)}, {v(a,2)} {bc}",
                    f"v_pk_fma_f32 {v(a,2)}, {v(a,2)}, {v(RE+2*nt,2)}, {v(BF+4*tau+2*pr,2)} {bc}",
                    f"v_pk_mul_f32 {v(t,2)}, {v(a,2)}, {v(a,2)}",
                    f"v_pk_fma_f32 {v(t,2)}, {v(t,2)}, {v(C1,2)}, {v(C2,2)} op_sel_hi:[1,0,0]",
                    f"v_pk_mul_f32 {v(t,2)}, {v(t,2)}, {v(a,2)}",
                    f"v_exp_f32 v{t}, v{t}",
                    f"v_exp_f32 v{t+1}, v{t+1}",
                    f"v_pk_add_f32 {v(t,2)}, {v(t,2)}, {v(C3,2)} op_sel_hi:[1,0]",
                    f"v_rcp_f32 v{t}, v{t}",
                    f"v_rcp_f32 v{t+1}, v{t+1}",
                    f"v_pk_mul_f32 {v(t,2)}, {v(t,2)}, {v(a,2)}",
                    f"v_cvt_pk_bf16_f32 v{o+2*ti+pr}, v{t}, v{t+1}"])
        for ins in zip(*chains):
            for x in ins: A(x)
        A(f"v_permlane16_swap_b32 v{o}, v{o+2}")
        A(f"v_permlane16_swap_b32 v{o+1}, v{o+3}")
        so = 's59' if (grp[0][1] == 1) else '0'
        A(f"buffer_store_dwordx4 {v(o,4)}, v{SA+grp[0][0]//2}, s[44:47], {so} offen")
    stamp(A)
    if DEBUG: A.wait_vm0()
    dump_stamps(A, 24, 0)
    A("s_endpgm")

def kernel_a():
    A = Asm()
    A(".globl ka_kernel\n.p2align 8\n.type ka_kernel,@function")
    A("ka_kernel:")
    ka_prologue(A)
    ka_loader(A)
    ka_gemm(A)
    ka_ln(A)
    ka_kgen(A)
    A("KA_end:")
    A("s_endpgm")
    return A.text()

def kd(name, vgpr=256, sgpr=102):
    return f""".p2align 6
.amdhsa_kernel {name}
  .amdhsa_next_free_vgpr {vgpr}
  .amdhsa_next_free_sgpr {sgpr}
  .amdhsa_accum_offset {vgpr}
  .amdhsa_group_segment_fixed_size 0
  .amdhsa_kernarg_size 136
  .amdhsa_user_sgpr_count 2
  .amdhsa_user_sgpr_kernarg_segment_ptr 1
  .amdhsa_system_sgpr_workgroup_id_x 1
.end_amdhsa_kernel
"""

if __name__ == '__main__':
    out = sys.argv[1] if len(sys.argv) > 1 else f'cdna_kernels/{NAME}.s'
    txt = f"; @launch kernel=ka_kernel grid=(256,1,1) block=(512,1,1) lds={LA_SIZE}\n"
    body = kernel_a()
    kds = kd('ka_kernel')
    try:
        import genb
        txt += genb.launch_lines()
        body += genb.kernel_b()
        kds += genb.kds()
    except ImportError:
        pass
    txt += '.amdgcn_target "amdgcn-amd-amdhsa--gfx950"\n.text\n' + body + '.section .rodata,"a"\n' + kds
    open(out, 'w').write(txt)
```

```python
import sys, os
sys.path.insert(0, os.path.dirname(__file__))
from asmlib import Asm

NAME = 'recurrent_scan__ssm_conv_s4__mixer_channel_mlp__prompt'
WS_XNB = 0
WS_KG = 0x200000
KG_ROW = 4160
WS_H = 0x800000
WS_ST = 0x1000000
WS_FLAG = 0x1400000
SRD3 = '0x00020000'
OOB = 0x40000000

def v(a, n=1): return f'v{a}' if n == 1 else f'v[{a}:{a+n-1}]'
def s(a, n=1): return f's{a}' if n == 1 else f's[{a}:{a+n-1}]'

def srd(A, d, base, size, off=0):
    if off:
        A(f's_add_u32 s{d}, s{base}, {off}')
        A(f's_addc_u32 s{d+1}, s{base+1}, 0')
    else:
        A(f's_mov_b32 s{d}, s{base}')
        A(f's_mov_b32 s{d+1}, s{base+1}')
    A(f's_mov_b32 s{d+2}, {size}')
    A(f's_mov_b32 s{d+3}, {SRD3}')

def bf16r(A, d, x, t):
    A(f'v_cvt_pk_bf16_f32 v{t}, v{x}, v{x}')
    A(f'v_lshlrev_b32 v{d}, 16, v{t}')

def f2u(x):
    import struct
    return '0x%08x' % struct.unpack('<I', struct.pack('<f', x))[0]

LOG2E = 1.4426950408889634
DEBUG = os.environ.get('KDEBUG', '0') == '1'
WS_DBG = 0x1800000
OPT = dict(kv.split('=') for kv in os.environ.get('KOPT', '').split(',') if kv)
class Stamps:
    n = 0
def stamp(A, real=False):
    if not DEBUG: return
    i = A.nst = getattr(A, 'nst', 0)
    assert i < 12
    A(f"{'s_memrealtime' if real else 's_memtime'} s[{70+2*i}:{71+2*i}]")
    A.nst = i + 1
def dump_stamps(A, wsreg, kidx):
    if not DEBUG: return
    stamp(A); stamp(A, True)
    A("s_waitcnt lgkmcnt(0)")
    if OPT.get('dbgout'):
        n = A.nst
        L = A.newlabel('dbg')
        A("s_and_b32 s94, s2, 0x7f")
        A("s_or_b32 s94, s94, s3")
        A("s_cmp_lg_u32 s94, 0")
        A(f"s_cbranch_scc1 {L}")
        A("s_load_dwordx2 s[94:95], s[0:1], 120")
        A("s_waitcnt lgkmcnt(0)")
        srd(A, 96, 94, 256)
        A("s_lshr_b32 s94, s2, 2")
        A("v_mov_b32 v250, s94")
        idx = [0, n-1, 2, 3, 5, 7, 8, n-2]
        for i, k in enumerate(idx):
            if k >= n: continue
            if i < 2: A(f"v_mov_b32 v251, s{70+2*k}")
            else:
                A(f"s_sub_u32 s95, s{70+2*k}, s72")
                A("v_mov_b32 v251, s95")
            A(f"buffer_store_dword v251, v250, s[96:99], 0 offen offset:{4*i}")
        A(f"{L}:")
        return
    srd(A, 96, wsreg, 0x100000, WS_DBG + kidx * 0x40000)
    A("s_lshl_b32 s94, s2, 3")
    A("s_add_u32 s94, s94, s3")
    A("s_lshl_b32 s94, s94, 6")
    A("v_mov_b32 v250, s94")
    for i in range(A.nst):
        A(f"v_mov_b32 v251, s{70+2*i}")
        A(f"buffer_store_dword v251, v250, s[96:99], 0 offen offset:{4*i}")
LA_W1 = 0
LA_KT = [131072, 131072 + 15520]
LA_FLAG = 162112
LA_CSF = LA_FLAG + 128
LA_CS = LA_FLAG + 144
LA_SIZE = LA_CS + 448

def ka_prologue(A):
    A("s_cmp_ge_u32 s2, 256")
    A("s_cbranch_scc1 KA_end")
    stamp(A, True); stamp(A)
    A("s_load_dwordx16 s[4:19], s[0:1], 0")
    A("s_load_dwordx4 s[20:23], s[0:1], 80")
    A("s_load_dwordx2 s[24:25], s[0:1], 128")
    A("s_load_dwordx2 s[58:59], s[0:1], 96")
    A("v_lshrrev_b32 v2, 6, v0")
    A("v_and_b32 v1, 63, v0")
    A("v_mov_b32 v3, 0")
    A("v_readfirstlane_b32 s3, v2")
    A(f"v_lshlrev_b32 v4, 2, v1")
    A(f"v_min_u32 v4, 140, v4")
    A(f"ds_write_b32 v4, v3 offset:{LA_FLAG - 131072}", tag='z') if False else None
    A(f"v_add_u32 v4, {LA_FLAG}, v4")
    A(f"ds_write_b32 v4, v3")
    A("s_and_b32 s26, s2, 7")
    A("s_lshr_b32 s27, s2, 3")
    A("s_lshl_b32 s28, s26, 5")
    A("s_add_u32 s28, s28, s27")
    A("s_waitcnt lgkmcnt(0)")
    A("s_barrier")
    stamp(A)
    A.reset_counters()
    A("s_cmp_lt_u32 s3, 4")
    A("s_cbranch_scc1 KA_gemm")
    A("s_cmp_eq_u32 s3, 7")
    A("s_cbranch_scc1 KA_loader")
    if OPT.get('nohelp'): A("s_endpgm")
    A("s_cmp_eq_u32 s3, 4")
    A("s_cbranch_scc1 KA_ln")
    A("s_cmp_lt_u32 s3, 7")
    A("s_cbranch_scc1 KA_kgen")
    A("s_branch KA_loader")

def ka_ln(A):
    A("KA_ln:")
    A.reset_counters(); A.nst = 3
    srd(A, 32, 4, 2097152)
    srd(A, 36, 24, 2097152, WS_XNB)
    A("s_lshl_b32 s29, s28, 13")
    A("v_lshlrev_b32 v2, 4, v1")
    A("v_add_u32 v3, 4096, v2")
    X = 8
    for t in range(8):
        A(f"buffer_load_dwordx4 {v(X+4*t,4)}, v{2 + t//4}, s[32:35], s29 offen offset:{(t%4)*1024}", tag=('x', t))
    A("v_mov_b32 v4, 0x3f803f80")
    S, Q = 40, 48
    for t in range(8):
        A.wait_vm(('x', t))
        for k in range(4):
            if k == 0:
                A(f"v_dot2_f32_bf16 v{S+t}, v{X+4*t}, v4, 0")
                A(f"v_dot2_f32_bf16 v{Q+t}, v{X+4*t}, v{X+4*t}, 0")
            else:
                A(f"v_dot2_f32_bf16 v{S+t}, v{X+4*t+k}, v4, v{S+t}")
                A(f"v_dot2_f32_bf16 v{Q+t}, v{X+4*t+k}, v{X+4*t+k}, v{Q+t}")
    stamp(A)
    for B in (S, Q):
        for t in range(4):
            A(f"v_permlane32_swap_b32 v{B+t}, v{B+t+4}")
    for B in (S, Q):
        for t in range(4):
            A(f"v_add_f32 v{B+t}, v{B+t}, v{B+t+4}")
    for B in (S, Q):
        for t in range(2):
            A(f"v_permlane16_swap_b32 v{B+t}, v{B+t+2}")
    for B in (S, Q):
        for t in range(2):
            A(f"v_add_f32 v{B+t}, v{B+t}, v{B+t+2}")
    for sh in (8, 4, 2, 1):
        for r in (S, S+1, Q, Q+1):
            A(f"v_add_f32_dpp v{r}, v{r}, v{r} row_ror:{sh} row_mask:0xf bank_mask:0xf")
    for t in range(2):
        m, q, tmp = S+t, Q+t, 56+t
        A(f"v_mul_f32 v{m}, {f2u(1/512)}, v{m}")
        A(f"v_mul_f32 v{q}, {f2u(1/512)}, v{q}")
        A(f"v_fma_f32 v{q}, -v{m}, v{m}, v{q}")
        A(f"v_max_f32 v{q}, 0, v{q}")
        bf16r(A, m, m, tmp)
        bf16r(A, q, q, tmp)
        A(f"v_add_f32 v{q}, {f2u(1e-5)}, v{q}")
        bf16r(A, q, q, tmp)
        A(f"v_sqrt_f32 v{q}, v{q}")
        bf16r(A, q, q, tmp)
        A(f"v_rcp_f32 v{q}, v{q}")
    for t in range(2):
        for rho in range(4):
            A(f"v_readlane_b32 s{40 + t + 2*rho}, v{S+t}, {16*rho}")
            A(f"v_readlane_b32 s{48 + t + 2*rho}, v{Q+t}, {16*rho}")
    F, O = 64, 96
    for i in range(4):
        for h, t in enumerate((7 - 2*i, 6 - 2*i)):
            for k in range(4):
                lo, hi, x = F + 8*h + 2*k, F + 8*h + 2*k + 1, X + 4*t + k
                A(f"v_lshlrev_b32 v{lo}, 16, v{x}")
                A(f"v_and_b32 v{hi}, 0xffff0000, v{x}")
                A(f"v_subrev_f32 v{lo}, s{40+t}, v{lo}")
                A(f"v_subrev_f32 v{hi}, s{40+t}, v{hi}")
                A(f"v_cvt_pk_bf16_f32 v{x}, v{lo}, v{hi}")
                A(f"v_lshlrev_b32 v{lo}, 16, v{x}")
                A(f"v_and_b32 v{hi}, 0xffff0000, v{x}")
                A(f"v_mul_f32 v{lo}, s{48+t}, v{lo}")
                A(f"v_mul_f32 v{hi}, s{48+t}, v{hi}")
        for dl in range(8):
            A(f"v_cvt_pk_bf16_f32 v{O+4*dl+i}, v{F+dl}, v{F+8+dl}")
    for dl in range(8):
        A(f"buffer_store_dwordx4 {v(O+4*dl,4)}, v{2 + dl//4}, s[36:39], s29 offen offset:{1024*(dl%4)}")
    stamp(A)
    if DEBUG: A.wait_vm0()
    dump_stamps(A, 24, 0)
    A("s_endpgm")

XROWS = [(0,0),(0,1),(0,2),(0,3),(1,0),(1,1),(1,2),(1,3),(2,0),(2,2),(4,0),(6,0),(3,0),(3,2),(5,0),(7,0),
         (8,0),(10,0),(12,0),(14,0),(9,0),(11,0),(13,0),(15,0),(16,0)]
KT_STRIDE = 272

def ka_kgen(A):
    A("KA_kgen:")
    A.reset_counters(); A.nst = 3
    A("s_sub_u32 s29, s3, 5")
    A("s_lshl_b32 s30, s28, 1")
    A("s_add_u32 s30, s30, s29")
    A("s_lshl_b32 s31, s28, 2")
    A("s_load_dword s60, s[18:19], s31")
    A("s_lshl_b32 s31, s30, 8")
    A("v_lshlrev_b32 v2, 2, v1")
    for i in range(6):
        srd(A, 32 + 4*i, 6 + 2*i, 131072)
        A(f"buffer_load_dword v{8+i}, v2, s[{32+4*i}:{35+4*i}], s31 offen", tag='p')
    srd(A, 56, 24, 512*KG_ROW, WS_KG)
    A(f"s_mul_i32 s61, s29, {LA_KT[1]-LA_KT[0]}")
    A(f"s_add_u32 s61, s61, {LA_KT[0]}")
    A("v_add_u32 v3, s61, v2")
    A("v_and_b32 v4, 31, v1")
    A(f"v_mul_u32_u24 v4, {KT_STRIDE}, v4")
    A("v_lshrrev_b32 v5, 5, v1")
    A("v_lshl_add_u32 v4, v5, 4, v4")
    A("v_add_u32 v4, s61, v4")
    A("s_waitcnt lgkmcnt(0)")
    A("s_lshl_b32 s62, s29, 4")
    A("s_lshr_b32 s60, s60, s62")
    A("s_lshl_b32 s60, s60, 16")
    A(f"v_mov_b32 v6, {f2u(LOG2E)}")
    A("v_mul_f32 v6, s60, v6")
    A("v_exp_f32 v6, v6")
    bf16r(A, 6, 6, 7)
    A.wait_vm0()
    D = 128
    for ps in range(2):
        stamp(A)
        if DEBUG: A("s_waitcnt lgkmcnt(0)")
        for i in range(6):
            if ps == 0: A(f"v_lshlrev_b32 v{16+i}, 16, v{8+i}")
            else: A(f"v_and_b32 v{16+i}, 0xffff0000, v{8+i}")
        for i in range(4):
            A(f"v_mul_f32 v{16+i}, v6, v{16+i}")
        A(f"v_mul_f32 v16, {f2u(LOG2E)}, v16")
        A(f"v_mul_f32 v17, 0.15915494, v17")
        for base, o in ((22, 1.0), (25, 4.0), (28, 128.0)):
            if o == 1.0:
                A(f"v_exp_f32 v31, v16")
                A(f"v_fract_f32 v32, v17")
            else:
                A(f"v_mul_f32 v31, {f2u(o)}, v16")
                A(f"v_mul_f32 v32, {f2u(o)}, v17")
                A(f"v_exp_f32 v31, v31")
                A(f"v_fract_f32 v32, v32")
            A(f"v_cos_f32 v{base}, v32")
            A(f"v_sin_f32 v{base+1}, v32")
            A(f"v_mul_f32 v{base}, v31, v{base}")
            A(f"v_mul_f32 v{base+1}, v31, v{base+1}")
            A(f"v_sub_f32 v{base+2}, 0, v{base+1}")
        def cmul(d, a, b):
            A(f"v_mul_f32 v{d}, v{a}, v{b}")
            A(f"v_mul_f32 v{d+1}, v{a}, v{b+1}")
            A(f"v_fmac_f32 v{d}, v{a+1}, v{b+2}")
            A(f"v_fmac_f32 v{d+1}, v{a+1}, v{b}")
        cmul(33, 22, 22); A("v_sub_f32 v35, 0, v34")
        cmul(36, 33, 22); A("v_sub_f32 v38, 0, v37")
        ZE = {1: 22, 2: 33, 3: 36}
        A("v_mul_f32 v40, v20, v18")
        A("v_mul_f32 v41, v20, v19")
        A("v_fma_f32 v40, -v21, v19, v40")
        A("v_fmac_f32 v41, v21, v18")
        pk = [46, 47, 48, 49]; pki = 0
        def put(row, re, im, neg):
            nonlocal pki
            p = pk[pki % 4]; pki += 1
            A(f"v_cvt_pk_bf16_f32 v{p}, v{re}, {'-' if neg else ''}v{im}")
            A(f"ds_write_b32 v3, v{p} offset:{row*KT_STRIDE}", tag='w')
        cur = 40
        for a in range(17):
            for row, (ra, e) in enumerate(XROWS):
                if ra != a: continue
                if e == 0: put(row, cur, cur+1, True)
                else:
                    cmul(44, cur, ZE[e]); put(row, 44, 45, True)
            if a < 16:
                nxt = 42 if cur == 40 else 40
                cmul(nxt, cur, 28); cur = nxt
        A("v_mov_b32 v50, 0x00003f80")
        A(f"ds_write_b32 v3, v50 offset:{25*KT_STRIDE}", tag='w')
        put(26, 25, 26, False)
        cur = 25
        for b in range(2, 32):
            nxt = 42 if cur != 42 else 40
            cmul(nxt, cur, 25); cur = nxt
            put(25 + b, cur, cur+1, False)
        FA, FB = 64, 96
        for st in range(8):
            A(f"ds_read_b128 {v(FA+4*st,4)}, v4 offset:{st*32}", tag=('f', st))
            A(f"ds_read_b128 {v(FB+4*st,4)}, v4 offset:{25*KT_STRIDE + st*32}", tag=('f', st))
            if st >= 4: A.wait_lg(('f', st-4))
            if st >= 4:
                q = st - 4
                A(f"v_mfma_f32_32x32x16_bf16 {v(D,16)}, {v(FA+4*q,4)}, {v(FB+4*q,4)}, {'0' if (ps==0 and q==0) else v(D,16)}")
        for q in range(4, 8):
            A.wait_lg(('f', q))
            A(f"v_mfma_f32_32x32x16_bf16 {v(D,16)}, {v(FA+4*q,4)}, {v(FB+4*q,4)}, {v(D,16)}")
    A("v_and_b32 v7, 31, v1")
    A("v_lshlrev_b32 v7, 3, v7")
    A("v_lshl_add_u32 v7, v5, 8, v7")
    A("v_add_u32 v7, s61, v7")
    T = 16
    def dup(dst, r):
        A(f"v_cvt_pk_bf16_f32 v{dst}, v{r}, v{r}")
    A("s_mov_b32 s64, 0x55555555\ns_mov_b32 s65, 0x55555555")
    A("s_mov_b32 s66, 0x11111111\ns_mov_b32 s67, 0x11111111")
    for r in range(8, 13):
        dup(T + 2*(r-8), D + r); A(f"v_mov_b32 v{T+2*(r-8)+1}, v{T+2*(r-8)}")
    for r in (6, 7): dup(T + 10 + (r-6), D + r)
    for r in (4, 5): dup(T + 12 + (r-4), D + r)
    A(f"v_cvt_pk_bf16_f32 v{T+14}, v{D}, v{D+1}")
    A(f"v_cvt_pk_bf16_f32 v{T+15}, v{D+2}, v{D+3}")
    A("s_mov_b64 exec, 1")
    A(f"ds_write_b64 v7, {v(T+8,2)} offset:{2*(2048-4)}")
    A("s_mov_b64 exec, s[64:65]")
    for r in range(8, 12):
        o = 1024 + 256*(r-8)
        A(f"ds_write_b64 v7, {v(T+2*(r-8),2)} offset:{2*(o-4)}")
        A(f"ds_write_b64 v7, {v(T+2*(r-8),2)} offset:{2*o}")
    A("s_mov_b64 exec, s[66:67]")
    for r in range(8, 12):
        o = 1024 + 256*(r-8)
        A(f"ds_write_b16 v7, v{T+2*(r-8)} offset:{2*(o+4)}")
    A("s_mov_b64 exec, -1")
    for r in (6, 7):
        o = 512 + 256*(r-6)
        A(f"ds_write_b32 v7, v{T+10+(r-6)} offset:{2*(o-2)}")
        A(f"ds_write_b32 v7, v{T+10+(r-6)} offset:{2*o}")
    A("s_mov_b64 exec, s[64:65]")
    for r in (6, 7):
        o = 512 + 256*(r-6)
        A(f"ds_write_b16 v7, v{T+10+(r-6)} offset:{2*(o+2)}")
    A("s_mov_b64 exec, -1")
    A(f"ds_write_b16 v7, v{T+12} offset:{2*(256-1)}")
    A(f"ds_write_b32 v7, v{T+12} offset:{2*256}")
    A(f"ds_write_b16 v7, v{T+13} offset:{2*(256+2)}")
    A(f"ds_write_b64 v7, {v(T+14,2)}")
    A("v_lshlrev_b32 v2, 4, v1")
    A("v_add_u32 v3, s61, v2")
    for i in range(4):
        A(f"ds_read_b128 {v(64+4*i,4)}, v3 offset:{1024*i}", tag=('k', i))
    A(f"s_mul_i32 s31, s30, {KG_ROW}")
    A("v_mov_b32 v80, 0\nv_mov_b32 v81, 0\nv_mov_b32 v82, 0\nv_mov_b32 v83, 0")
    A("v_mov_b32 v84, 48")
    A("buffer_store_dwordx4 v[80:83], v84, s[56:59], s31 offen")
    for i in range(4):
        A.wait_lg(('k', i))
        A(f"buffer_store_dwordx4 {v(64+4*i,4)}, v2, s[56:59], s31 offen offset:{64 + 1024*i}")
    stamp(A)
    if DEBUG: A.wait_vm0()
    dump_stamps(A, 24, 0)
    A("s_endpgm")

def ka_map(A):
    mapping = OPT.get('map', '8x4')
    if mapping == '16x2':
        A("s_and_b32 s48, s27, 1")
        A("s_lshl_b32 s49, s26, 1")
        A("s_add_u32 s49, s49, s48")
        A("s_lshr_b32 s50, s27, 1")
        A("s_lshl_b32 s51, s48, 2")
        A("s_add_u32 s51, s51, s50")
    else:
        A("s_and_b32 s48, s27, 3")
        A("s_lshr_b32 s49, s26, 1")
        A("s_lshl_b32 s49, s49, 2")
        A("s_add_u32 s49, s49, s48")
        A("s_lshr_b32 s52, s27, 2")
        A("s_and_b32 s50, s26, 1")
        A("s_lshl_b32 s50, s50, 3")
        A("s_add_u32 s50, s50, s52")
        A("s_lshl_b32 s51, s48, 1")
        A("s_add_u32 s51, s51, s52")
    if OPT.get('order', 'same') == 'same': A("s_mov_b32 s51, 0")
    if OPT.get('order') == 'half': A("s_and_b32 s51, s51, 1")
    if OPT.get('order') == 'quarter': A("s_and_b32 s51, s51, 3")

LA_FULL = LA_FLAG
LA_DONE = LA_FLAG + 32

def ka_loader(A):
    A("KA_loader:")
    A.reset_counters(); A.nst = 3
    A("s_setprio 3")
    srd(A, 32, 4, 2097152)
    srd(A, 36, 20, 1835008)
    ka_map(A)
    A("v_and_b32 v2, 15, v1")
    A("v_lshrrev_b32 v3, 4, v1")
    A("s_mul_i32 s53, s50, 224")
    A("s_and_b32 s53, s53, 0xffffffc0")
    A("v_mul_u32_u24 v4, 3584, v3")
    A("v_add_u32 v4, s53, v4")
    A("v_lshlrev_b32 v5, 1, v3")
    A("v_xor_b32 v5, v5, v2")
    for q in range(4):
        A(f"v_xor_b32 v6, {8*((q>>1)&1)}, v5")
        A(f"v_lshl_add_u32 v{8+q}, v6, 4, v4")
        if q: A(f"v_add_u32 v{8+q}, {q*(4*3584-1024)}, v{8+q}")
    A("v_lshrrev_b32 v4, 3, v1")
    A("v_lshrrev_b32 v5, 4, v1")
    A("v_and_b32 v6, 7, v1")
    A("v_xor_b32 v5, v5, v6")
    A("s_lshl_b32 s52, s49, 7")
    A("v_add_u32 v4, s52, v4")
    A("v_lshlrev_b32 v4, 10, v4")
    for q in range(4):
        A(f"v_xor_b32 v6, {4*(q&1)}, v5")
        A(f"v_lshl_add_u32 v{12+q}, v6, 4, v4")
        if q: A(f"v_add_u32 v{12+q}, {q*(8192-1024)}, v{12+q}")
    A("v_mov_b32 v16, 1")
    A(f"v_mov_b32 v17, {LA_FLAG}")
    def issue(u, parts):
        if 0 in parts:
            A(f"s_add_u32 s55, s51, {u}")
            A("s_and_b32 s55, s55, 7")
            A("s_lshl_b32 s56, s55, 7")
            A(f"s_mul_i32 s57, s55, {64*3584}")
        base = LA_W1 + (u % 4) * 32768
        for part in parts:
            qq = part // 2
            if part % 2 == 0:
                A(f"s_mov_b32 m0, {base + qq*4096}")
                if qq: A(f"s_add_u32 s57, s57, {16*3584}")
                for q in range(4):
                    A(f"buffer_load_dwordx4 v{8+q}, s[36:39], s57 offen offset:{1024*q} lds", tag=('u', u))
            else:
                A(f"s_mov_b32 m0, {base + 16384 + qq*4096}")
                if qq: A(f"s_add_u32 s56, s56, 32768")
                for q in range(4):
                    A(f"buffer_load_dwordx4 v{12+q}, s[32:35], s56 offen offset:{1024*q} lds", tag=('u', u))
    def post(u):
        A.wait_vm(('u', u))
        A(f"ds_write_b32 v17, v16 offset:{4*u}")
    PP = int(OPT.get('PP', 4))
    issue(0, range(8))
    for u in range(1, 8):
        if u >= 4:
            L1 = A.newlabel('fr')
            A(f"{L1}:")
            A(f"ds_read_b128 v[20:23], v17 offset:32")
            A("s_waitcnt lgkmcnt(0)")
            A("v_min_u32 v20, v20, v21")
            A("v_min3_u32 v20, v20, v22, v23")
            A(f"v_cmp_le_u32 vcc, {u-3}, v20")
            A(f"s_cbranch_vccz {L1}")
        issue(u, range(PP))
        post(u-1)
        issue(u, range(PP, 8))
        if u in (1, 4): stamp(A)
    post(7)
    stamp(A)
    if not OPT.get('nopf'):
        srd(A, 40, 58, 1835008)
        A("v_lshrrev_b32 v4, 5, v1")
        A("v_lshlrev_b32 v4, 10, v4")
        A("v_and_b32 v5, 31, v1")
        A("v_lshl_add_u32 v4, v5, 4, v4")
        A("s_mul_i32 s52, s27, 57344")
        A("s_and_b32 s53, s26, 1")
        A("s_lshl_b32 s53, s53, 9")
        A("s_add_u32 s52, s52, s53")
        for i in range(28):
            A(f"buffer_load_dwordx4 {v(24+4*(i%8),4)}, v4, s[40:43], s52 offen offset:{2048*(i%2)}")
            if i % 2: A("s_add_u32 s52, s52, 4096")
    srd(A, 32, 24, 2097152, WS_ST)
    A("s_lshl_b32 s29, s28, 13")
    A("v_lshlrev_b32 v4, 4, v1")
    A("v_mov_b32 v8, -1\nv_mov_b32 v9, -1\nv_mov_b32 v10, -1\nv_mov_b32 v11, -1")
    for i in range(8):
        A(f"buffer_store_dwordx4 v[8:11], v4, s[32:35], s29 offen offset:{1024*(i%4)}")
        if i == 3: A("s_add_u32 s29, s29, 4096")
    dump_stamps(A, 24, 0)
    A("s_endpgm")

def ka_gemm(A):
    A("KA_gemm:")
    A.reset_counters(); A.nst = 3
    A("s_setprio 2")
    ka_map(A)
    A("v_and_b32 v2, 15, v1")
    A("v_lshrrev_b32 v3, 4, v1")
    srd(A, 40, 22, 3584)
    srd(A, 44, 24, 7340032, WS_H)
    A("v_bfe_u32 v6, v1, 2, 2")
    A("v_and_b32 v9, 1, v3")
    A("v_lshl_or_b32 v9, v9, 2, v6")
    A("v_lshl_add_u32 v10, v3, 3, v6")
    A("v_lshlrev_b32 v10, 8, v10")
    A("v_and_b32 v11, 3, v1")
    A("v_lshl_add_u32 v10, v11, 3, v10")
    A("s_and_b32 s68, s50, 1")
    AB = 12
    for tau in range(7):
        A(f"s_lshl_b32 s59, s3, 1")
        A(f"s_add_u32 s59, s59, {tau}")
        A(f"s_sub_u32 s67, s59, 7")
        A(f"s_cmp_ge_u32 s59, 7")
        A(f"s_cselect_b32 s{60+tau}, s67, s59")
        A(f"s_add_u32 s59, s{60+tau}, s68")
        A(f"v_xor_b32 v11, s59, v9")
        A(f"v_lshl_add_u32 v{AB+tau}, v11, 5, v10")
    A("v_lshrrev_b32 v6, 1, v2")
    A("v_xor_b32 v6, v6, v3")
    A("v_lshlrev_b32 v6, 4, v6")
    A("v_lshl_add_u32 v6, v2, 7, v6")
    A("s_lshl_b32 s59, s3, 12")
    A("s_add_u32 s59, s59, 16384")
    A("v_add_u32 v4, s59, v6")
    A("v_xor_b32 v5, 64, v4")
    A("s_mul_i32 s53, s50, 224")
    A("v_lshlrev_b32 v6, 3, v3")
    B1 = 20
    for tau in range(7):
        A(f"s_lshl_b32 s59, s{60+tau}, 5")
        A(f"s_add_u32 s59, s59, s53")
        A(f"buffer_load_dwordx2 {v(B1+2*tau,2)}, v6, s[40:43], s59 offen", tag='b1')
    ONES = 36
    for i in range(4): A(f"v_mov_b32 v{ONES+i}, 0x3f803f80")
    A("v_mov_b32 v34, 1")
    A(f"s_lshl_b32 s59, s3, 2")
    A(f"s_add_u32 s59, s59, {LA_FLAG}")
    A("v_mov_b32 v35, s59")
    A(f"v_mov_b32 v2, {LA_FLAG}")
    FL = 40
    AF = 44
    ACC = 72
    XR = 128
    ACS, ARS, AQS = 192, 200, 208
    def check_issue(off):
        A(f"ds_read_b128 {v(FL,4)}, v2 offset:{off}", tag='fr')
    def check_eval(off):
        L1, L2 = A.newlabel('chk'), A.newlabel('chk')
        A(f"{L1}:")
        A.wait_lg0()
        A(f"v_add3_u32 v{FL}, v{FL}, v{FL+1}, v{FL+2}")
        A(f"v_add_u32 v{FL}, v{FL}, v{FL+3}")
        A(f"v_cmp_eq_u32 vcc, 4, v{FL}")
        A(f"s_cbranch_vccnz {L2}")
        A(f"ds_read_b128 {v(FL,4)}, v2 offset:{off}")
        A(f"s_branch {L1}")
        A(f"{L2}:")
        A.lg = []
    def full_issue(u):
        A(f"ds_read_b32 v{FL}, v2 offset:{4*u}", tag=('fu', u))
    def full_eval(u):
        L1, L2 = A.newlabel('fu'), A.newlabel('fu')
        A.wait_lg(('fu', u))
        A(f"v_cmp_eq_u32 vcc, 1, v{FL}")
        A(f"s_cbranch_vccnz {L2}")
        A(f"{L1}:")
        A(f"ds_read_b32 v{FL}, v2 offset:{4*u}")
        A.lg.pop()
        A("s_waitcnt lgkmcnt(0)")
        A(f"v_cmp_eq_u32 vcc, 1, v{FL}")
        A(f"s_cbranch_vccz {L1}")
        A(f"{L2}:")
    def trread(j, tau, hh):
        if OPT.get('noread') and j > 0: return
        off = ((j//2) % 2) * 32768 + (j % 2) * 8192 + hh * 1024
        A(f"ds_read_b64_tr_b16 {v(AF+4*tau+2*hh,2)}, v{AB+tau} offset:{off}", tag=('a', j, tau))
    def xread(j, nt):
        if OPT.get('noread') and j > 0: return
        off = ((j//2) % 2) * 32768 + nt * 2048
        A(f"ds_read_b128 {v(XR+8*(j%2)+4*nt,4)}, v{4 + j%2} offset:{off}", tag=('x', j))
    full_issue(0); full_eval(0)
    stamp(A)
    if DEBUG: A("s_waitcnt lgkmcnt(0)")
    xread(0, 0); xread(0, 1)
    for tau in range(7):
        for hh in range(2): trread(0, tau, hh)
    for j in range(16):
        if j in (4, 8, 12) and DEBUG:
            A.wait_lg0(); stamp(A); A("s_waitcnt lgkmcnt(0)")
        sl = XR + 8*(j % 2)
        c0 = (j == 0)
        def mf(acc, a, b):
            if OPT.get('nomfma') and not c0: return
            A(f"v_mfma_f32_16x16x32_bf16 {v(acc,4)}, {v(a,4)}, {v(b,4)}, {'0' if c0 else v(acc,4)}")
        A.wait_lg(('x', j))
        mf(ARS, ONES, sl)
        if j % 2 == 1 and j < 15: full_eval((j+1)//2)
        mf(AQS, sl, sl)
        flip = (j < 15 and (j + 1) % 4 == 0)
        if j < 15 and flip:
            A(f"v_xor_b32 v4, 0x10000, v4"); A(f"v_xor_b32 v5, 0x10000, v5")
        mf(ARS+4, ONES, sl+4)
        if j < 15: xread(j+1, 0); xread(j+1, 1)
        mf(AQS+4, sl+4, sl+4)
        for tau in range(7):
            if tau % 2 == 0: A.wait_lg(('a', j, tau), ('a', j, min(tau+1, 6)))
            mf(ACC + 8*tau, AF + 4*tau, sl)
            if j < 15 and flip: A(f"v_xor_b32 v{AB+tau}, 0x10000, v{AB+tau}")
            if tau == 6 and j % 2 == 1 and j < 8:
                A(f"v_mov_b32 v6, {j//2 + 1}")
                A(f"ds_write_b32 v35, v6 offset:32", tag='dn')
            if tau == 5 and j % 2 == 0 and j < 14: full_issue(j//2 + 1)
            mf(ACC + 8*tau + 4, AF + 4*tau, sl + 4)
            if tau < 2: mf(ACS + 4*tau, AF + 4*tau, ONES)
            if j < 15:
                trread(j+1, tau, 0); trread(j+1, tau, 1)
    T0 = 144
    stamp(A)
    if DEBUG: A("s_waitcnt lgkmcnt(0)")
    for tau in range(2):
        A(f"s_lshl_b32 s59, s{60+tau}, 6")
        A(f"s_add_u32 s59, s59, {LA_CS}")
        A(f"v_lshl_add_u32 v{T0+tau}, v3, 4, s59")
        A(f"ds_write_b128 v{T0+tau}, {v(ACS+4*tau,4)}", tag='cw')
    A.wait_lg0()
    A(f"ds_write_b32 v35, v34 offset:128", tag='fl')
    A("v_and_b32 v6, 15, v1")
    A("v_and_b32 v8, 3, v1")
    A("v_lshrrev_b32 v9, 2, v6")
    A("v_lshl_add_u32 v9, v9, 4, v6")
    A("v_lshlrev_b32 v9, 2, v9")
    MN, RE = 132, 136
    A("v_cmp_eq_u32 s[52:53], 1, v8")
    A("v_cmp_eq_u32 s[54:55], 2, v8")
    A("v_cmp_eq_u32 s[56:57], 3, v8")
    for k in range(3):
        for nt in range(2):
            q = AQS + 4*nt
            A(f"v_cndmask_b32 v{q}, v{q}, v{q+1+k}, s[{52+2*k}:{53+2*k}]")
    for nt in range(2):
        q = AQS + 4*nt
        A(f"ds_bpermute_b32 v{q+1}, v9, v{q}", tag=('bp', nt))
    BF = 164
    A.wait_vm('b1')
    for tau in range(7):
        for k in range(2):
            A(f"v_lshlrev_b32 v{BF+4*tau+2*k}, 16, v{B1+2*tau+k}")
            A(f"v_and_b32 v{BF+4*tau+2*k+1}, 0xffff0000, v{B1+2*tau+k}")
    A.wait_lg(('bp', 0), ('bp', 1))
    check_issue(128)
    seqs = []
    for nt in range(2):
        m, q = ARS + 4*nt, AQS + 4*nt + 1
        t1, t2, t3, t4 = m+1, m+2, m+3, q+1
        S = []
        def br(d, x): S.extend([f'v_cvt_pk_bf16_f32 v{t4}, v{x}, v{x}', f'v_lshlrev_b32 v{d}, 16, v{t4}'])
        S.append(f"v_mul_f32 v{m}, {f2u(1/512)}, v{m}")
        S.append(f"v_mul_f32 v{q}, {f2u(1/512)}, v{q}")
        S.append(f"v_fma_f32 v{q}, -v{m}, v{m}, v{q}")
        S.append(f"v_max_f32 v{q}, 0, v{q}")
        br(t1, q)
        S.append(f"v_add_f32 v{t1}, {f2u(1e-5)}, v{t1}")
        br(t1, t1)
        S.append(f"v_sqrt_f32 v{t1}, v{t1}")
        br(t1, t1)
        S.append(f"v_rcp_f32 v{t2}, v{t1}")
        br(t3, m)
        S.append(f"v_sub_f32 v{m}, v{m}, v{t3}")
        S.append(f"v_mul_f32 v{m}, v{m}, v{t2}")
        br(m, m)
        S.append(f"v_fmac_f32 v{t3}, v{m}, v{t1}")
        S.append(f"v_sub_f32 v{MN+2*nt}, 0, v{t3}")
        S.append(f"v_mul_f32 v{q}, v{q}, v{t2}")
        S.append(f"v_mul_f32 v{q}, v{q}, v{t2}")
        br(q, q)
        S.append(f"v_add_f32 v{q}, {f2u(1e-5)}, v{q}")
        br(q, q)
        S.append(f"v_sqrt_f32 v{q}, v{q}")
        br(q, q)
        S.append(f"v_rcp_f32 v{q}, v{q}")
        S.append(f"v_mul_f32 v{RE+2*nt}, v{q}, v{t2}")
        seqs.append(S)
    for x, y in zip(*seqs): A(x); A(y)
    check_eval(128)
    stamp(A)
    if DEBUG: A("s_waitcnt lgkmcnt(0)")
    CS = 44
    for tau in range(7):
        A(f"s_lshl_b32 s59, s{60+tau}, 6")
        A(f"s_add_u32 s59, s59, {LA_CS}")
        A(f"v_lshl_add_u32 v{T0+tau}, v3, 4, s59")
        A(f"ds_read_b128 {v(CS+4*tau,4)}, v{T0+tau}", tag=('cs', tau))
    C1, C2, C3 = 196, 198, 200
    k0 = -2.0 * LOG2E * 0.7978845608028654
    A(f"v_mov_b32 v{C1}, {f2u(k0*0.044715)}")
    A(f"v_mov_b32 v{C2}, {f2u(k0)}")
    A(f"v_mov_b32 v{C3}, 1.0")
    A("s_lshl_b32 s52, s49, 3")
    A("s_lshl_b32 s53, s3, 1")
    A("s_add_u32 s52, s52, s53")
    A("s_mul_i32 s52, s52, 57344")
    A("s_mul_i32 s53, s50, 3584")
    A("s_add_u32 s52, s52, s53")
    A("v_lshrrev_b32 v8, 1, v3")
    A("v_lshlrev_b32 v8, 8, v8")
    A("v_lshl_add_u32 v8, v6, 4, v8")
    A("v_add_u32 v8, s52, v8")
    A("v_and_b32 v10, 1, v3")
    A("v_cmp_eq_u32 vcc, 1, v10")
    SA = 10
    for pr in range(4):
        A(f"s_lshl_b32 s59, s{60+2*pr}, 9")
        if pr < 3: A(f"s_lshl_b32 s67, s{60+2*pr+1}, 9")
        else: A(f"s_add_u32 s67, s59, 57344")
        A(f"v_mov_b32 v14, s59")
        A(f"v_mov_b32 v15, s67")
        A(f"v_cndmask_b32 v14, v14, v15, vcc")
        A(f"v_add_u32 v{SA+pr}, v14, v8")
    A(f"s_mov_b32 s59, 57344")
    TM = 202
    OUT = 224
    oi = 0
    bc = "op_sel_hi:[1,0,1]"
    groups = [((0,0),(1,0)), ((2,0),(3,0)), ((4,0),(5,0)), ((6,0),(6,1)), ((0,1),(1,1)), ((2,1),(3,1)), ((4,1),(5,1))]
    for grp in groups:
        o = OUT + 4 * (oi % 4); oi += 1
        chains = []
        for ti, (tau, nt) in enumerate(grp):
            A.wait_lg(('cs', tau))
            for pr in range(2):
                a = ACC + 8*tau + 4*nt + 2*pr
                t = TM + 2*(2*ti + pr)
                chains.append([
                    f"v_pk_fma_f32 {v(a,2)}, {v(CS+4*tau+2*pr,2)}, {v(MN+2*nt,2)}, {v(a,2)} {bc}",
                    f"v_pk_fma_f32 {v(a,2)}, {v(a,2)}, {v(RE+2*nt,2)}, {v(BF+4*tau+2*pr,2)} {bc}",
                    f"v_pk_mul_f32 {v(t,2)}, {v(a,2)}, {v(a,2)}",
                    f"v_pk_fma_f32 {v(t,2)}, {v(t,2)}, {v(C1,2)}, {v(C2,2)} op_sel_hi:[1,0,0]",
                    f"v_pk_mul_f32 {v(t,2)}, {v(t,2)}, {v(a,2)}",
                    f"v_exp_f32 v{t}, v{t}",
                    f"v_exp_f32 v{t+1}, v{t+1}",
                    f"v_pk_add_f32 {v(t,2)}, {v(t,2)}, {v(C3,2)} op_sel_hi:[1,0]",
                    f"v_rcp_f32 v{t}, v{t}",
                    f"v_rcp_f32 v{t+1}, v{t+1}",
                    f"v_pk_mul_f32 {v(t,2)}, {v(t,2)}, {v(a,2)}",
                    f"v_cvt_pk_bf16_f32 v{o+2*ti+pr}, v{t}, v{t+1}"])
        for ins in zip(*chains):
            for x in ins: A(x)
        A(f"v_permlane16_swap_b32 v{o}, v{o+2}")
        A(f"v_permlane16_swap_b32 v{o+1}, v{o+3}")
        so = 's59' if (grp[0][1] == 1) else '0'
        A(f"buffer_store_dwordx4 {v(o,4)}, v{SA+grp[0][0]//2}, s[44:47], {so} offen")
    stamp(A)
    if DEBUG: A.wait_vm0()
    dump_stamps(A, 24, 0)
    A("s_endpgm")

def kernel_a():
    A = Asm()
    A(".globl ka_kernel\n.p2align 8\n.type ka_kernel,@function")
    A("ka_kernel:")
    ka_prologue(A)
    ka_loader(A)
    ka_gemm(A)
    ka_ln(A)
    ka_kgen(A)
    A("KA_end:")
    A("s_endpgm")
    return A.text()

def kd(name, vgpr=256, sgpr=102):
    return f""".p2align 6
.amdhsa_kernel {name}
  .amdhsa_next_free_vgpr {vgpr}
  .amdhsa_next_free_sgpr {sgpr}
  .amdhsa_accum_offset {vgpr}
  .amdhsa_group_segment_fixed_size 0
  .amdhsa_kernarg_size 136
  .amdhsa_user_sgpr_count 2
  .amdhsa_user_sgpr_kernarg_segment_ptr 1
  .amdhsa_system_sgpr_workgroup_id_x 1
.end_amdhsa_kernel
"""

if __name__ == '__main__':
    out = sys.argv[1] if len(sys.argv) > 1 else f'cdna_kernels/{NAME}.s'
    txt = f"; @launch kernel=ka_kernel grid=(256,1,1) block=(512,1,1) lds={LA_SIZE}\n"
    body = kernel_a()
    kds = kd('ka_kernel')
    try:
        import genb
        txt += genb.launch_lines()
        body += genb.kernel_b()
        kds += genb.kds()
    except ImportError:
        pass
    txt += '.amdgcn_target "amdgcn-amd-amdhsa--gfx950"\n.text\n' + body + '.section .rodata,"a"\n' + kds
    open(out, 'w').write(txt)
```

```python
from gen import *
import gen

NR = 5
NU = 1
LB_RING = 0
LB_CONV = 4 * NR * 4096
CV_STRIDE = 2 * 4160 + 4576
LB_TAB = LB_CONV + 2 * CV_STRIDE
TAB_STRIDE = 32 * KT_STRIDE
LB_FLAG = LB_TAB + 4 * TAB_STRIDE
LB_SIZE = LB_FLAG + 96 + NU * 16

def launch_lines():
    return f"; @launch kernel=kb_kernel grid=(256,1,1) block=(512,1,1) lds={LB_SIZE}\n"

def wait_flags(A, areg, off, n, treg):
    L1 = A.newlabel('wf')
    A(f"{L1}:")
    if n == 1:
        A(f"ds_read_b32 v{treg}, v{areg} offset:{off}")
        A("s_waitcnt lgkmcnt(0)")
    else:
        A(f"ds_read_b128 {v(treg,4)}, v{areg} offset:{off}")
        A("s_waitcnt lgkmcnt(0)")
        A(f"v_and_b32 v{treg}, v{treg}, v{treg+1}")
        A(f"v_and_b32 v{treg+2}, v{treg+2}, v{treg+3}")
        A(f"v_and_b32 v{treg}, v{treg}, v{treg+2}")
    A(f"v_cmp_eq_u32 vcc, 1, v{treg}")
    A(f"s_cbranch_vccz {L1}")
    A.lg = []

def kb_prologue(A):
    A("s_cmp_ge_u32 s2, 256")
    A("s_cbranch_scc1 KB_end")
    stamp(A, True); stamp(A)
    A("s_load_dwordx16 s[4:19], s[0:1], 0")
    A("s_load_dwordx2 s[20:21], s[0:1], 64")
    A("s_load_dwordx4 s[60:63], s[0:1], 96")
    A("s_load_dwordx2 s[22:23], s[0:1], 112")
    A("s_load_dwordx2 s[24:25], s[0:1], 128")
    A("v_lshrrev_b32 v2, 6, v0")
    A("v_and_b32 v1, 63, v0")
    A("v_mov_b32 v3, 0")
    A("v_readfirstlane_b32 s3, v2")
    A("v_min_u32 v4, 13, v1")
    A("v_lshlrev_b32 v4, 3, v4")
    A(f"v_add_u32 v4, {LB_FLAG}, v4")
    A("v_mov_b32 v6, 0\nv_mov_b32 v7, 0")
    A("ds_write_b64 v4, v[6:7]")
    A("s_and_b32 s26, s2, 7")
    A("s_lshr_b32 s27, s2, 3")
    A("s_lshl_b32 s28, s26, 5")
    A("s_add_u32 s28, s28, s27")
    A("s_lshr_b32 s29, s26, 1")
    A("s_lshl_b32 s29, s29, 3")
    A("s_and_b32 s30, s27, 7")
    A("s_add_u32 s29, s29, s30")
    A("s_and_b32 s30, s26, 1")
    A("s_lshl_b32 s30, s30, 2")
    A("s_lshr_b32 s31, s27, 3")
    A("s_add_u32 s30, s30, s31")
    A("v_and_b32 v2, 15, v1")
    A("v_lshrrev_b32 v3, 4, v1")
    A("s_waitcnt lgkmcnt(0)")
    A("s_barrier")
    stamp(A)
    A.reset_counters()
    A("s_cmp_ge_u32 s3, 4")
    A("s_cbranch_scc1 KB_conv")

def kb_gemm(A):
    LA = int(OPT.get('LA', 3))
    assert LA + 2 <= NR
    A.reset_counters(); A.nst = 3
    A(f"s_setprio {OPT.get('gprio', 0)}")
    if OPT.get('nogemm'): A("s_endpgm")
    srd(A, 32, 24, 7340032, WS_H)
    srd(A, 36, 60, 1835008)
    A("v_lshlrev_b32 v236, 4, v1")
    for l in range(4):
        A(f"s_add_u32 s49, s3, {l}")
        A("s_and_b32 s49, s49, 3")
        A("s_mul_i32 s49, s49, 57344")
        A(f"v_add_u32 v{4+l}, s49, v236")
    A(f"s_mul_i32 s48, s29, {4*57344}")
    A("s_lshl_b32 s49, s3, 10")
    A("s_add_u32 s48, s48, s49")
    A("v_lshrrev_b32 v12, 3, v1")
    A("v_and_b32 v13, 7, v1")
    A("v_bfe_u32 v14, v1, 4, 1")
    A("v_lshlrev_b32 v14, 1, v14")
    A("v_xor_b32 v13, v13, v14")
    A("v_lshlrev_b32 v12, 10, v12")
    A("s_lshl_b32 s49, s30, 7")
    A("v_add_u32 v12, s49, v12")
    for q in range(4):
        A(f"v_xor_b32 v14, {4*(q&1)}, v13")
        A(f"v_lshl_add_u32 v{8+q}, v14, 4, v12")
        if q: A(f"v_add_u32 v{8+q}, {q*(8192-1024)}, v{8+q}")
    A("s_lshl_b32 s50, s3, 15")
    A(f"s_mul_i32 s51, s3, {NR*4096}")
    NSTEP = 14
    if OPT.get('uord', 'local') == 'local':
        A("s_and_b32 s57, s26, 1")
        A("s_mul_i32 s57, s57, 7")
    else:
        A("s_mov_b32 s57, 0")
    HB, NH = 112, LA + 2
    assert HB + 16 * NH <= 208
    def loads(j):
        hb = HB + 16 * (j % NH)
        def first():
            A("s_lshl_b32 s58, s57, 12")
            A("s_add_u32 s58, s58, s48")
            A("s_lshl_b32 s59, s57, 17")
            A("s_add_u32 s59, s59, s50")
            A(f"s_add_u32 m0, s51, {(j % NR)*4096}")
            A(f"buffer_load_dwordx4 v8, s[36:39], s59 offen lds", tag=('ld', j))
        fs = [first]
        for q in range(1, 4):
            fs.append(lambda q=q: A(f"buffer_load_dwordx4 v{8+q}, s[36:39], s59 offen offset:{1024*q} lds", tag=('ld', j)))
        for nt in range(4):
            fs.append(lambda nt=nt: A(f"buffer_load_dwordx4 {v(hb+4*nt,4)}, v{4+nt}, s[32:35], s58 offen", tag=('ld', j)))
        def last():
            A("s_add_u32 s57, s57, 1")
            A(f"s_cmp_eq_u32 s57, {NSTEP}")
            A("s_cselect_b32 s57, 0, s57")
        fs.append(last)
        return fs
    for j in range(2):
        for f in loads(j): f()
    A("v_bfe_u32 v16, v1, 2, 2")
    A("v_lshrrev_b32 v17, 1, v16")
    A("v_and_b32 v18, 1, v3")
    A("v_lshl_or_b32 v17, v18, 1, v17")
    A("v_lshl_add_u32 v18, v3, 3, v16")
    A("v_lshlrev_b32 v18, 7, v18")
    A("v_and_b32 v19, 3, v1")
    A("v_lshl_add_u32 v18, v19, 3, v18")
    A("v_add_u32 v18, s51, v18")
    for mt in range(4):
        A(f"v_xor_b32 v19, {mt}, v17")
        A(f"v_lshl_add_u32 v{12+mt}, v19, 5, v18")
    for j in range(2, LA + 1):
        for f in loads(j): f()
    srd(A, 40, 4, 2097152)
    srd(A, 44, 62, 1024)
    srd(A, 52, 22, 2097152)
    A("s_lshl_b32 s49, s29, 6")
    A("s_lshl_b32 s56, s3, 4")
    A("s_add_u32 s49, s49, s56")
    A("v_add_u32 v16, s49, v2")
    A("v_lshlrev_b32 v16, 10, v16")
    A("v_and_b32 v17, 1, v3")
    A("v_lshl_add_u32 v16, v17, 5, v16")
    A("v_lshrrev_b32 v17, 1, v3")
    A("v_lshl_add_u32 v16, v17, 4, v16")
    A("s_lshl_b32 s49, s30, 7")
    A("v_add_u32 v16, s49, v16")
    A("v_lshlrev_b32 v17, 3, v3")
    A("v_mov_b32 v44, 1")
    A("s_lshl_b32 s56, s3, 2")
    A(f"s_add_u32 s56, s56, {LB_FLAG}")
    A("v_mov_b32 v45, s56")
    A(f"v_mov_b32 v46, {LB_FLAG}")
    A("v_add_u32 v47, s51, v236")
    A("v_bfe_u32 v18, v1, 2, 2")
    A("v_lshl_add_u32 v18, v3, 2, v18")
    A("v_bfe_u32 v19, v18, 1, 2")
    A("v_xor_b32 v19, s3, v19")
    A("v_lshlrev_b32 v18, 7, v18")
    A("v_lshl_add_u32 v18, v19, 5, v18")
    A("v_and_b32 v19, 3, v1")
    A("v_lshl_add_u32 v18, v19, 3, v18")
    A(f"v_add_u32 v18, {LB_TAB + 4096}, v18")
    for k in range(1, 4):
        A(f"s_add_u32 s56, s3, {k}")
        A("s_and_b32 s56, s56, 3")
        A(f"s_mul_i32 s56, s56, {NR*4096}")
        A(f"s_add_u32 s56, s56, {(4-k)*4096}")
        A(f"v_add_u32 v{247+k}, s56, v236")
    for l in range(4):
        pass
    AF, ACC = 28, 48
    def trread(j, mt):
        for hh in range(2):
            A(f"ds_read_b64_tr_b16 {v(AF+4*mt+2*hh,2)}, v{12+mt} offset:{(j % NR)*4096 + hh*512}", tag=('a', j, mt))
    A.wait_vm(('ld', 0))
    stamp(A)
    if DEBUG: A("s_waitcnt lgkmcnt(0)")
    for mt in range(4): trread(0, mt)
    for j in range(NSTEP):
        if j in (4, 9) and DEBUG:
            A.wait_lg0(); stamp(A); A("s_waitcnt lgkmcnt(0)")
        fs = loads(j + LA + 1) if j + LA + 1 < NSTEP else []
        if j == NSTEP - LA - 1:
            fs = [lambda: A("buffer_load_dwordx4 v[20:23], v16, s[40:43], 0 offen", tag='ep'),
                  lambda: A("buffer_load_dwordx4 v[24:27], v16, s[40:43], 0 offen offset:64", tag='ep')]
            for mt in range(4):
                fs.append(lambda mt=mt: A(f"buffer_load_dwordx2 {v(240+2*mt,2)}, v17, s[44:47], s49 offen offset:{32*mt}", tag='ep'))
        if j == int(OPT.get('GO', 9)): A("ds_write_b32 v45, v44 offset:64", tag='go')
        if j + 1 < NSTEP: A.wait_vm(('ld', j + 1))
        hb = HB + 16 * (j % NH)
        if j + 1 < NSTEP:
            for mt in range(4):
                A.wait_lg(('a', j, mt))
                for nt in range(4):
                    acc = ACC + 16*nt + 4*mt
                    A(f"v_mfma_f32_16x16x32_bf16 {v(acc,4)}, {v(AF+4*mt,4)}, {v(hb+4*nt,4)}, {'0' if j == 0 else v(acc,4)}")
                    if fs and nt < 3: fs.pop(0)()
                trread(j + 1, mt)
            while fs: fs.pop(0)()
        else:
            A.wait_lg0()
            pend = []
            for nt in (1, 2, 3, 0):
                for mt in range(4):
                    acc = ACC + 16*nt + 4*mt
                    A(f"v_mfma_f32_16x16x32_bf16 {v(acc,4)}, {v(AF+4*mt,4)}, {v(hb+4*nt,4)}, {v(acc,4)}")
                    if len(pend) >= 4:
                        a2, o2 = pend.pop(0)
                        A(f"ds_write_b128 v47, {v(a2,4)} offset:{o2}")
                    if nt: pend.append((acc, (4*nt+mt)*1024))
            for a2, o2 in pend: A(f"ds_write_b128 v47, {v(a2,4)} offset:{o2}")
    stamp(A)
    A("s_waitcnt lgkmcnt(0)")
    A("ds_write_b32 v45, v44 offset:96")
    A.wait_vm('ep')
    BB, XX, SS, T = 176, 192, 208, 128
    for mt in range(4):
        for k in range(2):
            A(f"v_lshlrev_b32 v{BB+4*mt+2*k}, 16, v{240+2*mt+k}")
            A(f"v_and_b32 v{BB+4*mt+2*k+1}, 0xffff0000, v{240+2*mt+k}")
    for r in range(0, 16, 2):
        A(f"v_pk_add_f32 {v(ACC+r,2)}, {v(ACC+r,2)}, {v(BB+r,2)}")
    if not (OPT.get('noconv') or OPT.get('nopoll')): wait_flags(A, 46, 32, 4, 8)
    for mt in range(4):
        A(f"ds_read_b64_tr_b16 {v(224+2*mt,2)}, v18 offset:{mt*TAB_STRIDE}", tag='s')
    for k in range(8):
        A(f"v_lshlrev_b32 v{XX+2*k}, 16, v{20+k}")
        A(f"v_and_b32 v{XX+2*k+1}, 0xffff0000, v{20+k}")
    A(f"v_mov_b32 v232, {f2u(-LOG2E)}")
    A(f"v_mov_b32 v234, 1.0")
    wait_flags(A, 46, 96, 4, 8)
    stamp(A)
    if DEBUG: A("s_waitcnt lgkmcnt(0)")
    PR = 128
    for k in range(1, 4):
        for mt in range(4):
            A(f"ds_read_b128 {v(PR+16*(k-1)+4*mt,4)}, v{247+k} offset:{mt*1024}", tag=('p', k))
    for mt in range(4):
        for k in range(2):
            A(f"v_lshlrev_b32 v{SS+4*mt+2*k}, 16, v{224+2*mt+k}")
            A(f"v_and_b32 v{SS+4*mt+2*k+1}, 0xffff0000, v{224+2*mt+k}")
    for k in range(1, 4):
        A.wait_lg(('p', k))
        for r in range(0, 16, 2):
            A(f"v_pk_add_f32 {v(ACC+r,2)}, {v(ACC+r,2)}, {v(PR+16*(k-1)+r,2)}")
    for r in range(0, 16, 2):
        A(f"v_pk_mul_f32 {v(T+r,2)}, {v(ACC+r,2)}, {v(232,2)} op_sel_hi:[1,0]")
    for r in range(16): A(f"v_exp_f32 v{T+r}, v{T+r}")
    for r in range(0, 16, 2):
        A(f"v_pk_add_f32 {v(T+r,2)}, {v(T+r,2)}, {v(234,2)} op_sel_hi:[1,0]")
        A(f"v_pk_mul_f32 {v(ACC+r,2)}, {v(ACC+r,2)}, {v(SS+r,2)}")
    for r in range(16): A(f"v_rcp_f32 v{T+r}, v{T+r}")
    for r in range(0, 16, 2):
        A(f"v_pk_mul_f32 {v(ACC+r,2)}, {v(ACC+r,2)}, {v(T+r,2)}")
    O = 160
    for r in range(0, 16, 2):
        A(f"v_cvt_pk_bf16_f32 v{O+r//2}, v{ACC+r}, v{ACC+r+1}")
    for pr in range(2):
        A(f"v_permlane16_swap_b32 v{O+4*pr}, v{O+4*pr+2}")
        A(f"v_permlane16_swap_b32 v{O+4*pr+1}, v{O+4*pr+3}")
    for k in range(8):
        A(f"v_lshlrev_b32 v{T+2*k}, 16, v{O+k}")
        A(f"v_and_b32 v{T+2*k+1}, 0xffff0000, v{O+k}")
    for k in range(8):
        A(f"v_pk_add_f32 {v(T+2*k,2)}, {v(T+2*k,2)}, {v(XX+2*k,2)}")
    for k in range(8):
        A(f"v_cvt_pk_bf16_f32 v{O+k}, v{T+2*k}, v{T+2*k+1}")
    A(f"buffer_store_dwordx4 {v(O,4)}, v16, s[52:55], 0 offen")
    A(f"buffer_store_dwordx4 {v(O+4,4)}, v16, s[52:55], 0 offen offset:64")
    stamp(A)
    if DEBUG: A.wait_vm0()
    dump_stamps(A, 24, 1)
    A("s_endpgm")

def kb_conv(A):
    A("KB_conv:")
    A.reset_counters(); A.nst = 3
    if OPT.get('noconv'): A("s_endpgm")
    A(f"s_setprio {OPT.get('cprio', 1)}")
    A("s_sub_u32 s48, s3, 4")
    A("s_lshr_b32 s49, s48, 1")
    A("s_and_b32 s50, s48, 1")
    A("s_lshl_b32 s51, s28, 1")
    A("s_add_u32 s51, s51, s49")
    A("s_lshl_b32 s52, s28, 2")
    A("s_load_dword s53, s[20:21], s52")
    A("s_load_dword s60, s[18:19], s52")
    A("s_lshl_b32 s55, s51, 8")
    A("v_lshlrev_b32 v5, 2, v1")
    for i in range(6):
        srd(A, 32, 6 + 2*i, 131072)
        A(f"buffer_load_dword v{8+i}, v5, s[32:35], s55 offen", tag='p')
    srd(A, 36, 24, 2097152, WS_XNB)
    A(f"s_mul_i32 s54, s49, {CV_STRIDE}")
    A(f"s_add_u32 s54, s54, {LB_CONV}")
    A(f"s_mul_i32 s61, s48, {TAB_STRIDE}")
    A(f"s_add_u32 s61, s61, {LB_TAB}")
    A("s_xor_b32 s62, s48, 1")
    A(f"s_mul_i32 s62, s62, {TAB_STRIDE}")
    A(f"s_add_u32 s62, s62, {LB_TAB}")
    A("v_lshlrev_b32 v4, 4, v1")
    A("v_sub_u32 v6, 63, v1")
    A("v_lshlrev_b32 v6, 13, v6")
    A("s_and_b32 s56, s51, 7")
    A("s_lshl_b32 s56, s56, 10")
    A("s_lshr_b32 s57, s51, 3")
    A("s_lshl_b32 s57, s57, 4")
    A("s_add_u32 s56, s56, s57")
    A("v_add_u32 v6, s56, v6")
    for k in range(2):
        A(f"s_lshl_b32 s56, s50, 1")
        A(f"s_add_u32 s56, s56, {k}")
        A(f"s_lshl_b32 s57, s56, 10")
        A(f"s_add_u32 s57, s57, s54")
        A(f"s_add_u32 m0, s57, {2*4160}")
        A(f"s_sub_u32 s56, 3, s56")
        A(f"s_lshl_b32 s56, s56, 19")
        A(f"buffer_load_dwordx4 v6, s[36:39], s56 offen lds", tag='c')
    A("v_mov_b32 v24, 0\nv_mov_b32 v25, 0\nv_mov_b32 v26, 0\nv_mov_b32 v27, 0")
    A("v_min_u32 v6, 31, v1")
    A("v_lshlrev_b32 v6, 4, v6")
    A("s_mul_i32 s56, s50, 4160")
    A("v_add_u32 v7, s56, v6")
    A(f"v_add_u32 v6, {2*4160 + 4096 - 32}, v6")
    A("v_cmp_gt_u32 vcc, 2, v1")
    A("v_cndmask_b32 v6, v6, v7, vcc")
    A("v_add_u32 v6, s54, v6")
    A("ds_write_b128 v6, v[24:27]")
    A("v_mov_b32 v17, 1")
    A("s_lshl_b32 s56, s48, 2")
    A(f"s_add_u32 s56, s56, {LB_FLAG}")
    A("v_mov_b32 v18, s56")
    A("v_xor_b32 v19, 4, v18")
    A("v_add_u32 v5, s61, v5")
    A("v_and_b32 v6, 31, v1")
    A(f"v_mul_u32_u24 v6, {KT_STRIDE}, v6")
    A("v_lshrrev_b32 v7, 5, v1")
    A("v_lshl_add_u32 v6, v7, 4, v6")
    A("v_add_u32 v6, s61, v6")
    A("s_waitcnt lgkmcnt(0)")
    A.lg = []
    A("s_lshl_b32 s56, s49, 4")
    A("s_lshr_b32 s60, s60, s56")
    A("s_lshl_b32 s60, s60, 16")
    A("s_lshr_b32 s53, s53, s56")
    A("s_lshl_b32 s53, s53, 16")
    A(f"v_mov_b32 v14, {f2u(LOG2E)}")
    A("v_mul_f32 v14, s60, v14")
    A("v_exp_f32 v14, v14")
    bf16r(A, 14, 14, 15)
    A("s_lshl_b32 s56, s50, 4")
    A.wait_vm('p')
    stamp(A)
    for i in range(6):
        A(f"v_lshrrev_b32 v{8+i}, s56, v{8+i}")
    for i in range(6):
        A(f"v_lshlrev_b32 v{8+i}, 16, v{8+i}")
    for i in range(4):
        A(f"v_mul_f32 v{8+i}, v14, v{8+i}")
    A(f"v_mul_f32 v8, {f2u(LOG2E)}, v8")
    A(f"v_mul_f32 v9, 0.15915494, v9")
    Z1, Z4, Z128, Z2, Z3 = 20, 22, 24, 26, 28
    for k, (base, o) in enumerate(((Z4, 4.0), (Z1, 1.0), (Z128, 128.0))):
        e, f = 30 + 2*k, 31 + 2*k
        A(f"v_mul_f32 v{e}, {f2u(o)}, v8")
        A(f"v_mul_f32 v{f}, {f2u(o)}, v9")
        A(f"v_exp_f32 v{e}, v{e}")
        A(f"v_fract_f32 v{f}, v{f}")
        A(f"v_cos_f32 v{base}, v{f}")
        A(f"v_sin_f32 v{base+1}, v{f}")
        A(f"v_pk_mul_f32 {v(base,2)}, {v(base,2)}, {v(e,2)} op_sel_hi:[1,0]")
    def cmul(d, a, b):
        A(f"v_pk_mul_f32 {v(d,2)}, {v(a,2)}, {v(b,2)} op_sel_hi:[0,1]")
        A(f"v_pk_fma_f32 {v(d,2)}, {v(a,2)}, {v(b,2)}, {v(d,2)} op_sel:[1,1,0] op_sel_hi:[1,0,1] neg_lo:[0,1,0]")
    pki = 0
    def put(row, c, neg):
        nonlocal pki
        p = 46 + pki % 4; pki += 1
        A(f"v_cvt_pk_bf16_f32 v{p}, v{c}, {'-' if neg else ''}v{c+1}")
        A(f"ds_write_b32 v5, v{p} offset:{row*KT_STRIDE}", tag='w')
    A("v_mov_b32 v50, 0x00003f80")
    A(f"ds_write_b32 v5, v50", tag='w')
    put(1, Z4, False)
    cur = Z4
    for b in range(2, 32):
        nxt = 42 if cur != 42 else 40
        cmul(nxt, cur, Z4); cur = nxt
        put(b, cur, False)
    if OPT.get('kst'): stamp(A)
    FA, FB, D = 64, 96, 128
    for st in range(8):
        A(f"ds_read_b128 {v(FB+4*st,4)}, v6 offset:{st*32}", tag='fb')
    cmul(Z2, Z1, Z1); cmul(Z3, Z2, Z1)
    cmul(40, 12, 10)
    ZE = {1: Z1, 2: Z2, 3: Z3}
    A.wait_lg('fb')
    cur = 40
    for a in range(17):
        for row, (ra, e) in enumerate(XROWS):
            if ra != a: continue
            if e == 0: put(row, cur, True)
            else:
                cmul(44, cur, ZE[e]); put(row, 44, True)
        if a < 16:
            nxt = 42 if cur == 40 else 40
            cmul(nxt, cur, Z128); cur = nxt
    if OPT.get('kst'): stamp(A); A("s_waitcnt lgkmcnt(0)")
    for st in range(8):
        A(f"ds_read_b128 {v(FA+4*st,4)}, v6 offset:{st*32}", tag=('fa', st))
    for st in range(8):
        A.wait_lg(('fa', st))
        A(f"v_mfma_f32_32x32x16_bf16 {v(D,16)}, {v(FA+4*st,4)}, {v(FB+4*st,4)}, {'0' if st == 0 else v(D,16)}")
    A("v_add_u32 v8, s61, v4")
    A("v_add_u32 v9, s62, v4")
    for k in range(4):
        A(f"ds_write_b128 v8, {v(D+4*k,4)} offset:{1024*k}")
    A("s_waitcnt lgkmcnt(0)")
    if OPT.get('kst'): stamp(A); A("s_waitcnt lgkmcnt(0)")
    A("ds_write_b32 v18, v17 offset:48")
    wait_flags(A, 19, 48, 1, 20)
    for k in range(4):
        A(f"ds_read_b128 {v(FA+4*k,4)}, v9 offset:{1024*k}")
    A("v_and_b32 v10, 31, v1")
    A("v_lshlrev_b32 v10, 3, v10")
    A("v_lshl_add_u32 v10, v7, 8, v10")
    A("s_add_u32 s56, s54, 32")
    A("v_add_u32 v10, s56, v10")
    A("s_mov_b32 s64, 0x55555555\ns_mov_b32 s65, 0x55555555")
    A("s_mov_b32 s66, 0x11111111\ns_mov_b32 s67, 0x11111111")
    A("s_waitcnt lgkmcnt(0)")
    A.lg = []
    for r in range(0, 14, 2):
        A(f"v_pk_add_f32 {v(D+r,2)}, {v(D+r,2)}, {v(FA+r,2)}")
    T = 24
    def dup(dst, r): A(f"v_cvt_pk_bf16_f32 v{dst}, v{r}, v{r}")
    A("s_cmp_eq_u32 s50, 0")
    A("s_cbranch_scc1 KB_e0")
    for r in range(8, 13):
        dup(T + 2*(r-8), D + r); A(f"v_mov_b32 v{T+2*(r-8)+1}, v{T+2*(r-8)}")
    A("s_mov_b64 exec, 1")
    A(f"ds_write_b64 v10, {v(T+8,2)} offset:{2*(2048-4)}")
    A(f"ds_write_b32 v10, v{T} offset:{2*(1024-2)}")
    A("s_mov_b64 exec, s[64:65]")
    for r in range(8, 12):
        o = 1024 + 256*(r-8)
        if r == 8: A("s_andn2_b64 exec, exec, 1")
        A(f"ds_write_b64 v10, {v(T+2*(r-8),2)} offset:{2*(o-4)}")
        if r == 8: A("s_mov_b64 exec, s[64:65]")
        A(f"ds_write_b64 v10, {v(T+2*(r-8),2)} offset:{2*o}")
    A("s_mov_b64 exec, s[66:67]")
    for r in range(8, 12):
        o = 1024 + 256*(r-8)
        A(f"ds_write_b16 v10, v{T+2*(r-8)} offset:{2*(o+4)}")
    A("s_mov_b64 exec, -1")
    A("s_branch KB_e1")
    A("KB_e0:")
    for r in (6, 7): dup(T + 10 + (r-6), D + r)
    for r in (4, 5): dup(T + 12 + (r-4), D + r)
    A(f"v_cvt_pk_bf16_f32 v{T+14}, v{D}, v{D+1}")
    A(f"v_cvt_pk_bf16_f32 v{T+15}, v{D+2}, v{D+3}")
    for r in (6, 7):
        o = 512 + 256*(r-6)
        A(f"ds_write_b32 v10, v{T+10+(r-6)} offset:{2*(o-2)}")
        A(f"ds_write_b32 v10, v{T+10+(r-6)} offset:{2*o}")
    A("s_mov_b64 exec, s[64:65]")
    for r in (6, 7):
        o = 512 + 256*(r-6)
        A(f"ds_write_b16 v10, v{T+10+(r-6)} offset:{2*(o+2)}")
    A("s_mov_b64 exec, -1")
    A(f"ds_write_b16 v10, v{T+12} offset:{2*(256-1)}")
    A(f"ds_write_b32 v10, v{T+12} offset:{2*256}")
    A(f"ds_write_b16 v10, v{T+13} offset:{2*(256+2)}")
    A(f"ds_write_b64 v10, {v(T+14,2)}")
    A("KB_e1:")
    A("s_waitcnt lgkmcnt(0)")
    if OPT.get('kst'): stamp(A); A("s_waitcnt lgkmcnt(0)")
    A("ds_write_b32 v18, v17 offset:80")
    wait_flags(A, 19, 80, 1, 20)
    A("s_lshl_b32 s56, s50, 11")
    A("s_add_u32 s56, s56, s54")
    A("s_add_u32 s56, s56, 28")
    A("v_add_u32 v8, s56, v4")
    for k in range(2):
        A(f"ds_read_b32 v{FA+8*k+3}, v8 offset:{1024*k}")
        A(f"ds_read_b128 {v(FA+8*k+4,4)}, v8 offset:{1024*k+4}")
    A("s_waitcnt lgkmcnt(0)")
    for k in range(2):
        for i in range(4):
            A(f"v_alignbit_b32 v{FB+4*k+i}, v{FA+8*k+4+i}, v{FA+8*k+3+i}, 16")
        A(f"ds_write_b128 v8, {v(FB+4*k,4)} offset:{1024*k + 4 + 4160}")
    A("v_lshrrev_b32 v6, 1, v2")
    A("v_lshlrev_b32 v6, 2, v6")
    A("v_lshl_add_u32 v6, v3, 4, v6")
    A("v_and_b32 v7, 1, v2")
    A("v_sub_u32 v7, 1, v7")
    A("v_mul_u32_u24 v7, 4160, v7")
    A("v_add_u32 v6, v6, v7")
    A("s_lshl_b32 s56, s50, 8")
    A("s_add_u32 s56, s56, s54")
    A("s_add_u32 s57, s56, 4")
    A("v_add_u32 v12, s57, v6")
    for qq in range(1, 4): A(f"v_add_u32 v{12+qq}, {1024*qq}, v12")
    A("v_lshlrev_b32 v6, 4, v3")
    A("v_lshlrev_b32 v7, 5, v2")
    A("v_sub_u32 v6, v6, v7")
    A(f"s_add_u32 s57, s56, {2*4160 + 480}")
    A("v_add_u32 v16, s57, v6")
    A("s_waitcnt vmcnt(0) lgkmcnt(0)")
    A.reset_counters()
    A("ds_write_b32 v18, v17")
    wait_flags(A, 19, 0, 1, 20)
    stamp(A)
    if DEBUG: A("s_waitcnt lgkmcnt(0)")
    ACC, FR = 24, 64
    def reads(pl):
        b = FR + 64 * (pl % 2)
        fs = []
        for k in range(8):
            o = 128*(k & 1) + 16*pl
            fs.append(lambda k=k, o=o: A(f"ds_read2_b32 {v(b+4*k,2)}, v{12+k//2} offset0:{o} offset1:{o+1}", tag=('f', pl)))
            fs.append(lambda k=k, o=o: A(f"ds_read2_b32 {v(b+4*k+2,2)}, v{12+k//2} offset0:{o+2} offset1:{o+3}", tag=('f', pl)))
            fs.append(lambda k=k: A(f"ds_read_b128 {v(b+32+4*k,4)}, v16 offset:{3584 - 512*k + 64*pl}", tag=('f', pl)))
        return fs
    for f in reads(0): f()
    for pl in range(4):
        A.wait_lg0()
        fs = reads(pl + 1) if pl < 3 else []
        b = FR + 64 * (pl % 2)
        first = set()
        for q in range(8):
            for w in range(8 - q):
                ib = q + w
                c = '0' if (pl == 0 and ib not in first) else v(ACC+4*ib, 4)
                first.add(ib)
                A(f"v_mfma_f32_16x16x32_bf16 {v(ACC+4*ib,4)}, {v(b+4*q,4)}, {v(b+32+4*w,4)}, {c}")
                if fs: fs.pop(0)()
    stamp(A)
    if DEBUG: A("s_waitcnt lgkmcnt(0)")
    A("v_add_u32 v6, s61, v4")
    A("v_add_u32 v7, s62, v4")
    F = 64
    A("s_cmp_eq_u32 s50, 0")
    A("s_cbranch_scc1 KB_x0")
    for ph, lab in ((1, None), (0, 'KB_x0')):
        if lab: A(f"{lab}:")
        send, keep = (4, 0) if ph == 0 else (0, 4)
        for a in range(4):
            A(f"ds_write_b128 v6, {v(ACC+4*(send+a),4)} offset:{1024*a}")
        for r in range(16):
            A(f"v_mov_b32 v{F+r}, v{ACC+4*keep+r}")
        if not lab: A("s_branch KB_x1")
    A("KB_x1:")
    A("s_waitcnt lgkmcnt(0)")
    A("ds_write_b32 v18, v17 offset:16")
    A("v_lshlrev_b32 v8, 5, v2")
    A("v_lshl_add_u32 v8, v3, 3, v8")
    A("s_lshl_b32 s56, s50, 11")
    A(f"s_add_u32 s57, s54, {2*4160 + 4088 - 1536}")
    A("s_sub_u32 s57, s57, s56")
    A("v_sub_u32 v8, s57, v8")
    XN = 96
    for a in range(4):
        A(f"ds_read_b64 {v(XN+2*a,2)}, v8 offset:{1536 - 512*a}")
    wait_flags(A, 19, 16, 1, 20)
    R = 80
    for a in range(4):
        A(f"ds_read_b128 {v(R+4*a,4)}, v7 offset:{1024*a}", tag='r')
    T = 104
    for a in range(4):
        A(f"v_and_b32 v{T+4*a}, 0xffff0000, v{XN+2*a+1}")
        A(f"v_lshlrev_b32 v{T+4*a+1}, 16, v{XN+2*a+1}")
        A(f"v_and_b32 v{T+4*a+2}, 0xffff0000, v{XN+2*a}")
        A(f"v_lshlrev_b32 v{T+4*a+3}, 16, v{XN+2*a}")
    for r in range(16): A(f"v_mul_f32 v{T+r}, s53, v{T+r}")
    P1 = 120
    for k in range(8): A(f"v_cvt_pk_bf16_f32 v{P1+k}, v{T+2*k}, v{T+2*k+1}")
    for k in range(8):
        A(f"v_lshlrev_b32 v{T+2*k}, 16, v{P1+k}")
        A(f"v_and_b32 v{T+2*k+1}, 0xffff0000, v{P1+k}")
    A.wait_lg('r')
    for r in range(0, 16, 2):
        A(f"v_pk_add_f32 {v(F+r,2)}, {v(F+r,2)}, {v(R+r,2)}")
    for k in range(8): A(f"v_cvt_pk_bf16_f32 v{P1+k}, v{F+2*k}, v{F+2*k+1}")
    for k in range(8):
        A(f"v_lshlrev_b32 v{F+2*k}, 16, v{P1+k}")
        A(f"v_and_b32 v{F+2*k+1}, 0xffff0000, v{P1+k}")
    for r in range(0, 16, 2):
        A(f"v_pk_add_f32 {v(F+r,2)}, {v(F+r,2)}, {v(T+r,2)}")
    for k in range(8): A(f"v_cvt_pk_bf16_f32 v{P1+k}, v{F+2*k}, v{F+2*k+1}")
    for pr in range(2):
        A(f"v_permlane16_swap_b32 v{P1+4*pr}, v{P1+4*pr+2}")
        A(f"v_permlane16_swap_b32 v{P1+4*pr+1}, v{P1+4*pr+3}")
    srd(A, 40, 24, 2097152, WS_ST)
    A("v_and_b32 v8, 1, v3")
    A("v_lshlrev_b32 v8, 9, v8")
    A("v_lshl_add_u32 v8, v2, 5, v8")
    A("v_lshrrev_b32 v9, 1, v3")
    A("v_lshl_add_u32 v8, v9, 4, v8")
    A("s_lshl_b32 s56, s51, 12")
    A("s_lshl_b32 s57, s50, 11")
    A("s_add_u32 s56, s56, s57")
    for pr in range(2):
        A(f"buffer_store_dwordx4 {v(P1+4*pr,4)}, v8, s[40:43], s56 offen offset:{1024*pr} sc1")
    if not OPT.get('kst'): stamp(A)
    if OPT.get('nopoll'):
        dump_stamps(A, 24, 1); A("s_endpgm"); A.nst = 7
    A("v_lshrrev_b32 v8, 3, v1")
    A("v_and_b32 v9, 7, v1")
    A("v_lshlrev_b32 v10, 12, v8")
    A("v_lshl_add_u32 v10, v9, 4, v10")
    A("s_lshl_b32 s56, s30, 6")
    A("s_lshl_b32 s57, s48, 4")
    A("s_add_u32 s56, s56, s57")
    A("s_lshl_b32 s56, s56, 12")
    A("s_lshl_b32 s57, s29, 7")
    A("s_add_u32 s56, s56, s57")
    A("s_add_u32 s59, s56, 32768")
    A("v_bfe_u32 v11, v8, 1, 2")
    A("v_lshlrev_b32 v11, 1, v11")
    A("v_xor_b32 v11, v11, v9")
    A("v_lshlrev_b32 v11, 4, v11")
    A("v_lshl_add_u32 v11, v8, 7, v11")
    A(f"s_add_u32 s57, s61, 4096")
    A("v_add_u32 v11, s57, v11")
    A("KB_go:")
    A("s_sleep 4")
    A("ds_read_b32 v20, v18 offset:64")
    A("s_waitcnt lgkmcnt(0)")
    A("v_cmp_eq_u32 vcc, 1, v20")
    A("s_cbranch_vccz KB_go")
    A("s_mov_b32 s58, 0")
    A("KB_poll:")
    A("buffer_load_dwordx4 v[64:67], v10, s[40:43], s56 offen sc1")
    A("buffer_load_dwordx4 v[68:71], v10, s[40:43], s59 offen sc1")
    A("s_waitcnt vmcnt(0)")
    A("v_max3_u32 v12, v64, v65, v66")
    A("v_max3_u32 v13, v67, v68, v69")
    A("v_max3_u32 v12, v12, v70, v71")
    A("v_max_u32 v12, v12, v13")
    A("v_cmp_eq_u32 vcc, -1, v12")
    A("s_cbranch_vccz KB_polled")
    A(f"s_sleep {OPT.get('sleep', 8)}")
    A("s_add_u32 s58, s58, 1")
    A("s_cmp_lt_u32 s58, 0x8000")
    A("s_cbranch_scc1 KB_poll")
    A("KB_polled:")
    if not OPT.get('kst'): stamp(A)
    A("ds_write_b128 v11, v[64:67]")
    A("ds_write_b128 v11, v[68:71] offset:1024")
    A("s_waitcnt lgkmcnt(0)")
    A("ds_write_b32 v18, v17 offset:32")
    dump_stamps(A, 24, 1)
    A("s_endpgm")

def kernel_b():
    A = Asm()
    A.uid = 1000
    A(".globl kb_kernel\n.p2align 8\n.type kb_kernel,@function")
    A("kb_kernel:")
    kb_prologue(A)
    kb_gemm(A)
    kb_conv(A)
    A("KB_end:")
    A("s_endpgm")
    return A.text()

def kds():
    return kd('kb_kernel')
```

```python
import sys, os
sys.path.insert(0, os.path.dirname(__file__))
from asmlib import Asm

NAME = 'recurrent_scan__ssm_conv_s4__mixer_channel_mlp__prompt'
WS_XNB = 0
WS_KG = 0x200000
KG_ROW = 4160
WS_H = 0x800000
WS_ST = 0x1000000
WS_FLAG = 0x1400000
SRD3 = '0x00020000'
OOB = 0x40000000

def v(a, n=1): return f'v{a}' if n == 1 else f'v[{a}:{a+n-1}]'
def s(a, n=1): return f's{a}' if n == 1 else f's[{a}:{a+n-1}]'

def srd(A, d, base, size, off=0):
    if off:
        A(f's_add_u32 s{d}, s{base}, {off}')
        A(f's_addc_u32 s{d+1}, s{base+1}, 0')
    else:
        A(f's_mov_b32 s{d}, s{base}')
        A(f's_mov_b32 s{d+1}, s{base+1}')
    A(f's_mov_b32 s{d+2}, {size}')
    A(f's_mov_b32 s{d+3}, {SRD3}')

def bf16r(A, d, x, t):
    A(f'v_cvt_pk_bf16_f32 v{t}, v{x}, v{x}')
    A(f'v_lshlrev_b32 v{d}, 16, v{t}')

def f2u(x):
    import struct
    return '0x%08x' % struct.unpack('<I', struct.pack('<f', x))[0]

LOG2E = 1.4426950408889634
DEBUG = os.environ.get('KDEBUG', '0') == '1'
WS_DBG = 0x1800000
OPT = dict(kv.split('=') for kv in os.environ.get('KOPT', '').split(',') if kv)
class Stamps:
    n = 0
def stamp(A, real=False):
    if not DEBUG: return
    i = A.nst = getattr(A, 'nst', 0)
    assert i < 12
    A(f"{'s_memrealtime' if real else 's_memtime'} s[{70+2*i}:{71+2*i}]")
    A.nst = i + 1
def dump_stamps(A, wsreg, kidx):
    if not DEBUG: return
    stamp(A); stamp(A, True)
    A("s_waitcnt lgkmcnt(0)")
    if OPT.get('dbgout'):
        n = A.nst
        L = A.newlabel('dbg')
        A("s_and_b32 s94, s2, 0x7f")
        A("s_or_b32 s94, s94, s3")
        A("s_cmp_lg_u32 s94, 0")
        A(f"s_cbranch_scc1 {L}")
        A("s_load_dwordx2 s[94:95], s[0:1], 120")
        A("s_waitcnt lgkmcnt(0)")
        srd(A, 96, 94, 256)
        A("s_lshr_b32 s94, s2, 2")
        A("v_mov_b32 v250, s94")
        idx = [0, n-1, 2, 3, 5, 7, 8, n-2]
        for i, k in enumerate(idx):
            if k >= n: continue
            if i < 2: A(f"v_mov_b32 v251, s{70+2*k}")
            else:
                A(f"s_sub_u32 s95, s{70+2*k}, s72")
                A("v_mov_b32 v251, s95")
            A(f"buffer_store_dword v251, v250, s[96:99], 0 offen offset:{4*i}")
        A(f"{L}:")
        return
    srd(A, 96, wsreg, 0x100000, WS_DBG + kidx * 0x40000)
    A("s_lshl_b32 s94, s2, 3")
    A("s_add_u32 s94, s94, s3")
    A("s_lshl_b32 s94, s94, 6")
    A("v_mov_b32 v250, s94")
    for i in range(A.nst):
        A(f"v_mov_b32 v251, s{70+2*i}")
        A(f"buffer_store_dword v251, v250, s[96:99], 0 offen offset:{4*i}")
LA_W1 = 0
LA_KT = [131072, 131072 + 15520]
LA_FLAG = 131072
LA_CSF = LA_FLAG + 128
LA_CS = LA_FLAG + 144
LA_SIZE = LA_CS + 448

def ka_prologue(A):
    A("s_cmp_ge_u32 s2, 256")
    A("s_cbranch_scc1 KA_end")
    stamp(A, True); stamp(A)
    A("s_load_dwordx16 s[4:19], s[0:1], 0")
    A("s_load_dwordx4 s[20:23], s[0:1], 80")
    A("s_load_dwordx2 s[24:25], s[0:1], 128")
    A("s_load_dwordx2 s[58:59], s[0:1], 96")
    A("v_lshrrev_b32 v2, 6, v0")
    A("v_and_b32 v1, 63, v0")
    A("v_mov_b32 v3, 0")
    A("v_readfirstlane_b32 s3, v2")
    A(f"v_lshlrev_b32 v4, 2, v1")
    A(f"v_min_u32 v4, 140, v4")
    A(f"ds_write_b32 v4, v3 offset:{LA_FLAG - 131072}", tag='z') if False else None
    A(f"v_add_u32 v4, {LA_FLAG}, v4")
    A(f"ds_write_b32 v4, v3")
    A("s_and_b32 s26, s2, 7")
    A("s_lshr_b32 s27, s2, 3")
    A("s_lshl_b32 s28, s26, 5")
    A("s_add_u32 s28, s28, s27")
    A("s_waitcnt lgkmcnt(0)")
    A("s_barrier")
    stamp(A)
    A.reset_counters()
    A("s_cmp_lt_u32 s3, 4")
    A("s_cbranch_scc1 KA_gemm")
    A("s_cmp_ge_u32 s3, 6")
    A("s_cbranch_scc1 KA_loader")
    if OPT.get('nohelp'): A("s_endpgm")
    A("s_cmp_eq_u32 s3, 4")
    A("s_cbranch_scc1 KA_ln")
    ka_pf(A)
    if not OPT.get('nocpf'):
        A("s_getpc_b64 s[32:33]")
        A("KA_pc:")
        A("s_sub_u32 s32, s32, KA_pc-KA_start")
        A("s_subb_u32 s33, s33, 0")
        A("s_mov_b32 s34, CODE_END-KA_start")
        A(f"s_mov_b32 s35, {SRD3}")
        A("v_lshlrev_b32 v4, 7, v1")
        A("s_and_b32 s36, s27, 3")
        A("s_lshl_b32 s36, s36, 13")
        A("buffer_load_dword v8, v4, s[32:35], s36 offen")
        A("s_lshl_b32 s36, s28, 9")
        A("s_mov_b64 exec, 15")
        for i in range(6):
            srd(A, 40, 6 + 2*i, 131072)
            A(f"buffer_load_dword v{9+i}, v4, s[40:43], s36 offen")
    A("s_endpgm")

def ka_pf(A):
    if OPT.get('nopfa'): return
    srd(A, 32, 4, 2097152)
    srd(A, 36, 20, 1835008)
    A("v_and_b32 v4, 31, v1")
    A("v_cmp_le_u32 vcc, 14, v4")
    A("v_subrev_u32 v5, 14, v4")
    A("v_cndmask_b32 v5, v4, v5, vcc")
    A("v_cndmask_b32 v6, 0, 1, vcc")
    A("v_lshrrev_b32 v7, 5, v1")
    A("v_lshl_add_u32 v6, v7, 6, v6")
    A("s_lshl_b32 s40, s27, 1")
    A("v_add_u32 v6, s40, v6")
    A("v_mul_u32_u24 v6, 3584, v6")
    A("v_lshl_add_u32 v6, v5, 7, v6")
    A("s_and_b32 s40, s26, 1")
    A("s_mul_i32 s40, s40, 1792")
    A("v_add_u32 v6, s40, v6")
    A("v_cmp_gt_u32 vcc, 28, v4")
    A(f"v_mov_b32 v7, {OOB}")
    A("v_cndmask_b32 v6, v7, v6, vcc")
    A("v_and_b32 v4, 15, v1")
    A("s_lshr_b32 s40, s26, 1")
    A("s_lshl_b32 s40, s40, 9")
    A("s_lshl_b32 s41, s27, 4")
    A("s_add_u32 s40, s40, s41")
    A("v_add_u32 v4, s40, v4")
    A("v_lshlrev_b32 v4, 10, v4")
    A("v_lshrrev_b32 v5, 4, v1")
    A("v_lshl_add_u32 v4, v5, 7, v4")
    A(f"s_sleep {OPT.get('pfsleep', 4)}")
    A("buffer_load_dword v8, v4, s[32:35], 0 offen")
    for i in range(int(OPT.get('pf0', 1)), 4):
        A(f"s_mov_b32 s40, {i*128*3584}")
        A(f"buffer_load_dword v{9+i}, v6, s[36:39], s40 offen")
        if i == 1: A("buffer_load_dword v13, v4, s[32:35], 0 offen offset:512")

def ka_ln(A):
    A("KA_ln:")
    A.reset_counters(); A.nst = 3
    srd(A, 32, 4, 2097152)
    srd(A, 36, 24, 2097152, WS_XNB)
    A("s_lshl_b32 s29, s28, 13")
    A("v_lshlrev_b32 v2, 4, v1")
    A("v_add_u32 v3, 4096, v2")
    X = 8
    for t in range(8):
        A(f"buffer_load_dwordx4 {v(X+4*t,4)}, v{2 + t//4}, s[32:35], s29 offen offset:{(t%4)*1024}", tag=('x', t))
    A("v_mov_b32 v4, 0x3f803f80")
    S, Q = 40, 48
    for t in range(8):
        A.wait_vm(('x', t))
        for k in range(4):
            if k == 0:
                A(f"v_dot2_f32_bf16 v{S+t}, v{X+4*t}, v4, 0")
                A(f"v_dot2_f32_bf16 v{Q+t}, v{X+4*t}, v{X+4*t}, 0")
            else:
                A(f"v_dot2_f32_bf16 v{S+t}, v{X+4*t+k}, v4, v{S+t}")
                A(f"v_dot2_f32_bf16 v{Q+t}, v{X+4*t+k}, v{X+4*t+k}, v{Q+t}")
    stamp(A)
    for B in (S, Q):
        for t in range(4):
            A(f"v_permlane32_swap_b32 v{B+t}, v{B+t+4}")
    for B in (S, Q):
        for t in range(4):
            A(f"v_add_f32 v{B+t}, v{B+t}, v{B+t+4}")
    for B in (S, Q):
        for t in range(2):
            A(f"v_permlane16_swap_b32 v{B+t}, v{B+t+2}")
    for B in (S, Q):
        for t in range(2):
            A(f"v_add_f32 v{B+t}, v{B+t}, v{B+t+2}")
    for sh in (8, 4, 2, 1):
        for r in (S, S+1, Q, Q+1):
            A(f"v_add_f32_dpp v{r}, v{r}, v{r} row_ror:{sh} row_mask:0xf bank_mask:0xf")
    for t in range(2):
        m, q, tmp = S+t, Q+t, 56+t
        A(f"v_mul_f32 v{m}, {f2u(1/512)}, v{m}")
        A(f"v_mul_f32 v{q}, {f2u(1/512)}, v{q}")
        A(f"v_fma_f32 v{q}, -v{m}, v{m}, v{q}")
        A(f"v_max_f32 v{q}, 0, v{q}")
        bf16r(A, m, m, tmp)
        bf16r(A, q, q, tmp)
        A(f"v_add_f32 v{q}, {f2u(1e-5)}, v{q}")
        bf16r(A, q, q, tmp)
        A(f"v_sqrt_f32 v{q}, v{q}")
        bf16r(A, q, q, tmp)
        A(f"v_rcp_f32 v{q}, v{q}")
    for t in range(2):
        for rho in range(4):
            A(f"v_readlane_b32 s{40 + t + 2*rho}, v{S+t}, {16*rho}")
            A(f"v_readlane_b32 s{48 + t + 2*rho}, v{Q+t}, {16*rho}")
    F, O = 64, 96
    for i in range(4):
        for h, t in enumerate((7 - 2*i, 6 - 2*i)):
            for k in range(4):
                lo, hi, x = F + 8*h + 2*k, F + 8*h + 2*k + 1, X + 4*t + k
                A(f"v_lshlrev_b32 v{lo}, 16, v{x}")
                A(f"v_and_b32 v{hi}, 0xffff0000, v{x}")
                A(f"v_subrev_f32 v{lo}, s{40+t}, v{lo}")
                A(f"v_subrev_f32 v{hi}, s{40+t}, v{hi}")
                A(f"v_cvt_pk_bf16_f32 v{x}, v{lo}, v{hi}")
                A(f"v_lshlrev_b32 v{lo}, 16, v{x}")
                A(f"v_and_b32 v{hi}, 0xffff0000, v{x}")
                A(f"v_mul_f32 v{lo}, s{48+t}, v{lo}")
                A(f"v_mul_f32 v{hi}, s{48+t}, v{hi}")
        for dl in range(8):
            A(f"v_cvt_pk_bf16_f32 v{O+4*dl+i}, v{F+dl}, v{F+8+dl}")
    for dl in range(8):
        A(f"buffer_store_dwordx4 {v(O+4*dl,4)}, v{2 + dl//4}, s[36:39], s29 offen offset:{1024*(dl%4)}")
    stamp(A)
    if DEBUG: A.wait_vm0()
    dump_stamps(A, 24, 0)
    A("s_endpgm")

XROWS = [(0,0),(0,1),(0,2),(0,3),(1,0),(1,1),(1,2),(1,3),(2,0),(2,2),(4,0),(6,0),(3,0),(3,2),(5,0),(7,0),
         (8,0),(10,0),(12,0),(14,0),(9,0),(11,0),(13,0),(15,0),(16,0)]
KT_STRIDE = 272

def ka_kgen(A):
    A("KA_kgen:")
    A.reset_counters(); A.nst = 3
    A("s_sub_u32 s29, s3, 5")
    A("s_lshl_b32 s30, s28, 1")
    A("s_add_u32 s30, s30, s29")
    A("s_lshl_b32 s31, s28, 2")
    A("s_load_dword s60, s[18:19], s31")
    A("s_lshl_b32 s31, s30, 8")
    A("v_lshlrev_b32 v2, 2, v1")
    for i in range(6):
        srd(A, 32 + 4*i, 6 + 2*i, 131072)
        A(f"buffer_load_dword v{8+i}, v2, s[{32+4*i}:{35+4*i}], s31 offen", tag='p')
    srd(A, 56, 24, 512*KG_ROW, WS_KG)
    A(f"s_mul_i32 s61, s29, {LA_KT[1]-LA_KT[0]}")
    A(f"s_add_u32 s61, s61, {LA_KT[0]}")
    A("v_add_u32 v3, s61, v2")
    A("v_and_b32 v4, 31, v1")
    A(f"v_mul_u32_u24 v4, {KT_STRIDE}, v4")
    A("v_lshrrev_b32 v5, 5, v1")
    A("v_lshl_add_u32 v4, v5, 4, v4")
    A("v_add_u32 v4, s61, v4")
    A("s_waitcnt lgkmcnt(0)")
    A("s_lshl_b32 s62, s29, 4")
    A("s_lshr_b32 s60, s60, s62")
    A("s_lshl_b32 s60, s60, 16")
    A(f"v_mov_b32 v6, {f2u(LOG2E)}")
    A("v_mul_f32 v6, s60, v6")
    A("v_exp_f32 v6, v6")
    bf16r(A, 6, 6, 7)
    A.wait_vm0()
    D = 128
    for ps in range(2):
        stamp(A)
        if DEBUG: A("s_waitcnt lgkmcnt(0)")
        for i in range(6):
            if ps == 0: A(f"v_lshlrev_b32 v{16+i}, 16, v{8+i}")
            else: A(f"v_and_b32 v{16+i}, 0xffff0000, v{8+i}")
        for i in range(4):
            A(f"v_mul_f32 v{16+i}, v6, v{16+i}")
        A(f"v_mul_f32 v16, {f2u(LOG2E)}, v16")
        A(f"v_mul_f32 v17, 0.15915494, v17")
        for base, o in ((22, 1.0), (25, 4.0), (28, 128.0)):
            if o == 1.0:
                A(f"v_exp_f32 v31, v16")
                A(f"v_fract_f32 v32, v17")
            else:
                A(f"v_mul_f32 v31, {f2u(o)}, v16")
                A(f"v_mul_f32 v32, {f2u(o)}, v17")
                A(f"v_exp_f32 v31, v31")
                A(f"v_fract_f32 v32, v32")
            A(f"v_cos_f32 v{base}, v32")
            A(f"v_sin_f32 v{base+1}, v32")
            A(f"v_mul_f32 v{base}, v31, v{base}")
            A(f"v_mul_f32 v{base+1}, v31, v{base+1}")
            A(f"v_sub_f32 v{base+2}, 0, v{base+1}")
        def cmul(d, a, b):
            A(f"v_mul_f32 v{d}, v{a}, v{b}")
            A(f"v_mul_f32 v{d+1}, v{a}, v{b+1}")
            A(f"v_fmac_f32 v{d}, v{a+1}, v{b+2}")
            A(f"v_fmac_f32 v{d+1}, v{a+1}, v{b}")
        cmul(33, 22, 22); A("v_sub_f32 v35, 0, v34")
        cmul(36, 33, 22); A("v_sub_f32 v38, 0, v37")
        ZE = {1: 22, 2: 33, 3: 36}
        A("v_mul_f32 v40, v20, v18")
        A("v_mul_f32 v41, v20, v19")
        A("v_fma_f32 v40, -v21, v19, v40")
        A("v_fmac_f32 v41, v21, v18")
        pk = [46, 47, 48, 49]; pki = 0
        def put(row, re, im, neg):
            nonlocal pki
            p = pk[pki % 4]; pki += 1
            A(f"v_cvt_pk_bf16_f32 v{p}, v{re}, {'-' if neg else ''}v{im}")
            A(f"ds_write_b32 v3, v{p} offset:{row*KT_STRIDE}", tag='w')
        cur = 40
        for a in range(17):
            for row, (ra, e) in enumerate(XROWS):
                if ra != a: continue
                if e == 0: put(row, cur, cur+1, True)
                else:
                    cmul(44, cur, ZE[e]); put(row, 44, 45, True)
            if a < 16:
                nxt = 42 if cur == 40 else 40
                cmul(nxt, cur, 28); cur = nxt
        A("v_mov_b32 v50, 0x00003f80")
        A(f"ds_write_b32 v3, v50 offset:{25*KT_STRIDE}", tag='w')
        put(26, 25, 26, False)
        cur = 25
        for b in range(2, 32):
            nxt = 42 if cur != 42 else 40
            cmul(nxt, cur, 25); cur = nxt
            put(25 + b, cur, cur+1, False)
        FA, FB = 64, 96
        for st in range(8):
            A(f"ds_read_b128 {v(FA+4*st,4)}, v4 offset:{st*32}", tag=('f', st))
            A(f"ds_read_b128 {v(FB+4*st,4)}, v4 offset:{25*KT_STRIDE + st*32}", tag=('f', st))
            if st >= 4: A.wait_lg(('f', st-4))
            if st >= 4:
                q = st - 4
                A(f"v_mfma_f32_32x32x16_bf16 {v(D,16)}, {v(FA+4*q,4)}, {v(FB+4*q,4)}, {'0' if (ps==0 and q==0) else v(D,16)}")
        for q in range(4, 8):
            A.wait_lg(('f', q))
            A(f"v_mfma_f32_32x32x16_bf16 {v(D,16)}, {v(FA+4*q,4)}, {v(FB+4*q,4)}, {v(D,16)}")
    A("v_and_b32 v7, 31, v1")
    A("v_lshlrev_b32 v7, 3, v7")
    A("v_lshl_add_u32 v7, v5, 8, v7")
    A("v_add_u32 v7, s61, v7")
    T = 16
    def dup(dst, r):
        A(f"v_cvt_pk_bf16_f32 v{dst}, v{r}, v{r}")
    A("s_mov_b32 s64, 0x55555555\ns_mov_b32 s65, 0x55555555")
    A("s_mov_b32 s66, 0x11111111\ns_mov_b32 s67, 0x11111111")
    for r in range(8, 13):
        dup(T + 2*(r-8), D + r); A(f"v_mov_b32 v{T+2*(r-8)+1}, v{T+2*(r-8)}")
    for r in (6, 7): dup(T + 10 + (r-6), D + r)
    for r in (4, 5): dup(T + 12 + (r-4), D + r)
    A(f"v_cvt_pk_bf16_f32 v{T+14}, v{D}, v{D+1}")
    A(f"v_cvt_pk_bf16_f32 v{T+15}, v{D+2}, v{D+3}")
    A("s_mov_b64 exec, 1")
    A(f"ds_write_b64 v7, {v(T+8,2)} offset:{2*(2048-4)}")
    A("s_mov_b64 exec, s[64:65]")
    for r in range(8, 12):
        o = 1024 + 256*(r-8)
        A(f"ds_write_b64 v7, {v(T+2*(r-8),2)} offset:{2*(o-4)}")
        A(f"ds_write_b64 v7, {v(T+2*(r-8),2)} offset:{2*o}")
    A("s_mov_b64 exec, s[66:67]")
    for r in range(8, 12):
        o = 1024 + 256*(r-8)
        A(f"ds_write_b16 v7, v{T+2*(r-8)} offset:{2*(o+4)}")
    A("s_mov_b64 exec, -1")
    for r in (6, 7):
        o = 512 + 256*(r-6)
        A(f"ds_write_b32 v7, v{T+10+(r-6)} offset:{2*(o-2)}")
        A(f"ds_write_b32 v7, v{T+10+(r-6)} offset:{2*o}")
    A("s_mov_b64 exec, s[64:65]")
    for r in (6, 7):
        o = 512 + 256*(r-6)
        A(f"ds_write_b16 v7, v{T+10+(r-6)} offset:{2*(o+2)}")
    A("s_mov_b64 exec, -1")
    A(f"ds_write_b16 v7, v{T+12} offset:{2*(256-1)}")
    A(f"ds_write_b32 v7, v{T+12} offset:{2*256}")
    A(f"ds_write_b16 v7, v{T+13} offset:{2*(256+2)}")
    A(f"ds_write_b64 v7, {v(T+14,2)}")
    A("v_lshlrev_b32 v2, 4, v1")
    A("v_add_u32 v3, s61, v2")
    for i in range(4):
        A(f"ds_read_b128 {v(64+4*i,4)}, v3 offset:{1024*i}", tag=('k', i))
    A(f"s_mul_i32 s31, s30, {KG_ROW}")
    A("v_mov_b32 v80, 0\nv_mov_b32 v81, 0\nv_mov_b32 v82, 0\nv_mov_b32 v83, 0")
    A("v_mov_b32 v84, 48")
    A("buffer_store_dwordx4 v[80:83], v84, s[56:59], s31 offen")
    for i in range(4):
        A.wait_lg(('k', i))
        A(f"buffer_store_dwordx4 {v(64+4*i,4)}, v2, s[56:59], s31 offen offset:{64 + 1024*i}")
    stamp(A)
    if DEBUG: A.wait_vm0()
    dump_stamps(A, 24, 0)
    A("s_endpgm")

def ka_map(A):
    mapping = OPT.get('map', '8x4')
    if mapping == '16x2':
        A("s_and_b32 s48, s27, 1")
        A("s_lshl_b32 s49, s26, 1")
        A("s_add_u32 s49, s49, s48")
        A("s_lshr_b32 s50, s27, 1")
        A("s_lshl_b32 s51, s48, 2")
        A("s_add_u32 s51, s51, s50")
    else:
        A("s_and_b32 s48, s27, 3")
        A("s_lshr_b32 s49, s26, 1")
        A("s_lshl_b32 s49, s49, 2")
        A("s_add_u32 s49, s49, s48")
        A("s_lshr_b32 s52, s27, 2")
        A("s_and_b32 s50, s26, 1")
        A("s_lshl_b32 s50, s50, 3")
        A("s_add_u32 s50, s50, s52")
        A("s_lshl_b32 s51, s48, 1")
        A("s_add_u32 s51, s51, s52")
    if OPT.get('order', 'same') == 'same': A("s_mov_b32 s51, 0")
    if OPT.get('order') == 'half': A("s_and_b32 s51, s51, 1")
    if OPT.get('order') == 'quarter': A("s_and_b32 s51, s51, 3")

LA_FULL = LA_FLAG
LA_DONE = LA_FLAG + 32

def ka_loader(A):
    A("KA_loader:")
    A.reset_counters(); A.nst = 3
    A("s_setprio 3")
    srd(A, 32, 4, 2097152)
    srd(A, 36, 20, 1835008)
    ka_map(A)
    A("v_and_b32 v2, 15, v1")
    A("v_lshrrev_b32 v3, 4, v1")
    A("s_mul_i32 s53, s50, 224")
    A("s_and_b32 s53, s53, 0xffffffc0")
    A("v_mul_u32_u24 v4, 3584, v3")
    A("v_add_u32 v4, s53, v4")
    A("v_lshlrev_b32 v5, 1, v3")
    A("v_xor_b32 v5, v5, v2")
    for q in range(4):
        A(f"v_xor_b32 v6, {8*((q>>1)&1)}, v5")
        A(f"v_lshl_add_u32 v{8+q}, v6, 4, v4")
        if q: A(f"v_add_u32 v{8+q}, {q*(4*3584-1024)}, v{8+q}")
    A("v_lshrrev_b32 v4, 3, v1")
    A("v_lshrrev_b32 v5, 4, v1")
    A("v_and_b32 v6, 7, v1")
    A("v_xor_b32 v5, v5, v6")
    A("s_lshl_b32 s52, s49, 7")
    A("v_add_u32 v4, s52, v4")
    A("v_lshlrev_b32 v4, 10, v4")
    for q in range(4):
        A(f"v_xor_b32 v6, {4*(q&1)}, v5")
        A(f"v_lshl_add_u32 v{12+q}, v6, 4, v4")
        if q: A(f"v_add_u32 v{12+q}, {q*(8192-1024)}, v{12+q}")
    A("v_mov_b32 v16, 1")
    A(f"v_mov_b32 v17, {LA_FLAG}")
    def issue(u, parts):
        if 0 in parts:
            A(f"s_add_u32 s55, s51, {u}")
            A("s_and_b32 s55, s55, 7")
            A("s_lshl_b32 s56, s55, 7")
            A(f"s_mul_i32 s57, s55, {64*3584}")
        base = LA_W1 + (u % 4) * 32768
        for part in parts:
            qq = part // 2
            if part % 2 == 0:
                A(f"s_add_u32 m0, s61, {base + qq*4096}")
                if qq: A(f"s_add_u32 s57, s57, {16*3584}")
                for q in range(4):
                    A(f"buffer_load_dwordx4 v{8+q}, s[36:39], s57 offen offset:{1024*q} lds", tag=('u', u))
            else:
                A(f"s_add_u32 m0, s61, {base + 16384 + qq*4096}")
                if qq: A(f"s_add_u32 s56, s56, 32768")
                for q in range(4):
                    A(f"buffer_load_dwordx4 v{12+q}, s[32:35], s56 offen offset:{1024*q} lds", tag=('u', u))
    def post(u):
        A.wait_vm(('u', u))
        A(f"ds_write_b32 v17, v16 offset:{4*u}")
    A("s_and_b32 s60, s3, 1")
    A("s_add_u32 s51, s51, s60")
    A("s_lshl_b32 s61, s60, 15")
    A("s_lshl_b32 s62, s60, 2")
    A("v_add_u32 v18, s62, v17")
    L0 = A.newlabel('st')
    A("s_cmp_eq_u32 s60, 0")
    A(f"s_cbranch_scc1 {L0}_go")
    A(f"{L0}:")
    A("ds_read_b32 v20, v17 offset:48")
    A("s_waitcnt lgkmcnt(0)")
    A("v_cmp_eq_u32 vcc, 1, v20")
    A(f"s_cbranch_vccz {L0}")
    A(f"{L0}_go:")
    for i in range(4):
        if i >= 2:
            L1 = A.newlabel('fr')
            A(f"s_add_u32 s63, s60, {2*i-3}")
            A(f"{L1}:")
            A(f"ds_read_b128 v[20:23], v17 offset:32")
            A("s_waitcnt lgkmcnt(0)")
            A("v_min_u32 v20, v20, v21")
            A("v_min3_u32 v20, v20, v22, v23")
            A(f"v_cmp_le_u32 vcc, s63, v20")
            A(f"s_cbranch_vccz {L1}")
        issue(2*i, range(8))
        if i == 0: A("ds_write_b32 v17, v16 offset:48")
        A.wait_vm0()
        A(f"ds_write_b32 v18, v16 offset:{8*i}")
        if i in (0, 2): stamp(A)
    stamp(A)
    A("s_cmp_eq_u32 s60, 0")
    A("s_cbranch_scc1 KA_fill")
    if not OPT.get('nopf'):
        srd(A, 40, 58, 1835008)
        A("s_mul_i32 s52, s27, 57344")
        A("s_and_b32 s53, s26, 1")
        A("s_lshl_b32 s53, s53, 9")
        A("s_add_u32 s52, s52, s53")
        if OPT.get('densepf'):
            A("v_lshrrev_b32 v4, 5, v1")
            A("v_lshlrev_b32 v4, 10, v4")
            A("v_and_b32 v5, 31, v1")
            A("v_lshl_add_u32 v4, v5, 4, v4")
            for i in range(28):
                A(f"buffer_load_dwordx4 {v(24+4*(i%8),4)}, v4, s[40:43], s52 offen offset:{2048*(i%2)}")
                if i % 2: A("s_add_u32 s52, s52, 4096")
        else:
            A("v_lshrrev_b32 v4, 2, v1")
            A("v_lshlrev_b32 v4, 10, v4")
            A("v_and_b32 v5, 3, v1")
            A("v_lshl_add_u32 v4, v5, 7, v4")
            for i in range(4):
                if i == 3: A("s_mov_b64 exec, 0xffffffff")
                A(f"buffer_load_dword v{24+i}, v4, s[40:43], s52 offen")
                A("s_add_u32 s52, s52, 16384")
            A("s_mov_b64 exec, -1")
    nst = A.nst
    dump_stamps(A, 24, 0)
    A.nst = nst
    A("s_endpgm")
    A("KA_fill:")
    srd(A, 32, 24, 2097152, WS_ST)
    A("s_lshl_b32 s29, s28, 13")
    A("v_lshlrev_b32 v4, 4, v1")
    A("v_mov_b32 v8, -1\nv_mov_b32 v9, -1\nv_mov_b32 v10, -1\nv_mov_b32 v11, -1")
    for i in range(8):
        A(f"buffer_store_dwordx4 v[8:11], v4, s[32:35], s29 offen offset:{1024*(i%4)}")
        if i == 3: A("s_add_u32 s29, s29, 4096")
    dump_stamps(A, 24, 0)
    A("s_endpgm")

def ka_gemm(A):
    A("KA_gemm:")
    A.reset_counters(); A.nst = 3
    A("s_setprio 2")
    ka_map(A)
    A("v_and_b32 v2, 15, v1")
    A("v_lshrrev_b32 v3, 4, v1")
    srd(A, 40, 22, 3584)
    srd(A, 44, 24, 7340032, WS_H)
    A("v_bfe_u32 v6, v1, 2, 2")
    A("v_and_b32 v9, 1, v3")
    A("v_lshl_or_b32 v9, v9, 2, v6")
    A("v_lshl_add_u32 v10, v3, 3, v6")
    A("v_lshlrev_b32 v10, 8, v10")
    A("v_and_b32 v11, 3, v1")
    A("v_lshl_add_u32 v10, v11, 3, v10")
    A("s_and_b32 s68, s50, 1")
    AB = 12
    for tau in range(7):
        A(f"s_lshl_b32 s59, s3, 1")
        A(f"s_add_u32 s59, s59, {tau}")
        A(f"s_sub_u32 s67, s59, 7")
        A(f"s_cmp_ge_u32 s59, 7")
        A(f"s_cselect_b32 s{60+tau}, s67, s59")
        A(f"s_add_u32 s59, s{60+tau}, s68")
        A(f"v_xor_b32 v11, s59, v9")
        A(f"v_lshl_add_u32 v{AB+tau}, v11, 5, v10")
    A("v_lshrrev_b32 v6, 1, v2")
    A("v_xor_b32 v6, v6, v3")
    A("v_lshlrev_b32 v6, 4, v6")
    A("v_lshl_add_u32 v6, v2, 7, v6")
    A("s_lshl_b32 s59, s3, 12")
    A("s_add_u32 s59, s59, 16384")
    A("v_add_u32 v4, s59, v6")
    A("v_xor_b32 v5, 64, v4")
    A("s_mul_i32 s53, s50, 224")
    A("v_lshlrev_b32 v6, 3, v3")
    B1 = 20
    for tau in range(7):
        A(f"s_lshl_b32 s59, s{60+tau}, 5")
        A(f"s_add_u32 s59, s59, s53")
        A(f"buffer_load_dwordx2 {v(B1+2*tau,2)}, v6, s[40:43], s59 offen", tag='b1')
    ONES = 36
    for i in range(4): A(f"v_mov_b32 v{ONES+i}, 0x3f803f80")
    A("v_mov_b32 v34, 1")
    A(f"s_lshl_b32 s59, s3, 2")
    A(f"s_add_u32 s59, s59, {LA_FLAG}")
    A("v_mov_b32 v35, s59")
    A(f"v_mov_b32 v2, {LA_FLAG}")
    FL = 40
    AF = 44
    ACC = 72
    XR = 128
    ACS, ARS, AQS = 192, 200, 208
    def check_issue(off):
        A(f"ds_read_b128 {v(FL,4)}, v2 offset:{off}", tag='fr')
    def check_eval(off):
        L1, L2 = A.newlabel('chk'), A.newlabel('chk')
        A(f"{L1}:")
        A.wait_lg0()
        A(f"v_add3_u32 v{FL}, v{FL}, v{FL+1}, v{FL+2}")
        A(f"v_add_u32 v{FL}, v{FL}, v{FL+3}")
        A(f"v_cmp_eq_u32 vcc, 4, v{FL}")
        A(f"s_cbranch_vccnz {L2}")
        A(f"ds_read_b128 {v(FL,4)}, v2 offset:{off}")
        A(f"s_branch {L1}")
        A(f"{L2}:")
        A.lg = []
    def full_issue(u):
        A(f"ds_read_b32 v{FL}, v2 offset:{4*u}", tag=('fu', u))
    def full_eval(u):
        L1, L2 = A.newlabel('fu'), A.newlabel('fu')
        A.wait_lg(('fu', u))
        A(f"v_cmp_eq_u32 vcc, 1, v{FL}")
        A(f"s_cbranch_vccnz {L2}")
        A(f"{L1}:")
        A(f"ds_read_b32 v{FL}, v2 offset:{4*u}")
        A.lg.pop()
        A("s_waitcnt lgkmcnt(0)")
        A(f"v_cmp_eq_u32 vcc, 1, v{FL}")
        A(f"s_cbranch_vccz {L1}")
        A(f"{L2}:")
    def trread(j, tau, hh):
        if OPT.get('noread') and j > 0: return
        off = ((j//2) % 2) * 32768 + (j % 2) * 8192 + hh * 1024
        A(f"ds_read_b64_tr_b16 {v(AF+4*tau+2*hh,2)}, v{AB+tau} offset:{off}", tag=('a', j, tau))
    def xread(j, nt):
        if OPT.get('noread') and j > 0: return
        off = ((j//2) % 2) * 32768 + nt * 2048
        A(f"ds_read_b128 {v(XR+8*(j%2)+4*nt,4)}, v{4 + j%2} offset:{off}", tag=('x', j))
    full_issue(0); full_eval(0)
    stamp(A)
    if DEBUG: A("s_waitcnt lgkmcnt(0)")
    xread(0, 0); xread(0, 1)
    for tau in range(7):
        for hh in range(2): trread(0, tau, hh)
    for j in range(16):
        if j in (4, 8, 12) and DEBUG:
            A.wait_lg0(); stamp(A); A("s_waitcnt lgkmcnt(0)")
        sl = XR + 8*(j % 2)
        c0 = (j == 0)
        def mf(acc, a, b):
            if OPT.get('nomfma') and not c0: return
            A(f"v_mfma_f32_16x16x32_bf16 {v(acc,4)}, {v(a,4)}, {v(b,4)}, {'0' if c0 else v(acc,4)}")
        A.wait_lg(('x', j))
        mf(ARS, ONES, sl)
        if j % 2 == 1 and j < 15: full_eval((j+1)//2)
        mf(AQS, sl, sl)
        flip = (j < 15 and (j + 1) % 4 == 0)
        if j < 15 and flip:
            A(f"v_xor_b32 v4, 0x10000, v4"); A(f"v_xor_b32 v5, 0x10000, v5")
        mf(ARS+4, ONES, sl+4)
        if j < 15: xread(j+1, 0); xread(j+1, 1)
        mf(AQS+4, sl+4, sl+4)
        for tau in range(7):
            if tau % 2 == 0: A.wait_lg(('a', j, tau), ('a', j, min(tau+1, 6)))
            mf(ACC + 8*tau, AF + 4*tau, sl)
            if j < 15 and flip: A(f"v_xor_b32 v{AB+tau}, 0x10000, v{AB+tau}")
            if tau == 6 and j % 2 == 1 and j < 8:
                A(f"v_mov_b32 v6, {j//2 + 1}")
                A(f"ds_write_b32 v35, v6 offset:32", tag='dn')
            if tau == 5 and j % 2 == 0 and j < 14: full_issue(j//2 + 1)
            mf(ACC + 8*tau + 4, AF + 4*tau, sl + 4)
            if tau < 2: mf(ACS + 4*tau, AF + 4*tau, ONES)
            if j < 15:
                trread(j+1, tau, 0); trread(j+1, tau, 1)
    T0 = 144
    stamp(A)
    if DEBUG: A("s_waitcnt lgkmcnt(0)")
    for tau in range(2):
        A(f"s_lshl_b32 s59, s{60+tau}, 6")
        A(f"s_add_u32 s59, s59, {LA_CS}")
        A(f"v_lshl_add_u32 v{T0+tau}, v3, 4, s59")
        A(f"ds_write_b128 v{T0+tau}, {v(ACS+4*tau,4)}", tag='cw')
    A.wait_lg0()
    A(f"ds_write_b32 v35, v34 offset:128", tag='fl')
    A("v_and_b32 v6, 15, v1")
    A("v_and_b32 v8, 3, v1")
    A("v_lshrrev_b32 v9, 2, v6")
    A("v_lshl_add_u32 v9, v9, 4, v6")
    A("v_lshlrev_b32 v9, 2, v9")
    MN, RE = 132, 136
    A("v_cmp_eq_u32 s[52:53], 1, v8")
    A("v_cmp_eq_u32 s[54:55], 2, v8")
    A("v_cmp_eq_u32 s[56:57], 3, v8")
    for k in range(3):
        for nt in range(2):
            q = AQS + 4*nt
            A(f"v_cndmask_b32 v{q}, v{q}, v{q+1+k}, s[{52+2*k}:{53+2*k}]")
    for nt in range(2):
        q = AQS + 4*nt
        A(f"ds_bpermute_b32 v{q+1}, v9, v{q}", tag=('bp', nt))
    BF = 164
    A.wait_vm('b1')
    for tau in range(7):
        for k in range(2):
            A(f"v_lshlrev_b32 v{BF+4*tau+2*k}, 16, v{B1+2*tau+k}")
            A(f"v_and_b32 v{BF+4*tau+2*k+1}, 0xffff0000, v{B1+2*tau+k}")
    A.wait_lg(('bp', 0), ('bp', 1))
    check_issue(128)
    seqs = []
    for nt in range(2):
        m, q = ARS + 4*nt, AQS + 4*nt + 1
        t1, t2, t3, t4 = m+1, m+2, m+3, q+1
        S = []
        def br(d, x): S.extend([f'v_cvt_pk_bf16_f32 v{t4}, v{x}, v{x}', f'v_lshlrev_b32 v{d}, 16, v{t4}'])
        S.append(f"v_mul_f32 v{m}, {f2u(1/512)}, v{m}")
        S.append(f"v_mul_f32 v{q}, {f2u(1/512)}, v{q}")
        S.append(f"v_fma_f32 v{q}, -v{m}, v{m}, v{q}")
        S.append(f"v_max_f32 v{q}, 0, v{q}")
        br(t1, q)
        S.append(f"v_add_f32 v{t1}, {f2u(1e-5)}, v{t1}")
        br(t1, t1)
        S.append(f"v_sqrt_f32 v{t1}, v{t1}")
        br(t1, t1)
        S.append(f"v_rcp_f32 v{t2}, v{t1}")
        br(t3, m)
        S.append(f"v_sub_f32 v{m}, v{m}, v{t3}")
        S.append(f"v_mul_f32 v{m}, v{m}, v{t2}")
        br(m, m)
        S.append(f"v_fmac_f32 v{t3}, v{m}, v{t1}")
        S.append(f"v_sub_f32 v{MN+2*nt}, 0, v{t3}")
        S.append(f"v_mul_f32 v{q}, v{q}, v{t2}")
        S.append(f"v_mul_f32 v{q}, v{q}, v{t2}")
        br(q, q)
        S.append(f"v_add_f32 v{q}, {f2u(1e-5)}, v{q}")
        br(q, q)
        S.append(f"v_sqrt_f32 v{q}, v{q}")
        br(q, q)
        S.append(f"v_rcp_f32 v{q}, v{q}")
        S.append(f"v_mul_f32 v{RE+2*nt}, v{q}, v{t2}")
        seqs.append(S)
    for x, y in zip(*seqs): A(x); A(y)
    check_eval(128)
    stamp(A)
    if DEBUG: A("s_waitcnt lgkmcnt(0)")
    CS = 44
    for tau in range(7):
        A(f"s_lshl_b32 s59, s{60+tau}, 6")
        A(f"s_add_u32 s59, s59, {LA_CS}")
        A(f"v_lshl_add_u32 v{T0+tau}, v3, 4, s59")
        A(f"ds_read_b128 {v(CS+4*tau,4)}, v{T0+tau}", tag=('cs', tau))
    C1, C2, C3 = 196, 198, 200
    k0 = -2.0 * LOG2E * 0.7978845608028654
    A(f"v_mov_b32 v{C1}, {f2u(k0*0.044715)}")
    A(f"v_mov_b32 v{C2}, {f2u(k0)}")
    A(f"v_mov_b32 v{C3}, 1.0")
    A("s_lshl_b32 s52, s49, 3")
    A("s_lshl_b32 s53, s3, 1")
    A("s_add_u32 s52, s52, s53")
    A("s_mul_i32 s52, s52, 57344")
    A("s_mul_i32 s53, s50, 3584")
    A("s_add_u32 s52, s52, s53")
    A("v_lshrrev_b32 v8, 1, v3")
    A("v_lshlrev_b32 v8, 8, v8")
    A("v_lshl_add_u32 v8, v6, 4, v8")
    A("v_add_u32 v8, s52, v8")
    A("v_and_b32 v10, 1, v3")
    A("v_cmp_eq_u32 vcc, 1, v10")
    SA = 10
    for pr in range(4):
        A(f"s_lshl_b32 s59, s{60+2*pr}, 9")
        if pr < 3: A(f"s_lshl_b32 s67, s{60+2*pr+1}, 9")
        else: A(f"s_add_u32 s67, s59, 57344")
        A(f"v_mov_b32 v14, s59")
        A(f"v_mov_b32 v15, s67")
        A(f"v_cndmask_b32 v14, v14, v15, vcc")
        A(f"v_add_u32 v{SA+pr}, v14, v8")
    A(f"s_mov_b32 s59, 57344")
    TM = 202
    OUT = 224
    oi = 0
    bc = "op_sel_hi:[1,0,1]"
    groups = [((0,0),(1,0)), ((2,0),(3,0)), ((4,0),(5,0)), ((6,0),(6,1)), ((0,1),(1,1)), ((2,1),(3,1)), ((4,1),(5,1))]
    for grp in groups:
        o = OUT + 4 * (oi % 4); oi += 1
        chains = []
        for ti, (tau, nt) in enumerate(grp):
            A.wait_lg(('cs', tau))
            for pr in range(2):
                a = ACC + 8*tau + 4*nt + 2*pr
                t = TM + 2*(2*ti + pr)
                chains.append([
                    f"v_pk_fma_f32 {v(a,2)}, {v(CS+4*tau+2*pr,2)}, {v(MN+2*nt,2)}, {v(a,2)} {bc}",
                    f"v_pk_fma_f32 {v(a,2)}, {v(a,2)}, {v(RE+2*nt,2)}, {v(BF+4*tau+2*pr,2)} {bc}",
                    f"v_pk_mul_f32 {v(t,2)}, {v(a,2)}, {v(a,2)}",
                    f"v_pk_fma_f32 {v(t,2)}, {v(t,2)}, {v(C1,2)}, {v(C2,2)} op_sel_hi:[1,0,0]",
                    f"v_pk_mul_f32 {v(t,2)}, {v(t,2)}, {v(a,2)}",
                    f"v_exp_f32 v{t}, v{t}",
                    f"v_exp_f32 v{t+1}, v{t+1}",
                    f"v_pk_add_f32 {v(t,2)}, {v(t,2)}, {v(C3,2)} op_sel_hi:[1,0]",
                    f"v_rcp_f32 v{t}, v{t}",
                    f"v_rcp_f32 v{t+1}, v{t+1}",
                    f"v_pk_mul_f32 {v(t,2)}, {v(t,2)}, {v(a,2)}",
                    f"v_cvt_pk_bf16_f32 v{o+2*ti+pr}, v{t}, v{t+1}"])
        for ins in zip(*chains):
            for x in ins: A(x)
        A(f"v_permlane16_swap_b32 v{o}, v{o+2}")
        A(f"v_permlane16_swap_b32 v{o+1}, v{o+3}")
        so = 's59' if (grp[0][1] == 1) else '0'
        A(f"buffer_store_dwordx4 {v(o,4)}, v{SA+grp[0][0]//2}, s[44:47], {so} offen")
    stamp(A)
    if DEBUG: A.wait_vm0()
    dump_stamps(A, 24, 0)
    A("s_endpgm")

def kernel_a():
    A = Asm()
    A(".globl ka_kernel\n.p2align 8\n.type ka_kernel,@function")
    A("ka_kernel:")
    A("KA_start:")
    ka_prologue(A)
    ka_loader(A)
    ka_gemm(A)
    ka_ln(A)
    A("KA_end:")
    A("s_endpgm")
    return A.text()

def kd(name, vgpr=256, sgpr=102):
    return f""".p2align 6
.amdhsa_kernel {name}
  .amdhsa_next_free_vgpr {vgpr}
  .amdhsa_next_free_sgpr {sgpr}
  .amdhsa_accum_offset {vgpr}
  .amdhsa_group_segment_fixed_size 0
  .amdhsa_kernarg_size 136
  .amdhsa_user_sgpr_count 2
  .amdhsa_user_sgpr_kernarg_segment_ptr 1
  .amdhsa_system_sgpr_workgroup_id_x 1
.end_amdhsa_kernel
"""

if __name__ == '__main__':
    out = sys.argv[1] if len(sys.argv) > 1 else f'cdna_kernels/{NAME}.s'
    txt = f"; @launch kernel=ka_kernel grid=(256,1,1) block=(512,1,1) lds={LA_SIZE}\n"
    body = kernel_a()
    kds = kd('ka_kernel')
    try:
        import genb
        txt += genb.launch_lines()
        body += genb.kernel_b()
        kds += genb.kds()
    except ImportError:
        pass
    txt += '.amdgcn_target "amdgcn-amd-amdhsa--gfx950"\n.text\n' + body + 'CODE_END:\n.section .rodata,"a"\n' + kds
    open(out, 'w').write(txt)
```

```python
from gen import *
import gen

NR = 6
NU = 1
LB_RING = 0
LB_CONV = 4 * NR * 4096
CV_STRIDE = 2 * 4160 + 4576
LB_TAB = LB_CONV + 2 * CV_STRIDE
TAB_STRIDE = 6144
LB_FLAG = LB_TAB + 4 * TAB_STRIDE
LB_SIZE = LB_FLAG + 96 + NU * 16

def launch_lines():
    return f"; @launch kernel=kb_kernel grid=(256,1,1) block=(512,1,1) lds={LB_SIZE}\n"

def wait_flags(A, areg, off, n, treg):
    L1 = A.newlabel('wf')
    A(f"{L1}:")
    if n == 1:
        A(f"ds_read_b32 v{treg}, v{areg} offset:{off}")
        A("s_waitcnt lgkmcnt(0)")
    else:
        A(f"ds_read_b128 {v(treg,4)}, v{areg} offset:{off}")
        A("s_waitcnt lgkmcnt(0)")
        A(f"v_and_b32 v{treg}, v{treg}, v{treg+1}")
        A(f"v_and_b32 v{treg+2}, v{treg+2}, v{treg+3}")
        A(f"v_and_b32 v{treg}, v{treg}, v{treg+2}")
    A(f"v_cmp_eq_u32 vcc, 1, v{treg}")
    A(f"s_cbranch_vccz {L1}")
    A.lg = []

def kb_prologue(A):
    A("s_cmp_ge_u32 s2, 256")
    A("s_cbranch_scc1 KB_end")
    stamp(A, True); stamp(A)
    A("s_load_dwordx16 s[4:19], s[0:1], 0")
    A("s_load_dwordx2 s[20:21], s[0:1], 64")
    A("s_load_dwordx4 s[60:63], s[0:1], 96")
    A("s_load_dwordx2 s[22:23], s[0:1], 112")
    A("s_load_dwordx2 s[24:25], s[0:1], 128")
    A("v_lshrrev_b32 v2, 6, v0")
    A("v_and_b32 v1, 63, v0")
    A("v_mov_b32 v3, 0")
    A("v_readfirstlane_b32 s3, v2")
    A("v_min_u32 v4, 13, v1")
    A("v_lshlrev_b32 v4, 3, v4")
    A(f"v_add_u32 v4, {LB_FLAG}, v4")
    A("v_mov_b32 v6, 0\nv_mov_b32 v7, 0")
    A("ds_write_b64 v4, v[6:7]")
    A("s_and_b32 s26, s2, 7")
    A("s_lshr_b32 s27, s2, 3")
    A("s_lshl_b32 s28, s26, 5")
    A("s_add_u32 s28, s28, s27")
    A("s_lshr_b32 s29, s26, 1")
    A("s_lshl_b32 s29, s29, 3")
    A("s_and_b32 s30, s27, 7")
    A("s_add_u32 s29, s29, s30")
    A("s_and_b32 s30, s26, 1")
    A("s_lshl_b32 s30, s30, 2")
    A("s_lshr_b32 s31, s27, 3")
    A("s_add_u32 s30, s30, s31")
    A("v_and_b32 v2, 15, v1")
    A("v_lshrrev_b32 v3, 4, v1")
    A("s_waitcnt lgkmcnt(0)")
    A("s_barrier")
    stamp(A)
    A.reset_counters()
    A("s_cmp_ge_u32 s3, 4")
    A("s_cbranch_scc1 KB_conv")

def kb_gemm(A):
    LA = int(OPT.get('LA', 3))
    assert LA + 2 <= NR
    A.reset_counters(); A.nst = 3
    A(f"s_setprio {OPT.get('gprio', 1)}")
    if OPT.get('nogemm'): A("s_endpgm")
    srd(A, 32, 24, 7340032, WS_H)
    srd(A, 36, 60, 1835008)
    A("v_lshlrev_b32 v236, 4, v1")
    for l in range(4):
        A(f"s_add_u32 s49, s3, {l}")
        A("s_and_b32 s49, s49, 3")
        A("s_mul_i32 s49, s49, 57344")
        A(f"v_add_u32 v{4+l}, s49, v236")
    A(f"s_mul_i32 s48, s29, {4*57344}")
    A("s_lshl_b32 s49, s3, 10")
    A("s_add_u32 s48, s48, s49")
    A("v_lshrrev_b32 v12, 3, v1")
    A("v_and_b32 v13, 7, v1")
    A("v_bfe_u32 v14, v1, 4, 1")
    A("v_lshlrev_b32 v14, 1, v14")
    A("v_xor_b32 v13, v13, v14")
    A("v_lshlrev_b32 v12, 10, v12")
    A("s_lshl_b32 s49, s30, 7")
    A("v_add_u32 v12, s49, v12")
    for q in range(4):
        A(f"v_xor_b32 v14, {4*(q&1)}, v13")
        A(f"v_lshl_add_u32 v{8+q}, v14, 4, v12")
        if q: A(f"v_add_u32 v{8+q}, {q*(8192-1024)}, v{8+q}")
    A("s_lshl_b32 s50, s3, 15")
    A(f"s_mul_i32 s51, s3, {NR*4096}")
    NSTEP = 14
    if OPT.get('uord', 'local') == 'local':
        A("s_and_b32 s57, s26, 1")
        A("s_mul_i32 s57, s57, 7")
    else:
        A("s_mov_b32 s57, 0")
    HB, NH = 112, LA + 2
    assert HB + 16 * NH <= 208
    def loads(j):
        hb = HB + 16 * (j % NH)
        def first():
            A("s_lshl_b32 s58, s57, 12")
            A("s_add_u32 s58, s58, s48")
            A("s_lshl_b32 s59, s57, 17")
            A("s_add_u32 s59, s59, s50")
            A(f"s_add_u32 m0, s51, {(j % NR)*4096}")
            A(f"buffer_load_dwordx4 v8, s[36:39], s59 offen lds", tag=('ld', j))
        fs = [first]
        for q in range(1, 4):
            fs.append(lambda q=q: A(f"buffer_load_dwordx4 v{8+q}, s[36:39], s59 offen offset:{1024*q} lds", tag=('ld', j)))
        for nt in range(4):
            fs.append(lambda nt=nt: A(f"buffer_load_dwordx4 {v(hb+4*nt,4)}, v{4+nt}, s[32:35], s58 offen", tag=('ld', j)))
        def last():
            A("s_add_u32 s57, s57, 1")
            A(f"s_cmp_eq_u32 s57, {NSTEP}")
            A("s_cselect_b32 s57, 0, s57")
        fs.append(last)
        return fs
    for j in range(2):
        for f in loads(j): f()
    A("v_bfe_u32 v16, v1, 2, 2")
    A("v_lshrrev_b32 v17, 1, v16")
    A("v_and_b32 v18, 1, v3")
    A("v_lshl_or_b32 v17, v18, 1, v17")
    A("v_lshl_add_u32 v18, v3, 3, v16")
    A("v_lshlrev_b32 v18, 7, v18")
    A("v_and_b32 v19, 3, v1")
    A("v_lshl_add_u32 v18, v19, 3, v18")
    A("v_add_u32 v18, s51, v18")
    for mt in range(4):
        A(f"v_xor_b32 v19, {mt}, v17")
        A(f"v_lshl_add_u32 v{12+mt}, v19, 5, v18")
    for j in range(2, LA + 1):
        for f in loads(j): f()
    srd(A, 40, 4, 2097152)
    srd(A, 44, 62, 1024)
    srd(A, 52, 22, 2097152)
    A("s_lshl_b32 s49, s29, 6")
    A("s_lshl_b32 s56, s3, 4")
    A("s_add_u32 s49, s49, s56")
    A("v_add_u32 v16, s49, v2")
    A("v_lshlrev_b32 v16, 10, v16")
    A("v_and_b32 v17, 1, v3")
    A("v_lshl_add_u32 v16, v17, 5, v16")
    A("v_lshrrev_b32 v17, 1, v3")
    A("v_lshl_add_u32 v16, v17, 4, v16")
    A("s_lshl_b32 s49, s30, 7")
    A("v_add_u32 v16, s49, v16")
    A("v_lshlrev_b32 v17, 3, v3")
    A("v_mov_b32 v44, 1")
    A("s_lshl_b32 s56, s3, 2")
    A(f"s_add_u32 s56, s56, {LB_FLAG}")
    A("v_mov_b32 v45, s56")
    A(f"v_mov_b32 v46, {LB_FLAG}")
    A("v_add_u32 v47, s51, v236")
    A("v_bfe_u32 v18, v1, 2, 2")
    A("v_lshl_add_u32 v18, v3, 2, v18")
    A("v_bfe_u32 v19, v18, 1, 2")
    A("v_xor_b32 v19, s3, v19")
    A("v_lshlrev_b32 v18, 7, v18")
    A("v_lshl_add_u32 v18, v19, 5, v18")
    A("v_and_b32 v19, 3, v1")
    A("v_lshl_add_u32 v18, v19, 3, v18")
    A(f"v_add_u32 v18, {LB_TAB + 4096}, v18")
    for k in range(1, 4):
        A(f"s_add_u32 s56, s3, {k}")
        A("s_and_b32 s56, s56, 3")
        A(f"s_mul_i32 s56, s56, {NR*4096}")
        A(f"s_add_u32 s56, s56, {(4-k)*4096}")
        A(f"v_add_u32 v{247+k}, s56, v236")
    for l in range(4):
        pass
    AF, ACC = 28, 48
    def trread(j, mt):
        for hh in range(2):
            A(f"ds_read_b64_tr_b16 {v(AF+4*mt+2*hh,2)}, v{12+mt} offset:{(j % NR)*4096 + hh*512}", tag=('a', j, mt))
    A.wait_vm(('ld', 0))
    stamp(A)
    if DEBUG: A("s_waitcnt lgkmcnt(0)")
    for mt in range(4): trread(0, mt)
    for j in range(NSTEP):
        if j in (4, 9) and DEBUG:
            A.wait_lg0(); stamp(A); A("s_waitcnt lgkmcnt(0)")
        fs = loads(j + LA + 1) if j + LA + 1 < NSTEP else []
        if j == NSTEP - LA - 1:
            fs = [lambda: A("buffer_load_dwordx4 v[20:23], v16, s[40:43], 0 offen", tag='ep'),
                  lambda: A("buffer_load_dwordx4 v[24:27], v16, s[40:43], 0 offen offset:64", tag='ep')]
            for mt in range(4):
                fs.append(lambda mt=mt: A(f"buffer_load_dwordx2 {v(240+2*mt,2)}, v17, s[44:47], s49 offen offset:{32*mt}", tag='ep'))
        if j == int(OPT.get('GO', 9)): A("ds_write_b32 v45, v44 offset:64", tag='go')
        if j + 1 < NSTEP: A.wait_vm(('ld', j + 1))
        hb = HB + 16 * (j % NH)
        if j + 1 < NSTEP:
            for mt in range(4):
                A.wait_lg(('a', j, mt))
                for nt in range(4):
                    acc = ACC + 16*nt + 4*mt
                    A(f"v_mfma_f32_16x16x32_bf16 {v(acc,4)}, {v(AF+4*mt,4)}, {v(hb+4*nt,4)}, {'0' if j == 0 else v(acc,4)}")
                    if fs and nt < 3: fs.pop(0)()
                trread(j + 1, mt)
            while fs: fs.pop(0)()
        else:
            A.wait_lg0()
            pend = []
            for nt in (1, 2, 3, 0):
                for mt in range(4):
                    acc = ACC + 16*nt + 4*mt
                    A(f"v_mfma_f32_16x16x32_bf16 {v(acc,4)}, {v(AF+4*mt,4)}, {v(hb+4*nt,4)}, {v(acc,4)}")
                    if len(pend) >= 4:
                        a2, o2 = pend.pop(0)
                        A(f"ds_write_b128 v47, {v(a2,4)} offset:{o2}")
                    if nt: pend.append((acc, (4*nt+mt)*1024))
            for a2, o2 in pend: A(f"ds_write_b128 v47, {v(a2,4)} offset:{o2}")
    stamp(A)
    A("s_waitcnt lgkmcnt(0)")
    A("ds_write_b32 v45, v44 offset:96")
    A.wait_vm('ep')
    BB, XX, SS, T = 176, 192, 208, 128
    for mt in range(4):
        for k in range(2):
            A(f"v_lshlrev_b32 v{BB+4*mt+2*k}, 16, v{240+2*mt+k}")
            A(f"v_and_b32 v{BB+4*mt+2*k+1}, 0xffff0000, v{240+2*mt+k}")
    for r in range(0, 16, 2):
        A(f"v_pk_add_f32 {v(ACC+r,2)}, {v(ACC+r,2)}, {v(BB+r,2)}")
    if not (OPT.get('noconv') or OPT.get('nopoll')): wait_flags(A, 46, 32, 4, 8)
    for mt in range(4):
        A(f"ds_read_b64_tr_b16 {v(224+2*mt,2)}, v18 offset:{mt*TAB_STRIDE}", tag='s')
    for k in range(8):
        A(f"v_lshlrev_b32 v{XX+2*k}, 16, v{20+k}")
        A(f"v_and_b32 v{XX+2*k+1}, 0xffff0000, v{20+k}")
    A(f"v_mov_b32 v232, {f2u(-LOG2E)}")
    A(f"v_mov_b32 v234, 1.0")
    wait_flags(A, 46, 96, 4, 8)
    stamp(A)
    if DEBUG: A("s_waitcnt lgkmcnt(0)")
    PR = 128
    for k in range(1, 4):
        for mt in range(4):
            A(f"ds_read_b128 {v(PR+16*(k-1)+4*mt,4)}, v{247+k} offset:{mt*1024}", tag=('p', k))
    for mt in range(4):
        for k in range(2):
            A(f"v_lshlrev_b32 v{SS+4*mt+2*k}, 16, v{224+2*mt+k}")
            A(f"v_and_b32 v{SS+4*mt+2*k+1}, 0xffff0000, v{224+2*mt+k}")
    for k in range(1, 4):
        A.wait_lg(('p', k))
        for r in range(0, 16, 2):
            A(f"v_pk_add_f32 {v(ACC+r,2)}, {v(ACC+r,2)}, {v(PR+16*(k-1)+r,2)}")
    for r in range(0, 16, 2):
        A(f"v_pk_mul_f32 {v(T+r,2)}, {v(ACC+r,2)}, {v(232,2)} op_sel_hi:[1,0]")
    for r in range(16): A(f"v_exp_f32 v{T+r}, v{T+r}")
    for r in range(0, 16, 2):
        A(f"v_pk_add_f32 {v(T+r,2)}, {v(T+r,2)}, {v(234,2)} op_sel_hi:[1,0]")
        A(f"v_pk_mul_f32 {v(ACC+r,2)}, {v(ACC+r,2)}, {v(SS+r,2)}")
    for r in range(16): A(f"v_rcp_f32 v{T+r}, v{T+r}")
    for r in range(0, 16, 2):
        A(f"v_pk_mul_f32 {v(ACC+r,2)}, {v(ACC+r,2)}, {v(T+r,2)}")
    O = 160
    for r in range(0, 16, 2):
        A(f"v_cvt_pk_bf16_f32 v{O+r//2}, v{ACC+r}, v{ACC+r+1}")
    for pr in range(2):
        A(f"v_permlane16_swap_b32 v{O+4*pr}, v{O+4*pr+2}")
        A(f"v_permlane16_swap_b32 v{O+4*pr+1}, v{O+4*pr+3}")
    for k in range(8):
        A(f"v_lshlrev_b32 v{T+2*k}, 16, v{O+k}")
        A(f"v_and_b32 v{T+2*k+1}, 0xffff0000, v{O+k}")
    for k in range(8):
        A(f"v_pk_add_f32 {v(T+2*k,2)}, {v(T+2*k,2)}, {v(XX+2*k,2)}")
    for k in range(8):
        A(f"v_cvt_pk_bf16_f32 v{O+k}, v{T+2*k}, v{T+2*k+1}")
    A(f"buffer_store_dwordx4 {v(O,4)}, v16, s[52:55], 0 offen")
    A(f"buffer_store_dwordx4 {v(O+4,4)}, v16, s[52:55], 0 offen offset:64")
    stamp(A)
    if DEBUG: A.wait_vm0()
    dump_stamps(A, 24, 1)
    A("s_endpgm")

def kb_conv(A):
    A("KB_conv:")
    A.reset_counters(); A.nst = 3
    if OPT.get('noconv'): A("s_endpgm")
    A(f"s_setprio {OPT.get('cprio', 3)}")
    A("s_sub_u32 s48, s3, 4")
    A("s_lshr_b32 s49, s48, 1")
    A("s_and_b32 s50, s48, 1")
    A("s_lshl_b32 s51, s28, 1")
    A("s_add_u32 s51, s51, s49")
    A("s_lshl_b32 s52, s28, 2")
    A("s_load_dword s53, s[20:21], s52")
    srd(A, 32, 24, 512*KG_ROW, WS_KG)
    srd(A, 36, 24, 2097152, WS_XNB)
    A(f"s_mul_i32 s54, s49, {CV_STRIDE}")
    A(f"s_add_u32 s54, s54, {LB_CONV}")
    A(f"s_mul_i32 s61, s48, {TAB_STRIDE}")
    A(f"s_add_u32 s61, s61, {LB_TAB}")
    A("s_xor_b32 s62, s48, 1")
    A(f"s_mul_i32 s62, s62, {TAB_STRIDE}")
    A(f"s_add_u32 s62, s62, {LB_TAB}")
    A("v_lshlrev_b32 v4, 4, v1")
    A(f"s_mul_i32 s55, s51, {KG_ROW}")
    A("s_lshl_b32 s56, s50, 12")
    A("s_add_u32 s55, s55, s56")
    A("s_mul_i32 s56, s50, 4160")
    A("s_add_u32 s56, s56, s54")
    A("s_add_u32 m0, s56, 32")
    for q in range(4):
        A(f"buffer_load_dwordx4 v4, s[32:35], s55 offen offset:{1024*q} lds", tag='c')
    A("v_sub_u32 v6, 63, v1")
    A("v_lshlrev_b32 v6, 13, v6")
    A("s_and_b32 s56, s51, 7")
    A("s_lshl_b32 s56, s56, 10")
    A("s_lshr_b32 s57, s51, 3")
    A("s_lshl_b32 s57, s57, 4")
    A("s_add_u32 s56, s56, s57")
    A("v_add_u32 v6, s56, v6")
    for k in range(2):
        A(f"s_lshl_b32 s56, s50, 1")
        A(f"s_add_u32 s56, s56, {k}")
        A(f"s_lshl_b32 s57, s56, 10")
        A(f"s_add_u32 s57, s57, s54")
        A(f"s_add_u32 m0, s57, {2*4160}")
        A(f"s_sub_u32 s56, 3, s56")
        A(f"s_lshl_b32 s56, s56, 19")
        A(f"buffer_load_dwordx4 v6, s[36:39], s56 offen lds", tag='c')
    A("v_mov_b32 v24, 0\nv_mov_b32 v25, 0\nv_mov_b32 v26, 0\nv_mov_b32 v27, 0")
    A("v_min_u32 v6, 31, v1")
    A("v_lshlrev_b32 v6, 4, v6")
    A("s_mul_i32 s56, s50, 4160")
    A("v_add_u32 v7, s56, v6")
    A(f"v_add_u32 v6, {2*4160 + 4096 - 32}, v6")
    A("v_cmp_gt_u32 vcc, 2, v1")
    A("v_cndmask_b32 v6, v6, v7, vcc")
    A("v_add_u32 v6, s54, v6")
    A("ds_write_b128 v6, v[24:27]")
    A("v_mov_b32 v17, 1")
    A("s_lshl_b32 s56, s48, 2")
    A(f"s_add_u32 s56, s56, {LB_FLAG}")
    A("v_mov_b32 v18, s56")
    A("v_xor_b32 v19, 4, v18")
    A("v_lshrrev_b32 v6, 1, v2")
    A("v_lshlrev_b32 v6, 2, v6")
    A("v_lshl_add_u32 v6, v3, 4, v6")
    A("v_and_b32 v7, 1, v2")
    A("v_sub_u32 v7, 1, v7")
    A("v_mul_u32_u24 v7, 4160, v7")
    A("v_add_u32 v6, v6, v7")
    A("s_lshl_b32 s56, s50, 8")
    A("s_add_u32 s56, s56, s54")
    A("s_add_u32 s57, s56, 4")
    A("v_add_u32 v12, s57, v6")
    for qq in range(1, 4): A(f"v_add_u32 v{12+qq}, {1024*qq}, v12")
    A("v_lshlrev_b32 v6, 4, v3")
    A("v_lshlrev_b32 v7, 5, v2")
    A("v_sub_u32 v6, v6, v7")
    A(f"s_add_u32 s57, s56, {2*4160 + 480}")
    A("v_add_u32 v16, s57, v6")
    A("s_waitcnt vmcnt(0) lgkmcnt(0)")
    A.reset_counters()
    A("ds_write_b32 v18, v17")
    A("s_lshl_b32 s56, s49, 4")
    A("s_lshr_b32 s53, s53, s56")
    A("s_lshl_b32 s53, s53, 16")
    wait_flags(A, 19, 0, 1, 20)
    stamp(A)
    if DEBUG: A("s_waitcnt lgkmcnt(0)")
    ACC, FR = 24, 64
    def reads(pl):
        b = FR + 64 * (pl % 2)
        fs = []
        for k in range(8):
            o = 128*(k & 1) + 16*pl
            fs.append(lambda k=k, o=o: A(f"ds_read2_b32 {v(b+4*k,2)}, v{12+k//2} offset0:{o} offset1:{o+1}", tag=('f', pl)))
            fs.append(lambda k=k, o=o: A(f"ds_read2_b32 {v(b+4*k+2,2)}, v{12+k//2} offset0:{o+2} offset1:{o+3}", tag=('f', pl)))
            fs.append(lambda k=k: A(f"ds_read_b128 {v(b+32+4*k,4)}, v16 offset:{3584 - 512*k + 64*pl}", tag=('f', pl)))
        return fs
    for f in reads(0): f()
    A("v_lshlrev_b32 v8, 5, v2")
    A("v_lshl_add_u32 v8, v3, 3, v8")
    A("s_lshl_b32 s56, s50, 11")
    A(f"s_add_u32 s57, s54, {2*4160 + 4088 - 1536}")
    A("s_sub_u32 s57, s57, s56")
    A("v_sub_u32 v8, s57, v8")
    XN = 192
    for a in range(4):
        A(f"ds_read_b64 {v(XN+2*a,2)}, v8 offset:{1536 - 512*a}")
    A("s_waitcnt lgkmcnt(0)")
    A.lg = []
    T = 200
    for a in range(4):
        A(f"v_and_b32 v{T+4*a}, 0xffff0000, v{XN+2*a+1}")
        A(f"v_lshlrev_b32 v{T+4*a+1}, 16, v{XN+2*a+1}")
        A(f"v_and_b32 v{T+4*a+2}, 0xffff0000, v{XN+2*a}")
        A(f"v_lshlrev_b32 v{T+4*a+3}, 16, v{XN+2*a}")
    for r in range(16): A(f"v_mul_f32 v{T+r}, s53, v{T+r}")
    P1 = 216
    for k in range(8): A(f"v_cvt_pk_bf16_f32 v{P1+k}, v{T+2*k}, v{T+2*k+1}")
    for k in range(8):
        A(f"v_lshlrev_b32 v{T+2*k}, 16, v{P1+k}")
        A(f"v_and_b32 v{T+2*k+1}, 0xffff0000, v{P1+k}")
    A(f"s_setprio {OPT.get('cprio2', 0)}")
    for pl in range(4):
        A.wait_lg0()
        fs = reads(pl + 1) if pl < 3 else []
        b = FR + 64 * (pl % 2)
        first = set()
        for q in range(8):
            for w in range(8 - q):
                ib = q + w
                c = '0' if (pl == 0 and ib not in first) else v(ACC+4*ib, 4)
                first.add(ib)
                A(f"v_mfma_f32_16x16x32_bf16 {v(ACC+4*ib,4)}, {v(b+4*q,4)}, {v(b+32+4*w,4)}, {c}")
                if fs: fs.pop(0)()
    stamp(A)
    if DEBUG: A("s_waitcnt lgkmcnt(0)")
    A(f"s_setprio {OPT.get('cprio3', 3)}")
    A("v_add_u32 v6, s61, v4")
    A("v_add_u32 v7, s62, v4")
    F = 64
    A("s_cmp_eq_u32 s50, 0")
    A("s_cbranch_scc1 KB_x0")
    for ph, lab in ((1, None), (0, 'KB_x0')):
        if lab: A(f"{lab}:")
        send, keep = (4, 0) if ph == 0 else (0, 4)
        for a in range(4):
            A(f"ds_write_b128 v6, {v(ACC+4*(send+a),4)} offset:{1024*a}")
        for r in range(16):
            A(f"v_mov_b32 v{F+r}, v{ACC+4*keep+r}")
        if not lab: A("s_branch KB_x1")
    A("KB_x1:")
    A("s_waitcnt lgkmcnt(0)")
    A("ds_write_b32 v18, v17 offset:16")
    wait_flags(A, 19, 16, 1, 20)
    R = 80
    for a in range(4):
        A(f"ds_read_b128 {v(R+4*a,4)}, v7 offset:{1024*a}", tag='r')
    A.wait_lg('r')
    for r in range(0, 16, 2):
        A(f"v_pk_add_f32 {v(F+r,2)}, {v(F+r,2)}, {v(R+r,2)}")
    for k in range(8): A(f"v_cvt_pk_bf16_f32 v{P1+k}, v{F+2*k}, v{F+2*k+1}")
    for k in range(8):
        A(f"v_lshlrev_b32 v{F+2*k}, 16, v{P1+k}")
        A(f"v_and_b32 v{F+2*k+1}, 0xffff0000, v{P1+k}")
    for r in range(0, 16, 2):
        A(f"v_pk_add_f32 {v(F+r,2)}, {v(F+r,2)}, {v(T+r,2)}")
    for k in range(8): A(f"v_cvt_pk_bf16_f32 v{P1+k}, v{F+2*k}, v{F+2*k+1}")
    for pr in range(2):
        A(f"v_permlane16_swap_b32 v{P1+4*pr}, v{P1+4*pr+2}")
        A(f"v_permlane16_swap_b32 v{P1+4*pr+1}, v{P1+4*pr+3}")
    srd(A, 40, 24, 2097152, WS_ST)
    A("v_and_b32 v8, 1, v3")
    A("v_lshlrev_b32 v8, 9, v8")
    A("v_lshl_add_u32 v8, v2, 5, v8")
    A("v_lshrrev_b32 v9, 1, v3")
    A("v_lshl_add_u32 v8, v9, 4, v8")
    A("s_lshl_b32 s56, s51, 12")
    A("s_lshl_b32 s57, s50, 11")
    A("s_add_u32 s56, s56, s57")
    for pr in range(2):
        A(f"buffer_store_dwordx4 {v(P1+4*pr,4)}, v8, s[40:43], s56 offen offset:{1024*pr} sc1")
    if not OPT.get('kst'): stamp(A)
    if OPT.get('nopoll'):
        dump_stamps(A, 24, 1); A("s_endpgm"); A.nst = 6
    A("v_lshrrev_b32 v8, 3, v1")
    A("v_and_b32 v9, 7, v1")
    A("v_lshlrev_b32 v10, 12, v8")
    A("v_lshl_add_u32 v10, v9, 4, v10")
    A("s_lshl_b32 s56, s30, 6")
    A("s_lshl_b32 s57, s48, 4")
    A("s_add_u32 s56, s56, s57")
    A("s_lshl_b32 s56, s56, 12")
    A("s_lshl_b32 s57, s29, 7")
    A("s_add_u32 s56, s56, s57")
    A("s_add_u32 s59, s56, 32768")
    A("v_bfe_u32 v11, v8, 1, 2")
    A("v_lshlrev_b32 v11, 1, v11")
    A("v_xor_b32 v11, v11, v9")
    A("v_lshlrev_b32 v11, 4, v11")
    A("v_lshl_add_u32 v11, v8, 7, v11")
    A(f"s_add_u32 s57, s61, 4096")
    A("v_add_u32 v11, s57, v11")
    A("KB_go:")
    A("s_sleep 4")
    A("ds_read_b32 v20, v18 offset:64")
    A("s_waitcnt lgkmcnt(0)")
    A("v_cmp_eq_u32 vcc, 1, v20")
    A("s_cbranch_vccz KB_go")
    A("s_mov_b32 s58, 0")
    A("KB_poll:")
    A("buffer_load_dwordx4 v[64:67], v10, s[40:43], s56 offen sc1")
    A("buffer_load_dwordx4 v[68:71], v10, s[40:43], s59 offen sc1")
    A("s_waitcnt vmcnt(0)")
    A("v_max3_u32 v12, v64, v65, v66")
    A("v_max3_u32 v13, v67, v68, v69")
    A("v_max3_u32 v12, v12, v70, v71")
    A("v_max_u32 v12, v12, v13")
    A("v_cmp_eq_u32 vcc, -1, v12")
    A("s_cbranch_vccz KB_polled")
    A(f"s_sleep {OPT.get('sleep', 8)}")
    A("s_add_u32 s58, s58, 1")
    A("s_cmp_lt_u32 s58, 0x8000")
    A("s_cbranch_scc1 KB_poll")
    A("KB_polled:")
    if not OPT.get('kst'): stamp(A)
    A("ds_write_b128 v11, v[64:67]")
    A("ds_write_b128 v11, v[68:71] offset:1024")
    A("s_waitcnt lgkmcnt(0)")
    A("ds_write_b32 v18, v17 offset:32")
    dump_stamps(A, 24, 1)
    A("s_endpgm")

def kernel_b():
    A = Asm()
    A.uid = 1000
    A(".globl kb_kernel\n.p2align 8\n.type kb_kernel,@function")
    A("kb_kernel:")
    kb_prologue(A)
    kb_gemm(A)
    kb_conv(A)
    A("KB_end:")
    A("s_endpgm")
    return A.text()

def kds():
    return kd('kb_kernel')
```

```python
import sys, os
sys.path.insert(0, os.path.dirname(__file__))
from asmlib import Asm

NAME = 'recurrent_scan__ssm_conv_s4__mixer_channel_mlp__prompt'
WS_XNB = 0
WS_KG = 0x200000
KG_ROW = 8192
WS_H = 0x800000
WS_ST = 0x1000000
WS_FLAG = 0x1400000
SRD3 = '0x00020000'
OOB = 0x40000000

def v(a, n=1): return f'v{a}' if n == 1 else f'v[{a}:{a+n-1}]'
def s(a, n=1): return f's{a}' if n == 1 else f's[{a}:{a+n-1}]'

def srd(A, d, base, size, off=0):
    if off:
        A(f's_add_u32 s{d}, s{base}, {off}')
        A(f's_addc_u32 s{d+1}, s{base+1}, 0')
    else:
        A(f's_mov_b32 s{d}, s{base}')
        A(f's_mov_b32 s{d+1}, s{base+1}')
    A(f's_mov_b32 s{d+2}, {size}')
    A(f's_mov_b32 s{d+3}, {SRD3}')

def bf16r(A, d, x, t):
    A(f'v_cvt_pk_bf16_f32 v{t}, v{x}, v{x}')
    A(f'v_lshlrev_b32 v{d}, 16, v{t}')

def f2u(x):
    import struct
    return '0x%08x' % struct.unpack('<I', struct.pack('<f', x))[0]

LOG2E = 1.4426950408889634
DEBUG = os.environ.get('KDEBUG', '0') == '1'
WS_DBG = 0x1800000
OPT = dict(kv.split('=') for kv in os.environ.get('KOPT', '').split(',') if kv)
class Stamps:
    n = 0
def stamp(A, real=False):
    if not DEBUG: return
    i = A.nst = getattr(A, 'nst', 0)
    assert i < 12
    A(f"{'s_memrealtime' if real else 's_memtime'} s[{70+2*i}:{71+2*i}]")
    A.nst = i + 1
def dump_stamps(A, wsreg, kidx):
    if not DEBUG: return
    stamp(A); stamp(A, True)
    A("s_waitcnt lgkmcnt(0)")
    if OPT.get('dbgout'):
        n = A.nst
        L = A.newlabel('dbg')
        A("s_and_b32 s94, s2, 0x7f")
        A("s_or_b32 s94, s94, s3")
        A("s_cmp_lg_u32 s94, 0")
        A(f"s_cbranch_scc1 {L}")
        A("s_load_dwordx2 s[94:95], s[0:1], 120")
        A("s_waitcnt lgkmcnt(0)")
        srd(A, 96, 94, 256)
        A("s_lshr_b32 s94, s2, 2")
        A("v_mov_b32 v250, s94")
        idx = [0, n-1, 2, 3, 5, 7, 8, n-2]
        for i, k in enumerate(idx):
            if k >= n: continue
            if i < 2: A(f"v_mov_b32 v251, s{70+2*k}")
            else:
                A(f"s_sub_u32 s95, s{70+2*k}, s72")
                A("v_mov_b32 v251, s95")
            A(f"buffer_store_dword v251, v250, s[96:99], 0 offen offset:{4*i}")
        A(f"{L}:")
        return
    srd(A, 96, wsreg, 0x100000, WS_DBG + kidx * 0x40000)
    A("s_lshl_b32 s94, s2, 3")
    A("s_add_u32 s94, s94, s3")
    A("s_lshl_b32 s94, s94, 6")
    A("v_mov_b32 v250, s94")
    for i in range(A.nst):
        A(f"v_mov_b32 v251, s{70+2*i}")
        A(f"buffer_store_dword v251, v250, s[96:99], 0 offen offset:{4*i}")
LA_W1 = 0
LA_KTAB = 131072
LA_FLAG = LA_KTAB + 16384
LA_CSF = LA_FLAG + 128
LA_CS = LA_FLAG + 144
LA_SIZE = LA_CS + 448

def ka_prologue(A):
    A("s_cmp_ge_u32 s2, 256")
    A("s_cbranch_scc1 KA_end")
    stamp(A, True); stamp(A)
    A("s_load_dwordx16 s[4:19], s[0:1], 0")
    A("s_load_dwordx4 s[20:23], s[0:1], 80")
    A("s_load_dwordx2 s[24:25], s[0:1], 128")
    A("s_load_dwordx2 s[58:59], s[0:1], 96")
    A("v_lshrrev_b32 v2, 6, v0")
    A("v_and_b32 v1, 63, v0")
    A("v_mov_b32 v3, 0")
    A("v_readfirstlane_b32 s3, v2")
    A(f"v_lshlrev_b32 v4, 2, v1")
    A(f"v_min_u32 v4, 140, v4")
    A(f"ds_write_b32 v4, v3 offset:{LA_FLAG - 131072}", tag='z') if False else None
    A(f"v_add_u32 v4, {LA_FLAG}, v4")
    A(f"ds_write_b32 v4, v3")
    A("s_and_b32 s26, s2, 7")
    A("s_lshr_b32 s27, s2, 3")
    A("s_lshl_b32 s28, s26, 5")
    A("s_add_u32 s28, s28, s27")
    A("s_waitcnt lgkmcnt(0)")
    A("s_barrier")
    stamp(A)
    A.reset_counters()
    A("s_cmp_lt_u32 s3, 4")
    A("s_cbranch_scc1 KA_gemm")
    A("s_cmp_eq_u32 s3, 7")
    A("s_cbranch_scc1 KA_loader")
    if OPT.get('nohelp'): A("s_endpgm")
    A("s_cmp_eq_u32 s3, 4")
    A("s_cbranch_scc1 KA_ln")
    A("s_branch KA_kgen")

def ka_pf(A):
    if OPT.get('nopfa'): return
    srd(A, 32, 4, 2097152)
    srd(A, 36, 20, 1835008)
    A("v_and_b32 v4, 31, v1")
    A("v_cmp_le_u32 vcc, 14, v4")
    A("v_subrev_u32 v5, 14, v4")
    A("v_cndmask_b32 v5, v4, v5, vcc")
    A("v_cndmask_b32 v6, 0, 1, vcc")
    A("v_lshrrev_b32 v7, 5, v1")
    A("v_lshl_add_u32 v6, v7, 6, v6")
    A("s_lshl_b32 s40, s27, 1")
    A("v_add_u32 v6, s40, v6")
    A("v_mul_u32_u24 v6, 3584, v6")
    A("v_lshl_add_u32 v6, v5, 7, v6")
    A("s_and_b32 s40, s26, 1")
    A("s_mul_i32 s40, s40, 1792")
    A("v_add_u32 v6, s40, v6")
    A("v_cmp_gt_u32 vcc, 28, v4")
    A(f"v_mov_b32 v7, {OOB}")
    A("v_cndmask_b32 v6, v7, v6, vcc")
    A("v_and_b32 v4, 15, v1")
    A("s_lshr_b32 s40, s26, 1")
    A("s_lshl_b32 s40, s40, 9")
    A("s_lshl_b32 s41, s27, 4")
    A("s_add_u32 s40, s40, s41")
    A("v_add_u32 v4, s40, v4")
    A("v_lshlrev_b32 v4, 10, v4")
    A("v_lshrrev_b32 v5, 4, v1")
    A("v_lshl_add_u32 v4, v5, 7, v4")
    A(f"s_sleep {OPT.get('pfsleep', 4)}")
    A("buffer_load_dword v8, v4, s[32:35], 0 offen")
    for i in range(int(OPT.get('pf0', 1)), 4):
        A(f"s_mov_b32 s40, {i*128*3584}")
        A(f"buffer_load_dword v{9+i}, v6, s[36:39], s40 offen")
        if i == 1: A("buffer_load_dword v13, v4, s[32:35], 0 offen offset:512")

def ka_ln(A):
    A("KA_ln:")
    A.reset_counters(); A.nst = 3
    srd(A, 32, 4, 2097152)
    srd(A, 36, 24, 2097152, WS_XNB)
    A("s_lshl_b32 s29, s28, 13")
    A("v_lshlrev_b32 v2, 4, v1")
    A("v_add_u32 v3, 4096, v2")
    X = 8
    for t in range(8):
        A(f"buffer_load_dwordx4 {v(X+4*t,4)}, v{2 + t//4}, s[32:35], s29 offen offset:{(t%4)*1024}", tag=('x', t))
    if not OPT.get('nocpf'):
        A("s_getpc_b64 s[40:41]")
        A("KA_pc:")
        A("s_sub_u32 s40, s40, KA_pc-KA_start")
        A("s_subb_u32 s41, s41, 0")
        A("s_mov_b32 s42, CODE_END-KA_start")
        A(f"s_mov_b32 s43, {SRD3}")
        A("v_lshlrev_b32 v4, 7, v1")
        A("s_and_b32 s44, s27, 3")
        A("s_lshl_b32 s44, s44, 13")
        A("buffer_load_dword v5, v4, s[40:43], s44 offen", tag='cpf')
    A("v_mov_b32 v4, 0x3f803f80")
    S, Q = 40, 48
    for t in range(8):
        A.wait_vm(('x', t))
        for k in range(4):
            if k == 0:
                A(f"v_dot2_f32_bf16 v{S+t}, v{X+4*t}, v4, 0")
                A(f"v_dot2_f32_bf16 v{Q+t}, v{X+4*t}, v{X+4*t}, 0")
            else:
                A(f"v_dot2_f32_bf16 v{S+t}, v{X+4*t+k}, v4, v{S+t}")
                A(f"v_dot2_f32_bf16 v{Q+t}, v{X+4*t+k}, v{X+4*t+k}, v{Q+t}")
    stamp(A)
    for B in (S, Q):
        for t in range(4):
            A(f"v_permlane32_swap_b32 v{B+t}, v{B+t+4}")
    for B in (S, Q):
        for t in range(4):
            A(f"v_add_f32 v{B+t}, v{B+t}, v{B+t+4}")
    for B in (S, Q):
        for t in range(2):
            A(f"v_permlane16_swap_b32 v{B+t}, v{B+t+2}")
    for B in (S, Q):
        for t in range(2):
            A(f"v_add_f32 v{B+t}, v{B+t}, v{B+t+2}")
    for sh in (8, 4, 2, 1):
        for r in (S, S+1, Q, Q+1):
            A(f"v_add_f32_dpp v{r}, v{r}, v{r} row_ror:{sh} row_mask:0xf bank_mask:0xf")
    for t in range(2):
        m, q, tmp = S+t, Q+t, 56+t
        A(f"v_mul_f32 v{m}, {f2u(1/512)}, v{m}")
        A(f"v_mul_f32 v{q}, {f2u(1/512)}, v{q}")
        A(f"v_fma_f32 v{q}, -v{m}, v{m}, v{q}")
        A(f"v_max_f32 v{q}, 0, v{q}")
        bf16r(A, m, m, tmp)
        bf16r(A, q, q, tmp)
        A(f"v_add_f32 v{q}, {f2u(1e-5)}, v{q}")
        bf16r(A, q, q, tmp)
        A(f"v_sqrt_f32 v{q}, v{q}")
        bf16r(A, q, q, tmp)
        A(f"v_rcp_f32 v{q}, v{q}")
    for t in range(2):
        for rho in range(4):
            A(f"v_readlane_b32 s{40 + t + 2*rho}, v{S+t}, {16*rho}")
            A(f"v_readlane_b32 s{48 + t + 2*rho}, v{Q+t}, {16*rho}")
    F, O = 64, 96
    for i in range(4):
        for h, t in enumerate((7 - 2*i, 6 - 2*i)):
            for k in range(4):
                lo, hi, x = F + 8*h + 2*k, F + 8*h + 2*k + 1, X + 4*t + k
                A(f"v_lshlrev_b32 v{lo}, 16, v{x}")
                A(f"v_and_b32 v{hi}, 0xffff0000, v{x}")
                A(f"v_subrev_f32 v{lo}, s{40+t}, v{lo}")
                A(f"v_subrev_f32 v{hi}, s{40+t}, v{hi}")
                A(f"v_cvt_pk_bf16_f32 v{x}, v{lo}, v{hi}")
                A(f"v_lshlrev_b32 v{lo}, 16, v{x}")
                A(f"v_and_b32 v{hi}, 0xffff0000, v{x}")
                A(f"v_mul_f32 v{lo}, s{48+t}, v{lo}")
                A(f"v_mul_f32 v{hi}, s{48+t}, v{hi}")
        for dl in range(8):
            A(f"v_cvt_pk_bf16_f32 v{O+4*dl+i}, v{F+dl}, v{F+8+dl}")
    for dl in range(8):
        A(f"buffer_store_dwordx4 {v(O+4*dl,4)}, v{2 + dl//4}, s[36:39], s29 offen offset:{1024*(dl%4)}")
    stamp(A)
    if DEBUG: A.wait_vm0()
    dump_stamps(A, 24, 0)
    A("s_endpgm")

XROWS = [(0,0),(0,1),(0,2),(0,3),(1,0),(1,1),(1,2),(1,3),(2,0),(2,2),(4,0),(6,0),(3,0),(3,2),(5,0),(7,0),
         (8,0),(10,0),(12,0),(14,0),(9,0),(11,0),(13,0),(15,0),(16,0)]
KT_STRIDE = 272

def ka_kgen(A):
    A("KA_kgen:")
    A.reset_counters(); A.nst = 3
    A("s_setprio 3")
    A("s_sub_u32 s29, s3, 5")
    A("s_lshl_b32 s30, s28, 1")
    A("s_add_u32 s30, s30, s29")
    A("s_lshl_b32 s31, s28, 2")
    A("s_load_dword s60, s[18:19], s31")
    A("s_lshl_b32 s31, s30, 8")
    A("v_lshlrev_b32 v2, 2, v1")
    for i in range(6):
        srd(A, 32, 6 + 2*i, 131072)
        A(f"buffer_load_dword v{52+i}, v2, s[32:35], s31 offen", tag='p')
    if not OPT.get('nomall'):
        A("s_cmp_eq_u32 s29, 0")
        A("s_cselect_b32 s36, s20, s58")
        A("s_cselect_b32 s37, s21, s59")
        A("s_cselect_b32 s38, 1835008, 0" if OPT.get('w1only') else "s_mov_b32 s38, 1835008")
        A(f"s_mov_b32 s39, {SRD3}")
        A("v_lshlrev_b32 v5, 4, v1")
        A("s_mul_i32 s40, s2, 7168")
        for i in range(7):
            if i == 4: A("s_add_u32 s40, s40, 4096")
            A(f"buffer_load_dwordx4 {v(208+4*i,4)}, v5, s[36:39], s40 offen offset:{1024*(i%4)}", tag='t')
    srd(A, 56, 24, 512*KG_ROW, WS_KG)
    A(f"s_lshl_b32 s61, s29, 13")
    A(f"s_add_u32 s61, s61, {LA_KTAB}")
    WA, RA = 244, 252
    A("v_lshlrev_b32 v5, 7, v1")
    A("v_add_u32 v5, s61, v5")
    A("v_and_b32 v6, 7, v1")
    for c in range(8):
        A(f"v_xor_b32 v7, {c}, v6")
        A(f"v_lshl_add_u32 v{WA+c}, v7, 4, v5")
    A("v_bfe_u32 v5, v1, 2, 2")
    A("v_lshrrev_b32 v6, 5, v1")
    A("v_lshlrev_b32 v6, 2, v6")
    A("v_lshrrev_b32 v7, 1, v5")
    A("v_add_u32 v6, v6, v7")
    A("v_and_b32 v5, 1, v5")
    A("v_lshlrev_b32 v5, 2, v5")
    A("v_bfe_u32 v7, v1, 4, 1")
    A("v_lshl_add_u32 v5, v7, 1, v5")
    A("v_bfe_u32 v7, v1, 1, 1")
    A("v_add_u32 v5, v5, v7")
    A("v_and_b32 v7, 1, v1")
    A("v_lshlrev_b32 v7, 3, v7")
    A("v_add_u32 v7, s61, v7")
    for hh in range(2):
        if hh: A("v_add_u32 v6, 2, v6")
        A(f"v_xor_b32 v15, v5, v6")
        A(f"v_lshl_add_u32 v15, v15, 4, v7")
        A(f"v_lshl_add_u32 v{RA+hh}, v6, 7, v15")
    A("s_waitcnt lgkmcnt(0)")
    A("s_lshl_b32 s62, s29, 4")
    A("s_lshr_b32 s60, s60, s62")
    A("s_lshl_b32 s60, s60, 16")
    A(f"v_mov_b32 v14, {f2u(LOG2E)}")
    A("v_mul_f32 v14, s60, v14")
    A("v_exp_f32 v14, v14")
    bf16r(A, 14, 14, 15)
    XV = 60
    PKB = 112
    A("v_mov_b32 v46, 1.0")
    A("v_mov_b32 v47, 0")
    A.wait_vm('p')
    stamp(A)
    Z1, Z4, Z128, Z2, Z3, Z8, Z256 = 20, 22, 24, 26, 28, 36, 38
    def cmul2(l):
        for d, a, b in l: A(f"v_pk_mul_f32 {v(d,2)}, {v(a,2)}, {v(b,2)} op_sel_hi:[0,1]")
        for d, a, b in l: A(f"v_pk_fma_f32 {v(d,2)}, {v(a,2)}, {v(b,2)}, {v(d,2)} op_sel:[1,1,0] op_sel_hi:[1,0,1] neg_lo:[0,1,0]")
    def pack(PK, i, c0, c1, neg):
        n = '-' if neg else ''
        A(f"v_cvt_pk_bf16_f32 v{PK+i}, v{c0}, v{c1}")
        A(f"v_cvt_pk_bf16_f32 v{PK+16+i}, {n}v{c0+1}, {n}v{c1+1}")
    rowof = {ae: r for r, ae in enumerate(XROWS)}
    X = lambda a, e=0: XV + 2*rowof[(a, e)]
    ZE = {1: Z1, 2: Z2, 3: Z3}
    for half in range(2):
        PW, PX = PKB + 64*half, PKB + 64*half + 32
        for i in range(6):
            if half == 0: A(f"v_lshlrev_b32 v{8+i}, 16, v{52+i}")
            else: A(f"v_and_b32 v{8+i}, 0xffff0000, v{52+i}")
        for i in range(4):
            A(f"v_mul_f32 v{8+i}, v14, v{8+i}")
        A(f"v_mul_f32 v8, {f2u(LOG2E)}, v8")
        A(f"v_mul_f32 v9, 0.15915494, v9")
        zs = ((Z4, 4.0), (Z1, 1.0), (Z128, 128.0))
        for k, (base, o) in enumerate(zs):
            A(f"v_mul_f32 v{30+2*k}, {f2u(o)}, v8")
            A(f"v_mul_f32 v{31+2*k}, {f2u(o)}, v9")
        for k, (base, o) in enumerate(zs):
            A(f"v_exp_f32 v{30+2*k}, v{30+2*k}")
            A(f"v_fract_f32 v{31+2*k}, v{31+2*k}")
        for k, (base, o) in enumerate(zs):
            A(f"v_cos_f32 v{base}, v{31+2*k}")
            A(f"v_sin_f32 v{base+1}, v{31+2*k}")
        for k, (base, o) in enumerate(zs):
            A(f"v_pk_mul_f32 {v(base,2)}, {v(base,2)}, {v(30+2*k,2)} op_sel_hi:[1,0]")
        cmul2([(Z8, Z4, Z4), (Z2, Z1, Z1), (X(0), 12, 10), (Z256, Z128, Z128)])
        cmul2([(Z3, Z2, Z1), (X(1), X(0), Z128), (40, Z4, Z8), (X(2), X(0), Z256)])
        if half == 1: A.wait_vm0()
        pack(PW, 0, 46, Z4, False); pack(PW, 1, Z8, 40, False)
        ce, co = Z8, 40
        xs = [(X(a+2), X(a), Z256) for a in range(1, 15)]
        xs2 = [(X(a, e), X(a), ZE[e]) for (a, e) in XROWS if e]
        for b in range(4, 32, 2):
            ne = 42 if ce != 42 else 16
            no = 44 if co != 44 else 40
            l = [(ne, ce, Z8), (no, co, Z8), xs.pop(0)]
            if b >= 8 and xs2: l.append(xs2.pop(0))
            cmul2(l); ce, co = ne, no
            pack(PW, b//2, ce, co, False)
        assert not xs and not xs2
        for i in range(13):
            pack(PX, i, XV + 4*i, XV + 4*i + (2 if i < 12 else 0), True)
    stamp(A)
    A(f"s_setprio {OPT.get('kprio', 1)}")
    A(f"v_mov_b32 v3, {LA_FLAG}")
    A("KA_kw:")
    A("s_sleep 8")
    A(f"ds_read_b32 v4, v3 offset:{4*int(OPT.get('kwait', 7))}")
    A("s_waitcnt lgkmcnt(0)")
    A("v_cmp_eq_u32 vcc, 1, v4")
    A("s_cbranch_vccz KA_kw")
    A.lg = []
    FA, FB, D = 16, 48, 80
    def flush(PK):
        for part in range(2):
            for q in range(4):
                A(f"ds_write_b128 v{WA+4*part+q}, {v(PK+16*part+4*q,4)}", tag='w')
    def frags(F, tag):
        for st in range(8):
            for hh in range(2):
                A(f"ds_read_b64_tr_b16 {v(F+4*st+2*hh,2)}, v{RA+hh} offset:{st*1024}", tag=(tag, st))
    if DEBUG: A("s_waitcnt lgkmcnt(0)")
    for half in range(2):
        flush(PKB + 64*half); frags(FB, 'fb')
        flush(PKB + 64*half + 32); frags(FA, 'fa')
        for st in range(8):
            A.wait_lg(('fa', st))
            A(f"v_mfma_f32_32x32x16_bf16 {v(D,16)}, {v(FA+4*st,4)}, {v(FB+4*st,4)}, {'0' if (st == 0 and half == 0) else v(D,16)}")
    stamp(A)
    if DEBUG: A("s_waitcnt lgkmcnt(0)")
    A("v_lshrrev_b32 v7, 5, v1")
    A("v_lshlrev_b32 v2, 4, v1")
    A("v_mov_b32 v11, 0")
    A("s_add_u32 s61, s61, 16")
    A("v_mov_b32 v12, s61")
    A("v_subrev_u32 v12, 4, v12")
    A("ds_write_b32 v12, v11")
    A("v_and_b32 v10, 31, v1")
    A("v_lshlrev_b32 v10, 3, v10")
    A("v_lshl_add_u32 v10, v7, 8, v10")
    A("v_add_u32 v10, s61, v10")
    T = 16
    def dup(dst, r): A(f"v_cvt_pk_bf16_f32 v{dst}, v{r}, v{r}")
    A("s_mov_b32 s64, 0x55555555\ns_mov_b32 s65, 0x55555555")
    A("s_mov_b32 s66, 0x11111111\ns_mov_b32 s67, 0x11111111")
    for r in range(8, 13):
        dup(T + 2*(r-8), D + r); A(f"v_mov_b32 v{T+2*(r-8)+1}, v{T+2*(r-8)}")
    for r in (6, 7): dup(T + 10 + (r-6), D + r)
    for r in (4, 5): dup(T + 12 + (r-4), D + r)
    A(f"v_cvt_pk_bf16_f32 v{T+14}, v{D}, v{D+1}")
    A(f"v_cvt_pk_bf16_f32 v{T+15}, v{D+2}, v{D+3}")
    A("s_mov_b64 exec, 1")
    A(f"ds_write_b64 v10, {v(T+8,2)} offset:{2*(2048-4)}")
    A("s_mov_b64 exec, s[64:65]")
    for r in range(8, 12):
        o = 1024 + 256*(r-8)
        A(f"ds_write_b64 v10, {v(T+2*(r-8),2)} offset:{2*(o-4)}")
        A(f"ds_write_b64 v10, {v(T+2*(r-8),2)} offset:{2*o}")
    A("s_mov_b64 exec, s[66:67]")
    for r in range(8, 12):
        o = 1024 + 256*(r-8)
        A(f"ds_write_b16 v10, v{T+2*(r-8)} offset:{2*(o+4)}")
    A("s_mov_b64 exec, -1")
    for r in (6, 7):
        o = 512 + 256*(r-6)
        A(f"ds_write_b32 v10, v{T+10+(r-6)} offset:{2*(o-2)}")
        A(f"ds_write_b32 v10, v{T+10+(r-6)} offset:{2*o}")
    A("s_mov_b64 exec, s[64:65]")
    for r in (6, 7):
        o = 512 + 256*(r-6)
        A(f"ds_write_b16 v10, v{T+10+(r-6)} offset:{2*(o+2)}")
    A("s_mov_b64 exec, -1")
    A(f"ds_write_b16 v10, v{T+12} offset:{2*(256-1)}")
    A(f"ds_write_b32 v10, v{T+12} offset:{2*256}")
    A(f"ds_write_b16 v10, v{T+13} offset:{2*(256+2)}")
    A(f"ds_write_b64 v10, {v(T+14,2)}")
    A("v_add_u32 v3, s61, v2")
    A("v_subrev_u32 v3, 4, v3")
    for i in range(4):
        A(f"ds_read_b32 v{112+8*i+3}, v3 offset:{1024*i}", tag=('k', i))
        A(f"ds_read_b128 {v(112+8*i+4,4)}, v3 offset:{1024*i+4}", tag=('k', i))
    A(f"s_mul_i32 s31, s30, {KG_ROW}")
    A("s_add_u32 s32, s31, 4096")
    for i in range(4):
        A.wait_lg(('k', i))
        A(f"buffer_store_dwordx4 {v(112+8*i+4,4)}, v2, s[56:59], s31 offen offset:{1024*i}")
        for k in range(4):
            A(f"v_alignbit_b32 v{144+4*i+k}, v{112+8*i+4+k}, v{112+8*i+3+k}, 16")
        A(f"buffer_store_dwordx4 {v(144+4*i,4)}, v2, s[56:59], s32 offen offset:{1024*i}")
    stamp(A)
    if DEBUG: A.wait_vm0()
    dump_stamps(A, 24, 0)
    A("s_endpgm")

def ka_map(A):
    mapping = OPT.get('map', '8x4')
    if mapping == '16x2':
        A("s_and_b32 s48, s27, 1")
        A("s_lshl_b32 s49, s26, 1")
        A("s_add_u32 s49, s49, s48")
        A("s_lshr_b32 s50, s27, 1")
        A("s_lshl_b32 s51, s48, 2")
        A("s_add_u32 s51, s51, s50")
    else:
        A("s_and_b32 s48, s27, 3")
        A("s_lshr_b32 s49, s26, 1")
        A("s_lshl_b32 s49, s49, 2")
        A("s_add_u32 s49, s49, s48")
        A("s_lshr_b32 s52, s27, 2")
        A("s_and_b32 s50, s26, 1")
        A("s_lshl_b32 s50, s50, 3")
        A("s_add_u32 s50, s50, s52")
        A("s_lshl_b32 s51, s48, 1")
        A("s_add_u32 s51, s51, s52")
    if OPT.get('order', 'rot') == 'same': A("s_mov_b32 s51, 0")
    if OPT.get('order') == 'half': A("s_and_b32 s51, s51, 1")
    if OPT.get('order') == 'quarter': A("s_and_b32 s51, s51, 3")

LA_FULL = LA_FLAG
LA_DONE = LA_FLAG + 32

def ka_loader(A):
    A("KA_loader:")
    A.reset_counters(); A.nst = 3
    A("s_setprio 3")
    if OPT.get('noldr'): A("s_endpgm")
    srd(A, 32, 4, 2097152)
    srd(A, 36, 20, 1835008)
    ka_map(A)
    A("v_and_b32 v2, 15, v1")
    A("v_lshrrev_b32 v3, 4, v1")
    A("s_mul_i32 s53, s50, 224")
    A("s_and_b32 s53, s53, 0xffffff80" if OPT.get('al128') else "s_and_b32 s53, s53, 0xffffffc0")
    A("v_mul_u32_u24 v4, 3584, v3")
    A("v_add_u32 v4, s53, v4")
    A("v_lshlrev_b32 v5, 1, v3")
    A("v_xor_b32 v5, v5, v2")
    for q in range(4):
        A(f"v_xor_b32 v6, {8*((q>>1)&1)}, v5")
        A(f"v_lshl_add_u32 v{8+q}, v6, 4, v4")
        if q: A(f"v_add_u32 v{8+q}, {q*(4*3584-1024)}, v{8+q}")
    A("v_lshrrev_b32 v4, 3, v1")
    A("v_lshrrev_b32 v5, 4, v1")
    A("v_and_b32 v6, 7, v1")
    A("v_xor_b32 v5, v5, v6")
    A("s_lshl_b32 s52, s49, 7")
    A("v_add_u32 v4, s52, v4")
    A("v_lshlrev_b32 v4, 10, v4")
    for q in range(4):
        A(f"v_xor_b32 v6, {4*(q&1)}, v5")
        A(f"v_lshl_add_u32 v{12+q}, v6, 4, v4")
        if q: A(f"v_add_u32 v{12+q}, {q*(8192-1024)}, v{12+q}")
    A("v_mov_b32 v16, 1")
    A(f"v_mov_b32 v17, {LA_FLAG}")
    def issue(u, parts):
        if 0 in parts:
            A(f"s_add_u32 s55, s51, {u}")
            A("s_and_b32 s55, s55, 7")
            A("s_lshl_b32 s56, s55, 7")
            A(f"s_mul_i32 s57, s55, {64*3584}")
        base = LA_W1 + (u % 4) * 32768
        for part in parts:
            if OPT.get('only') == 'x' and part % 2 == 0: continue
            if OPT.get('only') == 'w' and part % 2 == 1: continue
            qq = part // 2
            if part % 2 == 0:
                A(f"s_add_u32 m0, s61, {base + qq*4096}")
                if qq: A(f"s_add_u32 s57, s57, {16*3584}")
                for q in range(4):
                    A(f"buffer_load_dwordx4 v{8+q}, s[36:39], s57 offen offset:{1024*q} lds", tag=('u', u))
            else:
                A(f"s_add_u32 m0, s61, {base + 16384 + qq*4096}")
                if qq: A(f"s_add_u32 s56, s56, 32768")
                for q in range(4):
                    A(f"buffer_load_dwordx4 v{12+q}, s[32:35], s56 offen offset:{1024*q} lds", tag=('u', u))
    def post(u):
        A.wait_vm(('u', u))
        A(f"ds_write_b32 v17, v16 offset:{4*u}")
    A("s_mov_b32 s61, 0")
    PP = int(OPT.get('PP', 4))
    issue(0, range(8))
    for u in range(1, 8):
        if u == 4 and OPT.get('kst'): A("s_endpgm")
        if u >= 4:
            L1 = A.newlabel('fr')
            A(f"{L1}:")
            A(f"ds_read_b128 v[20:23], v17 offset:32")
            A("s_waitcnt lgkmcnt(0)")
            A("v_min_u32 v20, v20, v21")
            A("v_min3_u32 v20, v20, v22, v23")
            A(f"v_cmp_le_u32 vcc, {u-3}, v20")
            A(f"s_cbranch_vccnz {L1}_d")
            A("s_sleep 1")
            A(f"s_branch {L1}")
            A(f"{L1}_d:")
        pp = int(OPT.get('PP0', 2)) if u == 1 else PP
        issue(u, range(pp))
        post(u-1)
        issue(u, range(pp, 8))
        if u in (1, 4): stamp(A)
    post(7)
    stamp(A)
    if not OPT.get('nopf'):
        srd(A, 40, 58, 1835008)
        A("s_mul_i32 s52, s27, 57344")
        A("s_and_b32 s53, s26, 1")
        A("s_lshl_b32 s53, s53, 9")
        A("s_add_u32 s52, s52, s53")
        if OPT.get('densepf'):
            A("v_lshrrev_b32 v4, 5, v1")
            A("v_lshlrev_b32 v4, 10, v4")
            A("v_and_b32 v5, 31, v1")
            A("v_lshl_add_u32 v4, v5, 4, v4")
            for i in range(28):
                A(f"buffer_load_dwordx4 {v(24+4*(i%8),4)}, v4, s[40:43], s52 offen offset:{2048*(i%2)}")
                if i % 2: A("s_add_u32 s52, s52, 4096")
        else:
            A("v_lshrrev_b32 v4, 2, v1")
            A("v_lshlrev_b32 v4, 10, v4")
            A("v_and_b32 v5, 3, v1")
            A("v_lshl_add_u32 v4, v5, 7, v4")
            for i in range(4):
                if i == 3: A("s_mov_b64 exec, 0xffffffff")
                A(f"buffer_load_dword v{24+i}, v4, s[40:43], s52 offen")
                A("s_add_u32 s52, s52, 16384")
            A("s_mov_b64 exec, -1")
    srd(A, 32, 24, 2097152, WS_ST)
    A("s_lshl_b32 s29, s28, 13")
    A("v_lshlrev_b32 v4, 4, v1")
    A("v_mov_b32 v8, -1\nv_mov_b32 v9, -1\nv_mov_b32 v10, -1\nv_mov_b32 v11, -1")
    for i in range(8):
        A(f"buffer_store_dwordx4 v[8:11], v4, s[32:35], s29 offen offset:{1024*(i%4)}")
        if i == 3: A("s_add_u32 s29, s29, 4096")
    dump_stamps(A, 24, 0)
    A("s_endpgm")

def ka_gemm(A):
    A("KA_gemm:")
    A.reset_counters(); A.nst = 3
    A("s_setprio 2")
    ka_map(A)
    A("v_and_b32 v2, 15, v1")
    A("v_lshrrev_b32 v3, 4, v1")
    srd(A, 40, 22, 3584)
    srd(A, 44, 24, 7340032, WS_H)
    A("v_bfe_u32 v6, v1, 2, 2")
    A("v_and_b32 v9, 1, v3")
    A("v_lshl_or_b32 v9, v9, 2, v6")
    A("v_lshl_add_u32 v10, v3, 3, v6")
    A("v_lshlrev_b32 v10, 8, v10")
    A("v_and_b32 v11, 3, v1")
    A("v_lshl_add_u32 v10, v11, 3, v10")
    A("s_and_b32 s68, s50, 1")
    AB = 12
    for tau in range(7):
        A(f"s_lshl_b32 s59, s3, 1")
        A(f"s_add_u32 s59, s59, {tau}")
        A(f"s_sub_u32 s67, s59, 7")
        A(f"s_cmp_ge_u32 s59, 7")
        A(f"s_cselect_b32 s{60+tau}, s67, s59")
        A(f"s_add_u32 s59, s{60+tau}, s68")
        A(f"v_xor_b32 v11, s59, v9")
        A(f"v_lshl_add_u32 v{AB+tau}, v11, 5, v10")
    A("v_lshrrev_b32 v6, 1, v2")
    A("v_xor_b32 v6, v6, v3")
    A("v_lshlrev_b32 v6, 4, v6")
    A("v_lshl_add_u32 v6, v2, 7, v6")
    A("s_lshl_b32 s59, s3, 12")
    A("s_add_u32 s59, s59, 16384")
    A("v_add_u32 v4, s59, v6")
    A("v_xor_b32 v5, 64, v4")
    B1 = 20
    def b1loads():
        A("s_mul_i32 s53, s50, 224")
        A("v_lshlrev_b32 v7, 3, v3")
        for tau in range(7):
            A(f"s_lshl_b32 s59, s{60+tau}, 5")
            A(f"s_add_u32 s59, s59, s53")
            A(f"buffer_load_dwordx2 {v(B1+2*tau,2)}, v7, s[40:43], s59 offen", tag='b1')
    ONES = 36
    for i in range(4): A(f"v_mov_b32 v{ONES+i}, 0x3f803f80")
    A("v_mov_b32 v34, 1")
    A(f"s_lshl_b32 s59, s3, 2")
    A(f"s_add_u32 s59, s59, {LA_FLAG}")
    A("v_mov_b32 v35, s59")
    A(f"v_mov_b32 v2, {LA_FLAG}")
    FL = 40
    AF = 44
    ACC = 72
    XR = 128
    ACS, ARS, AQS = 192, 200, 208
    def check_issue(off):
        A(f"ds_read_b128 {v(FL,4)}, v2 offset:{off}", tag='fr')
    def check_eval(off):
        L1, L2 = A.newlabel('chk'), A.newlabel('chk')
        A(f"{L1}:")
        A.wait_lg0()
        A(f"v_add3_u32 v{FL}, v{FL}, v{FL+1}, v{FL+2}")
        A(f"v_add_u32 v{FL}, v{FL}, v{FL+3}")
        A(f"v_cmp_eq_u32 vcc, 4, v{FL}")
        A(f"s_cbranch_vccnz {L2}")
        A(f"ds_read_b128 {v(FL,4)}, v2 offset:{off}")
        A(f"s_branch {L1}")
        A(f"{L2}:")
        A.lg = []
    def full_issue(u):
        A(f"ds_read_b32 v{FL}, v2 offset:{4*u}", tag=('fu', u))
    def full_eval(u):
        L1, L2 = A.newlabel('fu'), A.newlabel('fu')
        A.wait_lg(('fu', u))
        A(f"v_cmp_eq_u32 vcc, 1, v{FL}")
        A(f"s_cbranch_vccnz {L2}")
        A(f"{L1}:")
        A(f"ds_read_b32 v{FL}, v2 offset:{4*u}")
        A.lg.pop()
        A("s_waitcnt lgkmcnt(0)")
        A(f"v_cmp_eq_u32 vcc, 1, v{FL}")
        A(f"s_cbranch_vccz {L1}")
        A(f"{L2}:")
    def trread(j, tau, hh):
        if OPT.get('noread') and j > 0: return
        off = ((j//2) % 2) * 32768 + (j % 2) * 8192 + hh * 1024
        A(f"ds_read_b64_tr_b16 {v(AF+4*tau+2*hh,2)}, v{AB+tau} offset:{off}", tag=('a', j, tau))
    def xread(j, nt):
        if OPT.get('noread') and j > 0: return
        off = ((j//2) % 2) * 32768 + nt * 2048
        A(f"ds_read_b128 {v(XR+8*(j%2)+4*nt,4)}, v{4 + j%2} offset:{off}", tag=('x', j))
    b1loads()
    full_issue(0); full_eval(0)
    stamp(A)
    if DEBUG: A("s_waitcnt lgkmcnt(0)")
    xread(0, 0); xread(0, 1)
    for tau in range(7):
        for hh in range(2): trread(0, tau, hh)
    for j in range(16):
        if j in (4, 8, 12) and DEBUG:
            A.wait_lg0(); stamp(A); A("s_waitcnt lgkmcnt(0)")
        sl = XR + 8*(j % 2)
        c0 = (j == 0)
        def mf(acc, a, b):
            if OPT.get('nomfma') and not c0: return
            A(f"v_mfma_f32_16x16x32_bf16 {v(acc,4)}, {v(a,4)}, {v(b,4)}, {'0' if c0 else v(acc,4)}")
        A.wait_lg(('x', j))
        mf(ARS, ONES, sl)
        if j % 2 == 1 and j < 15: full_eval((j+1)//2)
        mf(AQS, sl, sl)
        flip = (j < 15 and (j + 1) % 4 == 0)
        if j < 15 and flip:
            A(f"v_xor_b32 v4, 0x10000, v4"); A(f"v_xor_b32 v5, 0x10000, v5")
        mf(ARS+4, ONES, sl+4)
        if j < 15: xread(j+1, 0); xread(j+1, 1)
        mf(AQS+4, sl+4, sl+4)
        for tau in range(7):
            if tau % 2 == 0: A.wait_lg(('a', j, tau), ('a', j, min(tau+1, 6)))
            mf(ACC + 8*tau, AF + 4*tau, sl)
            if j < 15 and flip: A(f"v_xor_b32 v{AB+tau}, 0x10000, v{AB+tau}")
            if tau == 6 and j % 2 == 1 and j < 8:
                A(f"v_mov_b32 v6, {j//2 + 1}")
                A(f"ds_write_b32 v35, v6 offset:32", tag='dn')
            if tau == 5 and j % 2 == 0 and j < 14: full_issue(j//2 + 1)
            mf(ACC + 8*tau + 4, AF + 4*tau, sl + 4)
            if tau < 2: mf(ACS + 4*tau, AF + 4*tau, ONES)
            if j < 15:
                trread(j+1, tau, 0); trread(j+1, tau, 1)
    T0 = 144
    stamp(A)
    if DEBUG: A("s_waitcnt lgkmcnt(0)")
    for tau in range(2):
        A(f"s_lshl_b32 s59, s{60+tau}, 6")
        A(f"s_add_u32 s59, s59, {LA_CS}")
        A(f"v_lshl_add_u32 v{T0+tau}, v3, 4, s59")
        A(f"ds_write_b128 v{T0+tau}, {v(ACS+4*tau,4)}", tag='cw')
    A.wait_lg0()
    A(f"ds_write_b32 v35, v34 offset:128", tag='fl')
    A("v_and_b32 v6, 15, v1")
    A("v_and_b32 v8, 3, v1")
    A("v_lshrrev_b32 v9, 2, v6")
    A("v_lshl_add_u32 v9, v9, 4, v6")
    A("v_lshlrev_b32 v9, 2, v9")
    MN, RE = 132, 136
    A("v_cmp_eq_u32 s[52:53], 1, v8")
    A("v_cmp_eq_u32 s[54:55], 2, v8")
    A("v_cmp_eq_u32 s[56:57], 3, v8")
    for k in range(3):
        for nt in range(2):
            q = AQS + 4*nt
            A(f"v_cndmask_b32 v{q}, v{q}, v{q+1+k}, s[{52+2*k}:{53+2*k}]")
    for nt in range(2):
        q = AQS + 4*nt
        A(f"ds_bpermute_b32 v{q+1}, v9, v{q}", tag=('bp', nt))
    BF = 164
    A.wait_vm('b1')
    for tau in range(7):
        for k in range(2):
            A(f"v_lshlrev_b32 v{BF+4*tau+2*k}, 16, v{B1+2*tau+k}")
            A(f"v_and_b32 v{BF+4*tau+2*k+1}, 0xffff0000, v{B1+2*tau+k}")
    A.wait_lg(('bp', 0), ('bp', 1))
    check_issue(128)
    seqs = []
    for nt in range(2):
        m, q = ARS + 4*nt, AQS + 4*nt + 1
        t1, t2, t3, t4 = m+1, m+2, m+3, q+1
        S = []
        def br(d, x): S.extend([f'v_cvt_pk_bf16_f32 v{t4}, v{x}, v{x}', f'v_lshlrev_b32 v{d}, 16, v{t4}'])
        S.append(f"v_mul_f32 v{m}, {f2u(1/512)}, v{m}")
        S.append(f"v_mul_f32 v{q}, {f2u(1/512)}, v{q}")
        S.append(f"v_fma_f32 v{q}, -v{m}, v{m}, v{q}")
        S.append(f"v_max_f32 v{q}, 0, v{q}")
        br(t1, q)
        S.append(f"v_add_f32 v{t1}, {f2u(1e-5)}, v{t1}")
        br(t1, t1)
        S.append(f"v_sqrt_f32 v{t1}, v{t1}")
        br(t1, t1)
        S.append(f"v_rcp_f32 v{t2}, v{t1}")
        br(t3, m)
        S.append(f"v_sub_f32 v{m}, v{m}, v{t3}")
        S.append(f"v_mul_f32 v{m}, v{m}, v{t2}")
        br(m, m)
        S.append(f"v_fmac_f32 v{t3}, v{m}, v{t1}")
        S.append(f"v_sub_f32 v{MN+2*nt}, 0, v{t3}")
        S.append(f"v_mul_f32 v{q}, v{q}, v{t2}")
        S.append(f"v_mul_f32 v{q}, v{q}, v{t2}")
        br(q, q)
        S.append(f"v_add_f32 v{q}, {f2u(1e-5)}, v{q}")
        br(q, q)
        S.append(f"v_sqrt_f32 v{q}, v{q}")
        br(q, q)
        S.append(f"v_rcp_f32 v{q}, v{q}")
        S.append(f"v_mul_f32 v{RE+2*nt}, v{q}, v{t2}")
        seqs.append(S)
    for x, y in zip(*seqs): A(x); A(y)
    check_eval(128)
    stamp(A)
    if DEBUG: A("s_waitcnt lgkmcnt(0)")
    CS = 44
    for tau in range(7):
        A(f"s_lshl_b32 s59, s{60+tau}, 6")
        A(f"s_add_u32 s59, s59, {LA_CS}")
        A(f"v_lshl_add_u32 v{T0+tau}, v3, 4, s59")
        A(f"ds_read_b128 {v(CS+4*tau,4)}, v{T0+tau}", tag=('cs', tau))
    C1, C2, C3 = 196, 198, 200
    k0 = -2.0 * LOG2E * 0.7978845608028654
    A(f"v_mov_b32 v{C1}, {f2u(k0*0.044715)}")
    A(f"v_mov_b32 v{C2}, {f2u(k0)}")
    A(f"v_mov_b32 v{C3}, 1.0")
    A("s_lshl_b32 s52, s49, 3")
    A("s_lshl_b32 s53, s3, 1")
    A("s_add_u32 s52, s52, s53")
    A("s_mul_i32 s52, s52, 57344")
    A("s_mul_i32 s53, s50, 3584")
    A("s_add_u32 s52, s52, s53")
    A("v_lshrrev_b32 v8, 1, v3")
    A("v_lshlrev_b32 v8, 8, v8")
    A("v_lshl_add_u32 v8, v6, 4, v8")
    A("v_add_u32 v8, s52, v8")
    A("v_and_b32 v10, 1, v3")
    A("v_cmp_eq_u32 vcc, 1, v10")
    SA = 10
    for pr in range(4):
        A(f"s_lshl_b32 s59, s{60+2*pr}, 9")
        if pr < 3: A(f"s_lshl_b32 s67, s{60+2*pr+1}, 9")
        else: A(f"s_add_u32 s67, s59, 57344")
        A(f"v_mov_b32 v14, s59")
        A(f"v_mov_b32 v15, s67")
        A(f"v_cndmask_b32 v14, v14, v15, vcc")
        A(f"v_add_u32 v{SA+pr}, v14, v8")
    A(f"s_mov_b32 s59, 57344")
    TM = 202
    OUT = 224
    oi = 0
    bc = "op_sel_hi:[1,0,1]"
    groups = [((0,0),(1,0)), ((2,0),(3,0)), ((4,0),(5,0)), ((6,0),(6,1)), ((0,1),(1,1)), ((2,1),(3,1)), ((4,1),(5,1))]
    for grp in groups:
        o = OUT + 4 * (oi % 4); oi += 1
        chains = []
        for ti, (tau, nt) in enumerate(grp):
            A.wait_lg(('cs', tau))
            for pr in range(2):
                a = ACC + 8*tau + 4*nt + 2*pr
                t = TM + 2*(2*ti + pr)
                chains.append([
                    f"v_pk_fma_f32 {v(a,2)}, {v(CS+4*tau+2*pr,2)}, {v(MN+2*nt,2)}, {v(a,2)} {bc}",
                    f"v_pk_fma_f32 {v(a,2)}, {v(a,2)}, {v(RE+2*nt,2)}, {v(BF+4*tau+2*pr,2)} {bc}",
                    f"v_pk_mul_f32 {v(t,2)}, {v(a,2)}, {v(a,2)}",
                    f"v_pk_fma_f32 {v(t,2)}, {v(t,2)}, {v(C1,2)}, {v(C2,2)} op_sel_hi:[1,0,0]",
                    f"v_pk_mul_f32 {v(t,2)}, {v(t,2)}, {v(a,2)}",
                    f"v_exp_f32 v{t}, v{t}",
                    f"v_exp_f32 v{t+1}, v{t+1}",
                    f"v_pk_add_f32 {v(t,2)}, {v(t,2)}, {v(C3,2)} op_sel_hi:[1,0]",
                    f"v_rcp_f32 v{t}, v{t}",
                    f"v_rcp_f32 v{t+1}, v{t+1}",
                    f"v_pk_mul_f32 {v(t,2)}, {v(t,2)}, {v(a,2)}",
                    f"v_cvt_pk_bf16_f32 v{o+2*ti+pr}, v{t}, v{t+1}"])
        for ins in zip(*chains):
            for x in ins: A(x)
        A(f"v_permlane16_swap_b32 v{o}, v{o+2}")
        A(f"v_permlane16_swap_b32 v{o+1}, v{o+3}")
        so = 's59' if (grp[0][1] == 1) else '0'
        A(f"buffer_store_dwordx4 {v(o,4)}, v{SA+grp[0][0]//2}, s[44:47], {so} offen")
    stamp(A)
    if DEBUG: A.wait_vm0()
    dump_stamps(A, 24, 0)
    A("s_endpgm")

def kernel_a():
    A = Asm()
    A(".globl ka_kernel\n.p2align 8\n.type ka_kernel,@function")
    A("ka_kernel:")
    A("KA_start:")
    ka_prologue(A)
    ka_loader(A)
    ka_gemm(A)
    ka_ln(A)
    ka_kgen(A)
    A("KA_end:")
    A("s_endpgm")
    return A.text()

def kd(name, vgpr=256, sgpr=102):
    return f""".p2align 6
.amdhsa_kernel {name}
  .amdhsa_next_free_vgpr {vgpr}
  .amdhsa_next_free_sgpr {sgpr}
  .amdhsa_accum_offset {vgpr}
  .amdhsa_group_segment_fixed_size 0
  .amdhsa_kernarg_size 136
  .amdhsa_user_sgpr_count 2
  .amdhsa_user_sgpr_kernarg_segment_ptr 1
  .amdhsa_system_sgpr_workgroup_id_x 1
.end_amdhsa_kernel
"""

if __name__ == '__main__':
    out = sys.argv[1] if len(sys.argv) > 1 else f'cdna_kernels/{NAME}.s'
    txt = f"; @launch kernel=ka_kernel grid=(256,1,1) block=(512,1,1) lds={LA_SIZE}\n"
    body = kernel_a()
    kds = kd('ka_kernel')
    try:
        if OPT.get('onlya'): raise ImportError
        import genb
        txt += genb.launch_lines()
        body += genb.kernel_b()
        kds += genb.kds()
    except ImportError:
        pass
    txt += '.amdgcn_target "amdgcn-amd-amdhsa--gfx950"\n.text\n' + body + 'CODE_END:\n.section .rodata,"a"\n' + kds
    open(out, 'w').write(txt)
```

```python
import sys, os, struct
sys.path.insert(0, os.path.dirname(__file__))
from asmlib import Asm

NAME = 'recurrent_scan__ssm_conv_s4__mixer_channel_mlp__prompt'
KN = NAME + '_kernel'
WS_XN = 0
WS_H = 0x800000
WS_ST = 0x1000000
WS_FLAG = 0x1400000
WS_MB = 0x40000
FLSZ = 0xC0000
WS_DBG = 0x1800000
SRD3 = '0x00020000'
LOG2E = 1.4426950408889634
DEBUG = os.environ.get('KDEBUG', '0') == '1'
OPT = dict(kv.split('=') for kv in os.environ.get('KOPT', '').split(',') if kv)

def v(a, n=1): return f'v{a}' if n == 1 else f'v[{a}:{a+n-1}]'
def f2u(x): return '0x%08x' % struct.unpack('<I', struct.pack('<f', x))[0]
def srd(A, d, base, size, off=0):
    if off:
        A(f's_add_u32 s{d}, s{base}, {off}'); A(f's_addc_u32 s{d+1}, s{base+1}, 0')
    else:
        A(f's_mov_b32 s{d}, s{base}'); A(f's_mov_b32 s{d+1}, s{base+1}')
    A(f's_mov_b32 s{d+2}, {size}'); A(f's_mov_b32 s{d+3}, {SRD3}')
def bf16r(A, d, x, t):
    A(f'v_cvt_pk_bf16_f32 v{t}, v{x}, v{x}'); A(f'v_lshlrev_b32 v{d}, 16, v{t}')

def stamp(A, real=False):
    if not DEBUG: return
    A(f"{'s_memrealtime' if real else 's_memtime'} s[94:95]")
    A("s_waitcnt lgkmcnt(0)"); A.lg = []
    A(f"v_writelane_b32 v255, s94, {A.nst}")
    A.nst += 1
    assert A.nst <= 32
def finish(A):
    if DEBUG:
        A.wait_vm0()
        stamp(A); stamp(A, True)
        srd(A, 96, 24, 0x100000, WS_DBG)
        A("s_lshl_b32 s94, s2, 3"); A("s_add_u32 s94, s94, s3"); A("s_lshl_b32 s94, s94, 7")
        A("v_lshlrev_b32 v254, 2, v1")
        A(f"s_mov_b64 exec, {(1 << A.nst) - 1}")
        A("buffer_store_dword v255, v254, s[96:99], s94 offen")
    A("s_endpgm")

L_CV = 131072
CVS = 2 * 4160 + 4576
F = L_CV + 2 * CVS
F_FULL, F_DONE, F_XD, F_PRE, F_NON, F_KR, F_UR, F_XCH, F_CS, F_ST, F_SR, F_GO, F_RED = 0, 32, 48, 64, 80, 84, 92, 112, 128, 144, 160, 176, 192
F_HR, F_XR, F_XT = 100, 104, 108
L_CS = F + 208
L_ST = L_CS + 448
L_S2 = L_ST + 1024
L_SIZE = L_S2 + 1024
SPARE = 28672
NR = 7

XROWS = [(0,0),(0,1),(0,2),(0,3),(1,0),(1,1),(1,2),(1,3),(2,0),(2,2),(4,0),(6,0),(3,0),(3,2),(5,0),(7,0),
         (8,0),(10,0),(12,0),(14,0),(9,0),(11,0),(13,0),(15,0),(16,0)]

def spin(A, areg, off, n, t, sleep=0, cmp='eq', val='1'):
    L = A.newlabel('sp')
    A(f"{L}:")
    if n == 1: A(f"ds_read_b32 v{t}, v{areg} offset:{off}")
    elif n == 2: A(f"ds_read2_b32 {v(t,2)}, v{areg} offset0:{off[0]//4} offset1:{off[1]//4}")
    else: A(f"ds_read_b128 {v(t,4)}, v{areg} offset:{off}")
    A("s_waitcnt lgkmcnt(0)")
    if n == 2: A(f"v_min_u32 v{t}, v{t}, v{t+1}")
    if n == 4:
        A(f"v_min_u32 v{t}, v{t}, v{t+1}"); A(f"v_min3_u32 v{t}, v{t}, v{t+2}, v{t+3}")
    A(f"v_cmp_{cmp}_u32 vcc, {val}, v{t}")
    if sleep:
        A(f"s_cbranch_vccnz {L}_d"); A(f"s_sleep {sleep}"); A(f"s_branch {L}"); A(f"{L}_d:")
    else:
        A(f"s_cbranch_vccz {L}")
    A.lg = []

def gpoll(A, vaddr, srdr, soff, t, nonce, sleep):
    L = A.newlabel('gp')
    A("s_mov_b32 s79, 0")
    A(f"{L}:")
    A(f"buffer_load_dword v{t}, v{vaddr}, s[{srdr}:{srdr+3}], {soff} offen sc1")
    A("s_waitcnt vmcnt(0)")
    A(f"v_cmp_ne_u32 vcc, v{nonce}, v{t}")
    A(f"s_cbranch_vccz {L}_d")
    A(f"s_sleep {sleep}")
    A("s_add_u32 s79, s79, 1")
    A("s_cmp_lt_u32 s79, 0x4000")
    A(f"s_cbranch_scc1 {L}")
    A(f"{L}_d:")
    A.vm = []

def prologue(A):
    A("s_cmp_ge_u32 s2, 256")
    A("s_cbranch_scc1 K_end")
    A.nst = 0
    A("s_load_dwordx16 s[4:19], s[0:1], 0")
    A("s_load_dwordx4 s[20:23], s[0:1], 80")
    A("s_load_dwordx2 s[24:25], s[0:1], 128")
    A("s_load_dwordx4 s[84:87], s[0:1], 96")
    A("s_load_dwordx4 s[88:91], s[0:1], 112")
    A("s_load_dwordx2 s[92:93], s[0:1], 64")
    A("v_lshrrev_b32 v2, 6, v0")
    A("v_and_b32 v1, 63, v0")
    A("v_mov_b32 v3, 0")
    A("v_readfirstlane_b32 s3, v2")
    A("v_min_u32 v4, 51, v1")
    A("v_lshlrev_b32 v4, 2, v4")
    A(f"v_add_u32 v4, {F}, v4")
    A("ds_write_b32 v4, v3")
    A("s_and_b32 s26, s2, 7")
    A("s_lshr_b32 s27, s2, 3")
    A("s_lshl_b32 s28, s26, 5")
    A("s_add_u32 s28, s28, s27")
    A("s_lshr_b32 s29, s26, 1")
    A("s_lshl_b32 s82, s29, 2")
    A("s_and_b32 s30, s27, 3")
    A("s_add_u32 s82, s82, s30")
    A("s_and_b32 s30, s26, 1")
    A("s_lshl_b32 s83, s30, 3")
    A("s_lshr_b32 s31, s27, 2")
    A("s_add_u32 s83, s83, s31")
    A("s_lshl_b32 s80, s29, 3")
    A("s_and_b32 s31, s27, 7")
    A("s_add_u32 s80, s80, s31")
    A("s_lshl_b32 s81, s30, 2")
    A("s_lshr_b32 s31, s27, 3")
    A("s_add_u32 s81, s81, s31")
    stamp(A, True); stamp(A)
    A("s_waitcnt lgkmcnt(0)")
    A("s_barrier")
    stamp(A)
    A.reset_counters()
    A("s_cmp_lt_u32 s3, 4")
    A("s_cbranch_scc1 K_gemm")
    A("s_cmp_eq_u32 s3, 4")
    A("s_cbranch_scc1 K_x")
    A("s_cmp_lt_u32 s3, 7")
    A("s_cbranch_scc1 K_kgen")

def w2_voffs(A, d, t):
    A(f"v_lshrrev_b32 v{t}, 3, v1")
    A(f"v_and_b32 v{t+1}, 7, v1")
    A(f"v_bfe_u32 v{t+2}, v1, 4, 1")
    A(f"v_lshlrev_b32 v{t+2}, 1, v{t+2}")
    A(f"v_xor_b32 v{t+1}, v{t+1}, v{t+2}")
    A(f"v_lshlrev_b32 v{t}, 10, v{t}")
    A("s_lshl_b32 s49, s81, 7")
    A(f"v_add_u32 v{t}, s49, v{t}")
    for q in range(4):
        A(f"v_xor_b32 v{t+2}, {4*(q&1)}, v{t+1}")
        A(f"v_lshl_add_u32 v{d+q}, v{t+2}, 4, v{t}")
        if q: A(f"v_add_u32 v{d+q}, {q*(8192-1024)}, v{d+q}")

def loader(A):
    A.reset_counters(); A.nst = 3
    A("s_setprio 3")
    srd(A, 32, 4, 2097152)
    srd(A, 36, 20, 1835008)
    A("v_and_b32 v2, 15, v1")
    A("v_lshrrev_b32 v3, 4, v1")
    A("s_mul_i32 s53, s83, 224")
    A("s_and_b32 s53, s53, 0xffffffc0")
    A("v_mul_u32_u24 v4, 3584, v3")
    A("v_add_u32 v4, s53, v4")
    A("v_lshlrev_b32 v5, 1, v3")
    A("v_xor_b32 v5, v5, v2")
    for q in range(4):
        A(f"v_xor_b32 v6, {8*((q>>1)&1)}, v5")
        A(f"v_lshl_add_u32 v{8+q}, v6, 4, v4")
        if q: A(f"v_add_u32 v{8+q}, {q*(4*3584-1024)}, v{8+q}")
    A("v_lshrrev_b32 v4, 3, v1")
    A("v_lshrrev_b32 v5, 4, v1")
    A("v_and_b32 v6, 7, v1")
    A("v_xor_b32 v5, v5, v6")
    A("s_lshl_b32 s52, s82, 7")
    A("v_add_u32 v4, s52, v4")
    A("v_lshlrev_b32 v4, 10, v4")
    for q in range(4):
        A(f"v_xor_b32 v6, {4*(q&1)}, v5")
        A(f"v_lshl_add_u32 v{12+q}, v6, 4, v4")
        if q: A(f"v_add_u32 v{12+q}, {q*(8192-1024)}, v{12+q}")
    A("v_mov_b32 v16, 1")
    A(f"v_mov_b32 v17, {F}")
    def issue(u, parts):
        base = (u % 4) * 32768
        for part in parts:
            qq = part // 2
            if part % 2 == 0:
                A(f"s_mov_b32 m0, {base + qq*4096}")
                A(f"s_mov_b32 s57, {(64*u + 16*qq)*3584}")
                for q in range(4):
                    A(f"buffer_load_dwordx4 v{8+q}, s[36:39], s57 offen offset:{1024*q} lds", tag=('u', u))
            else:
                A(f"s_mov_b32 m0, {base + 16384 + qq*4096}")
                A(f"s_mov_b32 s56, {128*u + 32768*qq}")
                for q in range(4):
                    A(f"buffer_load_dwordx4 v{12+q}, s[32:35], s56 offen offset:{1024*q} lds", tag=('u', u))
    def post(u):
        A.wait_vm(('u', u))
        A(f"ds_write_b32 v17, v16 offset:{F_FULL + 4*u}")
    def wait_free(n):
        L1 = A.newlabel('fr')
        A(f"{L1}:")
        A(f"ds_read_b128 v[20:23], v17 offset:{F_DONE}")
        A(f"ds_read_b32 v24, v17 offset:{F_XD}")
        A("s_waitcnt lgkmcnt(0)")
        A("v_min3_u32 v20, v20, v21, v24")
        A("v_min3_u32 v20, v20, v22, v23")
        A(f"v_cmp_le_u32 vcc, {n}, v20")
        A(f"s_cbranch_vccnz {L1}_d"); A("s_sleep 1"); A(f"s_branch {L1}"); A(f"{L1}_d:")
        A.lg = []
    issue(0, range(8))
    for u in range(1, 8):
        if u >= 4: wait_free(u - 3)
        pp = 2 if u == 1 else 4
        issue(u, range(pp)); post(u-1); issue(u, range(pp, 8))
    srd(A, 40, 84, 1835008)
    w2_voffs(A, 8, 4)
    post(7)
    stamp(A)
    A(f"s_setprio {OPT.get('lprio', 1)}")
    for w in range(4):
        wait_free(5 + w)
        for j in range(NR):
            A(f"s_mov_b32 m0, {w*32768 + j*4096}")
            A(f"s_mov_b32 s57, {(4*j + w)*32768}")
            for q in range(4):
                A(f"buffer_load_dwordx4 v{8+q}, s[40:43], s57 offen offset:{1024*q} lds", tag=('w', w))
        if w:
            A.wait_vm(('w', w-1)); A(f"ds_write_b32 v17, v16 offset:{F_PRE + 4*(w-1)}")
    A.wait_vm(('w', 3)); A(f"ds_write_b32 v17, v16 offset:{F_PRE + 12}")
    stamp(A)
    A("s_branch K_uload")

def xwave(A):
    A("K_x:")
    A.reset_counters(); A.nst = 3
    A("s_setprio 3")
    srd(A, 32, 4, 2097152)
    srd(A, 36, 24, 2097152, WS_XN)
    srd(A, 44, 24, FLSZ, WS_FLAG)
    A("v_lshlrev_b32 v2, 4, v1")
    A("v_mov_b32 v60, 0")
    A("s_mov_b32 s40, 0x30000")
    A("buffer_load_dword v61, v60, s[44:47], s40 offen sc1", tag='e')
    A("s_lshl_b32 s29, s28, 13")
    A("v_add_u32 v3, 4096, v2")
    X = 160
    for t in range(8):
        A(f"buffer_load_dwordx4 {v(X+4*t,4)}, v{2 + t//4}, s[32:35], s29 offen offset:{(t%4)*1024}", tag=('x', t))
    A("s_getpc_b64 s[40:41]")
    A("K_pc:")
    A("s_sub_u32 s40, s40, K_pc-K_start")
    A("s_subb_u32 s41, s41, 0")
    A("s_mov_b32 s42, CODE_END-K_start")
    A(f"s_mov_b32 s43, {SRD3}")
    A("v_lshlrev_b32 v4, 7, v1")
    A("s_and_b32 s48, s27, 3")
    A("s_lshl_b32 s48, s48, 13")
    A("buffer_load_dword v5, v4, s[40:43], s48 offen", tag='c')
    A("s_lshr_b32 s40, s83, 1")
    A(f"v_mov_b32 v6, {F}")
    A("v_mov_b32 v7, s40")
    A(f"ds_write_b32 v6, v7 offset:{F_XD}")
    A("v_mov_b32 v4, 0x3f803f80")
    S, Q = 64, 72
    A.wait_vm('e')
    A("v_add_u32 v61, 1, v61")
    A("v_max_u32 v61, 1, v61")
    A(f"ds_write_b32 v6, v61 offset:{F_NON}")
    for t in range(8):
        A.wait_vm(('x', t))
        for k in range(4):
            A(f"v_dot2_f32_bf16 v{S+t}, v{X+4*t+k}, v4, {'0' if k == 0 else 'v%d' % (S+t)}")
            A(f"v_dot2_f32_bf16 v{Q+t}, v{X+4*t+k}, v{X+4*t+k}, {'0' if k == 0 else 'v%d' % (Q+t)}")
    for B in (S, Q):
        for t in range(4): A(f"v_permlane32_swap_b32 v{B+t}, v{B+t+4}")
    for B in (S, Q):
        for t in range(4): A(f"v_add_f32 v{B+t}, v{B+t}, v{B+t+4}")
    for B in (S, Q):
        for t in range(2): A(f"v_permlane16_swap_b32 v{B+t}, v{B+t+2}")
    for B in (S, Q):
        for t in range(2): A(f"v_add_f32 v{B+t}, v{B+t}, v{B+t+2}")
    for sh in (8, 4, 2, 1):
        for r in (S, S+1, Q, Q+1):
            A(f"v_add_f32_dpp v{r}, v{r}, v{r} row_ror:{sh} row_mask:0xf bank_mask:0xf")
    seqs = []
    for t in range(2):
        m, q, G = S+t, Q+t, 80 + 4*t
        t1, t2, t3, t4 = 88+4*t, 89+4*t, 90+4*t, 91+4*t
        L = []
        def br(d, x): L.extend([f'v_cvt_pk_bf16_f32 v{t4}, v{x}, v{x}', f'v_lshlrev_b32 v{d}, 16, v{t4}'])
        L.append(f"v_mul_f32 v{m}, {f2u(1/512)}, v{m}")
        L.append(f"v_mul_f32 v{q}, {f2u(1/512)}, v{q}")
        L.append(f"v_fma_f32 v{q}, -v{m}, v{m}, v{q}")
        L.append(f"v_max_f32 v{q}, 0, v{q}")
        br(t1, q)
        L.append(f"v_add_f32 v{t1}, {f2u(1e-5)}, v{t1}")
        br(t1, t1)
        L.append(f"v_sqrt_f32 v{t1}, v{t1}")
        L.append(f"v_cvt_pk_bf16_f32 v{G}, v{m}, v{t1}")
        L.append(f"v_and_b32 v{t1}, 0xffff0000, v{G}")
        L.append(f"v_rcp_f32 v{t2}, v{t1}")
        L.append(f"v_lshlrev_b32 v{t3}, 16, v{G}")
        L.append(f"v_sub_f32 v{m}, v{m}, v{t3}")
        L.append(f"v_mul_f32 v{m}, v{m}, v{t2}")
        L.append(f"v_mul_f32 v{q}, v{q}, v{t2}")
        L.append(f"v_mul_f32 v{q}, v{q}, v{t2}")
        br(q, q)
        L.append(f"v_add_f32 v{q}, {f2u(1e-5)}, v{q}")
        br(q, q)
        L.append(f"v_sqrt_f32 v{q}, v{q}")
        L.append(f"v_mov_b32 v{G+1}, v61")
        L.append(f"v_cvt_pk_bf16_f32 v{G+2}, v{m}, v{q}")
        L.append(f"v_mov_b32 v{G+3}, v61")
        seqs.append(L)
    for x, y in zip(*seqs): A(x); A(y)
    A("v_and_b32 v8, 15, v1")
    A("v_lshlrev_b32 v8, 11, v8")
    A("v_lshrrev_b32 v9, 4, v1")
    A("v_lshl_add_u32 v8, v9, 5, v8")
    A("s_lshr_b32 s41, s28, 4")
    A("s_lshl_b32 s41, s41, 15")
    A("s_and_b32 s42, s28, 15")
    A("s_lshl_b32 s42, s42, 7")
    A("s_add_u32 s41, s41, s42")
    A(f"s_add_u32 s41, s41, {WS_MB}")
    for t in range(2):
        A(f"buffer_store_dwordx4 {v(80+4*t,4)}, v8, s[44:47], s41 offen offset:{16*t} sc1")
    stamp(A)
    A("s_setprio 0")
    A("v_bfe_u32 v8, v1, 2, 2")
    A("v_lshrrev_b32 v9, 5, v1")
    A("v_lshl_add_u32 v8, v9, 3, v8")
    A("v_bfe_u32 v9, v1, 4, 1")
    A("v_lshlrev_b32 v9, 1, v9")
    A("v_bfe_u32 v10, v1, 1, 1")
    A("v_add_u32 v9, v9, v10")
    A("s_and_b32 s41, s83, 1")
    A("s_lshl_b32 s41, s41, 2")
    A("v_add_u32 v9, s41, v9")
    A("s_and_b32 s41, s40, 3")
    A("s_lshl_b32 s41, s41, 15")
    A("s_add_u32 s41, s41, 16384")
    A("v_and_b32 v10, 1, v1")
    A("v_lshlrev_b32 v10, 3, v10")
    A("v_add_u32 v10, s41, v10")
    for hh in range(2):
        if hh: A("v_add_u32 v8, 4, v8")
        A("v_lshrrev_b32 v11, 1, v8")
        A("v_xor_b32 v11, v11, v9")
        A("v_lshl_add_u32 v11, v11, 4, v10")
        A(f"v_lshl_add_u32 v{12+hh}, v8, 7, v11")
    A("s_lshl_b32 s41, s40, 2")
    A("v_add_u32 v14, s41, v6")
    spin(A, 14, F_FULL, 1, 15, sleep=2)
    X = 16
    for k in range(8):
        for hh in range(2):
            A(f"ds_read_b64_tr_b16 {v(X+4*k+2*hh,2)}, v{12+hh} offset:{k*2048}")
    A("v_mov_b32 v7, 99")
    A("s_waitcnt lgkmcnt(0)")
    A(f"ds_write_b32 v6, v7 offset:{F_XD}")
    stamp(A)
    A("s_lshl_b32 s41, s82, 4")
    A("s_add_u32 s41, s41, s83")
    A("s_lshl_b32 s41, s41, 11")
    A(f"s_add_u32 s41, s41, {WS_MB}")
    A("s_mov_b32 s79, 0")
    A("K_x2:")
    A("buffer_load_dwordx4 v[64:67], v2, s[44:47], s41 offen sc1")
    A("buffer_load_dwordx4 v[68:71], v2, s[44:47], s41 offen offset:1024 sc1")
    A("s_waitcnt vmcnt(0)")
    A("v_xor_b32 v72, v61, v65")
    A("v_xor_b32 v73, v61, v67")
    A("v_xor_b32 v74, v61, v69")
    A("v_xor_b32 v75, v61, v71")
    A("v_or3_b32 v72, v72, v73, v74")
    A("v_or_b32 v72, v72, v75")
    A("v_cmp_ne_u32 vcc, 0, v72")
    A("s_cbranch_vccz K_x3")
    A("s_sleep 6")
    A("s_add_u32 s79, s79, 1")
    A("s_cmp_lt_u32 s79, 0x4000")
    A("s_cbranch_scc1 K_x2")
    A("K_x3:")
    A.reset_counters()
    A("s_setprio 3")
    for i in range(2):
        g, o = 64 + 4*i, 72 + 8*i
        A(f"v_and_b32 v{o+4}, 0xffff0000, v{g}")
        A(f"v_lshlrev_b32 v{o+5}, 16, v{g}")
        A(f"v_and_b32 v{o+6}, 0xffff0000, v{g+2}")
        A(f"v_lshlrev_b32 v{o+7}, 16, v{g+2}")
        A(f"v_rcp_f32 v{o}, v{o+4}")
        A(f"v_rcp_f32 v{o+3}, v{o+6}")
        A(f"v_fma_f32 v{o+2}, -v{o+7}, v{o+4}, -v{o+5}")
        A(f"v_mul_f32 v{o+1}, -v{o+5}, v{o}")
        A(f"v_mul_f32 v{o+3}, v{o+3}, v{o}")
    A("v_lshlrev_b32 v8, 3, v1")
    A(f"v_add_u32 v8, {L_ST}, v8")
    A("v_mov_b32 v7, 1")
    for i in range(2):
        A(f"ds_write_b64 v8, {v(72+8*i,2)} offset:{512*i}")
        A(f"ds_write_b64 v8, {v(74+8*i,2)} offset:{1024 + 512*i}")
    A(f"ds_write_b32 v6, v7 offset:{F_ST}")
    A("v_lshrrev_b32 v8, 5, v1")
    A("v_lshlrev_b32 v8, 6, v8")
    A(f"v_add_u32 v8, {L_ST}, v8")
    A("v_and_b32 v10, 15, v1")
    A("v_lshlrev_b32 v9, 8, v10")
    A("v_lshrrev_b32 v11, 5, v1")
    A("v_sub_u32 v11, 15, v11")
    A("v_and_b32 v12, 7, v1")
    A("v_xor_b32 v11, v11, v12")
    A("v_lshl_add_u32 v9, v11, 4, v9")
    A("v_bfe_u32 v12, v1, 4, 1")
    A(f"v_mul_u32_u24 v12, {CVS}, v12")
    A(f"v_add_u32 v12, {L_CV}, v12")
    for k in range(8):
        A(f"v_xor_b32 v{52+k}, {32*k}, v9")
        A(f"v_add_u32 v{52+k}, v12, v{52+k}")
    A("v_lshrrev_b32 v11, 4, v1")
    A("v_xor_b32 v12, v10, v11")
    A("v_lshlrev_b32 v12, 4, v12")
    A("v_lshl_add_u32 v12, v11, 8, v12")
    A("v_xor_b32 v13, 64, v12")
    A(f"v_add_u32 v12, {L_CV}, v12")
    A(f"v_add_u32 v13, {L_CV}, v13")
    A("v_lshlrev_b32 v11, 12, v11")
    A("v_lshl_add_u32 v10, v10, 4, v11")
    A("s_lshl_b32 s41, s83, 17")
    A("s_sub_u32 s42, 15, s82")
    A("s_lshl_b32 s42, s42, 8")
    A("s_add_u32 s41, s41, s42")
    A("s_lshl_b32 s42, s83, 11")
    A("s_lshl_b32 s43, s82, 2")
    A("s_add_u32 s42, s42, s43")
    A("s_add_u32 s42, s42, 0x8000")
    A("v_lshlrev_b32 v62, 7, v1")
    stamp(A)
    S, FF, O = 64, 128, 160
    def sread(k):
        for q in range(4):
            A(f"ds_read_b128 {v(S+16*(k%4)+4*q,4)}, v8 offset:{k*128 + 16*q}", tag=('s', k))
    for k in range(3): sread(k)
    for k in range(8):
        if k + 3 < 8: sread(k + 3)
        A.wait_lg(('s', k))
        for d in range(4):
            A(f"v_lshlrev_b32 v{FF+2*d}, 16, v{X+4*k+d}")
            A(f"v_and_b32 v{FF+2*d+1}, 0xffff0000, v{X+4*k+d}")
        for t in range(8):
            A(f"v_fma_f32 v{FF+t}, v{FF+t}, v{S+16*(k%4)+2*t}, v{S+16*(k%4)+2*t+1}")
        for d in range(4):
            A(f"v_cvt_pk_bf16_f32 v{O+4*k+d}, v{FF+7-2*d}, v{FF+6-2*d}")
    for k in range(8):
        A(f"ds_write_b128 v{52+k}, {v(O+4*k,4)}")
    for i in range(8):
        A(f"ds_read_b128 {v(S+4*i,4)}, v{12 + (i&1)} offset:{CVS*(i>>2) + 1024*(i&3)}", tag=('r', i))
    for i in range(8):
        A.wait_lg(('r', i))
        A(f"buffer_store_dwordx4 {v(S+4*i,4)}, v10, s[36:39], s41 offen sc1")
        A("s_add_u32 s41, s41, 16384")
    A(f"ds_write_b32 v6, v7 offset:{F_XT}")
    A.wait_vm0()
    A("s_mov_b64 exec, 0xffff")
    A("buffer_store_dword v61, v62, s[44:47], s42 offen sc1")
    A("s_mov_b64 exec, -1")
    stamp(A)
    A("s_branch K_uload")

def kgen(A):
    A("K_kgen:")
    A.reset_counters(); A.nst = 3
    A("s_setprio 3")
    A("s_sub_u32 s29, s3, 5")
    A("s_lshl_b32 s30, s28, 1")
    A("s_add_u32 s30, s30, s29")
    A("s_lshl_b32 s31, s28, 2")
    A("s_load_dword s60, s[18:19], s31")
    A("s_lshl_b32 s31, s30, 8")
    A("v_lshlrev_b32 v2, 2, v1")
    for i in range(6):
        srd(A, 32, 6 + 2*i, 131072)
        A(f"buffer_load_dword v{52+i}, v2, s[32:35], s31 offen", tag='p')
    A("s_cmp_eq_u32 s29, 0")
    A("s_mov_b32 s36, s20"); A("s_mov_b32 s37, s21")
    A("s_cselect_b32 s38, 1835008, 0")
    A(f"s_mov_b32 s39, {SRD3}")
    A("v_lshlrev_b32 v5, 4, v1")
    A("s_mul_i32 s40, s2, 7168")
    for i in range(7):
        if i == 4: A("s_add_u32 s40, s40, 4096")
        A(f"buffer_load_dwordx4 {v(208+4*i,4)}, v5, s[36:39], s40 offen offset:{1024*(i%4)}", tag='t')
    A(f"s_mul_i32 s54, s29, {CVS}")
    A(f"s_add_u32 s54, s54, {L_CV}")
    A("s_add_u32 s61, s54, 4160")
    WA, RA = 244, 252
    A("v_lshlrev_b32 v5, 7, v1")
    A("v_add_u32 v5, s61, v5")
    A("v_and_b32 v6, 7, v1")
    for c in range(8):
        A(f"v_xor_b32 v7, {c}, v6")
        A(f"v_lshl_add_u32 v{WA+c}, v7, 4, v5")
    A("v_bfe_u32 v5, v1, 2, 2")
    A("v_lshrrev_b32 v6, 5, v1")
    A("v_lshlrev_b32 v6, 2, v6")
    A("v_lshrrev_b32 v7, 1, v5")
    A("v_add_u32 v6, v6, v7")
    A("v_and_b32 v5, 1, v5")
    A("v_lshlrev_b32 v5, 2, v5")
    A("v_bfe_u32 v7, v1, 4, 1")
    A("v_lshl_add_u32 v5, v7, 1, v5")
    A("v_bfe_u32 v7, v1, 1, 1")
    A("v_add_u32 v5, v5, v7")
    A("v_and_b32 v7, 1, v1")
    A("v_lshlrev_b32 v7, 3, v7")
    A("v_add_u32 v7, s61, v7")
    for hh in range(2):
        if hh: A("v_add_u32 v6, 2, v6")
        A(f"v_xor_b32 v15, v5, v6")
        A(f"v_lshl_add_u32 v15, v15, 4, v7")
        A(f"v_lshl_add_u32 v{RA+hh}, v6, 7, v15")
    A("s_waitcnt lgkmcnt(0)")
    A("s_lshl_b32 s62, s29, 4")
    A("s_lshr_b32 s60, s60, s62")
    A("s_lshl_b32 s60, s60, 16")
    A(f"v_mov_b32 v14, {f2u(LOG2E)}")
    A("v_mul_f32 v14, s60, v14")
    A("v_exp_f32 v14, v14")
    bf16r(A, 14, 14, 15)
    XV, PKB = 60, 112
    A("v_mov_b32 v46, 1.0")
    A("v_mov_b32 v47, 0")
    A.wait_vm('p')
    stamp(A)
    Z1, Z4, Z128, Z2, Z3, Z8, Z256 = 20, 22, 24, 26, 28, 36, 38
    def cmul2(l):
        for d, a, b in l: A(f"v_pk_mul_f32 {v(d,2)}, {v(a,2)}, {v(b,2)} op_sel_hi:[0,1]")
        for d, a, b in l: A(f"v_pk_fma_f32 {v(d,2)}, {v(a,2)}, {v(b,2)}, {v(d,2)} op_sel:[1,1,0] op_sel_hi:[1,0,1] neg_lo:[0,1,0]")
    def pack(PK, i, c0, c1, neg):
        n = '-' if neg else ''
        A(f"v_cvt_pk_bf16_f32 v{PK+i}, v{c0}, v{c1}")
        A(f"v_cvt_pk_bf16_f32 v{PK+16+i}, {n}v{c0+1}, {n}v{c1+1}")
    rowof = {ae: r for r, ae in enumerate(XROWS)}
    X = lambda a, e=0: XV + 2*rowof[(a, e)]
    ZE = {1: Z1, 2: Z2, 3: Z3}
    for half in range(2):
        PW, PX = PKB + 64*half, PKB + 64*half + 32
        for i in range(6):
            if half == 0: A(f"v_lshlrev_b32 v{8+i}, 16, v{52+i}")
            else: A(f"v_and_b32 v{8+i}, 0xffff0000, v{52+i}")
        for i in range(4): A(f"v_mul_f32 v{8+i}, v14, v{8+i}")
        A(f"v_mul_f32 v8, {f2u(LOG2E)}, v8")
        A(f"v_mul_f32 v9, 0.15915494, v9")
        zs = ((Z4, 4.0), (Z1, 1.0), (Z128, 128.0))
        for k, (base, o) in enumerate(zs):
            A(f"v_mul_f32 v{30+2*k}, {f2u(o)}, v8"); A(f"v_mul_f32 v{31+2*k}, {f2u(o)}, v9")
        for k, (base, o) in enumerate(zs):
            A(f"v_exp_f32 v{30+2*k}, v{30+2*k}"); A(f"v_fract_f32 v{31+2*k}, v{31+2*k}")
        for k, (base, o) in enumerate(zs):
            A(f"v_cos_f32 v{base}, v{31+2*k}"); A(f"v_sin_f32 v{base+1}, v{31+2*k}")
        for k, (base, o) in enumerate(zs):
            A(f"v_pk_mul_f32 {v(base,2)}, {v(base,2)}, {v(30+2*k,2)} op_sel_hi:[1,0]")
        cmul2([(Z8, Z4, Z4), (Z2, Z1, Z1), (X(0), 12, 10), (Z256, Z128, Z128)])
        cmul2([(Z3, Z2, Z1), (X(1), X(0), Z128), (40, Z4, Z8), (X(2), X(0), Z256)])
        if half == 1: A.wait_vm0()
        pack(PW, 0, 46, Z4, False); pack(PW, 1, Z8, 40, False)
        ce, co = Z8, 40
        xs = [(X(a+2), X(a), Z256) for a in range(1, 15)]
        xs2 = [(X(a, e), X(a), ZE[e]) for (a, e) in XROWS if e]
        for b in range(4, 32, 2):
            ne = 42 if ce != 42 else 16
            no = 44 if co != 44 else 40
            l = [(ne, ce, Z8), (no, co, Z8), xs.pop(0)]
            if b >= 8 and xs2: l.append(xs2.pop(0))
            cmul2(l); ce, co = ne, no
            pack(PW, b//2, ce, co, False)
        for i in range(13):
            pack(PX, i, XV + 4*i, XV + 4*i + (2 if i < 12 else 0), True)
    stamp(A)
    A(f"s_setprio {OPT.get('kprio', 1)}")
    if not OPT.get('now2t'):
        A("s_cmp_eq_u32 s29, 1")
        A("s_mov_b32 s36, s84"); A("s_mov_b32 s37, s85")
        A("s_cselect_b32 s38, 1835008, 0")
        A("v_lshlrev_b32 v5, 4, v1")
        A("s_mul_i32 s40, s2, 7168")
        for i in range(7):
            if i == 4: A("s_add_u32 s40, s40, 4096")
            A(f"buffer_load_dwordx4 {v(60+4*i,4)}, v5, s[36:39], s40 offen offset:{1024*(i%4)}", tag='t')
        A.wait_vm0()
    A(f"v_mov_b32 v3, {F}")
    spin(A, 3, F_FULL + 4*int(OPT.get('kwait', 7)), 1, 4, sleep=8)
    FA, FB, D = 16, 48, 80
    def flush(PK):
        for part in range(2):
            for q in range(4):
                A(f"ds_write_b128 v{WA+4*part+q}, {v(PK+16*part+4*q,4)}", tag='w')
    def frags(Fr, tag):
        for st in range(8):
            for hh in range(2):
                A(f"ds_read_b64_tr_b16 {v(Fr+4*st+2*hh,2)}, v{RA+hh} offset:{st*1024}", tag=(tag, st))
    for half in range(2):
        flush(PKB + 64*half); frags(FB, 'fb')
        flush(PKB + 64*half + 32); frags(FA, 'fa')
        for st in range(8):
            A.wait_lg(('fa', st))
            A(f"v_mfma_f32_32x32x16_bf16 {v(D,16)}, {v(FA+4*st,4)}, {v(FB+4*st,4)}, {'0' if (st == 0 and half == 0) else v(D,16)}")
    stamp(A)
    spin(A, 3, F_XT, 1, 4, sleep=2)
    A("v_lshrrev_b32 v7, 5, v1")
    A("v_lshlrev_b32 v2, 4, v1")
    A("v_mov_b32 v112, 0\nv_mov_b32 v113, 0\nv_mov_b32 v114, 0\nv_mov_b32 v115, 0")
    A("v_bfe_u32 v11, v1, 1, 1")
    A("v_mul_u32_u24 v11, 4160, v11")
    A("v_and_b32 v12, 1, v1")
    A("v_lshl_add_u32 v11, v12, 4, v11")
    A("v_add_u32 v11, s54, v11")
    A("ds_write_b128 v11, v[112:115]")
    A("s_add_u32 s61, s54, 32")
    A("v_and_b32 v10, 31, v1")
    A("v_lshlrev_b32 v10, 3, v10")
    A("v_lshl_add_u32 v10, v7, 8, v10")
    A("v_add_u32 v10, s61, v10")
    T = 16
    def dup(dst, r): A(f"v_cvt_pk_bf16_f32 v{dst}, v{r}, v{r}")
    A("s_mov_b32 s64, 0x55555555\ns_mov_b32 s65, 0x55555555")
    A("s_mov_b32 s66, 0x11111111\ns_mov_b32 s67, 0x11111111")
    for r in range(8, 13):
        dup(T + 2*(r-8), D + r); dup(T + 2*(r-8) + 1, D + r)
    for r in (6, 7): dup(T + 10 + (r-6), D + r)
    for r in (4, 5): dup(T + 12 + (r-4), D + r)
    A(f"v_cvt_pk_bf16_f32 v{T+14}, v{D}, v{D+1}")
    A(f"v_cvt_pk_bf16_f32 v{T+15}, v{D+2}, v{D+3}")
    A("s_mov_b64 exec, 1")
    A(f"ds_write_b64 v10, {v(T+8,2)} offset:{2*(2048-4)}")
    A("s_mov_b64 exec, s[64:65]")
    for r in range(8, 12):
        o = 1024 + 256*(r-8)
        A(f"ds_write_b64 v10, {v(T+2*(r-8),2)} offset:{2*(o-4)}")
        A(f"ds_write_b64 v10, {v(T+2*(r-8),2)} offset:{2*o}")
    A("s_mov_b64 exec, s[66:67]")
    for r in range(8, 12):
        A(f"ds_write_b16 v10, v{T+2*(r-8)} offset:{2*(1024 + 256*(r-8) + 4)}")
    A("s_mov_b64 exec, -1")
    for r in (6, 7):
        o = 512 + 256*(r-6)
        A(f"ds_write_b32 v10, v{T+10+(r-6)} offset:{2*(o-2)}")
        A(f"ds_write_b32 v10, v{T+10+(r-6)} offset:{2*o}")
    A("s_mov_b64 exec, s[64:65]")
    for r in (6, 7):
        A(f"ds_write_b16 v10, v{T+10+(r-6)} offset:{2*(512 + 256*(r-6) + 2)}")
    A("s_mov_b64 exec, -1")
    A(f"ds_write_b16 v10, v{T+12} offset:{2*(256-1)}")
    A(f"ds_write_b32 v10, v{T+12} offset:{2*256}")
    A(f"ds_write_b16 v10, v{T+13} offset:{2*(256+2)}")
    A(f"ds_write_b64 v10, {v(T+14,2)}")
    A("s_add_u32 s61, s54, 28")
    A("v_add_u32 v4, s61, v2")
    for i in range(4):
        A(f"ds_read_b32 v{112+8*i+3}, v4 offset:{1024*i}", tag=('k', i))
        A(f"ds_read_b128 {v(112+8*i+4,4)}, v4 offset:{1024*i+4}", tag=('k', i))
    for i in range(4):
        A.wait_lg(('k', i))
        for k in range(4):
            A(f"v_alignbit_b32 v{144+4*i+k}, v{112+8*i+4+k}, v{112+8*i+3+k}, 16")
    for i in range(4):
        A(f"ds_write_b128 v4, {v(144+4*i,4)} offset:{1024*i + 4 + 4160}")
    A("v_mov_b32 v5, 1")
    A("s_lshl_b32 s61, s29, 2")
    A("v_add_u32 v6, s61, v3")
    A(f"ds_write_b32 v6, v5 offset:{F_KR}")
    stamp(A)
    A("s_branch K_conv")

def uload(A):
    A("K_uload:")
    A.reset_counters(); A.nst = 8
    A("s_setprio 3")
    A("s_sub_u32 s48, s3, 4")
    A("s_lshr_b32 s49, s48, 1")
    A("s_lshl_b32 s51, s28, 1")
    A("s_add_u32 s51, s51, s49")
    srd(A, 36, 24, 2097152, WS_XN)
    srd(A, 44, 24, FLSZ, WS_FLAG)
    A(f"s_mul_i32 s54, s49, {CVS}")
    A(f"s_add_u32 s54, s54, {L_CV}")
    A(f"v_mov_b32 v3, {F}")
    A("s_lshl_b32 s56, s49, 2")
    A("v_add_u32 v6, s56, v3")
    spin(A, 3, F_NON, 1, 61, sleep=2, cmp='ne', val='0')
    A("v_and_b32 v4, 15, v1")
    A("v_lshlrev_b32 v4, 2, v4")
    A("s_lshl_b32 s56, s28, 7")
    A("s_add_u32 s56, s56, 0x8000")
    A("s_cmp_eq_u32 s3, 7")
    A("s_cbranch_scc1 K_u1")
    gpoll(A, 4, 44, 's56', 5, 61, int(OPT.get('xsleep', 6)))
    A("v_mov_b32 v5, 1")
    A(f"ds_write_b32 v3, v5 offset:{F_XR}")
    A("K_u1:")
    spin(A, 3, F_XR, 1, 5, sleep=2)
    stamp(A)
    spin(A, 6, F_KR, 1, 5, sleep=1)
    A("v_lshlrev_b32 v4, 4, v1")
    A("s_lshl_b32 s56, s51, 12")
    A(f"s_add_u32 m0, s54, {2*4160}")
    for k in range(4):
        A(f"buffer_load_dwordx4 v4, s[36:39], s56 offen offset:{1024*k} sc1 lds")
    A("v_mov_b32 v8, 0\nv_mov_b32 v9, 0\nv_mov_b32 v10, 0\nv_mov_b32 v11, 0")
    A("v_min_u32 v7, 29, v1")
    A("v_lshlrev_b32 v7, 4, v7")
    A(f"s_add_u32 s56, s54, {2*4160 + 4096}")
    A("v_add_u32 v7, s56, v7")
    A("ds_write_b128 v7, v[8:11]")
    A("v_mov_b32 v5, 1")
    A("s_waitcnt vmcnt(0) lgkmcnt(0)")
    A(f"ds_write_b32 v6, v5 offset:{F_UR}")

def conv(A):
    A("K_conv:")
    A.reset_counters(); A.nst = 10
    A("s_sub_u32 s48, s3, 4")
    A("s_lshr_b32 s49, s48, 1")
    A("s_and_b32 s50, s48, 1")
    A("s_lshl_b32 s51, s28, 1")
    A("s_add_u32 s51, s51, s49")
    A("s_lshl_b32 s52, s28, 2")
    A("s_load_dword s53, s[92:93], s52")
    A(f"s_mul_i32 s54, s49, {CVS}")
    A(f"s_add_u32 s54, s54, {L_CV}")
    A("v_and_b32 v2, 15, v1")
    A("v_lshrrev_b32 v3, 4, v1")
    A("v_lshlrev_b32 v4, 4, v1")
    A("v_mov_b32 v17, 1")
    A("s_lshl_b32 s56, s48, 2")
    A(f"s_add_u32 s56, s56, {F}")
    A("v_mov_b32 v18, s56")
    A("v_xor_b32 v19, 4, v18")
    A("s_lshl_b32 s56, s49, 2")
    A(f"s_add_u32 s56, s56, {F}")
    A("v_mov_b32 v22, s56")
    A("v_lshrrev_b32 v6, 1, v2")
    A("v_lshlrev_b32 v6, 2, v6")
    A("v_lshl_add_u32 v6, v3, 4, v6")
    A("v_and_b32 v7, 1, v2")
    A("v_sub_u32 v7, 1, v7")
    A("v_mul_u32_u24 v7, 4160, v7")
    A("v_add_u32 v6, v6, v7")
    A("s_lshl_b32 s56, s50, 8")
    A("s_add_u32 s56, s56, s54")
    A("s_add_u32 s57, s56, 4")
    A("v_add_u32 v12, s57, v6")
    for qq in range(1, 4): A(f"v_add_u32 v{12+qq}, {1024*qq}, v12")
    A("v_lshlrev_b32 v6, 4, v3")
    A("v_lshlrev_b32 v7, 5, v2")
    A("v_sub_u32 v6, v6, v7")
    A(f"s_add_u32 s57, s56, {2*4160 + 480}")
    A("v_add_u32 v16, s57, v6")
    A("v_lshlrev_b32 v8, 5, v2")
    A("v_lshl_add_u32 v8, v3, 3, v8")
    A("s_lshl_b32 s56, s50, 11")
    A(f"s_add_u32 s57, s54, {2*4160 + 4088 - 1536}")
    A("s_sub_u32 s57, s57, s56")
    A("v_sub_u32 v8, s57, v8")
    A("s_lshl_b32 s56, s48, 15")
    A(f"s_add_u32 s56, s56, {SPARE}")
    A("v_add_u32 v6, s56, v4")
    A("v_xor_b32 v7, 0x8000, v6")
    srd(A, 40, 24, 2097152, WS_ST)
    srd(A, 44, 24, FLSZ, WS_FLAG)
    spin(A, 22, (F_KR, F_UR), 2, 20, sleep=1)
    A(f"v_mov_b32 v23, {F}")
    A(f"ds_read_b32 v61, v23 offset:{F_NON}")
    A("s_lshl_b32 s56, s49, 4")
    A("s_lshr_b32 s53, s53, s56")
    A("s_lshl_b32 s53, s53, 16")
    stamp(A)
    ACC, FR = 24, 64
    def reads(pl):
        b = FR + 64 * (pl % 2)
        fs = []
        for k in range(8):
            o = 128*(k & 1) + 16*pl
            fs.append(lambda k=k, o=o: A(f"ds_read2_b32 {v(b+4*k,2)}, v{12+k//2} offset0:{o} offset1:{o+1}"))
            fs.append(lambda k=k, o=o: A(f"ds_read2_b32 {v(b+4*k+2,2)}, v{12+k//2} offset0:{o+2} offset1:{o+3}"))
            fs.append(lambda k=k: A(f"ds_read_b128 {v(b+32+4*k,4)}, v16 offset:{3584 - 512*k + 64*pl}"))
        return fs
    XN, T, P1 = 192, 200, 216
    for a in range(4):
        A(f"ds_read_b64 {v(XN+2*a,2)}, v8 offset:{1536 - 512*a}", tag='xn')
    for f in reads(0): f()
    A.wait_lg('xn')
    for a in range(4):
        A(f"v_and_b32 v{T+4*a}, 0xffff0000, v{XN+2*a+1}")
        A(f"v_lshlrev_b32 v{T+4*a+1}, 16, v{XN+2*a+1}")
        A(f"v_and_b32 v{T+4*a+2}, 0xffff0000, v{XN+2*a}")
        A(f"v_lshlrev_b32 v{T+4*a+3}, 16, v{XN+2*a}")
    for r in range(16): A(f"v_mul_f32 v{T+r}, s53, v{T+r}")
    for k in range(8): A(f"v_cvt_pk_bf16_f32 v{P1+k}, v{T+2*k}, v{T+2*k+1}")
    for k in range(8):
        A(f"v_lshlrev_b32 v{T+2*k}, 16, v{P1+k}")
        A(f"v_and_b32 v{T+2*k+1}, 0xffff0000, v{P1+k}")
    A(f"s_setprio {OPT.get('cprio2', 0)}")
    for pl in range(4):
        A.wait_lg0()
        fs = reads(pl + 1) if pl < 3 else []
        b = FR + 64 * (pl % 2)
        first = set()
        for q in range(8):
            for w in range(8 - q):
                ib = q + w
                c = '0' if (pl == 0 and ib not in first) else v(ACC+4*ib, 4)
                first.add(ib)
                A(f"v_mfma_f32_16x16x32_bf16 {v(ACC+4*ib,4)}, {v(b+4*q,4)}, {v(b+32+4*w,4)}, {c}")
                if fs: fs.pop(0)()
    stamp(A)
    A("s_setprio 3")
    FF = 64
    A("s_cmp_eq_u32 s50, 0")
    A("s_cbranch_scc1 K_x0")
    for ph, lab in ((1, None), (0, 'K_x0')):
        if lab: A(f"{lab}:")
        send, keep = (4, 0) if ph == 0 else (0, 4)
        for a in range(4):
            A(f"ds_write_b128 v6, {v(ACC+4*(send+a),4)} offset:{1024*a}")
        A(f"ds_write_b32 v18, v17 offset:{F_XCH}")
        for r in range(16):
            A(f"v_mov_b32 v{FF+r}, v{ACC+4*keep+r}")
        if not lab: A("s_branch K_xe")
    A("K_xe:")
    A("v_and_b32 v8, 1, v3")
    A("v_lshlrev_b32 v8, 9, v8")
    A("v_lshl_add_u32 v8, v2, 5, v8")
    A("v_lshrrev_b32 v9, 1, v3")
    A("v_lshl_add_u32 v8, v9, 4, v8")
    A("s_lshl_b32 s56, s51, 12")
    A("s_lshl_b32 s57, s50, 11")
    A("s_add_u32 s56, s56, s57")
    spin(A, 19, F_XCH, 1, 20)
    R = 80
    for a in range(4):
        A(f"ds_read_b128 {v(R+4*a,4)}, v7 offset:{1024*a}", tag='r')
    A.wait_lg('r')
    for r in range(16): A(f"v_add_f32 v{FF+r}, v{FF+r}, v{R+r}")
    for k in range(8): A(f"v_cvt_pk_bf16_f32 v{P1+k}, v{FF+2*k}, v{FF+2*k+1}")
    for k in range(8):
        A(f"v_lshlrev_b32 v{FF+2*k}, 16, v{P1+k}")
        A(f"v_and_b32 v{FF+2*k+1}, 0xffff0000, v{P1+k}")
    for r in range(16): A(f"v_add_f32 v{FF+r}, v{FF+r}, v{T+r}")
    for k in range(8): A(f"v_cvt_pk_bf16_f32 v{P1+k}, v{FF+2*k}, v{FF+2*k+1}")
    for pr in range(2):
        A(f"v_permlane16_swap_b32 v{P1+4*pr}, v{P1+4*pr+2}")
        A(f"v_permlane16_swap_b32 v{P1+4*pr+1}, v{P1+4*pr+3}")
    for pr in range(2):
        A(f"buffer_store_dwordx4 {v(P1+4*pr,4)}, v8, s[40:43], s56 offen offset:{1024*pr} sc1")
    A("s_lshl_b32 s56, s50, 16")
    A("s_lshr_b32 s57, s28, 3")
    A("s_lshl_b32 s57, s57, 7")
    A("s_add_u32 s56, s56, s57")
    A("s_and_b32 s57, s51, 15")
    A("s_lshl_b32 s57, s57, 2")
    A("s_add_u32 s56, s56, s57")
    A("s_add_u32 s56, s56, 0x10000")
    A("v_lshlrev_b32 v60, 12, v1")
    A("v_lshrrev_b32 v8, 3, v1")
    A("v_and_b32 v9, 7, v1")
    A("v_lshlrev_b32 v10, 12, v8")
    A("v_lshl_add_u32 v10, v9, 4, v10")
    A("v_bfe_u32 v11, v8, 1, 2")
    A("v_lshlrev_b32 v11, 1, v11")
    A("v_xor_b32 v11, v11, v9")
    A("v_lshlrev_b32 v11, 4, v11")
    A("v_lshl_add_u32 v11, v8, 7, v11")
    A("s_lshl_b32 s57, s50, 11")
    A("s_add_u32 s57, s57, s54")
    A("v_add_u32 v11, s57, v11")
    A("v_and_b32 v12, 15, v1")
    A("v_lshlrev_b32 v12, 2, v12")
    A("s_waitcnt vmcnt(0)")
    A("s_mov_b64 exec, 0xffff")
    A("buffer_store_dword v61, v60, s[44:47], s56 offen sc1")
    A("s_mov_b64 exec, -1")
    stamp(A)
    A("s_lshl_b32 s56, s81, 6")
    A("s_lshl_b32 s57, s48, 4")
    A("s_add_u32 s56, s56, s57")
    A("s_lshl_b32 s58, s56, 3")
    A("s_lshl_b32 s57, s80, 12")
    A("s_add_u32 s58, s58, s57")
    A("s_add_u32 s58, s58, 0x10000")
    A("s_lshl_b32 s56, s56, 12")
    A("s_lshl_b32 s57, s80, 7")
    A("s_add_u32 s56, s56, s57")
    A("s_add_u32 s59, s56, 32768")
    spin(A, 18, F_GO, 1, 20, sleep=4)
    gpoll(A, 12, 44, 's58', 13, 61, int(OPT.get('ssleep', 6)))
    stamp(A)
    A("buffer_load_dwordx4 v[64:67], v10, s[40:43], s56 offen sc1")
    A("buffer_load_dwordx4 v[68:71], v10, s[40:43], s59 offen sc1")
    A("s_waitcnt vmcnt(0)")
    A("ds_write_b128 v11, v[64:67]")
    A("ds_write_b128 v11, v[68:71] offset:1024")
    A(f"ds_write_b32 v18, v17 offset:{F_SR}")
    finish(A)

def gemm(A):
    A("K_gemm:")
    A.reset_counters(); A.nst = 3
    A("s_setprio 2")
    A("v_and_b32 v19, 15, v1")
    A("v_lshrrev_b32 v3, 4, v1")
    srd(A, 40, 22, 3584)
    srd(A, 44, 24, 7340032, WS_H)
    A("v_bfe_u32 v6, v1, 2, 2")
    A("v_and_b32 v9, 1, v3")
    A("v_lshl_or_b32 v9, v9, 2, v6")
    A("v_lshl_add_u32 v10, v3, 3, v6")
    A("v_lshlrev_b32 v10, 8, v10")
    A("v_and_b32 v11, 3, v1")
    A("v_lshl_add_u32 v10, v11, 3, v10")
    A("s_and_b32 s68, s83, 1")
    AB, B1, ONES, FL, AF, ACC, XR = 12, 20, 36, 40, 44, 72, 128
    MN, RE, BF, ACS, ARS, AQS, SA, C1, C2, C3, CSA, TM = 144, 148, 164, 192, 200, 208, 216, 220, 222, 224, 226, 236
    A("s_mul_i32 s53, s83, 224")
    A("v_lshlrev_b32 v7, 3, v3")
    for tau in range(7):
        A(f"s_lshl_b32 s59, s3, 1")
        A(f"s_add_u32 s59, s59, {tau}")
        A(f"s_sub_u32 s67, s59, 7")
        A(f"s_cmp_ge_u32 s59, 7")
        A(f"s_cselect_b32 s{60+tau}, s67, s59")
        A(f"s_add_u32 s59, s{60+tau}, s68")
        A(f"v_xor_b32 v11, s59, v9")
        A(f"v_lshl_add_u32 v{AB+tau}, v11, 5, v10")
        A(f"s_lshl_b32 s59, s{60+tau}, 5")
        A(f"s_add_u32 s59, s59, s53")
        A(f"buffer_load_dwordx2 {v(B1+2*tau,2)}, v7, s[40:43], s59 offen", tag='b1')
        A(f"s_lshl_b32 s59, s{60+tau}, 6")
        A(f"s_add_u32 s59, s59, {L_CS}")
        A(f"v_lshl_add_u32 v{CSA+tau}, v3, 4, s59")
    A("v_lshrrev_b32 v6, 1, v19")
    A("v_xor_b32 v6, v6, v3")
    A("v_lshlrev_b32 v6, 4, v6")
    A("v_lshl_add_u32 v6, v19, 7, v6")
    A("s_lshl_b32 s59, s3, 12")
    A("s_add_u32 s59, s59, 16384")
    A("v_add_u32 v4, s59, v6")
    A("v_xor_b32 v5, 64, v4")
    for i in range(4): A(f"v_mov_b32 v{ONES+i}, 0x3f803f80")
    A("v_mov_b32 v34, 1")
    A(f"s_lshl_b32 s59, s3, 2")
    A(f"s_add_u32 s59, s59, {F}")
    A("v_mov_b32 v35, s59")
    A(f"v_mov_b32 v2, {F}")
    k0 = -2.0 * LOG2E * 0.7978845608028654
    A(f"v_mov_b32 v{C1}, {f2u(k0*0.044715)}")
    A(f"v_mov_b32 v{C2}, {f2u(k0)}")
    A(f"v_mov_b32 v{C3}, 1.0")
    A("s_lshl_b32 s59, s3, 8")
    A(f"s_add_u32 s59, s59, {L_S2}")
    A("v_lshl_add_u32 v156, v19, 3, s59")
    A("s_lshl_b32 s52, s82, 3")
    A("s_lshl_b32 s53, s3, 1")
    A("s_add_u32 s52, s52, s53")
    A("s_mul_i32 s52, s52, 57344")
    A("s_mul_i32 s53, s83, 3584")
    A("s_add_u32 s52, s52, s53")
    A("v_lshrrev_b32 v8, 1, v3")
    A("v_lshlrev_b32 v8, 8, v8")
    A("v_lshl_add_u32 v8, v19, 4, v8")
    A("v_add_u32 v8, s52, v8")
    A("v_and_b32 v10, 1, v3")
    A("v_cmp_eq_u32 vcc, 1, v10")
    for pr in range(4):
        A(f"s_lshl_b32 s59, s{60+2*pr}, 9")
        if pr < 3: A(f"s_lshl_b32 s67, s{60+2*pr+1}, 9")
        else: A(f"s_add_u32 s67, s59, 57344")
        A(f"v_mov_b32 v10, s59")
        A(f"v_mov_b32 v11, s67")
        A(f"v_cndmask_b32 v10, v10, v11, vcc")
        A(f"v_add_u32 v{SA+pr}, v10, v8")
    A("s_mov_b32 s59, 57344")
    A.wait_vm('b1')
    for tau in range(7):
        for k in range(2):
            A(f"v_lshlrev_b32 v{BF+4*tau+2*k}, 16, v{B1+2*tau+k}")
            A(f"v_and_b32 v{BF+4*tau+2*k+1}, 0xffff0000, v{B1+2*tau+k}")
    for u in range(8): A(f"v_mov_b32 v{B1+u}, {u+1}")
    def full_issue(u):
        A(f"ds_read_b32 v{FL}, v2 offset:{F_FULL + 4*u}", tag=('fu', u))
    def full_eval(u):
        L1, L2 = A.newlabel('fu'), A.newlabel('fu')
        A.wait_lg(('fu', u))
        A(f"v_cmp_eq_u32 vcc, 1, v{FL}")
        A(f"s_cbranch_vccnz {L2}")
        A(f"{L1}:")
        A(f"ds_read_b32 v{FL}, v2 offset:{F_FULL + 4*u}")
        A.lg.pop()
        A("s_waitcnt lgkmcnt(0)")
        A(f"v_cmp_eq_u32 vcc, 1, v{FL}")
        A(f"s_cbranch_vccz {L1}")
        A(f"{L2}:")
    def trread(j, tau, hh):
        off = ((j//2) % 2) * 32768 + (j % 2) * 8192 + hh * 1024
        A(f"ds_read_b64_tr_b16 {v(AF+4*tau+2*hh,2)}, v{AB+tau} offset:{off}", tag=('a', j, tau))
    def xread(j, nt):
        off = ((j//2) % 2) * 32768 + nt * 2048
        A(f"ds_read_b128 {v(XR+8*(j%2)+4*nt,4)}, v{4 + j%2} offset:{off}", tag=('x', j))
    spin(A, 2, F_FULL, 1, FL, sleep=1)
    stamp(A)
    xread(0, 0); xread(0, 1)
    for tau in range(7):
        for hh in range(2): trread(0, tau, hh)
    for j in range(16):
        if j == 8: stamp(A)
        sl = XR + 8*(j % 2)
        def mf(acc, a, b):
            A(f"v_mfma_f32_16x16x32_bf16 {v(acc,4)}, {v(a,4)}, {v(b,4)}, {'0' if j == 0 else v(acc,4)}")
        flip = (j < 15 and (j + 1) % 4 == 0)
        A.wait_lg(('x', j), ('a', j, 0), ('a', j, 1))
        for tau in range(7):
            if tau % 2 == 0 and tau: A.wait_lg(('a', j, tau), ('a', j, min(tau+1, 6)))
            mf(ACC + 8*tau, AF + 4*tau, sl)
            if tau == 0 and j % 2 == 1 and j < 15: full_eval((j+1)//2)
            if flip:
                A(f"v_xor_b32 v{AB+tau}, 0x10000, v{AB+tau}")
                if tau == 0: A(f"v_xor_b32 v4, 0x10000, v4"); A(f"v_xor_b32 v5, 0x10000, v5")
            if tau == 6 and j % 2 == 1:
                A(f"ds_write_b32 v35, v{B1 + j//2} offset:{F_DONE}", tag='dn')
            if tau == 5 and j % 2 == 0 and j < 14: full_issue(j//2 + 1)
            mf(ACC + 8*tau + 4, AF + 4*tau, sl + 4)
            if tau < 2:
                if j < 15: xread(j+1, tau)
                mf(ACS + 4*tau, AF + 4*tau, ONES)
            if j < 15:
                trread(j+1, tau, 0); trread(j+1, tau, 1)
            if j == 15 and tau == 4:
                for t2 in range(2):
                    A(f"ds_write_b128 v{CSA+t2}, {v(ACS+4*t2,4)}", tag='cw')
                A(f"ds_write_b32 v35, v34 offset:{F_CS}", tag='fl')
    stamp(A)
    spin(A, 2, F_ST, 1, FL)
    for nt in range(2):
        A(f"ds_read_b64 {v(MN+4*nt,2)}, v156 offset:{128*nt}")
    spin(A, 2, F_CS, 4, FL)
    CS = 44
    for tau in range(7):
        A(f"ds_read_b128 {v(CS+4*tau,4)}, v{CSA+tau}", tag=('cs', tau))
    stamp(A)
    OUT = 192
    bc = "op_sel_hi:[1,0,1]"
    groups = [((0,0),(1,0)), ((2,0),(3,0)), ((4,0),(5,0)), ((6,0),(6,1)), ((0,1),(1,1)), ((2,1),(3,1)), ((4,1),(5,1))]
    for gi, grp in enumerate(groups):
        o = OUT + 4 * (gi % 4)
        chains = []
        for ti, (tau, nt) in enumerate(grp):
            A.wait_lg(('cs', tau))
            for pr in range(2):
                a = ACC + 8*tau + 4*nt + 2*pr
                t = TM + 2*(2*ti + pr)
                chains.append([
                    f"v_pk_fma_f32 {v(a,2)}, {v(CS+4*tau+2*pr,2)}, {v(MN+4*nt,2)}, {v(a,2)} {bc}",
                    f"v_pk_fma_f32 {v(a,2)}, {v(a,2)}, {v(MN+4*nt,2)}, {v(BF+4*tau+2*pr,2)} op_sel:[0,1,0] op_sel_hi:[1,1,1]",
                    f"v_pk_mul_f32 {v(t,2)}, {v(a,2)}, {v(a,2)}",
                    f"v_pk_fma_f32 {v(t,2)}, {v(t,2)}, {v(C1,2)}, {v(C2,2)} op_sel_hi:[1,0,0]",
                    f"v_pk_mul_f32 {v(t,2)}, {v(t,2)}, {v(a,2)}",
                    f"v_exp_f32 v{t}, v{t}",
                    f"v_exp_f32 v{t+1}, v{t+1}",
                    f"v_pk_add_f32 {v(t,2)}, {v(t,2)}, {v(C3,2)} op_sel_hi:[1,0]",
                    f"v_rcp_f32 v{t}, v{t}",
                    f"v_rcp_f32 v{t+1}, v{t+1}",
                    f"v_pk_mul_f32 {v(t,2)}, {v(t,2)}, {v(a,2)}",
                    f"v_cvt_pk_bf16_f32 v{o+2*ti+pr}, v{t}, v{t+1}"])
        for ins in zip(*chains):
            for x in ins: A(x)
        A(f"v_permlane16_swap_b32 v{o}, v{o+2}")
        A(f"v_permlane16_swap_b32 v{o+1}, v{o+3}")
        so = 's59' if (grp[0][1] == 1) else '0'
        A(f"buffer_store_dwordx4 {v(o,4)}, v{SA+grp[0][0]//2}, s[44:47], {so} offen sc1", tag='hs')
    stamp(A)
    LA = int(OPT.get('LA', 3))
    NSTEP = 14
    A(f"ds_read_b32 v237, v2 offset:{F_NON}")
    srd(A, 36, 84, 1835008)
    srd(A, 40, 4, 2097152)
    srd(A, 64, 86, 1024)
    srd(A, 52, 88, 2097152)
    srd(A, 60, 24, FLSZ, WS_FLAG)
    A("v_lshlrev_b32 v236, 4, v1")
    for l in range(4):
        A(f"s_add_u32 s49, s3, {l}")
        A("s_and_b32 s49, s49, 3")
        A("s_mul_i32 s49, s49, 57344")
        A(f"v_add_u32 v{4+l}, s49, v236")
    A(f"s_mul_i32 s48, s80, {4*57344}")
    A("s_lshl_b32 s49, s3, 10")
    A("s_add_u32 s48, s48, s49")
    w2_voffs(A, 8, 12)
    A("s_lshl_b32 s50, s3, 15")
    A("v_bfe_u32 v16, v1, 2, 2")
    A("v_lshrrev_b32 v17, 1, v16")
    A("v_and_b32 v18, 1, v3")
    A("v_lshl_or_b32 v17, v18, 1, v17")
    A("v_lshl_add_u32 v18, v3, 3, v16")
    A("v_lshlrev_b32 v18, 7, v18")
    A("v_and_b32 v20, 3, v1")
    A("v_lshl_add_u32 v18, v20, 3, v18")
    A("v_add_u32 v18, s50, v18")
    for mt in range(4):
        A(f"v_xor_b32 v20, {mt}, v17")
        A(f"v_lshl_add_u32 v{12+mt}, v20, 5, v18")
    A("s_lshl_b32 s49, s80, 6")
    A("s_lshl_b32 s56, s3, 4")
    A("s_add_u32 s49, s49, s56")
    A("v_add_u32 v16, s49, v19")
    A("v_lshlrev_b32 v16, 10, v16")
    A("v_and_b32 v17, 1, v3")
    A("v_lshl_add_u32 v16, v17, 5, v16")
    A("v_lshrrev_b32 v17, 1, v3")
    A("v_lshl_add_u32 v16, v17, 4, v16")
    A("s_lshl_b32 s49, s81, 7")
    A("v_add_u32 v16, s49, v16")
    A("v_lshlrev_b32 v17, 3, v3")
    A("v_mov_b32 v44, 1")
    A("v_mov_b32 v45, v35")
    A("v_mov_b32 v46, v2")
    A("v_add_u32 v47, s50, v236")
    A("v_bfe_u32 v18, v1, 2, 2")
    A("v_lshl_add_u32 v18, v3, 2, v18")
    A("v_bfe_u32 v20, v18, 1, 2")
    A("v_xor_b32 v20, s3, v20")
    A("v_lshlrev_b32 v18, 7, v18")
    A("v_lshl_add_u32 v18, v20, 5, v18")
    A("v_and_b32 v20, 3, v1")
    A("v_lshl_add_u32 v18, v20, 3, v18")
    A(f"v_add_u32 v18, {L_CV}, v18")
    for k in range(1, 4):
        A(f"s_add_u32 s56, s3, {k}")
        A("s_and_b32 s56, s56, 3")
        A(f"s_lshl_b32 s56, s56, 15")
        A(f"s_add_u32 s56, s56, {(4-k)*4096}")
        A(f"v_add_u32 v{247+k}, s56, v236")
    A("s_lshl_b32 s56, s82, 1")
    A("s_lshr_b32 s57, s3, 1")
    A("s_add_u32 s56, s56, s57")
    A("s_lshl_b32 s56, s56, 10")
    A("s_lshl_b32 s57, s83, 3")
    A("s_add_u32 s56, s56, s57")
    A("s_and_b32 s57, s3, 1")
    A("s_lshl_b32 s57, s57, 2")
    A("s_add_u32 s56, s56, s57")
    A("v_lshlrev_b32 v238, 7, v1")
    A("v_and_b32 v239, 31, v1")
    A("v_lshlrev_b32 v239, 2, v239")
    spin(A, 46, F_NON, 1, 237, cmp='ne', val='0')
    A.wait_vm0()
    A("s_mov_b64 exec, 0xff")
    A("buffer_store_dword v237, v238, s[60:63], s56 offen sc1")
    A("s_mov_b64 exec, -1")
    stamp(A)
    A("buffer_load_dwordx4 v[20:23], v16, s[40:43], 0 offen")
    A("buffer_load_dwordx4 v[24:27], v16, s[40:43], 0 offen offset:64")
    for mt in range(4):
        A(f"buffer_load_dwordx2 {v(240+2*mt,2)}, v17, s[64:67], s49 offen offset:{32*mt}")
    A(f"s_setprio {OPT.get('gprio', 1)}")
    spin(A, 45, F_PRE, 1, 28, sleep=1)
    HB, NH, AF, ACC = 112, LA + 2, 28, 48
    def trread2(j, mt):
        for hh in range(2):
            A(f"ds_read_b64_tr_b16 {v(AF+4*mt+2*hh,2)}, v{12+mt} offset:{(j % NR)*4096 + hh*512}", tag=('a', j, mt))
    for mt in range(4): trread2(0, mt)
    A("s_lshl_b32 s56, s80, 10")
    A("s_lshl_b32 s57, s81, 7")
    A("s_add_u32 s56, s56, s57")
    A("s_cmp_lg_u32 s3, 0")
    A("s_cbranch_scc1 K_g1")
    gpoll(A, 239, 60, 's56', 238, 237, int(OPT.get('hsleep', 4)))
    A(f"ds_write_b32 v46, v44 offset:{F_HR}")
    A("K_g1:")
    spin(A, 46, F_HR, 1, 238, sleep=1)
    A.wait_vm0()
    stamp(A)
    def hloads(j):
        hb = HB + 16 * (j % NH)
        fs = [lambda: A(f"s_add_u32 s58, s48, {4096*j}")]
        for nt in range(4):
            fs.append(lambda nt=nt: A(f"buffer_load_dwordx4 {v(hb+4*nt,4)}, v{4+nt}, s[44:47], s58 offen sc1", tag=('h', j)))
        return fs
    def wloads(j):
        def first():
            A(f"s_add_u32 s59, s50, {131072*j}")
            A(f"s_add_u32 m0, s50, {(j % NR)*4096}")
            A(f"buffer_load_dwordx4 v8, s[36:39], s59 offen lds", tag=('w', j))
        return [first] + [(lambda q=q: A(f"buffer_load_dwordx4 v{8+q}, s[36:39], s59 offen offset:{1024*q} lds", tag=('w', j))) for q in range(1, 4)]
    for j in range(LA + 1):
        for f in hloads(j): f()
    for j in range(NSTEP):
        if j in (4, 9): stamp(A)
        fs = hloads(j + LA + 1) if j + LA + 1 < NSTEP else []
        jw = j + NR - 1
        if j >= 1 and jw < NSTEP: fs = fs + wloads(jw)
        if j == int(OPT.get('GO', 7)): A(f"ds_write_b32 v45, v44 offset:{F_GO}", tag='go')
        A.wait_vm(('h', j), ('w', j + 1))
        hb = HB + 16 * (j % NH)
        if j + 1 < NSTEP:
            for mt in range(4):
                A.wait_lg(('a', j, mt))
                for nt in range(4):
                    acc = ACC + 16*nt + 4*mt
                    A(f"v_mfma_f32_16x16x32_bf16 {v(acc,4)}, {v(AF+4*mt,4)}, {v(hb+4*nt,4)}, {'0' if j == 0 else v(acc,4)}")
                    if fs and nt < 3: fs.pop(0)()
                trread2(j + 1, mt)
            while fs: fs.pop(0)()
        else:
            A.wait_lg0()
            pend = []
            for nt in (1, 2, 3, 0):
                for mt in range(4):
                    acc = ACC + 16*nt + 4*mt
                    A(f"v_mfma_f32_16x16x32_bf16 {v(acc,4)}, {v(AF+4*mt,4)}, {v(hb+4*nt,4)}, {v(acc,4)}")
                    if len(pend) >= 4:
                        a2, o2 = pend.pop(0)
                        A(f"ds_write_b128 v47, {v(a2,4)} offset:{o2}")
                    if nt: pend.append((acc, (4*nt+mt)*1024))
            for a2, o2 in pend: A(f"ds_write_b128 v47, {v(a2,4)} offset:{o2}")
    A(f"ds_write_b32 v45, v44 offset:{F_RED}")
    stamp(A)
    BB, XX, SS, T = 176, 192, 208, 128
    for mt in range(4):
        for k in range(2):
            A(f"v_lshlrev_b32 v{BB+4*mt+2*k}, 16, v{240+2*mt+k}")
            A(f"v_and_b32 v{BB+4*mt+2*k+1}, 0xffff0000, v{240+2*mt+k}")
    for r in range(0, 16, 2):
        A(f"v_pk_add_f32 {v(ACC+r,2)}, {v(ACC+r,2)}, {v(BB+r,2)}")
    for k in range(8):
        A(f"v_lshlrev_b32 v{XX+2*k}, 16, v{20+k}")
        A(f"v_and_b32 v{XX+2*k+1}, 0xffff0000, v{20+k}")
    A(f"v_mov_b32 v232, {f2u(-LOG2E)}")
    A(f"v_mov_b32 v234, 1.0")
    spin(A, 46, F_RED, 4, 8)
    PR = 128
    for k in range(1, 4):
        for mt in range(4):
            A(f"ds_read_b128 {v(PR+16*(k-1)+4*mt,4)}, v{247+k} offset:{mt*1024}", tag=('p', k))
    for k in range(1, 4):
        A.wait_lg(('p', k))
        for r in range(0, 16, 2):
            A(f"v_pk_add_f32 {v(ACC+r,2)}, {v(ACC+r,2)}, {v(PR+16*(k-1)+r,2)}")
    for r in range(0, 16, 2):
        A(f"v_pk_mul_f32 {v(T+r,2)}, {v(ACC+r,2)}, {v(232,2)} op_sel_hi:[1,0]")
    for r in range(16): A(f"v_exp_f32 v{T+r}, v{T+r}")
    for r in range(0, 16, 2):
        A(f"v_pk_add_f32 {v(T+r,2)}, {v(T+r,2)}, {v(234,2)} op_sel_hi:[1,0]")
    for r in range(16): A(f"v_rcp_f32 v{T+r}, v{T+r}")
    for r in range(0, 16, 2):
        A(f"v_pk_mul_f32 {v(ACC+r,2)}, {v(ACC+r,2)}, {v(T+r,2)}")
    stamp(A)
    spin(A, 46, F_SR, 4, 8)
    stamp(A)
    for mt in range(4):
        A(f"ds_read_b64_tr_b16 {v(224+2*mt,2)}, v18 offset:{(mt>>1)*CVS + (mt&1)*2048}", tag='s')
    A.wait_lg('s')
    for mt in range(4):
        for k in range(2):
            A(f"v_lshlrev_b32 v{SS+4*mt+2*k}, 16, v{224+2*mt+k}")
            A(f"v_and_b32 v{SS+4*mt+2*k+1}, 0xffff0000, v{224+2*mt+k}")
    for r in range(0, 16, 2):
        A(f"v_pk_mul_f32 {v(ACC+r,2)}, {v(ACC+r,2)}, {v(SS+r,2)}")
    O = 160
    for r in range(0, 16, 2):
        A(f"v_cvt_pk_bf16_f32 v{O+r//2}, v{ACC+r}, v{ACC+r+1}")
    for pr in range(2):
        A(f"v_permlane16_swap_b32 v{O+4*pr}, v{O+4*pr+2}")
        A(f"v_permlane16_swap_b32 v{O+4*pr+1}, v{O+4*pr+3}")
    for k in range(8):
        A(f"v_lshlrev_b32 v{T+2*k}, 16, v{O+k}")
        A(f"v_and_b32 v{T+2*k+1}, 0xffff0000, v{O+k}")
    for k in range(8):
        A(f"v_pk_add_f32 {v(T+2*k,2)}, {v(T+2*k,2)}, {v(XX+2*k,2)}")
    for k in range(8):
        A(f"v_cvt_pk_bf16_f32 v{O+k}, v{T+2*k}, v{T+2*k+1}")
    A(f"buffer_store_dwordx4 {v(O,4)}, v16, s[52:55], 0 offen {OPT.get('sto','sc1')}")
    A(f"buffer_store_dwordx4 {v(O+4,4)}, v16, s[52:55], 0 offen offset:64 {OPT.get('sto','sc1')}")
    A("s_or_b32 s56, s2, s3")
    A("s_cmp_lg_u32 s56, 0")
    A("s_cbranch_scc1 K_g9")
    A("v_mov_b32 v238, 0")
    A("s_mov_b32 s56, 0x30000")
    A("s_mov_b64 exec, 1")
    A("buffer_store_dword v237, v238, s[60:63], s56 offen sc1")
    A("s_mov_b64 exec, -1")
    A("K_g9:")
    finish(A)

def build():
    A = Asm()
    A(f".globl {KN}\n.p2align 8\n.type {KN},@function")
    A(f"{KN}:")
    A("K_start:")
    prologue(A)
    loader(A)
    gemm(A)
    xwave(A)
    kgen(A)
    uload(A)
    conv(A)
    A("K_end:")
    A("s_endpgm")
    hdr = open('cdna_kernels/' + NAME + '.s.ref').read().split('; Override launch')[0] if os.path.exists('cdna_kernels/' + NAME + '.s.ref') else ''
    txt = hdr + f"; @launch grid=(256,1,1) block=(512,1,1) lds={L_SIZE}\n"
    txt += '.amdgcn_target "amdgcn-amd-amdhsa--gfx950"\n.text\n' + A.text() + 'CODE_END:\n.section .rodata,"a"\n'
    txt += f""".p2align 6
.amdhsa_kernel {KN}
  .amdhsa_next_free_vgpr 256
  .amdhsa_next_free_sgpr 102
  .amdhsa_accum_offset 256
  .amdhsa_group_segment_fixed_size 0
  .amdhsa_kernarg_size 136
  .amdhsa_user_sgpr_count 2
  .amdhsa_user_sgpr_kernarg_segment_ptr 1
  .amdhsa_system_sgpr_workgroup_id_x 1
.end_amdhsa_kernel
"""
    return txt

if __name__ == '__main__':
    out = sys.argv[1] if len(sys.argv) > 1 else f'cdna_kernels/{NAME}.s'
    open(out, 'w').write(build())
```

```python
import sys, os, struct
sys.path.insert(0, os.path.dirname(__file__))
from asmlib import Asm

NAME = 'recurrent_scan__ssm_conv_s4__mixer_channel_mlp__prompt'
KN = NAME + '_kernel'
WS_XN = 0
WS_H = 0x800000
WS_ST = 0x1000000
WS_FLAG = 0x1400000
WS_MB = 0x40000
FLSZ = 0xC0000
WS_DBG = 0x1800000
SRD3 = '0x00020000'
LOG2E = 1.4426950408889634
DEBUG = os.environ.get('KDEBUG', '0') == '1'
OPT = dict(kv.split('=') for kv in os.environ.get('KOPT', '').split(',') if kv)

def v(a, n=1): return f'v{a}' if n == 1 else f'v[{a}:{a+n-1}]'
def f2u(x): return '0x%08x' % struct.unpack('<I', struct.pack('<f', x))[0]
def srd(A, d, base, size, off=0):
    if off:
        A(f's_add_u32 s{d}, s{base}, {off}'); A(f's_addc_u32 s{d+1}, s{base+1}, 0')
    else:
        A(f's_mov_b32 s{d}, s{base}'); A(f's_mov_b32 s{d+1}, s{base+1}')
    A(f's_mov_b32 s{d+2}, {size}'); A(f's_mov_b32 s{d+3}, {SRD3}')
def bf16r(A, d, x, t):
    A(f'v_cvt_pk_bf16_f32 v{t}, v{x}, v{x}'); A(f'v_lshlrev_b32 v{d}, 16, v{t}')

def stamp(A, real=False):
    if not DEBUG: return
    A(f"{'s_memrealtime' if real else 's_memtime'} s[94:95]")
    A("s_waitcnt lgkmcnt(0)"); A.lg = []
    A(f"v_writelane_b32 v255, s94, {A.nst}")
    A.nst += 1
    assert A.nst <= 32
def finish(A):
    if DEBUG:
        A.wait_vm0()
        stamp(A); stamp(A, True)
        srd(A, 96, 24, 0x100000, WS_DBG)
        A("s_lshl_b32 s94, s2, 3"); A("s_add_u32 s94, s94, s3"); A("s_lshl_b32 s94, s94, 7")
        A("v_lshlrev_b32 v254, 2, v1")
        A(f"s_mov_b64 exec, {(1 << A.nst) - 1}")
        A("buffer_store_dword v255, v254, s[96:99], s94 offen")
    A("s_endpgm")

L_CV = 131072
CVS = 2 * 4160 + 4576
F = L_CV + 2 * CVS
F_FULL, F_DONE, F_XD, F_PRE, F_NON, F_KR, F_UR, F_XCH, F_CS, F_ST, F_SR, F_GO, F_RED = 0, 32, 48, 64, 80, 84, 92, 112, 128, 144, 160, 176, 192
F_HR, F_XR, F_XT = 100, 104, 108
F_FX = 208
F_PF = 240
L_CS = F + 256
L_ST = L_CS + 448
L_S2 = L_ST + 1024
L_B1 = L_S2 + 1024
L_SIZE = L_B1 + 256
SPARE = 28672
NR = 7

XROWS = [(0,0),(0,1),(0,2),(0,3),(1,0),(1,1),(1,2),(1,3),(2,0),(2,2),(4,0),(6,0),(3,0),(3,2),(5,0),(7,0),
         (8,0),(10,0),(12,0),(14,0),(9,0),(11,0),(13,0),(15,0),(16,0)]

def spin(A, areg, off, n, t, sleep=0, cmp='eq', val='1'):
    L = A.newlabel('sp')
    A(f"{L}:")
    if n == 1: A(f"ds_read_b32 v{t}, v{areg} offset:{off}")
    elif n == 2: A(f"ds_read2_b32 {v(t,2)}, v{areg} offset0:{off[0]//4} offset1:{off[1]//4}")
    else: A(f"ds_read_b128 {v(t,4)}, v{areg} offset:{off}")
    A("s_waitcnt lgkmcnt(0)")
    if n == 2: A(f"v_min_u32 v{t}, v{t}, v{t+1}")
    if n == 4:
        A(f"v_min_u32 v{t}, v{t}, v{t+1}"); A(f"v_min3_u32 v{t}, v{t}, v{t+2}, v{t+3}")
    A(f"v_cmp_{cmp}_u32 vcc, {val}, v{t}")
    if sleep:
        A(f"s_cbranch_vccnz {L}_d"); A(f"s_sleep {sleep}"); A(f"s_branch {L}"); A(f"{L}_d:")
    else:
        A(f"s_cbranch_vccz {L}")
    A.lg = []

def gpoll(A, vaddr, srdr, soff, t, nonce, sleep):
    L = A.newlabel('gp')
    A("s_mov_b32 s79, 0")
    A(f"{L}:")
    A(f"buffer_load_dword v{t}, v{vaddr}, s[{srdr}:{srdr+3}], {soff} offen sc1")
    A("s_waitcnt vmcnt(0)")
    A(f"v_cmp_ne_u32 vcc, v{nonce}, v{t}")
    A(f"s_cbranch_vccz {L}_d")
    A(f"s_sleep {sleep}")
    A("s_add_u32 s79, s79, 1")
    A("s_cmp_lt_u32 s79, 0x4000")
    A(f"s_cbranch_scc1 {L}")
    A(f"{L}_d:")
    A.vm = []

def prologue(A):
    A("s_cmp_ge_u32 s2, 256")
    A("s_cbranch_scc1 K_end")
    A.nst = 0
    A("s_load_dwordx16 s[4:19], s[0:1], 0")
    A("s_load_dwordx4 s[20:23], s[0:1], 80")
    A("s_load_dwordx2 s[24:25], s[0:1], 128")
    A("s_load_dwordx4 s[84:87], s[0:1], 96")
    A("s_load_dwordx4 s[88:91], s[0:1], 112")
    A("s_load_dwordx2 s[92:93], s[0:1], 64")
    A("v_lshrrev_b32 v2, 6, v0")
    A("v_and_b32 v1, 63, v0")
    A("v_mov_b32 v3, 0")
    A("v_readfirstlane_b32 s3, v2")
    A("v_min_u32 v4, 63, v1")
    A("v_lshlrev_b32 v4, 2, v4")
    A(f"v_add_u32 v4, {F}, v4")
    A("ds_write_b32 v4, v3")
    A("s_and_b32 s26, s2, 7")
    A("s_lshr_b32 s27, s2, 3")
    A("s_lshl_b32 s28, s26, 5")
    A("s_add_u32 s28, s28, s27")
    if OPT.get('map', 'b') == 'a':
        A("s_lshr_b32 s29, s26, 1")
        A("s_lshl_b32 s82, s29, 2")
        A("s_and_b32 s30, s27, 3")
        A("s_add_u32 s82, s82, s30")
        A("s_and_b32 s30, s26, 1")
        A("s_lshl_b32 s83, s30, 3")
        A("s_lshr_b32 s31, s27, 2")
        A("s_add_u32 s83, s83, s31")
        A("s_lshl_b32 s80, s29, 3")
        A("s_and_b32 s31, s27, 7")
        A("s_add_u32 s80, s80, s31")
        A("s_lshl_b32 s81, s30, 2")
        A("s_lshr_b32 s31, s27, 3")
        A("s_add_u32 s81, s81, s31")
    else:
        A("s_lshl_b32 s82, s26, 1")
        A("s_and_b32 s30, s27, 1")
        A("s_add_u32 s82, s82, s30")
        A("s_lshr_b32 s83, s27, 1")
        A("s_lshl_b32 s80, s26, 2")
        A("s_and_b32 s30, s27, 3")
        A("s_add_u32 s80, s80, s30")
        A("s_lshr_b32 s81, s27, 2")
    stamp(A, True); stamp(A)
    A("s_waitcnt lgkmcnt(0)")
    A("s_barrier")
    stamp(A)
    A.reset_counters()
    A("s_cmp_lt_u32 s3, 4")
    A("s_cbranch_scc1 K_gemm")
    A("s_cmp_eq_u32 s3, 4")
    A("s_cbranch_scc1 K_x")
    A("s_cmp_lt_u32 s3, 7")
    A("s_cbranch_scc1 K_kgen")

def w2_voffs(A, d, t):
    A(f"v_lshrrev_b32 v{t}, 3, v1")
    A(f"v_and_b32 v{t+1}, 7, v1")
    A(f"v_bfe_u32 v{t+2}, v1, 4, 1")
    A(f"v_lshlrev_b32 v{t+2}, 1, v{t+2}")
    A(f"v_xor_b32 v{t+1}, v{t+1}, v{t+2}")
    A(f"v_lshlrev_b32 v{t}, 10, v{t}")
    A("s_lshl_b32 s49, s81, 7")
    A(f"v_add_u32 v{t}, s49, v{t}")
    for q in range(4):
        A(f"v_xor_b32 v{t+2}, {4*(q&1)}, v{t+1}")
        A(f"v_lshl_add_u32 v{d+q}, v{t+2}, 4, v{t}")
        if q: A(f"v_add_u32 v{d+q}, {q*(8192-1024)}, v{d+q}")

def p1_voffs(A, d, t):
    A(f"v_and_b32 v{t}, 15, v1")
    A(f"v_lshrrev_b32 v{t+1}, 4, v1")
    A("s_mul_i32 s53, s83, 224")
    A("s_and_b32 s53, s53, 0xffffffc0")
    A(f"v_mul_u32_u24 v{t+2}, 3584, v{t+1}")
    A(f"v_add_u32 v{t+2}, s53, v{t+2}")
    A(f"v_lshlrev_b32 v{t+3}, 1, v{t+1}")
    A(f"v_xor_b32 v{t+3}, v{t+3}, v{t}")
    for q in range(4):
        A(f"v_xor_b32 v{t+4}, {8*((q>>1)&1)}, v{t+3}")
        A(f"v_lshl_add_u32 v{d+q}, v{t+4}, 4, v{t+2}")
        if q: A(f"v_add_u32 v{d+q}, {q*(4*3584-1024)}, v{d+q}")
    A(f"v_lshrrev_b32 v{t+2}, 3, v1")
    A(f"v_and_b32 v{t+4}, 7, v1")
    A(f"v_xor_b32 v{t+3}, v{t+1}, v{t+4}")
    A("s_lshl_b32 s52, s82, 7")
    A(f"v_add_u32 v{t+2}, s52, v{t+2}")
    A(f"v_lshlrev_b32 v{t+2}, 10, v{t+2}")
    for q in range(4):
        A(f"v_xor_b32 v{t+4}, {4*(q&1)}, v{t+3}")
        A(f"v_lshl_add_u32 v{d+4+q}, v{t+4}, 4, v{t+2}")
        if q: A(f"v_add_u32 v{d+4+q}, {q*(8192-1024)}, v{d+4+q}")

NG = int(OPT.get('NG', 0))

def wait_free(A, n):
    L1 = A.newlabel('fr')
    A(f"{L1}:")
    A(f"ds_read_b128 v[20:23], v17 offset:{F_DONE}")
    A("s_waitcnt lgkmcnt(0)")
    A("v_min_u32 v20, v20, v21")
    A("v_min3_u32 v20, v20, v22, v23")
    A(f"v_cmp_le_u32 vcc, {n}, v20")
    A(f"s_cbranch_vccnz {L1}_d"); A(f"s_sleep {OPT.get('fsleep', 2)}"); A(f"s_branch {L1}"); A(f"{L1}_d:")
    A.lg = []

def p1_stream(A, isx):
    A("s_setprio 3")
    if isx: srd(A, 36, 4, 2097152)
    else: srd(A, 36, 20, 1835008)
    p1_voffs(A, 8, 2)
    A("v_mov_b32 v16, 1")
    A(f"v_mov_b32 v17, {F}")
    if OPT.get('iso'):
        for u in range(8): A(f"ds_write_b32 v17, v16 offset:{(F_FX if isx else F_FULL) + 4*u}")
        A("s_endpgm")
    def issue(u):
        base = (u % 4) * 32768
        for qq in range(4):
            A(f"s_mov_b32 m0, {base + qq*4096 + (16384 if isx else 0)}")
            A(f"s_mov_b32 s57, {128*u + 32768*qq if isx else (64*u + 16*qq)*3584}")
            for q in range(4):
                A(f"buffer_load_dwordx4 v{(12 if isx else 8)+q}, s[36:39], s57 offen offset:{1024*q} lds", tag=('u', u))
    def post(u):
        A.wait_vm(('u', u))
        A(f"ds_write_b32 v17, v16 offset:{(F_FX if isx else F_FULL) + 4*u}")
    issue(0); issue(1); post(0)
    if not isx:
        srd(A, 40, 22, 3584)
        A("v_lshlrev_b32 v18, 2, v1")
        A("s_mul_i32 s53, s83, 224")
        A(f"s_mov_b32 m0, {L_B1}")
        A("buffer_load_dword v18, s[40:43], s53 offen lds", tag='b1')
    for u in range(2, 8):
        if u >= 4: wait_free(A, u - 3)
        issue(u); post(u-1)
    post(7)

def loader(A):
    A.reset_counters(); A.nst = 3
    p1_stream(A, False)
    srd(A, 40, 84, 1835008)
    w2_voffs(A, 8, 4)
    stamp(A)
    A(f"s_setprio {OPT.get('lprio', 1)}")
    for w in range(4):
        wait_free(A, 5 + w)
        for j in range(NR):
            A(f"s_mov_b32 m0, {w*32768 + j*4096}")
            A(f"s_mov_b32 s57, {(4*j + w)*32768}")
            for q in range(4):
                A(f"buffer_load_dwordx4 v{8+q}, s[40:43], s57 offen offset:{1024*q} lds", tag=('w', w))
        if w:
            A.wait_vm(('w', w-1)); A(f"ds_write_b32 v17, v16 offset:{F_PRE + 4*(w-1)}")
    A.wait_vm(('w', 3)); A(f"ds_write_b32 v17, v16 offset:{F_PRE + 12}")
    stamp(A)
    A("s_branch K_conv")

def xwave(A):
    A("K_x:")
    if OPT.get('iso'): A("s_endpgm")
    A.reset_counters(); A.nst = 3
    A("s_setprio 3")
    srd(A, 32, 4, 2097152)
    srd(A, 36, 24, 2097152, WS_XN)
    srd(A, 44, 24, FLSZ, WS_FLAG)
    A("v_lshlrev_b32 v2, 4, v1")
    A("v_mov_b32 v60, 0")
    A("s_mov_b32 s40, 0x30000")
    A("buffer_load_dword v61, v60, s[44:47], s40 offen sc1", tag='e')
    A("s_lshl_b32 s29, s28, 13")
    A("v_add_u32 v3, 4096, v2")
    X = 160
    for t in range(8):
        A(f"buffer_load_dwordx4 {v(X+4*t,4)}, v{2 + t//4}, s[32:35], s29 offen offset:{(t%4)*1024}", tag=('x', t))
    A("s_getpc_b64 s[40:41]")
    A("K_pc:")
    A("s_sub_u32 s40, s40, K_pc-K_start")
    A("s_subb_u32 s41, s41, 0")
    A("s_mov_b32 s42, CODE_END-K_start")
    A(f"s_mov_b32 s43, {SRD3}")
    A("v_lshlrev_b32 v4, 7, v1")
    A("s_and_b32 s48, s27, 3")
    A("s_lshl_b32 s48, s48, 13")
    A("buffer_load_dword v5, v4, s[40:43], s48 offen", tag='c')
    A(f"v_mov_b32 v6, {F}")
    A("v_mov_b32 v4, 0x3f803f80")
    S, Q = 64, 72
    A.wait_vm('e')
    A("v_add_u32 v61, 1, v61")
    A("v_max_u32 v61, 1, v61")
    A(f"ds_write_b32 v6, v61 offset:{F_NON}")
    for t in range(8):
        A.wait_vm(('x', t))
        for k in range(4):
            A(f"v_dot2_f32_bf16 v{S+t}, v{X+4*t+k}, v4, {'0' if k == 0 else 'v%d' % (S+t)}")
            A(f"v_dot2_f32_bf16 v{Q+t}, v{X+4*t+k}, v{X+4*t+k}, {'0' if k == 0 else 'v%d' % (Q+t)}")
    for B in (S, Q):
        for t in range(4): A(f"v_permlane32_swap_b32 v{B+t}, v{B+t+4}")
    for B in (S, Q):
        for t in range(4): A(f"v_add_f32 v{B+t}, v{B+t}, v{B+t+4}")
    for B in (S, Q):
        for t in range(2): A(f"v_permlane16_swap_b32 v{B+t}, v{B+t+2}")
    for B in (S, Q):
        for t in range(2): A(f"v_add_f32 v{B+t}, v{B+t}, v{B+t+2}")
    for sh in (8, 4, 2, 1):
        for r in (S, S+1, Q, Q+1):
            A(f"v_add_f32_dpp v{r}, v{r}, v{r} row_ror:{sh} row_mask:0xf bank_mask:0xf")
    seqs = []
    for t in range(2):
        m, q, G = S+t, Q+t, 80 + 4*t
        t1, t2, t3, t4 = 88+4*t, 89+4*t, 90+4*t, 91+4*t
        L = []
        def br(d, x): L.extend([f'v_cvt_pk_bf16_f32 v{t4}, v{x}, v{x}', f'v_lshlrev_b32 v{d}, 16, v{t4}'])
        L.append(f"v_mul_f32 v{m}, {f2u(1/512)}, v{m}")
        L.append(f"v_mul_f32 v{q}, {f2u(1/512)}, v{q}")
        L.append(f"v_fma_f32 v{q}, -v{m}, v{m}, v{q}")
        L.append(f"v_max_f32 v{q}, 0, v{q}")
        br(t1, q)
        L.append(f"v_add_f32 v{t1}, {f2u(1e-5)}, v{t1}")
        br(t1, t1)
        L.append(f"v_sqrt_f32 v{t1}, v{t1}")
        L.append(f"v_cvt_pk_bf16_f32 v{G}, v{m}, v{t1}")
        L.append(f"v_and_b32 v{t1}, 0xffff0000, v{G}")
        L.append(f"v_rcp_f32 v{t2}, v{t1}")
        L.append(f"v_lshlrev_b32 v{t3}, 16, v{G}")
        L.append(f"v_sub_f32 v{m}, v{m}, v{t3}")
        L.append(f"v_mul_f32 v{m}, v{m}, v{t2}")
        L.append(f"v_mul_f32 v{q}, v{q}, v{t2}")
        L.append(f"v_mul_f32 v{q}, v{q}, v{t2}")
        br(q, q)
        L.append(f"v_add_f32 v{q}, {f2u(1e-5)}, v{q}")
        br(q, q)
        L.append(f"v_sqrt_f32 v{q}, v{q}")
        L.append(f"v_mov_b32 v{G+1}, v61")
        L.append(f"v_cvt_pk_bf16_f32 v{G+2}, v{m}, v{q}")
        L.append(f"v_mov_b32 v{G+3}, v61")
        seqs.append(L)
    for x, y in zip(*seqs): A(x); A(y)
    A("v_and_b32 v8, 15, v1")
    A("v_lshlrev_b32 v8, 11, v8")
    A("v_lshrrev_b32 v9, 4, v1")
    A("v_lshl_add_u32 v8, v9, 5, v8")
    A("s_lshr_b32 s41, s28, 4")
    A("s_lshl_b32 s41, s41, 15")
    A("s_and_b32 s42, s28, 15")
    A("s_lshl_b32 s42, s42, 7")
    A("s_add_u32 s41, s41, s42")
    A(f"s_add_u32 s41, s41, {WS_MB}")
    for t in range(2):
        A(f"buffer_store_dwordx4 {v(80+4*t,4)}, v8, s[44:47], s41 offen offset:{16*t} {OPT.get('hst','sc1')}")
    stamp(A)
    for t in range(2):
        for rho in range(4):
            A(f"v_readlane_b32 s{64 + t + 2*rho}, v{90+4*t}, {16*rho}")
            A(f"v_readlane_b32 s{48 + t + 2*rho}, v{89+4*t}, {16*rho}")
    FF, O = 96, 112
    for i in range(4):
        for h, t in enumerate((7 - 2*i, 6 - 2*i)):
            for k in range(4):
                lo, hi, x = FF + 8*h + 2*k, FF + 8*h + 2*k + 1, X + 4*t + k
                A(f"v_lshlrev_b32 v{lo}, 16, v{x}")
                A(f"v_and_b32 v{hi}, 0xffff0000, v{x}")
                A(f"v_subrev_f32 v{lo}, s{64+t}, v{lo}")
                A(f"v_subrev_f32 v{hi}, s{64+t}, v{hi}")
                if not OPT.get('fastln'):
                    A(f"v_cvt_pk_bf16_f32 v{x}, v{lo}, v{hi}")
                    A(f"v_lshlrev_b32 v{lo}, 16, v{x}")
                    A(f"v_and_b32 v{hi}, 0xffff0000, v{x}")
                A(f"v_mul_f32 v{lo}, s{48+t}, v{lo}")
                A(f"v_mul_f32 v{hi}, s{48+t}, v{hi}")
        for dl in range(8):
            A(f"v_cvt_pk_bf16_f32 v{O+4*dl+i}, v{FF+dl}, v{FF+8+dl}")
    for dl in range(8):
        A(f"buffer_store_dwordx4 {v(O+4*dl,4)}, v{2 + dl//4}, s[36:39], s29 offen offset:{1024*(dl%4)} sc1")
    A("s_lshl_b32 s42, s28, 2")
    A("s_add_u32 s42, s42, 0x8000")
    spin(A, 6, F_PF, 1, 9, sleep=1)
    A.wait_vm0()
    A("s_mov_b64 exec, 1")
    A("buffer_store_dword v61, v60, s[44:47], s42 offen sc1")
    A("s_mov_b64 exec, -1")
    stamp(A)
    A("s_setprio 1")
    spin(A, 6, F_DONE, 4, 48, sleep=4, cmp='le', val=str(OPT.get('swait', 5)))
    A("s_lshl_b32 s41, s82, 4")
    A("s_add_u32 s41, s41, s83")
    A("s_lshl_b32 s41, s41, 11")
    A(f"s_add_u32 s41, s41, {WS_MB}")
    A("s_mov_b32 s79, 0")
    A("K_x2:")
    A("buffer_load_dwordx4 v[64:67], v2, s[44:47], s41 offen sc1")
    A("buffer_load_dwordx4 v[68:71], v2, s[44:47], s41 offen offset:1024 sc1")
    A("s_waitcnt vmcnt(0)")
    A("v_xor_b32 v72, v61, v65")
    A("v_xor_b32 v73, v61, v67")
    A("v_xor_b32 v74, v61, v69")
    A("v_xor_b32 v75, v61, v71")
    A("v_or3_b32 v72, v72, v73, v74")
    A("v_or_b32 v72, v72, v75")
    A("v_cmp_ne_u32 vcc, 0, v72")
    A("s_cbranch_vccz K_x3")
    A("s_sleep 6")
    A("s_add_u32 s79, s79, 1")
    A("s_cmp_lt_u32 s79, 0x4000")
    A("s_cbranch_scc1 K_x2")
    A("K_x3:")
    A.reset_counters()
    A(f"s_setprio {OPT.get('xprio', 1)}")
    for i in range(2):
        g, o = 64 + 4*i, 72 + 8*i
        A(f"v_and_b32 v{o+4}, 0xffff0000, v{g}")
        A(f"v_lshlrev_b32 v{o+5}, 16, v{g}")
        A(f"v_and_b32 v{o+6}, 0xffff0000, v{g+2}")
        A(f"v_lshlrev_b32 v{o+7}, 16, v{g+2}")
        A(f"v_rcp_f32 v{o}, v{o+4}")
        A(f"v_rcp_f32 v{o+3}, v{o+6}")
        A(f"v_fma_f32 v{o+2}, -v{o+7}, v{o+4}, -v{o+5}")
        A(f"v_mul_f32 v{o+3}, v{o+3}, v{o}")
    A("v_lshlrev_b32 v8, 3, v1")
    A(f"v_add_u32 v8, {L_ST}, v8")
    A("v_mov_b32 v7, 1")
    for i in range(2):
        A(f"ds_write_b64 v8, {v(74+8*i,2)} offset:{1024 + 512*i}")
    A(f"ds_write_b32 v6, v7 offset:{F_ST}")
    stamp(A)
    A("s_branch K_uload")

def kgen(A):
    A("K_kgen:")
    A.reset_counters(); A.nst = 3
    A("s_setprio 3")
    A("s_sub_u32 s29, s3, 5")
    A("s_lshl_b32 s31, s28, 2")
    A("s_load_dword s63, s[18:19], s31")
    A("s_lshl_b32 s31, s28, 9")
    A("s_lshl_b32 s30, s29, 8")
    A("s_add_u32 s31, s31, s30")
    A("v_lshlrev_b32 v2, 2, v1")
    for i in range(6):
        srd(A, 32, 6 + 2*i, 131072)
        A(f"buffer_load_dword v{52+i}, v2, s[32:35], s31 offen", tag='p')
    A("s_cmp_eq_u32 s29, 0")
    A("s_cbranch_scc1 K_k5")
    vm = list(A.vm)
    p1_stream(A, True)
    A("s_branch K_k6")
    A("K_k5:")
    if OPT.get('iso'): A("s_endpgm")
    A.vm = vm
    srd(A, 36, 20, 1835008)
    A("v_lshlrev_b32 v5, 4, v1")
    A("s_mul_i32 s40, s2, 7168")
    for i in range(7):
        if i == 4: A("s_add_u32 s40, s40, 4096")
        A(f"buffer_load_dwordx4 {v(208+4*i,4)}, v5, s[36:39], s40 offen offset:{1024*(i%4)}", tag='t')
    srd(A, 40, 24, 2097152, WS_ST)
    A("s_lshl_b32 s44, s28, 13")
    A("v_mov_b32 v8, -1\nv_mov_b32 v9, -1\nv_mov_b32 v10, -1\nv_mov_b32 v11, -1")
    for i in range(8):
        if i == 4: A("s_add_u32 s44, s44, 4096")
        A(f"buffer_store_dwordx4 v[8:11], v5, s[40:43], s44 offen offset:{1024*(i%4)} sc1", tag='t')
    A("K_k6:")
    A(f"v_mov_b32 v3, {F}")
    A(f"s_mul_i32 s54, s29, {CVS}")
    A(f"s_add_u32 s54, s54, {L_CV}")
    A("s_lshl_b32 s61, s29, 16")
    A(f"s_add_u32 s61, s61, {SPARE}")
    A("s_mov_b32 s45, 32768")
    WA, RA = 244, 252
    A("v_and_b32 v5, 31, v1")
    A("v_lshlrev_b32 v5, 7, v5")
    A("v_lshrrev_b32 v6, 5, v1")
    A("v_mul_u32_u24 v6, s45, v6")
    A("v_add3_u32 v5, v5, v6, s61")
    A("v_and_b32 v6, 7, v1")
    for c in range(8):
        A(f"v_xor_b32 v7, {c}, v6")
        A(f"v_lshl_add_u32 v{WA+c}, v7, 4, v5")
    A("v_bfe_u32 v5, v1, 2, 2")
    A("v_lshrrev_b32 v6, 5, v1")
    A("v_lshlrev_b32 v6, 2, v6")
    A("v_lshrrev_b32 v7, 1, v5")
    A("v_add_u32 v6, v6, v7")
    A("v_and_b32 v5, 1, v5")
    A("v_lshlrev_b32 v5, 2, v5")
    A("v_bfe_u32 v7, v1, 4, 1")
    A("v_lshl_add_u32 v5, v7, 1, v5")
    A("v_bfe_u32 v7, v1, 1, 1")
    A("v_add_u32 v5, v5, v7")
    A("v_and_b32 v7, 1, v1")
    A("v_lshlrev_b32 v7, 3, v7")
    A("v_add_u32 v7, s61, v7")
    for hh in range(2):
        if hh: A("v_add_u32 v6, 2, v6")
        A(f"v_xor_b32 v15, v5, v6")
        A(f"v_lshl_add_u32 v15, v15, 4, v7")
        A(f"v_lshl_add_u32 v{RA+hh}, v6, 7, v15")
        A(f"v_add_u32 v{18+hh}, s45, v{RA+hh}")
    A("s_waitcnt lgkmcnt(0)")
    A("s_lshl_b32 s62, s29, 4")
    A("s_lshr_b32 s60, s63, s62")
    A("s_lshl_b32 s60, s60, 16")
    A(f"v_mov_b32 v14, {f2u(LOG2E)}")
    A("v_mul_f32 v14, s60, v14")
    A("v_exp_f32 v14, v14")
    bf16r(A, 14, 14, 15)
    XV, PKB = 60, 112
    A.wait_vm('p')
    A.nst = 3
    stamp(A)
    Z = {1: (20, 22), 2: (24, 26), 3: (28, 30), 8: (32, 34), 256: (36, 38), 4: (41, 43), 128: (21, 23)}
    def smul(d, x, y):
        A(f"v_mul_f32 v{d[0]}, v{x[0]}, v{y[0]}")
        A(f"v_mul_f32 v{d[1]}, v{x[0]}, v{y[1]}")
        A(f"v_fma_f32 v{d[0]}, -v{x[1]}, v{y[1]}, v{d[0]}")
        A(f"v_fmac_f32 v{d[1]}, v{x[1]}, v{y[0]}")
    def cm2(l):
        for d, x, m in l:
            A(f"v_pk_mul_f32 {v(d,2)}, {v(x,2)}, {v(m[0],2)} op_sel_hi:[1,0]")
            A(f"v_pk_mul_f32 {v(d+2,2)}, {v(x,2)}, {v(m[1],2)} op_sel_hi:[1,0]")
        for d, x, m in l:
            A(f"v_pk_fma_f32 {v(d,2)}, {v(x+2,2)}, {v(m[1],2)}, {v(d,2)} op_sel_hi:[1,0,1] neg_lo:[0,1,0] neg_hi:[0,1,0]")
            A(f"v_pk_fma_f32 {v(d+2,2)}, {v(x+2,2)}, {v(m[0],2)}, {v(d+2,2)} op_sel_hi:[1,0,1]")
    pairs = [(a, 0) for a in range(0, 17, 2)] + [(0, 1), (0, 2), (0, 3), (2, 2)]
    XP = {ae: XV + 4*i for i, ae in enumerate(pairs)}
    def xre(row):
        a, e = XROWS[row]
        return XP[(a & ~1, e)] + (a & 1)
    for half in range(2):
        PW, PX = PKB + 64*half, PKB + 64*half + 32
        for i in range(6):
            if half == 0: A(f"v_lshlrev_b32 v{8+i}, 16, v{52+i}")
            else: A(f"v_and_b32 v{8+i}, 0xffff0000, v{52+i}")
        for i in range(4): A(f"v_mul_f32 v{8+i}, v14, v{8+i}")
        A(f"v_mul_f32 v8, {f2u(LOG2E)}, v8")
        A(f"v_mul_f32 v9, 0.15915494, v9")
        zs = ((4, 25, 27), (1, 29, 31), (128, 33, 35))
        for o, e, f in zs:
            A(f"v_mul_f32 v{e}, {f2u(float(o))}, v8"); A(f"v_mul_f32 v{f}, {f2u(float(o))}, v9")
        for o, e, f in zs:
            A(f"v_exp_f32 v{e}, v{e}"); A(f"v_fract_f32 v{f}, v{f}")
        for o, e, f in zs:
            A(f"v_cos_f32 v{Z[o][0]}, v{f}"); A(f"v_sin_f32 v{Z[o][1]}, v{f}")
        for o, e, f in zs:
            A(f"v_mul_f32 v{Z[o][0]}, v{e}, v{Z[o][0]}"); A(f"v_mul_f32 v{Z[o][1]}, v{e}, v{Z[o][1]}")
        y0, y1 = (XP[(0,0)], XP[(0,0)]+2), (XP[(0,0)]+1, XP[(0,0)]+3)
        smul(Z[8], Z[4], Z[4]); smul(y0, (12, 13), (10, 11)); smul(Z[256], Z[128], Z[128]); smul(Z[2], Z[1], Z[1])
        smul(y1, y0, Z[128]); smul(Z[3], Z[2], Z[1])
        A("v_mov_b32 v40, 1.0"); A("v_mov_b32 v42, 0")
        if half == 1:
            A.wait_vm0()
            A("v_mov_b32 v4, 1")
            A("s_lshl_b32 s44, s29, 2")
            A("v_add_u32 v5, s44, v3")
            A(f"ds_write_b32 v5, v4 offset:{F_PF}")
        xs = [(XP[(a+2, 0)], XP[(a, 0)], Z[256]) for a in range(0, 16, 2)] + [(XP[(a, e)], XP[(a, 0)], Z[e]) for (a, e) in pairs[9:]]
        cur = 40
        for i in range(16):
            A(f"v_cvt_pk_bf16_f32 v{PW+i}, v{cur}, v{cur+1}")
            A(f"v_cvt_pk_bf16_f32 v{PW+16+i}, v{cur+2}, v{cur+3}")
            nxt = 44 if cur == 40 else 40
            l = ([(nxt, cur, Z[8])] if i < 15 else []) + ([xs.pop(0)] if xs else [])
            cm2(l); cur = nxt
        for i in range(13):
            r0, r1 = xre(2*i), xre(min(2*i+1, 24))
            A(f"v_cvt_pk_bf16_f32 v{PX+i}, v{r0}, v{r1}")
            A(f"v_cvt_pk_bf16_f32 v{PX+16+i}, -v{r0+2}, -v{r1+2}")
    stamp(A)
    A(f"s_setprio {OPT.get('kprio', 2)}")
    A("v_mov_b32 v48, v18\nv_mov_b32 v49, v19")
    if not OPT.get('now2t'):
        A("s_cmp_eq_u32 s29, 0")
        A("s_mov_b32 s36, s84"); A("s_mov_b32 s37, s85")
        A("s_cselect_b32 s38, 1835008, 0")
        A("v_lshlrev_b32 v5, 4, v1")
        A("s_mul_i32 s40, s2, 7168")
        for i in range(7):
            if i == 4: A("s_add_u32 s40, s40, 4096")
            A(f"buffer_load_dwordx4 {v(60+4*i,4)}, v5, s[36:39], s40 offen offset:{1024*(i%4)}", tag='t')
        A.wait_vm0()
    spin(A, 3, F_DONE, 4, 4, sleep=3, cmp='le', val='8')
    FA, FB, D = 16, 60, 92
    def flush(PK):
        for part in range(2):
            for q in range(4):
                A(f"ds_write_b128 v{WA+4*part+q}, {v(PK+16*part+4*q,4)}", tag='w')
    def frags(Fr, tag):
        for st in range(8):
            for hh in range(2):
                A(f"ds_read_b64_tr_b16 {v(Fr+4*st+2*hh,2)}, v{(RA if st < 4 else 48)+hh} offset:{(st&3)*1024}", tag=(tag, st))
    for half in range(2):
        flush(PKB + 64*half); frags(FB, 'fb')
        flush(PKB + 64*half + 32); frags(FA, 'fa')
        for st in range(8):
            A.wait_lg(('fa', st))
            A(f"v_mfma_f32_32x32x16_bf16 {v(D,16)}, {v(FA+4*st,4)}, {v(FB+4*st,4)}, {'0' if (st == 0 and half == 0) else v(D,16)}")
    stamp(A)
    A("v_lshrrev_b32 v7, 5, v1")
    A("v_lshlrev_b32 v2, 4, v1")
    A("v_mov_b32 v112, 0\nv_mov_b32 v113, 0\nv_mov_b32 v114, 0\nv_mov_b32 v115, 0")
    A("v_bfe_u32 v11, v1, 1, 1")
    A("v_mul_u32_u24 v11, 4160, v11")
    A("v_and_b32 v12, 1, v1")
    A("v_lshl_add_u32 v11, v12, 4, v11")
    A("v_add_u32 v11, s54, v11")
    A("ds_write_b128 v11, v[112:115]")
    A("s_add_u32 s61, s54, 32")
    A("v_and_b32 v10, 31, v1")
    A("v_lshlrev_b32 v10, 3, v10")
    A("v_lshl_add_u32 v10, v7, 8, v10")
    A("v_add_u32 v10, s61, v10")
    T = 16
    def dup(dst, r): A(f"v_cvt_pk_bf16_f32 v{dst}, v{r}, v{r}")
    A("s_mov_b32 s64, 0x55555555\ns_mov_b32 s65, 0x55555555")
    A("s_mov_b32 s66, 0x11111111\ns_mov_b32 s67, 0x11111111")
    for r in range(8, 13):
        dup(T + 2*(r-8), D + r); dup(T + 2*(r-8) + 1, D + r)
    for r in (6, 7): dup(T + 10 + (r-6), D + r)
    for r in (4, 5): dup(T + 12 + (r-4), D + r)
    A(f"v_cvt_pk_bf16_f32 v{T+14}, v{D}, v{D+1}")
    A(f"v_cvt_pk_bf16_f32 v{T+15}, v{D+2}, v{D+3}")
    A("s_mov_b64 exec, 1")
    A(f"ds_write_b64 v10, {v(T+8,2)} offset:{2*(2048-4)}")
    A("s_mov_b64 exec, s[64:65]")
    for r in range(8, 12):
        o = 1024 + 256*(r-8)
        A(f"ds_write_b64 v10, {v(T+2*(r-8),2)} offset:{2*(o-4)}")
        A(f"ds_write_b64 v10, {v(T+2*(r-8),2)} offset:{2*o}")
    A("s_mov_b64 exec, s[66:67]")
    for r in range(8, 12):
        A(f"ds_write_b16 v10, v{T+2*(r-8)} offset:{2*(1024 + 256*(r-8) + 4)}")
    A("s_mov_b64 exec, -1")
    for r in (6, 7):
        o = 512 + 256*(r-6)
        A(f"ds_write_b32 v10, v{T+10+(r-6)} offset:{2*(o-2)}")
        A(f"ds_write_b32 v10, v{T+10+(r-6)} offset:{2*o}")
    A("s_mov_b64 exec, s[64:65]")
    for r in (6, 7):
        A(f"ds_write_b16 v10, v{T+10+(r-6)} offset:{2*(512 + 256*(r-6) + 2)}")
    A("s_mov_b64 exec, -1")
    A(f"ds_write_b16 v10, v{T+12} offset:{2*(256-1)}")
    A(f"ds_write_b32 v10, v{T+12} offset:{2*256}")
    A(f"ds_write_b16 v10, v{T+13} offset:{2*(256+2)}")
    A(f"ds_write_b64 v10, {v(T+14,2)}")
    A("s_add_u32 s61, s54, 28")
    A("v_add_u32 v4, s61, v2")
    for i in range(4):
        A(f"ds_read_b32 v{112+8*i+3}, v4 offset:{1024*i}", tag=('k', i))
        A(f"ds_read_b128 {v(112+8*i+4,4)}, v4 offset:{1024*i+4}", tag=('k', i))
    for i in range(4):
        A.wait_lg(('k', i))
        for k in range(4):
            A(f"v_alignbit_b32 v{144+4*i+k}, v{112+8*i+4+k}, v{112+8*i+3+k}, 16")
    for i in range(4):
        A(f"ds_write_b128 v4, {v(144+4*i,4)} offset:{1024*i + 4 + 4160}")
    A("v_mov_b32 v5, 1")
    A("s_lshl_b32 s61, s29, 2")
    A("v_add_u32 v6, s61, v3")
    A(f"ds_write_b32 v6, v5 offset:{F_KR}")
    stamp(A)
    A("s_branch K_conv")

def uload(A):
    A("K_uload:")
    A.reset_counters(); A.nst = 8
    A(f"s_setprio {OPT.get('uprio', 3)}")
    A(f"v_mov_b32 v3, {F}")
    A("v_lshlrev_b32 v4, 4, v1")
    A("s_mov_b32 s56, 0x8000")
    A("s_mov_b32 s79, 0")
    A("K_u2:")
    A("buffer_load_dwordx4 v[8:11], v4, s[44:47], s56 offen sc1")
    A("s_waitcnt vmcnt(0)")
    for r in range(4): A(f"v_xor_b32 v{8+r}, v61, v{8+r}")
    A("v_or3_b32 v8, v8, v9, v10")
    A("v_or_b32 v8, v8, v11")
    A("v_cmp_ne_u32 vcc, 0, v8")
    A("s_cbranch_vccz K_u3")
    A(f"s_sleep {OPT.get('xsleep', 8)}")
    A("s_add_u32 s79, s79, 1")
    A("s_cmp_lt_u32 s79, 0x4000")
    A("s_cbranch_scc1 K_u2")
    A("K_u3:")
    stamp(A)
    A("v_sub_u32 v5, 63, v1")
    A("v_lshlrev_b32 v5, 13, v5")
    A("s_and_b32 s56, s28, 3")
    A("s_lshl_b32 s56, s56, 11")
    A("s_lshr_b32 s57, s28, 2")
    A("s_lshl_b32 s57, s57, 4")
    A("s_add_u32 s56, s56, s57")
    A("v_add_u32 v5, s56, v5")
    for c in range(2):
        for q in range(4):
            A(f"s_mov_b32 m0, {L_CV + c*CVS + 2*4160 + 1024*q}")
            A(f"s_mov_b32 s56, {((3-q) << 19) + 1024*c}")
            A(f"buffer_load_dwordx4 v5, s[36:39], s56 offen sc1 lds")
    A("v_mov_b32 v8, 0\nv_mov_b32 v9, 0\nv_mov_b32 v10, 0\nv_mov_b32 v11, 0")
    A("v_min_u32 v7, 29, v1")
    A("v_lshlrev_b32 v7, 4, v7")
    A(f"v_add_u32 v7, {L_CV + 2*4160 + 4096}, v7")
    A("ds_write_b128 v7, v[8:11]")
    A(f"ds_write_b128 v7, v[8:11] offset:{CVS}")
    A("v_mov_b32 v8, 1\nv_mov_b32 v9, 1")
    A("s_waitcnt vmcnt(0) lgkmcnt(0)")
    A(f"ds_write2_b32 v3, v8, v9 offset0:{F_UR//4} offset1:{F_UR//4+1}")

def conv(A):
    A("K_conv:")
    A.reset_counters(); A.nst = 10
    A("s_sub_u32 s48, s3, 4")
    A("s_lshr_b32 s49, s48, 1")
    A("s_and_b32 s50, s48, 1")
    A("s_lshl_b32 s51, s28, 1")
    A("s_add_u32 s51, s51, s49")
    A("s_lshl_b32 s52, s28, 2")
    A("s_load_dword s53, s[92:93], s52")
    A(f"s_mul_i32 s54, s49, {CVS}")
    A(f"s_add_u32 s54, s54, {L_CV}")
    A("v_and_b32 v2, 15, v1")
    A("v_lshrrev_b32 v3, 4, v1")
    A("v_lshlrev_b32 v4, 4, v1")
    A("v_mov_b32 v17, 1")
    A("s_lshl_b32 s56, s48, 2")
    A(f"s_add_u32 s56, s56, {F}")
    A("v_mov_b32 v18, s56")
    A("v_xor_b32 v19, 4, v18")
    A("s_lshl_b32 s56, s49, 2")
    A(f"s_add_u32 s56, s56, {F}")
    A("v_mov_b32 v22, s56")
    A("v_lshrrev_b32 v6, 1, v2")
    A("v_lshlrev_b32 v6, 2, v6")
    A("v_lshl_add_u32 v6, v3, 4, v6")
    A("v_and_b32 v7, 1, v2")
    A("v_sub_u32 v7, 1, v7")
    A("v_mul_u32_u24 v7, 4160, v7")
    A("v_add_u32 v6, v6, v7")
    A("s_lshl_b32 s56, s50, 8")
    A("s_add_u32 s56, s56, s54")
    A("s_add_u32 s57, s56, 4")
    A("v_add_u32 v12, s57, v6")
    for qq in range(1, 4): A(f"v_add_u32 v{12+qq}, {1024*qq}, v12")
    A("v_lshlrev_b32 v6, 4, v3")
    A("v_lshlrev_b32 v7, 5, v2")
    A("v_sub_u32 v6, v6, v7")
    A(f"s_add_u32 s57, s56, {2*4160 + 480}")
    A("v_add_u32 v16, s57, v6")
    A("v_lshlrev_b32 v8, 5, v2")
    A("v_lshl_add_u32 v8, v3, 3, v8")
    A("s_lshl_b32 s56, s50, 11")
    A(f"s_add_u32 s57, s54, {2*4160 + 4088 - 1536}")
    A("s_sub_u32 s57, s57, s56")
    A("v_sub_u32 v8, s57, v8")
    A("s_lshl_b32 s56, s48, 15")
    A(f"s_add_u32 s56, s56, {SPARE}")
    A("v_add_u32 v6, s56, v4")
    A("v_xor_b32 v7, 0x8000, v6")
    srd(A, 40, 24, 2097152, WS_ST)
    srd(A, 44, 24, FLSZ, WS_FLAG)
    spin(A, 22, (F_KR, F_UR), 2, 20, sleep=1)
    A(f"v_mov_b32 v23, {F}")
    A(f"ds_read_b32 v61, v23 offset:{F_NON}")
    A("s_lshl_b32 s56, s49, 4")
    A("s_lshr_b32 s53, s53, s56")
    A("s_lshl_b32 s53, s53, 16")
    stamp(A)
    ACC, FR = 24, 64
    def reads(pl):
        b = FR + 64 * (pl % 2)
        fs = []
        for k in range(8):
            o = 128*(k & 1) + 16*pl
            fs.append(lambda k=k, o=o: A(f"ds_read2_b32 {v(b+4*k,2)}, v{12+k//2} offset0:{o} offset1:{o+1}"))
            fs.append(lambda k=k, o=o: A(f"ds_read2_b32 {v(b+4*k+2,2)}, v{12+k//2} offset0:{o+2} offset1:{o+3}"))
            fs.append(lambda k=k: A(f"ds_read_b128 {v(b+32+4*k,4)}, v16 offset:{3584 - 512*k + 64*pl}"))
        return fs
    XN, T, P1 = 192, 200, 216
    for a in range(4):
        A(f"ds_read_b64 {v(XN+2*a,2)}, v8 offset:{1536 - 512*a}", tag='xn')
    for f in reads(0): f()
    A.wait_lg('xn')
    for a in range(4):
        A(f"v_and_b32 v{T+4*a}, 0xffff0000, v{XN+2*a+1}")
        A(f"v_lshlrev_b32 v{T+4*a+1}, 16, v{XN+2*a+1}")
        A(f"v_and_b32 v{T+4*a+2}, 0xffff0000, v{XN+2*a}")
        A(f"v_lshlrev_b32 v{T+4*a+3}, 16, v{XN+2*a}")
    for r in range(16): A(f"v_mul_f32 v{T+r}, s53, v{T+r}")
    for k in range(8): A(f"v_cvt_pk_bf16_f32 v{P1+k}, v{T+2*k}, v{T+2*k+1}")
    for k in range(8):
        A(f"v_lshlrev_b32 v{T+2*k}, 16, v{P1+k}")
        A(f"v_and_b32 v{T+2*k+1}, 0xffff0000, v{P1+k}")
    A(f"s_setprio {OPT.get('cprio2', 0)}")
    for pl in range(4):
        A.wait_lg0()
        fs = reads(pl + 1) if pl < 3 else []
        b = FR + 64 * (pl % 2)
        first = set()
        for q in range(8):
            for w in range(8 - q):
                ib = q + w
                c = '0' if (pl == 0 and ib not in first) else v(ACC+4*ib, 4)
                first.add(ib)
                A(f"v_mfma_f32_16x16x32_bf16 {v(ACC+4*ib,4)}, {v(b+4*q,4)}, {v(b+32+4*w,4)}, {c}")
                if fs: fs.pop(0)()
    stamp(A)
    A("s_setprio 3")
    FF = 64
    A("s_cmp_eq_u32 s50, 0")
    A("s_cbranch_scc1 K_x0")
    for ph, lab in ((1, None), (0, 'K_x0')):
        if lab: A(f"{lab}:")
        send, keep = (4, 0) if ph == 0 else (0, 4)
        for a in range(4):
            A(f"ds_write_b128 v6, {v(ACC+4*(send+a),4)} offset:{1024*a}")
        A(f"ds_write_b32 v18, v17 offset:{F_XCH}")
        for r in range(16):
            A(f"v_mov_b32 v{FF+r}, v{ACC+4*keep+r}")
        if not lab: A("s_branch K_xe")
    A("K_xe:")
    A("v_and_b32 v8, 1, v3")
    A("v_lshlrev_b32 v8, 9, v8")
    A("v_lshl_add_u32 v8, v2, 5, v8")
    A("v_lshrrev_b32 v9, 1, v3")
    A("v_lshl_add_u32 v8, v9, 4, v8")
    A("s_lshl_b32 s56, s51, 12")
    A("s_lshl_b32 s57, s50, 11")
    A("s_add_u32 s56, s56, s57")
    spin(A, 19, F_XCH, 1, 20)
    R = 80
    for a in range(4):
        A(f"ds_read_b128 {v(R+4*a,4)}, v7 offset:{1024*a}", tag='r')
    A.wait_lg('r')
    for r in range(16): A(f"v_add_f32 v{FF+r}, v{FF+r}, v{R+r}")
    for k in range(8): A(f"v_cvt_pk_bf16_f32 v{P1+k}, v{FF+2*k}, v{FF+2*k+1}")
    for k in range(8):
        A(f"v_lshlrev_b32 v{FF+2*k}, 16, v{P1+k}")
        A(f"v_and_b32 v{FF+2*k+1}, 0xffff0000, v{P1+k}")
    for r in range(16): A(f"v_add_f32 v{FF+r}, v{FF+r}, v{T+r}")
    for k in range(8): A(f"v_cvt_pk_bf16_f32 v{P1+k}, v{FF+2*k}, v{FF+2*k+1}")
    for pr in range(2):
        A(f"v_permlane16_swap_b32 v{P1+4*pr}, v{P1+4*pr+2}")
        A(f"v_permlane16_swap_b32 v{P1+4*pr+1}, v{P1+4*pr+3}")
    for pr in range(2):
        A(f"buffer_store_dwordx4 {v(P1+4*pr,4)}, v8, s[40:43], s56 offen offset:{1024*pr} sc1")
    A("v_lshrrev_b32 v8, 3, v1")
    A("v_and_b32 v9, 7, v1")
    A("v_lshlrev_b32 v10, 12, v8")
    A("v_lshl_add_u32 v10, v9, 4, v10")
    A("v_bfe_u32 v11, v8, 1, 2")
    A("v_lshlrev_b32 v11, 1, v11")
    A("v_xor_b32 v11, v11, v9")
    A("v_lshlrev_b32 v11, 4, v11")
    A("v_lshl_add_u32 v11, v8, 7, v11")
    A("s_lshl_b32 s57, s50, 11")
    A("s_add_u32 s57, s57, s54")
    A("v_add_u32 v11, s57, v11")
    stamp(A)
    A("s_lshl_b32 s56, s81, 6")
    A("s_lshl_b32 s57, s48, 4")
    A("s_add_u32 s56, s56, s57")
    A("s_lshl_b32 s56, s56, 12")
    A("s_lshl_b32 s57, s80, 7")
    A("s_add_u32 s56, s56, s57")
    A("s_add_u32 s59, s56, 32768")
    spin(A, 18, F_GO, 1, 20, sleep=4)
    A("s_mov_b32 s79, 0")
    A("K_sp:")
    A("buffer_load_dwordx4 v[64:67], v10, s[40:43], s56 offen sc1")
    A("buffer_load_dwordx4 v[68:71], v10, s[40:43], s59 offen sc1")
    A("s_waitcnt vmcnt(0)")
    A("v_max3_u32 v12, v64, v65, v66")
    A("v_max3_u32 v13, v67, v68, v69")
    A("v_max3_u32 v12, v12, v70, v71")
    A("v_max_u32 v12, v12, v13")
    A("v_cmp_eq_u32 vcc, -1, v12")
    A("s_cbranch_vccz K_spd")
    A(f"s_sleep {OPT.get('ssleep', 4)}")
    A("s_add_u32 s79, s79, 1")
    A("s_cmp_lt_u32 s79, 0x1000")
    A("s_cbranch_scc1 K_sp")
    A("K_spd:")
    stamp(A)
    A("ds_write_b128 v11, v[64:67]")
    A("ds_write_b128 v11, v[68:71] offset:1024")
    A(f"ds_write_b32 v18, v17 offset:{F_SR}")
    finish(A)

def gemm(A):
    A("K_gemm:")
    A.reset_counters(); A.nst = 3
    A("s_setprio 2")
    A("v_and_b32 v19, 15, v1")
    A("v_lshrrev_b32 v3, 4, v1")
    srd(A, 40, 22, 3584)
    srd(A, 44, 24, 7340032, WS_H)
    A("v_bfe_u32 v6, v1, 2, 2")
    A("v_and_b32 v9, 1, v3")
    A("v_lshl_or_b32 v9, v9, 2, v6")
    A("v_lshl_add_u32 v10, v3, 3, v6")
    A("v_lshlrev_b32 v10, 8, v10")
    A("v_and_b32 v11, 3, v1")
    A("v_lshl_add_u32 v10, v11, 3, v10")
    A("s_and_b32 s68, s83, 1")
    AB, B1, ONES, FL, AF, ACC, XR = 12, 20, 36, 40, 44, 72, 128
    MN0, RE, BF, ACS, ARS, AQS, SA, C1, C2, C3, CSA, TM = 144, 148, 164, 192, 200, 208, 216, 220, 222, 224, 226, 236
    A("s_mul_i32 s53, s83, 224")
    A("v_lshlrev_b32 v7, 3, v3")
    for tau in range(7):
        A(f"s_lshl_b32 s59, s3, 1")
        A(f"s_add_u32 s59, s59, {tau}")
        A(f"s_sub_u32 s67, s59, 7")
        A(f"s_cmp_ge_u32 s59, 7")
        A(f"s_cselect_b32 s{60+tau}, s67, s59")
        A(f"s_add_u32 s59, s{60+tau}, s68")
        A(f"v_xor_b32 v11, s59, v9")
        A(f"v_lshl_add_u32 v{AB+tau}, v11, 5, v10")
        A(f"s_lshl_b32 s59, s{60+tau}, 6")
        A(f"s_add_u32 s59, s59, {L_CS}")
        A(f"v_lshl_add_u32 v{CSA+tau}, v3, 4, s59")
        A(f"s_lshl_b32 s59, s{60+tau}, 5")
        A(f"s_add_u32 s59, s59, {L_B1}")
        A(f"v_add_u32 v{B1+2*tau}, s59, v7")
    A("v_lshrrev_b32 v6, 1, v19")
    A("v_xor_b32 v6, v6, v3")
    A("v_lshlrev_b32 v6, 4, v6")
    A("v_lshl_add_u32 v6, v19, 7, v6")
    A("s_lshl_b32 s59, s3, 12")
    A("s_add_u32 s59, s59, 16384")
    A("v_add_u32 v4, s59, v6")
    A("v_xor_b32 v5, 64, v4")
    for i in range(4): A(f"v_mov_b32 v{ONES+i}, 0x3f803f80")
    A("v_mov_b32 v34, 1")
    A(f"s_lshl_b32 s59, s3, 2")
    A(f"s_add_u32 s59, s59, {F}")
    A("v_mov_b32 v35, s59")
    A(f"v_mov_b32 v2, {F}")
    MN = 152
    k0 = -2.0 * LOG2E * 0.7978845608028654
    A(f"v_mov_b32 v{C1}, {f2u(k0*0.044715)}")
    A(f"v_mov_b32 v{C2}, {f2u(k0)}")
    A(f"v_mov_b32 v{C3}, 1.0")
    A("s_lshl_b32 s59, s3, 8")
    A(f"s_add_u32 s59, s59, {L_S2}")
    A("v_lshl_add_u32 v160, v19, 3, s59")
    A("s_lshl_b32 s52, s82, 3")
    A("s_lshl_b32 s53, s3, 1")
    A("s_add_u32 s52, s52, s53")
    A("s_mul_i32 s52, s52, 57344")
    A("s_mul_i32 s53, s83, 3584")
    A("s_add_u32 s52, s52, s53")
    A("v_lshrrev_b32 v8, 1, v3")
    A("v_lshlrev_b32 v8, 8, v8")
    A("v_lshl_add_u32 v8, v19, 4, v8")
    A("v_add_u32 v8, s52, v8")
    A("v_and_b32 v10, 1, v3")
    A("v_cmp_eq_u32 vcc, 1, v10")
    for pr in range(4):
        A(f"s_lshl_b32 s59, s{60+2*pr}, 9")
        if pr < 3: A(f"s_lshl_b32 s67, s{60+2*pr+1}, 9")
        else: A(f"s_add_u32 s67, s59, 57344")
        A(f"v_mov_b32 v10, s59")
        A(f"v_mov_b32 v11, s67")
        A(f"v_cndmask_b32 v10, v10, v11, vcc")
        A(f"v_add_u32 v{SA+pr}, v10, v8")
    A("s_mov_b32 s59, 57344")
    DN = 206
    for u in range(9): A(f"v_mov_b32 v{DN+u}, {u+1}")
    def full_issue(u):
        if OPT.get('nofl'): return
        A(f"ds_read2_b32 {v(FL,2)}, v2 offset0:{u} offset1:{F_FX//4 + u}", tag=('fu', u))
    def full_eval(u):
        if OPT.get('nofl'): return
        L1, L2 = A.newlabel('fu'), A.newlabel('fu')
        A.wait_lg(('fu', u))
        A(f"v_and_b32 v{FL}, v{FL}, v{FL+1}")
        A(f"v_cmp_eq_u32 vcc, 1, v{FL}")
        A(f"s_cbranch_vccnz {L2}")
        A(f"{L1}:")
        A(f"ds_read2_b32 {v(FL,2)}, v2 offset0:{u} offset1:{F_FX//4 + u}")
        A.lg.pop()
        A("s_waitcnt lgkmcnt(0)")
        A(f"v_and_b32 v{FL}, v{FL}, v{FL+1}")
        A(f"v_cmp_eq_u32 vcc, 1, v{FL}")
        A(f"s_cbranch_vccz {L1}")
        A(f"{L2}:")
    def trread(j, tau, hh):
        if OPT.get('iso') == 'nord' and j > 0: return
        off = ((j//2) % 2) * 32768 + (j % 2) * 8192 + hh * 1024
        A(f"ds_read_b64_tr_b16 {v(AF+4*tau+2*hh,2)}, v{AB+tau} offset:{off}", tag=('a', j, tau))
    def xread(j, nt):
        off = ((j//2) % 2) * 32768 + nt * 2048
        A(f"ds_read_b128 {v(XR+8*(j%2)+4*nt,4)}, v{4 + j%2} offset:{off}", tag=('x', j))
    spin(A, 2, (F_FULL, F_FX), 2, FL, sleep=1)
    stamp(A)
    xread(0, 0); xread(0, 1)
    for tau in range(7):
        for hh in range(2): trread(0, tau, hh)
    for j in range(16):
        if j in (4, 8, 12): stamp(A)
        sl = XR + 8*(j % 2)
        def mf(acc, a, b):
            A(f"v_mfma_f32_16x16x32_bf16 {v(acc,4)}, {v(a,4)}, {v(b,4)}, {'0' if j == 0 else v(acc,4)}")
        flip = (j < 15 and (j + 1) % 4 == 0)
        A.wait_lg(('x', j), ('a', j, 0), ('a', j, 1))
        for tau in range(7):
            if tau % 2 == 0 and tau: A.wait_lg(('a', j, tau), ('a', j, min(tau+1, 6)))
            mf(ACC + 8*tau, AF + 4*tau, sl)
            if tau == 0:
                if j > 0: trread(j, 6, 0)
                if j % 2 == 1 and j < 15:
                    full_eval((j+1)//2)
                if flip: A(f"v_xor_b32 v4, 0x10000, v4"); A(f"v_xor_b32 v5, 0x10000, v5")
            elif j < 15: trread(j+1, tau-1, 0)
            if flip: A(f"v_xor_b32 v{AB+tau}, 0x10000, v{AB+tau}")
            if tau == 6 and j % 2 == 1:
                A(f"ds_write_b32 v35, v{DN + j//2} offset:{F_DONE}", tag='dn')
            if tau == 5 and j % 2 == 0 and j < 14:
                full_issue(j//2 + 1)
            mf(ACC + 8*tau + 4, AF + 4*tau, sl + 4)
            if j == 9:
                A(f"ds_read_b64 {v(B1+2*tau,2)}, v{B1+2*tau}", tag='b1')
            if j in (10, 12, 13, 14):
                if j == 10 and tau == 0: A.wait_lg('b1')
                kk = {10: 0, 12: 1, 13: 2, 14: 3}[j]
                if kk % 2 == 0: A(f"v_lshlrev_b32 v{BF+4*tau+kk}, 16, v{B1+2*tau+kk//2}")
                else: A(f"v_and_b32 v{BF+4*tau+kk}, 0xffff0000, v{B1+2*tau+kk//2}")
            if tau == 0:
                if j > 0: trread(j, 6, 1)
            elif j < 15: trread(j+1, tau-1, 1)
            if tau < 2:
                mf(ACS + 4*tau, AF + 4*tau, ONES)
                if j < 15: xread(j+1, tau)
            if j == 15 and tau == 4:
                for t2 in range(2):
                    A(f"ds_write_b128 v{CSA+t2}, {v(ACS+4*t2,4)}", tag='cw')
                A(f"ds_write_b32 v35, v34 offset:{F_CS}", tag='fl')
    stamp(A)
    if OPT.get('iso'):
        n = A.nst; finish(A); A.nst = n
    spin(A, 2, F_ST, 1, FL)
    for nt in range(2):
        A(f"ds_read_b64 {v(MN+4*nt,2)}, v160 offset:{128*nt}")
    spin(A, 2, F_CS, 4, FL)
    CS = 44
    for tau in range(7):
        A(f"ds_read_b128 {v(CS+4*tau,4)}, v{CSA+tau}", tag=('cs', tau))
    for nt in range(2): A(f"v_mov_b32 v{MN+4*nt+2}, v{MN+4*nt+1}")
    stamp(A)
    OUT = 192
    bc = "op_sel_hi:[1,0,1]"
    groups = [((0,0),(1,0)), ((2,0),(3,0)), ((4,0),(5,0)), ((6,0),(6,1)), ((0,1),(1,1)), ((2,1),(3,1)), ((4,1),(5,1))]
    for gi, grp in enumerate(groups):
        o = OUT + 4 * (gi % 4)
        chains = []
        for ti, (tau, nt) in enumerate(grp):
            A.wait_lg(('cs', tau))
            for pr in range(2):
                a = ACC + 8*tau + 4*nt + 2*pr
                t = TM + 2*(2*ti + pr)
                chains.append([
                    f"v_pk_fma_f32 {v(a,2)}, {v(CS+4*tau+2*pr,2)}, {v(MN+4*nt,2)}, {v(a,2)} {bc}",
                    f"v_pk_fma_f32 {v(a,2)}, {v(a,2)}, {v(MN+4*nt+2,2)}, {v(BF+4*tau+2*pr,2)} {bc}",
                    f"v_pk_mul_f32 {v(t,2)}, {v(a,2)}, {v(a,2)}",
                    f"v_pk_fma_f32 {v(t,2)}, {v(t,2)}, {v(C1,2)}, {v(C2,2)} op_sel_hi:[1,0,0]",
                    f"v_pk_mul_f32 {v(t,2)}, {v(t,2)}, {v(a,2)}",
                    f"v_exp_f32 v{t}, v{t}",
                    f"v_exp_f32 v{t+1}, v{t+1}",
                    f"v_pk_add_f32 {v(t,2)}, {v(t,2)}, {v(C3,2)} op_sel_hi:[1,0]",
                    f"v_rcp_f32 v{t}, v{t}",
                    f"v_rcp_f32 v{t+1}, v{t+1}",
                    f"v_pk_mul_f32 {v(t,2)}, {v(t,2)}, {v(a,2)}",
                    f"v_cvt_pk_bf16_f32 v{o+2*ti+pr}, v{t}, v{t+1}"])
        for ins in zip(*chains):
            for x in ins: A(x)
        A(f"v_permlane16_swap_b32 v{o}, v{o+2}")
        A(f"v_permlane16_swap_b32 v{o+1}, v{o+3}")
        so = 's59' if (grp[0][1] == 1) else '0'
        A(f"buffer_store_dwordx4 {v(o,4)}, v{SA+grp[0][0]//2}, s[44:47], {so} offen {OPT.get('hst','sc1')}", tag='hs')
    stamp(A)
    LA = int(OPT.get('LA', 3))
    NSTEP = 14
    A(f"ds_read_b32 v237, v2 offset:{F_NON}")
    srd(A, 36, 84, 1835008)
    srd(A, 40, 4, 2097152)
    srd(A, 64, 86, 1024)
    srd(A, 52, 88, 2097152)
    srd(A, 60, 24, FLSZ, WS_FLAG)
    A("v_lshlrev_b32 v236, 4, v1")
    for l in range(4):
        A(f"s_add_u32 s49, s3, {l}")
        A("s_and_b32 s49, s49, 3")
        A("s_mul_i32 s49, s49, 57344")
        A(f"v_add_u32 v{4+l}, s49, v236")
    A(f"s_mul_i32 s48, s80, {4*57344}")
    A("s_lshl_b32 s49, s3, 10")
    A("s_add_u32 s48, s48, s49")
    w2_voffs(A, 8, 12)
    A("s_lshl_b32 s50, s3, 15")
    A("v_bfe_u32 v16, v1, 2, 2")
    A("v_lshrrev_b32 v17, 1, v16")
    A("v_and_b32 v18, 1, v3")
    A("v_lshl_or_b32 v17, v18, 1, v17")
    A("v_lshl_add_u32 v18, v3, 3, v16")
    A("v_lshlrev_b32 v18, 7, v18")
    A("v_and_b32 v20, 3, v1")
    A("v_lshl_add_u32 v18, v20, 3, v18")
    A("v_add_u32 v18, s50, v18")
    for mt in range(4):
        A(f"v_xor_b32 v20, {mt}, v17")
        A(f"v_lshl_add_u32 v{12+mt}, v20, 5, v18")
    A("s_lshl_b32 s49, s80, 6")
    A("s_lshl_b32 s56, s3, 4")
    A("s_add_u32 s49, s49, s56")
    A("v_add_u32 v16, s49, v19")
    A("v_lshlrev_b32 v16, 10, v16")
    A("v_and_b32 v17, 1, v3")
    A("v_lshl_add_u32 v16, v17, 5, v16")
    A("v_lshrrev_b32 v17, 1, v3")
    A("v_lshl_add_u32 v16, v17, 4, v16")
    A("s_lshl_b32 s49, s81, 7")
    A("v_add_u32 v16, s49, v16")
    A("v_lshlrev_b32 v17, 3, v3")
    A("v_mov_b32 v44, 1")
    A("v_mov_b32 v45, v35")
    A("v_mov_b32 v46, v2")
    A("v_add_u32 v47, s50, v236")
    A("v_bfe_u32 v18, v1, 2, 2")
    A("v_lshl_add_u32 v18, v3, 2, v18")
    A("v_bfe_u32 v20, v18, 1, 2")
    A("v_xor_b32 v20, s3, v20")
    A("v_lshlrev_b32 v18, 7, v18")
    A("v_lshl_add_u32 v18, v20, 5, v18")
    A("v_and_b32 v20, 3, v1")
    A("v_lshl_add_u32 v18, v20, 3, v18")
    A(f"v_add_u32 v18, {L_CV}, v18")
    for k in range(1, 4):
        A(f"s_add_u32 s56, s3, {k}")
        A("s_and_b32 s56, s56, 3")
        A(f"s_lshl_b32 s56, s56, 15")
        A(f"s_add_u32 s56, s56, {(4-k)*4096}")
        A(f"v_add_u32 v{247+k}, s56, v236")
    A("s_lshl_b32 s56, s82, 1")
    A("s_lshr_b32 s57, s3, 1")
    A("s_add_u32 s56, s56, s57")
    A("s_lshl_b32 s56, s56, 10")
    A("s_lshl_b32 s57, s83, 3")
    A("s_add_u32 s56, s56, s57")
    A("s_and_b32 s57, s3, 1")
    A("s_lshl_b32 s57, s57, 2")
    A("s_add_u32 s56, s56, s57")
    A("v_lshlrev_b32 v238, 7, v1")
    A("v_and_b32 v239, 31, v1")
    A("v_lshlrev_b32 v239, 2, v239")
    spin(A, 46, F_NON, 1, 237, cmp='ne', val='0')
    A.wait_vm0()
    A("s_mov_b64 exec, 0xff")
    A(f"buffer_store_dword v237, v238, s[60:63], s56 offen {OPT.get('hst','sc1')}")
    A("s_mov_b64 exec, -1")
    stamp(A)
    A("buffer_load_dwordx4 v[20:23], v16, s[40:43], 0 offen")
    A("buffer_load_dwordx4 v[24:27], v16, s[40:43], 0 offen offset:64")
    for mt in range(4):
        A(f"buffer_load_dwordx2 {v(240+2*mt,2)}, v17, s[64:67], s49 offen offset:{32*mt}")
    A(f"s_setprio {OPT.get('gprio', 1)}")
    spin(A, 45, F_PRE, 1, 28, sleep=1)
    NRG = int(OPT.get('NRG', 3))
    NH = LA + 1
    AF, ACC, AR, HB = 28, 48, 112, 112 + 16*NRG
    assert HB + 16*NH <= 236, HB + 16*NH
    def afr(j): return AR + 16*j if j < NRG else AF
    def trread2(j, mt):
        for hh in range(2):
            A(f"ds_read_b64_tr_b16 {v(afr(j)+4*mt+2*hh,2)}, v{12+mt} offset:{(j % NR)*4096 + hh*512}", tag=('a', j, mt))
    def hloads(j):
        hb = HB + 16 * (j % NH)
        fs = [lambda: A(f"s_add_u32 s58, s48, {4096*j}")]
        for nt in range(4):
            fs.append(lambda nt=nt: A(f"buffer_load_dwordx4 {v(hb+4*nt,4)}, v{4+nt}, s[44:47], s58 offen {OPT.get('hld','sc1')}", tag=('h', j)))
        return fs
    def wloads(j):
        def first():
            A(f"s_add_u32 s59, s50, {131072*j}")
            A(f"s_add_u32 m0, s50, {(j % NR)*4096}")
            A(f"buffer_load_dwordx4 v8, s[36:39], s59 offen lds", tag=('w', j))
        return [first] + [(lambda q=q: A(f"buffer_load_dwordx4 v{8+q}, s[36:39], s59 offen offset:{1024*q} lds", tag=('w', j))) for q in range(1, 4)]
    for j in range(NRG + 1):
        for mt in range(4): trread2(j, mt)
        if j >= 1:
            A.wait_lg(('a', j-1, 3))
            for f in wloads(j - 1 + NR): f()
    A.wait_lg0()
    for f in wloads(NRG + NR) if NRG + NR < NSTEP else []: f()
    nextw = NRG + NR + 1
    A("s_lshl_b32 s56, s80, 10")
    A("s_lshl_b32 s57, s81, 7")
    A("s_add_u32 s56, s56, s57")
    A("s_cmp_lg_u32 s3, 0")
    A("s_cbranch_scc1 K_g1")
    vm = list(A.vm)
    gpoll(A, 239, 60, 's56', 238, 237, int(OPT.get('hsleep', 4)))
    A.vm = vm
    A(f"ds_write_b32 v46, v44 offset:{F_HR}")
    A("K_g1:")
    spin(A, 46, F_HR, 1, 238, sleep=1)
    stamp(A)
    for j in range(LA):
        for f in hloads(j): f()
    for j in range(NSTEP):
        if j in (4, 9): stamp(A)
        fs = hloads(j + LA) if j + LA < NSTEP else []
        if nextw < NSTEP and j - 1 >= nextw - NR:
            fs = fs + wloads(nextw); nextw += 1
        if j == int(OPT.get('GO', 7)): A(f"ds_write_b32 v45, v44 offset:{F_GO}", tag='go')
        A.wait_vm(('h', j), ('w', j + 1))
        hb = HB + 16 * (j % NH)
        af = afr(j)
        if j + 1 < NSTEP:
            for mt in range(4):
                A.wait_lg(('a', j, mt))
                for nt in range(4):
                    acc = ACC + 16*nt + 4*mt
                    A(f"v_mfma_f32_16x16x32_bf16 {v(acc,4)}, {v(af+4*mt,4)}, {v(hb+4*nt,4)}, {'0' if j == 0 else v(acc,4)}")
                    if fs and nt < 3: fs.pop(0)()
                if j + 1 > NRG: trread2(j + 1, mt)
            while fs: fs.pop(0)()
        else:
            A.wait_lg0()
            pend = []
            for nt in (1, 2, 3, 0):
                for mt in range(4):
                    acc = ACC + 16*nt + 4*mt
                    A(f"v_mfma_f32_16x16x32_bf16 {v(acc,4)}, {v(af+4*mt,4)}, {v(hb+4*nt,4)}, {v(acc,4)}")
                    if len(pend) >= 4:
                        a2, o2 = pend.pop(0)
                        A(f"ds_write_b128 v47, {v(a2,4)} offset:{o2}")
                    if nt: pend.append((acc, (4*nt+mt)*1024))
            for a2, o2 in pend: A(f"ds_write_b128 v47, {v(a2,4)} offset:{o2}")
    assert nextw >= NSTEP
    A(f"ds_write_b32 v45, v44 offset:{F_RED}")
    stamp(A)
    BB, XX, SS, T = 176, 192, 208, 128
    for mt in range(4):
        for k in range(2):
            A(f"v_lshlrev_b32 v{BB+4*mt+2*k}, 16, v{240+2*mt+k}")
            A(f"v_and_b32 v{BB+4*mt+2*k+1}, 0xffff0000, v{240+2*mt+k}")
    for r in range(0, 16, 2):
        A(f"v_pk_add_f32 {v(ACC+r,2)}, {v(ACC+r,2)}, {v(BB+r,2)}")
    for k in range(8):
        A(f"v_lshlrev_b32 v{XX+2*k}, 16, v{20+k}")
        A(f"v_and_b32 v{XX+2*k+1}, 0xffff0000, v{20+k}")
    A(f"v_mov_b32 v232, {f2u(-LOG2E)}")
    A(f"v_mov_b32 v234, 1.0")
    spin(A, 46, F_RED, 4, 8)
    PR = 128
    for k in range(1, 4):
        for mt in range(4):
            A(f"ds_read_b128 {v(PR+16*(k-1)+4*mt,4)}, v{247+k} offset:{mt*1024}", tag=('p', k))
    for k in range(1, 4):
        A.wait_lg(('p', k))
        for r in range(0, 16, 2):
            A(f"v_pk_add_f32 {v(ACC+r,2)}, {v(ACC+r,2)}, {v(PR+16*(k-1)+r,2)}")
    for r in range(0, 16, 2):
        A(f"v_pk_mul_f32 {v(T+r,2)}, {v(ACC+r,2)}, {v(232,2)} op_sel_hi:[1,0]")
    for r in range(16): A(f"v_exp_f32 v{T+r}, v{T+r}")
    for r in range(0, 16, 2):
        A(f"v_pk_add_f32 {v(T+r,2)}, {v(T+r,2)}, {v(234,2)} op_sel_hi:[1,0]")
    for r in range(16): A(f"v_rcp_f32 v{T+r}, v{T+r}")
    for r in range(0, 16, 2):
        A(f"v_pk_mul_f32 {v(ACC+r,2)}, {v(ACC+r,2)}, {v(T+r,2)}")
    stamp(A)
    spin(A, 46, F_SR, 4, 8)
    stamp(A)
    for mt in range(4):
        A(f"ds_read_b64_tr_b16 {v(224+2*mt,2)}, v18 offset:{(mt>>1)*CVS + (mt&1)*2048}", tag='s')
    A.wait_lg('s')
    for mt in range(4):
        for k in range(2):
            A(f"v_lshlrev_b32 v{SS+4*mt+2*k}, 16, v{224+2*mt+k}")
            A(f"v_and_b32 v{SS+4*mt+2*k+1}, 0xffff0000, v{224+2*mt+k}")
    for r in range(0, 16, 2):
        A(f"v_pk_mul_f32 {v(ACC+r,2)}, {v(ACC+r,2)}, {v(SS+r,2)}")
    O = 160
    for r in range(0, 16, 2):
        A(f"v_cvt_pk_bf16_f32 v{O+r//2}, v{ACC+r}, v{ACC+r+1}")
    for pr in range(2):
        A(f"v_permlane16_swap_b32 v{O+4*pr}, v{O+4*pr+2}")
        A(f"v_permlane16_swap_b32 v{O+4*pr+1}, v{O+4*pr+3}")
    for k in range(8):
        A(f"v_lshlrev_b32 v{T+2*k}, 16, v{O+k}")
        A(f"v_and_b32 v{T+2*k+1}, 0xffff0000, v{O+k}")
    for k in range(8):
        A(f"v_pk_add_f32 {v(T+2*k,2)}, {v(T+2*k,2)}, {v(XX+2*k,2)}")
    for k in range(8):
        A(f"v_cvt_pk_bf16_f32 v{O+k}, v{T+2*k}, v{T+2*k+1}")
    A(f"buffer_store_dwordx4 {v(O,4)}, v16, s[52:55], 0 offen {OPT.get('sto','sc1')}")
    A(f"buffer_store_dwordx4 {v(O+4,4)}, v16, s[52:55], 0 offen offset:64 {OPT.get('sto','sc1')}")
    A("s_or_b32 s56, s2, s3")
    A("s_cmp_lg_u32 s56, 0")
    A("s_cbranch_scc1 K_g9")
    A("v_mov_b32 v238, 0")
    A("s_mov_b32 s56, 0x30000")
    A("s_mov_b64 exec, 1")
    A("buffer_store_dword v237, v238, s[60:63], s56 offen sc1")
    A("s_mov_b64 exec, -1")
    A("K_g9:")
    finish(A)

def build():
    A = Asm()
    A(f".globl {KN}\n.p2align 8\n.type {KN},@function")
    A(f"{KN}:")
    A("K_start:")
    prologue(A)
    loader(A)
    gemm(A)
    xwave(A)
    kgen(A)
    uload(A)
    conv(A)
    A("K_end:")
    A("s_endpgm")
    hdr = open('cdna_kernels/' + NAME + '.s.ref').read().split('; Override launch')[0] if os.path.exists('cdna_kernels/' + NAME + '.s.ref') else ''
    txt = hdr + f"; @launch grid=(256,1,1) block=(512,1,1) lds={L_SIZE}\n"
    txt += '.amdgcn_target "amdgcn-amd-amdhsa--gfx950"\n.text\n' + A.text() + 'CODE_END:\n.section .rodata,"a"\n'
    txt += f""".p2align 6
.amdhsa_kernel {KN}
  .amdhsa_next_free_vgpr 256
  .amdhsa_next_free_sgpr 102
  .amdhsa_accum_offset 256
  .amdhsa_group_segment_fixed_size 0
  .amdhsa_kernarg_size 136
  .amdhsa_user_sgpr_count 2
  .amdhsa_user_sgpr_kernarg_segment_ptr 1
  .amdhsa_system_sgpr_workgroup_id_x 1
.end_amdhsa_kernel
"""
    return txt

if __name__ == '__main__':
    out = sys.argv[1] if len(sys.argv) > 1 else f'cdna_kernels/{NAME}.s'
    open(out, 'w').write(build())
```

```python
import sys, os, struct
sys.path.insert(0, os.path.dirname(__file__))
from asmlib import Asm

NAME = 'recurrent_scan__ssm_conv_s4__mixer_channel_mlp__prompt'
KN = NAME + '_kernel'
WS_XN = 0
WS_H = 0x800000
WS_ST = 0x1000000
WS_FLAG = 0x1400000
WS_MB = 0x40000
FLSZ = 0xC0000
WS_DBG = 0x1800000
SRD3 = '0x00020000'
LOG2E = 1.4426950408889634
DEBUG = os.environ.get('KDEBUG', '0') == '1'
OPT = dict(kv.split('=') for kv in os.environ.get('KOPT', '').split(',') if kv)

def v(a, n=1): return f'v{a}' if n == 1 else f'v[{a}:{a+n-1}]'
def f2u(x): return '0x%08x' % struct.unpack('<I', struct.pack('<f', x))[0]
def srd(A, d, base, size, off=0):
    if off:
        A(f's_add_u32 s{d}, s{base}, {off}'); A(f's_addc_u32 s{d+1}, s{base+1}, 0')
    else:
        A(f's_mov_b32 s{d}, s{base}'); A(f's_mov_b32 s{d+1}, s{base+1}')
    A(f's_mov_b32 s{d+2}, {size}'); A(f's_mov_b32 s{d+3}, {SRD3}')
def bf16r(A, d, x, t):
    A(f'v_cvt_pk_bf16_f32 v{t}, v{x}, v{x}'); A(f'v_lshlrev_b32 v{d}, 16, v{t}')

def stamp(A, real=False):
    if not DEBUG: return
    A(f"{'s_memrealtime' if real else 's_memtime'} s[94:95]")
    A("s_waitcnt lgkmcnt(0)"); A.lg = []
    A(f"v_writelane_b32 v255, s94, {A.nst}")
    A.nst += 1
    assert A.nst <= 32
def finish(A):
    if DEBUG:
        A.wait_vm0()
        stamp(A); stamp(A, True)
        srd(A, 96, 24, 0x100000, WS_DBG)
        A("s_lshl_b32 s94, s2, 3"); A("s_add_u32 s94, s94, s3"); A("s_lshl_b32 s94, s94, 7")
        A("v_lshlrev_b32 v254, 2, v1")
        A(f"s_mov_b64 exec, {(1 << A.nst) - 1}")
        A("buffer_store_dword v255, v254, s[96:99], s94 offen")
    A("s_endpgm")

L_CV = 131072
CVS = 2 * 4160 + 4576
F = L_CV + 2 * CVS
F_FULL, F_DONE, F_XD, F_PRE, F_NON, F_KR, F_UR, F_XCH, F_CS, F_ST, F_SR, F_GO, F_RED = 0, 32, 48, 64, 80, 84, 92, 112, 128, 144, 160, 176, 192
F_HR, F_XR, F_XT = 100, 104, 108
F_FX = 208
F_PF = 240
L_CS = F + 256
L_ST = L_CS + 448
L_S2 = L_ST + 1024
L_B1 = L_S2 + 1024
L_SIZE = L_B1 + 256
SPARE = 28672
NR = 7

XROWS = [(0,0),(0,1),(0,2),(0,3),(1,0),(1,1),(1,2),(1,3),(2,0),(2,2),(4,0),(6,0),(3,0),(3,2),(5,0),(7,0),
         (8,0),(10,0),(12,0),(14,0),(9,0),(11,0),(13,0),(15,0),(16,0)]

def spin(A, areg, off, n, t, sleep=0, cmp='eq', val='1'):
    L = A.newlabel('sp')
    A(f"{L}:")
    if n == 1: A(f"ds_read_b32 v{t}, v{areg} offset:{off}")
    elif n == 2: A(f"ds_read2_b32 {v(t,2)}, v{areg} offset0:{off[0]//4} offset1:{off[1]//4}")
    else: A(f"ds_read_b128 {v(t,4)}, v{areg} offset:{off}")
    A("s_waitcnt lgkmcnt(0)")
    if n == 2: A(f"v_min_u32 v{t}, v{t}, v{t+1}")
    if n == 4:
        A(f"v_min_u32 v{t}, v{t}, v{t+1}"); A(f"v_min3_u32 v{t}, v{t}, v{t+2}, v{t+3}")
    A(f"v_cmp_{cmp}_u32 vcc, {val}, v{t}")
    if sleep:
        A(f"s_cbranch_vccnz {L}_d"); A(f"s_sleep {sleep}"); A(f"s_branch {L}"); A(f"{L}_d:")
    else:
        A(f"s_cbranch_vccz {L}")
    A.lg = []

def gpoll(A, vaddr, srdr, soff, t, nonce, sleep):
    L = A.newlabel('gp')
    A("s_mov_b32 s79, 0")
    A(f"{L}:")
    A(f"buffer_load_dword v{t}, v{vaddr}, s[{srdr}:{srdr+3}], {soff} offen sc1")
    A("s_waitcnt vmcnt(0)")
    A(f"v_cmp_ne_u32 vcc, v{nonce}, v{t}")
    A(f"s_cbranch_vccz {L}_d")
    A(f"s_sleep {sleep}")
    A("s_add_u32 s79, s79, 1")
    A("s_cmp_lt_u32 s79, 0x4000")
    A(f"s_cbranch_scc1 {L}")
    A(f"{L}_d:")
    A.vm = []

def prologue(A):
    A("s_cmp_ge_u32 s2, 256")
    A("s_cbranch_scc1 K_end")
    A.nst = 0
    A("s_load_dwordx16 s[4:19], s[0:1], 0")
    A("s_load_dwordx4 s[20:23], s[0:1], 80")
    A("s_load_dwordx2 s[24:25], s[0:1], 128")
    A("s_load_dwordx4 s[84:87], s[0:1], 96")
    A("s_load_dwordx4 s[88:91], s[0:1], 112")
    A("s_load_dwordx2 s[92:93], s[0:1], 64")
    A("v_lshrrev_b32 v2, 6, v0")
    A("v_and_b32 v1, 63, v0")
    A("v_mov_b32 v3, 0")
    A("v_readfirstlane_b32 s3, v2")
    A("v_min_u32 v4, 63, v1")
    A("v_lshlrev_b32 v4, 2, v4")
    A(f"v_add_u32 v4, {F}, v4")
    A("ds_write_b32 v4, v3")
    A("s_and_b32 s26, s2, 7")
    A("s_lshr_b32 s27, s2, 3")
    A("s_lshl_b32 s28, s26, 5")
    A("s_add_u32 s28, s28, s27")
    m1, m2 = OPT.get('map', 'bb')
    A("s_lshr_b32 s29, s26, 1")
    A("s_and_b32 s30, s26, 1")
    if m1 == 'a':
        A("s_lshl_b32 s82, s29, 2"); A("s_and_b32 s31, s27, 3"); A("s_add_u32 s82, s82, s31")
        A("s_lshl_b32 s83, s30, 3"); A("s_lshr_b32 s31, s27, 2"); A("s_add_u32 s83, s83, s31")
    elif m1 == 'c':
        A("s_lshr_b32 s82, s26, 2"); A("s_lshl_b32 s82, s82, 3"); A("s_and_b32 s31, s27, 7"); A("s_add_u32 s82, s82, s31")
        A("s_and_b32 s83, s26, 3"); A("s_lshl_b32 s83, s83, 2"); A("s_lshr_b32 s31, s27, 3"); A("s_add_u32 s83, s83, s31")
    else:
        A("s_lshl_b32 s82, s26, 1"); A("s_and_b32 s31, s27, 1"); A("s_add_u32 s82, s82, s31")
        A("s_lshr_b32 s83, s27, 1")
    if m2 == 'a':
        A("s_lshl_b32 s80, s29, 3"); A("s_and_b32 s31, s27, 7"); A("s_add_u32 s80, s80, s31")
        A("s_lshl_b32 s81, s30, 2"); A("s_lshr_b32 s31, s27, 3"); A("s_add_u32 s81, s81, s31")
    else:
        A("s_lshl_b32 s80, s26, 2"); A("s_and_b32 s31, s27, 3"); A("s_add_u32 s80, s80, s31")
        A("s_lshr_b32 s81, s27, 2")
    A(f"s_mul_i32 s78, s81, {OPT.get('rmul', 7)}")
    A("s_lshr_b32 s78, s78, 2")
    stamp(A, True); stamp(A)
    A("s_waitcnt lgkmcnt(0)")
    A("s_barrier")
    stamp(A)
    A.reset_counters()
    A("s_cmp_lt_u32 s3, 4")
    A("s_cbranch_scc1 K_gemm")
    A("s_cmp_eq_u32 s3, 4")
    A("s_cbranch_scc1 K_x")
    A("s_cmp_lt_u32 s3, 7")
    A("s_cbranch_scc1 K_kgen")

def w2_voffs(A, d, t):
    A(f"v_lshrrev_b32 v{t}, 3, v1")
    A(f"v_and_b32 v{t+1}, 7, v1")
    A(f"v_bfe_u32 v{t+2}, v1, 4, 1")
    A(f"v_lshlrev_b32 v{t+2}, 1, v{t+2}")
    A(f"v_xor_b32 v{t+1}, v{t+1}, v{t+2}")
    A(f"v_lshlrev_b32 v{t}, 10, v{t}")
    A("s_lshl_b32 s49, s81, 7")
    A(f"v_add_u32 v{t}, s49, v{t}")
    for q in range(4):
        A(f"v_xor_b32 v{t+2}, {4*(q&1)}, v{t+1}")
        A(f"v_lshl_add_u32 v{d+q}, v{t+2}, 4, v{t}")
        if q: A(f"v_add_u32 v{d+q}, {q*(8192-1024)}, v{d+q}")

def p1_voffs(A, d, t):
    A(f"v_and_b32 v{t}, 15, v1")
    A(f"v_lshrrev_b32 v{t+1}, 4, v1")
    A("s_mul_i32 s53, s83, 224")
    A("s_and_b32 s53, s53, 0xffffffc0")
    A(f"v_mul_u32_u24 v{t+2}, 3584, v{t+1}")
    A(f"v_add_u32 v{t+2}, s53, v{t+2}")
    A(f"v_lshlrev_b32 v{t+3}, 1, v{t+1}")
    A(f"v_xor_b32 v{t+3}, v{t+3}, v{t}")
    for q in range(4):
        A(f"v_xor_b32 v{t+4}, {8*((q>>1)&1)}, v{t+3}")
        A(f"v_lshl_add_u32 v{d+q}, v{t+4}, 4, v{t+2}")
        if q: A(f"v_add_u32 v{d+q}, {q*(4*3584-1024)}, v{d+q}")
    A(f"v_lshrrev_b32 v{t+2}, 3, v1")
    A(f"v_and_b32 v{t+4}, 7, v1")
    A(f"v_xor_b32 v{t+3}, v{t+1}, v{t+4}")
    A("s_lshl_b32 s52, s82, 7")
    A(f"v_add_u32 v{t+2}, s52, v{t+2}")
    A(f"v_lshlrev_b32 v{t+2}, 10, v{t+2}")
    for q in range(4):
        A(f"v_xor_b32 v{t+4}, {4*(q&1)}, v{t+3}")
        A(f"v_lshl_add_u32 v{d+4+q}, v{t+4}, 4, v{t+2}")
        if q: A(f"v_add_u32 v{d+4+q}, {q*(8192-1024)}, v{d+4+q}")

NG = int(OPT.get('NG', 0))

def rstep(A, d, j):
    A(f"s_add_u32 s{d}, s78, {j}")
    A(f"s_sub_u32 s77, s{d}, 14")
    A(f"s_cmp_ge_u32 s{d}, 14")
    A(f"s_cselect_b32 s{d}, s77, s{d}")

def wait_free(A, n):
    L1 = A.newlabel('fr')
    A(f"{L1}:")
    A(f"ds_read_b128 v[20:23], v17 offset:{F_DONE}")
    A("s_waitcnt lgkmcnt(0)")
    A("v_min_u32 v20, v20, v21")
    A("v_min3_u32 v20, v20, v22, v23")
    A(f"v_cmp_le_u32 vcc, {n}, v20")
    A(f"s_cbranch_vccnz {L1}_d"); A(f"s_sleep {OPT.get('fsleep', 2)}"); A(f"s_branch {L1}"); A(f"{L1}_d:")
    A.lg = []

def p1_stream(A, isx):
    A("s_setprio 3")
    if isx: srd(A, 36, 4, 2097152)
    else: srd(A, 36, 20, 1835008)
    p1_voffs(A, 8, 2)
    A("v_mov_b32 v16, 1")
    A(f"v_mov_b32 v17, {F}")
    if OPT.get('iso'):
        for u in range(8): A(f"ds_write_b32 v17, v16 offset:{(F_FX if isx else F_FULL) + 4*u}")
        A("s_endpgm")
    def issue(u):
        base = (u % 4) * 32768
        for qq in range(4):
            A(f"s_mov_b32 m0, {base + qq*4096 + (16384 if isx else 0)}")
            A(f"s_mov_b32 s57, {128*u + 32768*qq if isx else (64*u + 16*qq)*3584}")
            for q in range(4):
                A(f"buffer_load_dwordx4 v{(12 if isx else 8)+q}, s[36:39], s57 offen offset:{1024*q} lds", tag=('u', u))
    def post(u):
        A.wait_vm(('u', u))
        A(f"ds_write_b32 v17, v16 offset:{(F_FX if isx else F_FULL) + 4*u}")
    issue(0); issue(1); post(0)
    if not isx:
        srd(A, 40, 22, 3584)
        A("v_lshlrev_b32 v18, 2, v1")
        A("s_mul_i32 s53, s83, 224")
        A(f"s_mov_b32 m0, {L_B1}")
        A("buffer_load_dword v18, s[40:43], s53 offen lds", tag='b1')
    for u in range(2, 8):
        if u >= 4: wait_free(A, u - 3)
        issue(u); post(u-1)
    post(7)

def loader(A):
    A.reset_counters(); A.nst = 3
    p1_stream(A, False)
    srd(A, 40, 84, 1835008)
    w2_voffs(A, 8, 4)
    stamp(A)
    A(f"s_setprio {OPT.get('lprio', 1)}")
    for w in range(4):
        wait_free(A, 5 + w)
        for j in range(NR):
            A(f"s_mov_b32 m0, {w*32768 + j*4096}")
            rstep(A, 57, j)
            A("s_lshl_b32 s57, s57, 17")
            A(f"s_add_u32 s57, s57, {w*32768}")
            for q in range(4):
                A(f"buffer_load_dwordx4 v{8+q}, s[40:43], s57 offen offset:{1024*q} lds", tag=('w', w))
        if w:
            A.wait_vm(('w', w-1)); A(f"ds_write_b32 v17, v16 offset:{F_PRE + 4*(w-1)}")
    A.wait_vm(('w', 3)); A(f"ds_write_b32 v17, v16 offset:{F_PRE + 12}")
    stamp(A)
    A("s_branch K_conv")

def xwave(A):
    A("K_x:")
    if OPT.get('iso'): A("s_endpgm")
    A.reset_counters(); A.nst = 3
    A(f"s_setprio {OPT.get('x0prio', 3)}")
    srd(A, 32, 4, 2097152)
    srd(A, 36, 24, 2097152, WS_XN)
    srd(A, 44, 24, FLSZ, WS_FLAG)
    A("v_lshlrev_b32 v2, 4, v1")
    A("v_mov_b32 v60, 0")
    A("s_mov_b32 s40, 0x30000")
    A("buffer_load_dword v61, v60, s[44:47], s40 offen sc1", tag='e')
    A("s_lshl_b32 s29, s28, 13")
    A("v_add_u32 v3, 4096, v2")
    X = 160
    for t in range(8):
        A(f"buffer_load_dwordx4 {v(X+4*t,4)}, v{2 + t//4}, s[32:35], s29 offen offset:{(t%4)*1024}", tag=('x', t))
    A("s_getpc_b64 s[40:41]")
    A("K_pc:")
    A("s_sub_u32 s40, s40, K_pc-K_start")
    A("s_subb_u32 s41, s41, 0")
    A("s_mov_b32 s42, CODE_END-K_start")
    A(f"s_mov_b32 s43, {SRD3}")
    A("v_lshlrev_b32 v4, 7, v1")
    A("s_and_b32 s48, s27, 3")
    A("s_lshl_b32 s48, s48, 13")
    A("buffer_load_dword v5, v4, s[40:43], s48 offen", tag='c')
    A(f"v_mov_b32 v6, {F}")
    A("s_lshl_b32 s31, s28, 2")
    A("s_load_dword s63, s[18:19], s31")
    A("s_lshl_b32 s31, s28, 9")
    A("s_add_u32 s31, s31, 256")
    A("v_lshlrev_b32 v4, 2, v1")
    for i in range(6):
        srd(A, 40, 6 + 2*i, 131072)
        A(f"buffer_load_dword v{52+i}, v4, s[40:43], s31 offen", tag='p')
    A("v_mov_b32 v4, 0x3f803f80")
    S, Q = 64, 72
    A.wait_vm('e')
    A("v_add_u32 v61, 1, v61")
    A("v_max_u32 v61, 1, v61")
    A(f"ds_write_b32 v6, v61 offset:{F_NON}")
    for t in range(8):
        A.wait_vm(('x', t))
        for k in range(4):
            A(f"v_dot2_f32_bf16 v{S+t}, v{X+4*t+k}, v4, {'0' if k == 0 else 'v%d' % (S+t)}")
            A(f"v_dot2_f32_bf16 v{Q+t}, v{X+4*t+k}, v{X+4*t+k}, {'0' if k == 0 else 'v%d' % (Q+t)}")
    for B in (S, Q):
        for t in range(4): A(f"v_permlane32_swap_b32 v{B+t}, v{B+t+4}")
    for B in (S, Q):
        for t in range(4): A(f"v_add_f32 v{B+t}, v{B+t}, v{B+t+4}")
    for B in (S, Q):
        for t in range(2): A(f"v_permlane16_swap_b32 v{B+t}, v{B+t+2}")
    for B in (S, Q):
        for t in range(2): A(f"v_add_f32 v{B+t}, v{B+t}, v{B+t+2}")
    for sh in (8, 4, 2, 1):
        for r in (S, S+1, Q, Q+1):
            A(f"v_add_f32_dpp v{r}, v{r}, v{r} row_ror:{sh} row_mask:0xf bank_mask:0xf")
    seqs = []
    for t in range(2):
        m, q, G = S+t, Q+t, 80 + 4*t
        t1, t2, t3, t4 = 88+4*t, 89+4*t, 90+4*t, 91+4*t
        L = []
        def br(d, x): L.extend([f'v_cvt_pk_bf16_f32 v{t4}, v{x}, v{x}', f'v_lshlrev_b32 v{d}, 16, v{t4}'])
        L.append(f"v_mul_f32 v{m}, {f2u(1/512)}, v{m}")
        L.append(f"v_mul_f32 v{q}, {f2u(1/512)}, v{q}")
        L.append(f"v_fma_f32 v{q}, -v{m}, v{m}, v{q}")
        L.append(f"v_max_f32 v{q}, 0, v{q}")
        br(t1, q)
        L.append(f"v_add_f32 v{t1}, {f2u(1e-5)}, v{t1}")
        br(t1, t1)
        L.append(f"v_sqrt_f32 v{t1}, v{t1}")
        L.append(f"v_cvt_pk_bf16_f32 v{G}, v{m}, v{t1}")
        L.append(f"v_and_b32 v{t1}, 0xffff0000, v{G}")
        L.append(f"v_rcp_f32 v{t2}, v{t1}")
        L.append(f"v_lshlrev_b32 v{t3}, 16, v{G}")
        L.append(f"v_sub_f32 v{m}, v{m}, v{t3}")
        L.append(f"v_mul_f32 v{m}, v{m}, v{t2}")
        L.append(f"v_mul_f32 v{q}, v{q}, v{t2}")
        L.append(f"v_mul_f32 v{q}, v{q}, v{t2}")
        br(q, q)
        L.append(f"v_add_f32 v{q}, {f2u(1e-5)}, v{q}")
        br(q, q)
        L.append(f"v_sqrt_f32 v{q}, v{q}")
        L.append(f"v_mov_b32 v{G+1}, v61")
        L.append(f"v_cvt_pk_bf16_f32 v{G+2}, v{m}, v{q}")
        L.append(f"v_mov_b32 v{G+3}, v61")
        seqs.append(L)
    for x, y in zip(*seqs): A(x); A(y)
    A("v_and_b32 v8, 15, v1")
    A("v_lshlrev_b32 v8, 11, v8")
    A("v_lshrrev_b32 v9, 4, v1")
    A("v_lshl_add_u32 v8, v9, 5, v8")
    A("s_lshr_b32 s41, s28, 4")
    A("s_lshl_b32 s41, s41, 15")
    A("s_and_b32 s42, s28, 15")
    A("s_lshl_b32 s42, s42, 7")
    A("s_add_u32 s41, s41, s42")
    A(f"s_add_u32 s41, s41, {WS_MB}")
    for t in range(2):
        A(f"buffer_store_dwordx4 {v(80+4*t,4)}, v8, s[44:47], s41 offen offset:{16*t} {OPT.get('hst','sc1')}")
    stamp(A)
    for t in range(2):
        for rho in range(4):
            A(f"v_readlane_b32 s{64 + t + 2*rho}, v{90+4*t}, {16*rho}")
            A(f"v_readlane_b32 s{48 + t + 2*rho}, v{89+4*t}, {16*rho}")
    FF, O = 96, 112
    for i in range(4):
        for h, t in enumerate((7 - 2*i, 6 - 2*i)):
            for k in range(4):
                lo, hi, x = FF + 8*h + 2*k, FF + 8*h + 2*k + 1, X + 4*t + k
                A(f"v_lshlrev_b32 v{lo}, 16, v{x}")
                A(f"v_and_b32 v{hi}, 0xffff0000, v{x}")
                A(f"v_subrev_f32 v{lo}, s{64+t}, v{lo}")
                A(f"v_subrev_f32 v{hi}, s{64+t}, v{hi}")
                if not OPT.get('fastln'):
                    A(f"v_cvt_pk_bf16_f32 v{x}, v{lo}, v{hi}")
                    A(f"v_lshlrev_b32 v{lo}, 16, v{x}")
                    A(f"v_and_b32 v{hi}, 0xffff0000, v{x}")
                A(f"v_mul_f32 v{lo}, s{48+t}, v{lo}")
                A(f"v_mul_f32 v{hi}, s{48+t}, v{hi}")
        for dl in range(8):
            A(f"v_cvt_pk_bf16_f32 v{O+4*dl+i}, v{FF+dl}, v{FF+8+dl}")
    for dl in range(8):
        A(f"buffer_store_dwordx4 {v(O+4*dl,4)}, v{2 + dl//4}, s[36:39], s29 offen offset:{1024*(dl%4)} sc1")
    A("s_lshl_b32 s42, s28, 2")
    A("s_add_u32 s42, s42, 0x8000")
    spin(A, 6, F_PF, 1, 9, sleep=1)
    A.wait_vm0()
    A("s_mov_b64 exec, 1")
    A("buffer_store_dword v61, v60, s[44:47], s42 offen sc1")
    A("s_mov_b64 exec, -1")
    stamp(A)
    A("s_mov_b32 s29, 1")
    A("s_branch K_k6")

def kgen(A):
    A("K_kgen:")
    A.reset_counters(); A.nst = 3
    A("s_cmp_eq_u32 s3, 5")
    A("s_cbranch_scc1 K_k5")
    p1_stream(A, True)
    stamp(A)
    srd(A, 36, 24, 2097152, WS_XN)
    srd(A, 44, 24, FLSZ, WS_FLAG)
    A(f"v_mov_b32 v6, {F}")
    A("v_lshlrev_b32 v2, 4, v1")
    spin(A, 6, F_NON, 1, 61, sleep=1, cmp='ne', val='0')
    A("s_lshl_b32 s41, s82, 4")
    A("s_add_u32 s41, s41, s83")
    A("s_lshl_b32 s41, s41, 11")
    A(f"s_add_u32 s41, s41, {WS_MB}")
    A("s_mov_b32 s79, 0")
    A("K_x2:")
    A("buffer_load_dwordx4 v[64:67], v2, s[44:47], s41 offen sc1")
    A("buffer_load_dwordx4 v[68:71], v2, s[44:47], s41 offen offset:1024 sc1")
    A("s_waitcnt vmcnt(0)")
    A("v_xor_b32 v72, v61, v65")
    A("v_xor_b32 v73, v61, v67")
    A("v_xor_b32 v74, v61, v69")
    A("v_xor_b32 v75, v61, v71")
    A("v_or3_b32 v72, v72, v73, v74")
    A("v_or_b32 v72, v72, v75")
    A("v_cmp_ne_u32 vcc, 0, v72")
    A("s_cbranch_vccz K_x3")
    A("s_sleep 6")
    A("s_add_u32 s79, s79, 1")
    A("s_cmp_lt_u32 s79, 0x4000")
    A("s_cbranch_scc1 K_x2")
    A("K_x3:")
    A.reset_counters()
    A(f"s_setprio {OPT.get('xprio', 3)}")
    for i in range(2):
        g, o = 64 + 4*i, 72 + 8*i
        A(f"v_and_b32 v{o+4}, 0xffff0000, v{g}")
        A(f"v_lshlrev_b32 v{o+5}, 16, v{g}")
        A(f"v_and_b32 v{o+6}, 0xffff0000, v{g+2}")
        A(f"v_lshlrev_b32 v{o+7}, 16, v{g+2}")
        A(f"v_rcp_f32 v{o}, v{o+4}")
        A(f"v_rcp_f32 v{o+3}, v{o+6}")
        A(f"v_fma_f32 v{o+2}, -v{o+7}, v{o+4}, -v{o+5}")
        A(f"v_mul_f32 v{o+3}, v{o+3}, v{o}")
    A("v_lshlrev_b32 v8, 3, v1")
    A(f"v_add_u32 v8, {L_ST}, v8")
    A("v_mov_b32 v7, 1")
    for i in range(2):
        A(f"ds_write_b64 v8, {v(74+8*i,2)} offset:{1024 + 512*i}")
    A(f"ds_write_b32 v6, v7 offset:{F_ST}")
    stamp(A)
    A("s_branch K_uload")
    A("K_k5:")
    if OPT.get('iso'): A("s_endpgm")
    A.reset_counters(); A.nst = 3
    A("s_setprio 3")
    A("s_mov_b32 s29, 0")
    A("s_lshl_b32 s31, s28, 2")
    A("s_load_dword s63, s[18:19], s31")
    A("s_lshl_b32 s31, s28, 9")
    A("v_lshlrev_b32 v2, 2, v1")
    for i in range(6):
        srd(A, 32, 6 + 2*i, 131072)
        A(f"buffer_load_dword v{52+i}, v2, s[32:35], s31 offen", tag='p')
    srd(A, 36, 20, 0 if OPT.get('now1t') else 1835008)
    A("v_lshlrev_b32 v5, 4, v1")
    A("s_mul_i32 s40, s2, 7168")
    for i in range(7):
        if i == 4: A("s_add_u32 s40, s40, 4096")
        A(f"buffer_load_dwordx4 {v(208+4*i,4)}, v5, s[36:39], s40 offen offset:{1024*(i%4)}", tag='t')
    srd(A, 40, 24, 2097152, WS_ST)
    A("s_lshl_b32 s44, s28, 13")
    A("v_mov_b32 v8, -1\nv_mov_b32 v9, -1\nv_mov_b32 v10, -1\nv_mov_b32 v11, -1")
    for i in range(8):
        if i == 4: A("s_add_u32 s44, s44, 4096")
        A(f"buffer_store_dwordx4 v[8:11], v5, s[40:43], s44 offen offset:{1024*(i%4)} sc1", tag='t')
    A("K_k6:")
    A(f"v_mov_b32 v3, {F}")
    A(f"s_mul_i32 s54, s29, {CVS}")
    A(f"s_add_u32 s54, s54, {L_CV}")
    A("s_lshl_b32 s61, s29, 16")
    A(f"s_add_u32 s61, s61, {SPARE}")
    A("s_mov_b32 s45, 32768")
    WA, RA = 244, 252
    A("v_and_b32 v5, 31, v1")
    A("v_lshlrev_b32 v5, 7, v5")
    A("v_lshrrev_b32 v6, 5, v1")
    A("v_mul_u32_u24 v6, s45, v6")
    A("v_add3_u32 v5, v5, v6, s61")
    A("v_and_b32 v6, 7, v1")
    for c in range(8):
        A(f"v_xor_b32 v7, {c}, v6")
        A(f"v_lshl_add_u32 v{WA+c}, v7, 4, v5")
    A("v_bfe_u32 v5, v1, 2, 2")
    A("v_lshrrev_b32 v6, 5, v1")
    A("v_lshlrev_b32 v6, 2, v6")
    A("v_lshrrev_b32 v7, 1, v5")
    A("v_add_u32 v6, v6, v7")
    A("v_and_b32 v5, 1, v5")
    A("v_lshlrev_b32 v5, 2, v5")
    A("v_bfe_u32 v7, v1, 4, 1")
    A("v_lshl_add_u32 v5, v7, 1, v5")
    A("v_bfe_u32 v7, v1, 1, 1")
    A("v_add_u32 v5, v5, v7")
    A("v_and_b32 v7, 1, v1")
    A("v_lshlrev_b32 v7, 3, v7")
    A("v_add_u32 v7, s61, v7")
    for hh in range(2):
        if hh: A("v_add_u32 v6, 2, v6")
        A(f"v_xor_b32 v15, v5, v6")
        A(f"v_lshl_add_u32 v15, v15, 4, v7")
        A(f"v_lshl_add_u32 v{RA+hh}, v6, 7, v15")
        A(f"v_add_u32 v{18+hh}, s45, v{RA+hh}")
    A("s_waitcnt lgkmcnt(0)")
    A("s_lshl_b32 s62, s29, 4")
    A("s_lshr_b32 s60, s63, s62")
    A("s_lshl_b32 s60, s60, 16")
    A(f"v_mov_b32 v14, {f2u(LOG2E)}")
    A("v_mul_f32 v14, s60, v14")
    A("v_exp_f32 v14, v14")
    bf16r(A, 14, 14, 15)
    XV, PKB = 60, 112
    A.wait_vm('p')
    A("s_setprio 3")
    A.nst = 5
    stamp(A)
    Z = {1: (20, 22), 2: (24, 26), 3: (28, 30), 8: (32, 34), 256: (36, 38), 4: (41, 43), 128: (21, 23)}
    def smul(d, x, y):
        A(f"v_mul_f32 v{d[0]}, v{x[0]}, v{y[0]}")
        A(f"v_mul_f32 v{d[1]}, v{x[0]}, v{y[1]}")
        A(f"v_fma_f32 v{d[0]}, -v{x[1]}, v{y[1]}, v{d[0]}")
        A(f"v_fmac_f32 v{d[1]}, v{x[1]}, v{y[0]}")
    def cm2(l):
        for d, x, m in l:
            A(f"v_pk_mul_f32 {v(d,2)}, {v(x,2)}, {v(m[0],2)} op_sel_hi:[1,0]")
            A(f"v_pk_mul_f32 {v(d+2,2)}, {v(x,2)}, {v(m[1],2)} op_sel_hi:[1,0]")
        for d, x, m in l:
            A(f"v_pk_fma_f32 {v(d,2)}, {v(x+2,2)}, {v(m[1],2)}, {v(d,2)} op_sel_hi:[1,0,1] neg_lo:[0,1,0] neg_hi:[0,1,0]")
            A(f"v_pk_fma_f32 {v(d+2,2)}, {v(x+2,2)}, {v(m[0],2)}, {v(d+2,2)} op_sel_hi:[1,0,1]")
    pairs = [(a, 0) for a in range(0, 17, 2)] + [(0, 1), (0, 2), (0, 3), (2, 2)]
    XP = {ae: XV + 4*i for i, ae in enumerate(pairs)}
    def xre(row):
        a, e = XROWS[row]
        return XP[(a & ~1, e)] + (a & 1)
    for half in range(2):
        PW, PX = PKB + 64*half, PKB + 64*half + 32
        for i in range(6):
            if half == 0: A(f"v_lshlrev_b32 v{8+i}, 16, v{52+i}")
            else: A(f"v_and_b32 v{8+i}, 0xffff0000, v{52+i}")
        for i in range(4): A(f"v_mul_f32 v{8+i}, v14, v{8+i}")
        A(f"v_mul_f32 v8, {f2u(LOG2E)}, v8")
        A(f"v_mul_f32 v9, 0.15915494, v9")
        zs = ((4, 25, 27), (1, 29, 31), (128, 33, 35))
        for o, e, f in zs:
            A(f"v_mul_f32 v{e}, {f2u(float(o))}, v8"); A(f"v_mul_f32 v{f}, {f2u(float(o))}, v9")
        for o, e, f in zs:
            A(f"v_exp_f32 v{e}, v{e}"); A(f"v_fract_f32 v{f}, v{f}")
        for o, e, f in zs:
            A(f"v_cos_f32 v{Z[o][0]}, v{f}"); A(f"v_sin_f32 v{Z[o][1]}, v{f}")
        for o, e, f in zs:
            A(f"v_mul_f32 v{Z[o][0]}, v{e}, v{Z[o][0]}"); A(f"v_mul_f32 v{Z[o][1]}, v{e}, v{Z[o][1]}")
        y0, y1 = (XP[(0,0)], XP[(0,0)]+2), (XP[(0,0)]+1, XP[(0,0)]+3)
        smul(Z[8], Z[4], Z[4]); smul(y0, (12, 13), (10, 11)); smul(Z[256], Z[128], Z[128]); smul(Z[2], Z[1], Z[1])
        smul(y1, y0, Z[128]); smul(Z[3], Z[2], Z[1])
        A("v_mov_b32 v40, 1.0"); A("v_mov_b32 v42, 0")
        if half == 1:
            A.wait_vm0()
            A("v_mov_b32 v4, 1")
            A("s_lshl_b32 s44, s29, 2")
            A("v_add_u32 v5, s44, v3")
            A(f"ds_write_b32 v5, v4 offset:{F_PF}")
        xs = [(XP[(a+2, 0)], XP[(a, 0)], Z[256]) for a in range(0, 16, 2)] + [(XP[(a, e)], XP[(a, 0)], Z[e]) for (a, e) in pairs[9:]]
        cur = 40
        for i in range(16):
            A(f"v_cvt_pk_bf16_f32 v{PW+i}, v{cur}, v{cur+1}")
            A(f"v_cvt_pk_bf16_f32 v{PW+16+i}, v{cur+2}, v{cur+3}")
            nxt = 44 if cur == 40 else 40
            l = ([(nxt, cur, Z[8])] if i < 15 else []) + ([xs.pop(0)] if xs else [])
            cm2(l); cur = nxt
        for i in range(13):
            r0, r1 = xre(2*i), xre(min(2*i+1, 24))
            A(f"v_cvt_pk_bf16_f32 v{PX+i}, v{r0}, v{r1}")
            A(f"v_cvt_pk_bf16_f32 v{PX+16+i}, -v{r0+2}, -v{r1+2}")
    stamp(A)
    A(f"s_setprio {OPT.get('kprio', 2)}")
    A("v_mov_b32 v48, v18\nv_mov_b32 v49, v19")
    if not OPT.get('now2t'):
        A("s_cmp_eq_u32 s29, 0")
        A("s_mov_b32 s36, s84"); A("s_mov_b32 s37, s85")
        A("s_cselect_b32 s38, 1835008, 0")
        A(f"s_mov_b32 s39, {SRD3}")
        A("v_lshlrev_b32 v5, 4, v1")
        A("s_mul_i32 s40, s2, 7168")
        for i in range(7):
            if i == 4: A("s_add_u32 s40, s40, 4096")
            A(f"buffer_load_dwordx4 {v(60+4*i,4)}, v5, s[36:39], s40 offen offset:{1024*(i%4)}", tag='t')
        A.wait_vm0()
    if OPT.get('l2pf'):
        spin(A, 3, F_DONE, 4, 4, sleep=3, cmp='le', val=str(OPT.get('l2pf')))
        A("s_mul_i32 s40, s27, 57344")
        if OPT.get('dense'):
            for i in range(56):
                A(f"buffer_load_dwordx4 {v(60+4*(i%8),4)}, v5, s[36:39], s40 offen offset:{1024*(i%4)}")
                if i % 4 == 3: A("s_add_u32 s40, s40, 4096")
        else:
            A("v_lshlrev_b32 v5, 7, v1")
            for i in range(7):
                A(f"buffer_load_dword v{60+i}, v5, s[36:39], s40 offen")
                A("s_add_u32 s40, s40, 8192")
        A.wait_vm0()
    spin(A, 3, F_DONE, 4, 4, sleep=3, cmp='le', val='8')
    FA, FB, D = 16, 60, 92
    def flush(PK):
        for part in range(2):
            for q in range(4):
                A(f"ds_write_b128 v{WA+4*part+q}, {v(PK+16*part+4*q,4)}", tag='w')
    def frags(Fr, tag):
        for st in range(8):
            for hh in range(2):
                A(f"ds_read_b64_tr_b16 {v(Fr+4*st+2*hh,2)}, v{(RA if st < 4 else 48)+hh} offset:{(st&3)*1024}", tag=(tag, st))
    for half in range(2):
        flush(PKB + 64*half); frags(FB, 'fb')
        flush(PKB + 64*half + 32); frags(FA, 'fa')
        for st in range(8):
            A.wait_lg(('fa', st))
            A(f"v_mfma_f32_32x32x16_bf16 {v(D,16)}, {v(FA+4*st,4)}, {v(FB+4*st,4)}, {'0' if (st == 0 and half == 0) else v(D,16)}")
    stamp(A)
    A("v_lshrrev_b32 v7, 5, v1")
    A("v_lshlrev_b32 v2, 4, v1")
    A("v_mov_b32 v112, 0\nv_mov_b32 v113, 0\nv_mov_b32 v114, 0\nv_mov_b32 v115, 0")
    A("v_bfe_u32 v11, v1, 1, 1")
    A("v_mul_u32_u24 v11, 4160, v11")
    A("v_and_b32 v12, 1, v1")
    A("v_lshl_add_u32 v11, v12, 4, v11")
    A("v_add_u32 v11, s54, v11")
    A("ds_write_b128 v11, v[112:115]")
    A("s_add_u32 s61, s54, 32")
    A("v_and_b32 v10, 31, v1")
    A("v_lshlrev_b32 v10, 3, v10")
    A("v_lshl_add_u32 v10, v7, 8, v10")
    A("v_add_u32 v10, s61, v10")
    T = 16
    def dup(dst, r): A(f"v_cvt_pk_bf16_f32 v{dst}, v{r}, v{r}")
    A("s_mov_b32 s64, 0x55555555\ns_mov_b32 s65, 0x55555555")
    A("s_mov_b32 s66, 0x11111111\ns_mov_b32 s67, 0x11111111")
    for r in range(8, 13):
        dup(T + 2*(r-8), D + r); dup(T + 2*(r-8) + 1, D + r)
    for r in (6, 7): dup(T + 10 + (r-6), D + r)
    for r in (4, 5): dup(T + 12 + (r-4), D + r)
    A(f"v_cvt_pk_bf16_f32 v{T+14}, v{D}, v{D+1}")
    A(f"v_cvt_pk_bf16_f32 v{T+15}, v{D+2}, v{D+3}")
    A("s_mov_b64 exec, 1")
    A(f"ds_write_b64 v10, {v(T+8,2)} offset:{2*(2048-4)}")
    A("s_mov_b64 exec, s[64:65]")
    for r in range(8, 12):
        o = 1024 + 256*(r-8)
        A(f"ds_write_b64 v10, {v(T+2*(r-8),2)} offset:{2*(o-4)}")
        A(f"ds_write_b64 v10, {v(T+2*(r-8),2)} offset:{2*o}")
    A("s_mov_b64 exec, s[66:67]")
    for r in range(8, 12):
        A(f"ds_write_b16 v10, v{T+2*(r-8)} offset:{2*(1024 + 256*(r-8) + 4)}")
    A("s_mov_b64 exec, -1")
    for r in (6, 7):
        o = 512 + 256*(r-6)
        A(f"ds_write_b32 v10, v{T+10+(r-6)} offset:{2*(o-2)}")
        A(f"ds_write_b32 v10, v{T+10+(r-6)} offset:{2*o}")
    A("s_mov_b64 exec, s[64:65]")
    for r in (6, 7):
        A(f"ds_write_b16 v10, v{T+10+(r-6)} offset:{2*(512 + 256*(r-6) + 2)}")
    A("s_mov_b64 exec, -1")
    A(f"ds_write_b16 v10, v{T+12} offset:{2*(256-1)}")
    A(f"ds_write_b32 v10, v{T+12} offset:{2*256}")
    A(f"ds_write_b16 v10, v{T+13} offset:{2*(256+2)}")
    A(f"ds_write_b64 v10, {v(T+14,2)}")
    A("s_add_u32 s61, s54, 28")
    A("v_add_u32 v4, s61, v2")
    for i in range(4):
        A(f"ds_read_b32 v{112+8*i+3}, v4 offset:{1024*i}", tag=('k', i))
        A(f"ds_read_b128 {v(112+8*i+4,4)}, v4 offset:{1024*i+4}", tag=('k', i))
    for i in range(4):
        A.wait_lg(('k', i))
        for k in range(4):
            A(f"v_alignbit_b32 v{144+4*i+k}, v{112+8*i+4+k}, v{112+8*i+3+k}, 16")
    for i in range(4):
        A(f"ds_write_b128 v4, {v(144+4*i,4)} offset:{1024*i + 4 + 4160}")
    A("v_mov_b32 v5, 1")
    A("s_lshl_b32 s61, s29, 2")
    A("v_add_u32 v6, s61, v3")
    A(f"ds_write_b32 v6, v5 offset:{F_KR}")
    stamp(A)
    A("s_branch K_conv")

def uload(A):
    A("K_uload:")
    A.reset_counters(); A.nst = 8
    A(f"s_setprio {OPT.get('uprio', 3)}")
    A(f"v_mov_b32 v3, {F}")
    A("v_lshlrev_b32 v4, 4, v1")
    A("s_mov_b32 s56, 0x8000")
    A("s_mov_b32 s79, 0")
    A("K_u2:")
    A("buffer_load_dwordx4 v[8:11], v4, s[44:47], s56 offen sc1")
    A("s_waitcnt vmcnt(0)")
    for r in range(4): A(f"v_xor_b32 v{8+r}, v61, v{8+r}")
    A("v_or3_b32 v8, v8, v9, v10")
    A("v_or_b32 v8, v8, v11")
    A("v_cmp_ne_u32 vcc, 0, v8")
    A("s_cbranch_vccz K_u3")
    A(f"s_sleep {OPT.get('xsleep', 8)}")
    A("s_add_u32 s79, s79, 1")
    A("s_cmp_lt_u32 s79, 0x4000")
    A("s_cbranch_scc1 K_u2")
    A("K_u3:")
    stamp(A)
    A("v_sub_u32 v5, 63, v1")
    A("v_lshlrev_b32 v5, 13, v5")
    A("s_and_b32 s56, s28, 3")
    A("s_lshl_b32 s56, s56, 11")
    A("s_lshr_b32 s57, s28, 2")
    A("s_lshl_b32 s57, s57, 4")
    A("s_add_u32 s56, s56, s57")
    A("v_add_u32 v5, s56, v5")
    for c in range(2):
        for q in range(4):
            A(f"s_mov_b32 m0, {L_CV + c*CVS + 2*4160 + 1024*q}")
            A(f"s_mov_b32 s56, {((3-q) << 19) + 1024*c}")
            A(f"buffer_load_dwordx4 v5, s[36:39], s56 offen sc1 lds")
    A("v_mov_b32 v8, 0\nv_mov_b32 v9, 0\nv_mov_b32 v10, 0\nv_mov_b32 v11, 0")
    A("v_min_u32 v7, 29, v1")
    A("v_lshlrev_b32 v7, 4, v7")
    A(f"v_add_u32 v7, {L_CV + 2*4160 + 4096}, v7")
    A("ds_write_b128 v7, v[8:11]")
    A(f"ds_write_b128 v7, v[8:11] offset:{CVS}")
    A("v_mov_b32 v8, 1\nv_mov_b32 v9, 1")
    A("s_waitcnt vmcnt(0) lgkmcnt(0)")
    A(f"ds_write2_b32 v3, v8, v9 offset0:{F_UR//4} offset1:{F_UR//4+1}")

def conv(A):
    A("K_conv:")
    A.reset_counters(); A.nst = 10
    A("s_sub_u32 s48, s3, 4")
    A("s_lshr_b32 s49, s48, 1")
    A("s_and_b32 s50, s48, 1")
    A("s_lshl_b32 s51, s28, 1")
    A("s_add_u32 s51, s51, s49")
    A("s_lshl_b32 s52, s28, 2")
    A("s_load_dword s53, s[92:93], s52")
    A(f"s_mul_i32 s54, s49, {CVS}")
    A(f"s_add_u32 s54, s54, {L_CV}")
    A("v_and_b32 v2, 15, v1")
    A("v_lshrrev_b32 v3, 4, v1")
    A("v_lshlrev_b32 v4, 4, v1")
    A("v_mov_b32 v17, 1")
    A("s_lshl_b32 s56, s48, 2")
    A(f"s_add_u32 s56, s56, {F}")
    A("v_mov_b32 v18, s56")
    A("v_xor_b32 v19, 4, v18")
    A("s_lshl_b32 s56, s49, 2")
    A(f"s_add_u32 s56, s56, {F}")
    A("v_mov_b32 v22, s56")
    A("v_lshrrev_b32 v6, 1, v2")
    A("v_lshlrev_b32 v6, 2, v6")
    A("v_lshl_add_u32 v6, v3, 4, v6")
    A("v_and_b32 v7, 1, v2")
    A("v_sub_u32 v7, 1, v7")
    A("v_mul_u32_u24 v7, 4160, v7")
    A("v_add_u32 v6, v6, v7")
    A("s_lshl_b32 s56, s50, 8")
    A("s_add_u32 s56, s56, s54")
    A("s_add_u32 s57, s56, 4")
    A("v_add_u32 v12, s57, v6")
    for qq in range(1, 4): A(f"v_add_u32 v{12+qq}, {1024*qq}, v12")
    A("v_lshlrev_b32 v6, 4, v3")
    A("v_lshlrev_b32 v7, 5, v2")
    A("v_sub_u32 v6, v6, v7")
    A(f"s_add_u32 s57, s56, {2*4160 + 480}")
    A("v_add_u32 v16, s57, v6")
    A("v_lshlrev_b32 v8, 5, v2")
    A("v_lshl_add_u32 v8, v3, 3, v8")
    A("s_lshl_b32 s56, s50, 11")
    A(f"s_add_u32 s57, s54, {2*4160 + 4088 - 1536}")
    A("s_sub_u32 s57, s57, s56")
    A("v_sub_u32 v8, s57, v8")
    A("s_lshl_b32 s56, s48, 15")
    A(f"s_add_u32 s56, s56, {SPARE}")
    A("v_add_u32 v6, s56, v4")
    A("v_xor_b32 v7, 0x8000, v6")
    srd(A, 40, 24, 2097152, WS_ST)
    srd(A, 44, 24, FLSZ, WS_FLAG)
    spin(A, 22, (F_KR, F_UR), 2, 20, sleep=1)
    A(f"v_mov_b32 v23, {F}")
    A(f"ds_read_b32 v61, v23 offset:{F_NON}")
    A("s_lshl_b32 s56, s49, 4")
    A("s_lshr_b32 s53, s53, s56")
    A("s_lshl_b32 s53, s53, 16")
    stamp(A)
    ACC, FR = 24, 64
    def reads(pl):
        b = FR + 64 * (pl % 2)
        fs = []
        for k in range(8):
            o = 128*(k & 1) + 16*pl
            fs.append(lambda k=k, o=o: A(f"ds_read2_b32 {v(b+4*k,2)}, v{12+k//2} offset0:{o} offset1:{o+1}"))
            fs.append(lambda k=k, o=o: A(f"ds_read2_b32 {v(b+4*k+2,2)}, v{12+k//2} offset0:{o+2} offset1:{o+3}"))
            fs.append(lambda k=k: A(f"ds_read_b128 {v(b+32+4*k,4)}, v16 offset:{3584 - 512*k + 64*pl}"))
        return fs
    XN, T, P1 = 192, 200, 216
    for a in range(4):
        A(f"ds_read_b64 {v(XN+2*a,2)}, v8 offset:{1536 - 512*a}", tag='xn')
    for f in reads(0): f()
    A.wait_lg('xn')
    for a in range(4):
        A(f"v_and_b32 v{T+4*a}, 0xffff0000, v{XN+2*a+1}")
        A(f"v_lshlrev_b32 v{T+4*a+1}, 16, v{XN+2*a+1}")
        A(f"v_and_b32 v{T+4*a+2}, 0xffff0000, v{XN+2*a}")
        A(f"v_lshlrev_b32 v{T+4*a+3}, 16, v{XN+2*a}")
    for r in range(16): A(f"v_mul_f32 v{T+r}, s53, v{T+r}")
    for k in range(8): A(f"v_cvt_pk_bf16_f32 v{P1+k}, v{T+2*k}, v{T+2*k+1}")
    for k in range(8):
        A(f"v_lshlrev_b32 v{T+2*k}, 16, v{P1+k}")
        A(f"v_and_b32 v{T+2*k+1}, 0xffff0000, v{P1+k}")
    A(f"s_setprio {OPT.get('cprio2', 0)}")
    for pl in range(4):
        A.wait_lg0()
        fs = reads(pl + 1) if pl < 3 else []
        b = FR + 64 * (pl % 2)
        first = set()
        for q in range(8):
            for w in range(8 - q):
                ib = q + w
                c = '0' if (pl == 0 and ib not in first) else v(ACC+4*ib, 4)
                first.add(ib)
                A(f"v_mfma_f32_16x16x32_bf16 {v(ACC+4*ib,4)}, {v(b+4*q,4)}, {v(b+32+4*w,4)}, {c}")
                if fs: fs.pop(0)()
    stamp(A)
    A("s_setprio 3")
    FF = 64
    A("s_cmp_eq_u32 s50, 0")
    A("s_cbranch_scc1 K_x0")
    for ph, lab in ((1, None), (0, 'K_x0')):
        if lab: A(f"{lab}:")
        send, keep = (4, 0) if ph == 0 else (0, 4)
        for a in range(4):
            A(f"ds_write_b128 v6, {v(ACC+4*(send+a),4)} offset:{1024*a}")
        A(f"ds_write_b32 v18, v17 offset:{F_XCH}")
        for r in range(16):
            A(f"v_mov_b32 v{FF+r}, v{ACC+4*keep+r}")
        if not lab: A("s_branch K_xe")
    A("K_xe:")
    A("v_and_b32 v8, 1, v3")
    A("v_lshlrev_b32 v8, 9, v8")
    A("v_lshl_add_u32 v8, v2, 5, v8")
    A("v_lshrrev_b32 v9, 1, v3")
    A("v_lshl_add_u32 v8, v9, 4, v8")
    A("s_lshl_b32 s56, s51, 12")
    A("s_lshl_b32 s57, s50, 11")
    A("s_add_u32 s56, s56, s57")
    spin(A, 19, F_XCH, 1, 20)
    R = 80
    for a in range(4):
        A(f"ds_read_b128 {v(R+4*a,4)}, v7 offset:{1024*a}", tag='r')
    A.wait_lg('r')
    for r in range(16): A(f"v_add_f32 v{FF+r}, v{FF+r}, v{R+r}")
    for k in range(8): A(f"v_cvt_pk_bf16_f32 v{P1+k}, v{FF+2*k}, v{FF+2*k+1}")
    for k in range(8):
        A(f"v_lshlrev_b32 v{FF+2*k}, 16, v{P1+k}")
        A(f"v_and_b32 v{FF+2*k+1}, 0xffff0000, v{P1+k}")
    for r in range(16): A(f"v_add_f32 v{FF+r}, v{FF+r}, v{T+r}")
    for k in range(8): A(f"v_cvt_pk_bf16_f32 v{P1+k}, v{FF+2*k}, v{FF+2*k+1}")
    for pr in range(2):
        A(f"v_permlane16_swap_b32 v{P1+4*pr}, v{P1+4*pr+2}")
        A(f"v_permlane16_swap_b32 v{P1+4*pr+1}, v{P1+4*pr+3}")
    for pr in range(2):
        A(f"buffer_store_dwordx4 {v(P1+4*pr,4)}, v8, s[40:43], s56 offen offset:{1024*pr} sc1")
    A("v_lshrrev_b32 v8, 3, v1")
    A("v_and_b32 v9, 7, v1")
    A("v_lshlrev_b32 v10, 12, v8")
    A("v_lshl_add_u32 v10, v9, 4, v10")
    A("v_bfe_u32 v11, v8, 1, 2")
    A("v_lshlrev_b32 v11, 1, v11")
    A("v_xor_b32 v11, v11, v9")
    A("v_lshlrev_b32 v11, 4, v11")
    A("v_lshl_add_u32 v11, v8, 7, v11")
    A("s_lshl_b32 s57, s50, 11")
    A("s_add_u32 s57, s57, s54")
    A("v_add_u32 v11, s57, v11")
    stamp(A)
    A("s_lshl_b32 s56, s81, 6")
    A("s_lshl_b32 s57, s48, 4")
    A("s_add_u32 s56, s56, s57")
    A("s_lshl_b32 s56, s56, 12")
    A("s_lshl_b32 s57, s80, 7")
    A("s_add_u32 s56, s56, s57")
    A("s_add_u32 s59, s56, 32768")
    spin(A, 18, F_GO, 1, 20, sleep=4)
    A("s_mov_b32 s79, 0")
    A("K_sp:")
    A("buffer_load_dwordx4 v[64:67], v10, s[40:43], s56 offen sc1")
    A("buffer_load_dwordx4 v[68:71], v10, s[40:43], s59 offen sc1")
    A("s_waitcnt vmcnt(0)")
    A("v_max3_u32 v12, v64, v65, v66")
    A("v_max3_u32 v13, v67, v68, v69")
    A("v_max3_u32 v12, v12, v70, v71")
    A("v_max_u32 v12, v12, v13")
    A("v_cmp_eq_u32 vcc, -1, v12")
    A("s_cbranch_vccz K_spd")
    A(f"s_sleep {OPT.get('ssleep', 4)}")
    A("s_add_u32 s79, s79, 1")
    A("s_cmp_lt_u32 s79, 0x1000")
    A("s_cbranch_scc1 K_sp")
    A("K_spd:")
    stamp(A)
    A("ds_write_b128 v11, v[64:67]")
    A("ds_write_b128 v11, v[68:71] offset:1024")
    A(f"ds_write_b32 v18, v17 offset:{F_SR}")
    finish(A)

def gemm(A):
    A("K_gemm:")
    A.reset_counters(); A.nst = 3
    A("s_setprio 2")
    A("v_and_b32 v19, 15, v1")
    A("v_lshrrev_b32 v3, 4, v1")
    srd(A, 40, 22, 3584)
    srd(A, 44, 24, 7340032, WS_H)
    A("v_bfe_u32 v6, v1, 2, 2")
    A("v_and_b32 v9, 1, v3")
    A("v_lshl_or_b32 v9, v9, 2, v6")
    A("v_lshl_add_u32 v10, v3, 3, v6")
    A("v_lshlrev_b32 v10, 8, v10")
    A("v_and_b32 v11, 3, v1")
    A("v_lshl_add_u32 v10, v11, 3, v10")
    A("s_and_b32 s68, s83, 1")
    AB, B1, ONES, FL, AF, ACC, XR = 12, 20, 36, 40, 44, 72, 128
    MN0, RE, BF, ACS, ARS, AQS, SA, C1, C2, C3, CSA, TM = 144, 148, 164, 192, 200, 208, 216, 220, 222, 224, 226, 236
    A("s_mul_i32 s53, s83, 224")
    A("v_lshlrev_b32 v7, 3, v3")
    for tau in range(7):
        A(f"s_lshl_b32 s59, s3, 1")
        A(f"s_add_u32 s59, s59, {tau}")
        A(f"s_sub_u32 s67, s59, 7")
        A(f"s_cmp_ge_u32 s59, 7")
        A(f"s_cselect_b32 s{60+tau}, s67, s59")
        A(f"s_add_u32 s59, s{60+tau}, s68")
        A(f"v_xor_b32 v11, s59, v9")
        A(f"v_lshl_add_u32 v{AB+tau}, v11, 5, v10")
        A(f"s_lshl_b32 s59, s{60+tau}, 6")
        A(f"s_add_u32 s59, s59, {L_CS}")
        A(f"v_lshl_add_u32 v{CSA+tau}, v3, 4, s59")
        A(f"s_lshl_b32 s59, s{60+tau}, 5")
        A(f"s_add_u32 s59, s59, {L_B1}")
        A(f"v_add_u32 v{B1+2*tau}, s59, v7")
    A("v_lshrrev_b32 v6, 1, v19")
    A("v_xor_b32 v6, v6, v3")
    A("v_lshlrev_b32 v6, 4, v6")
    A("v_lshl_add_u32 v6, v19, 7, v6")
    A("s_lshl_b32 s59, s3, 12")
    A("s_add_u32 s59, s59, 16384")
    A("v_add_u32 v4, s59, v6")
    A("v_xor_b32 v5, 64, v4")
    for i in range(4): A(f"v_mov_b32 v{ONES+i}, 0x3f803f80")
    A("v_mov_b32 v34, 1")
    A(f"s_lshl_b32 s59, s3, 2")
    A(f"s_add_u32 s59, s59, {F}")
    A("v_mov_b32 v35, s59")
    A(f"v_mov_b32 v2, {F}")
    MN = 152
    k0 = -2.0 * LOG2E * 0.7978845608028654
    A(f"v_mov_b32 v{C1}, {f2u(k0*0.044715)}")
    A(f"v_mov_b32 v{C2}, {f2u(k0)}")
    A(f"v_mov_b32 v{C3}, 1.0")
    A("s_lshl_b32 s59, s3, 8")
    A(f"s_add_u32 s59, s59, {L_S2}")
    A("v_lshl_add_u32 v160, v19, 3, s59")
    A("s_lshl_b32 s52, s82, 3")
    A("s_lshl_b32 s53, s3, 1")
    A("s_add_u32 s52, s52, s53")
    A("s_mul_i32 s52, s52, 57344")
    A("s_mul_i32 s53, s83, 3584")
    A("s_add_u32 s52, s52, s53")
    A("v_lshrrev_b32 v8, 1, v3")
    A("v_lshlrev_b32 v8, 8, v8")
    A("v_lshl_add_u32 v8, v19, 4, v8")
    A("v_add_u32 v8, s52, v8")
    A("v_and_b32 v10, 1, v3")
    A("v_cmp_eq_u32 vcc, 1, v10")
    for pr in range(4):
        A(f"s_lshl_b32 s59, s{60+2*pr}, 9")
        if pr < 3: A(f"s_lshl_b32 s67, s{60+2*pr+1}, 9")
        else: A(f"s_add_u32 s67, s59, 57344")
        A(f"v_mov_b32 v10, s59")
        A(f"v_mov_b32 v11, s67")
        A(f"v_cndmask_b32 v10, v10, v11, vcc")
        A(f"v_add_u32 v{SA+pr}, v10, v8")
    A("s_mov_b32 s59, 57344")
    DN = 206
    for u in range(9): A(f"v_mov_b32 v{DN+u}, {u+1}")
    def full_issue(u):
        if OPT.get('nofl'): return
        A(f"ds_read2_b32 {v(FL,2)}, v2 offset0:{u} offset1:{F_FX//4 + u}", tag=('fu', u))
    def full_eval(u):
        if OPT.get('nofl'): return
        L1, L2 = A.newlabel('fu'), A.newlabel('fu')
        A.wait_lg(('fu', u))
        A(f"v_and_b32 v{FL}, v{FL}, v{FL+1}")
        A(f"v_cmp_eq_u32 vcc, 1, v{FL}")
        A(f"s_cbranch_vccnz {L2}")
        A(f"{L1}:")
        A(f"ds_read2_b32 {v(FL,2)}, v2 offset0:{u} offset1:{F_FX//4 + u}")
        A.lg.pop()
        A("s_waitcnt lgkmcnt(0)")
        A(f"v_and_b32 v{FL}, v{FL}, v{FL+1}")
        A(f"v_cmp_eq_u32 vcc, 1, v{FL}")
        A(f"s_cbranch_vccz {L1}")
        A(f"{L2}:")
    def trread(j, tau, hh):
        if OPT.get('iso') == 'nord' and j > 0: return
        off = ((j//2) % 2) * 32768 + (j % 2) * 8192 + hh * 1024
        A(f"ds_read_b64_tr_b16 {v(AF+4*tau+2*hh,2)}, v{AB+tau} offset:{off}", tag=('a', j, tau))
    def xread(j, nt):
        off = ((j//2) % 2) * 32768 + nt * 2048
        A(f"ds_read_b128 {v(XR+8*(j%2)+4*nt,4)}, v{4 + j%2} offset:{off}", tag=('x', j))
    spin(A, 2, (F_FULL, F_FX), 2, FL, sleep=1)
    stamp(A)
    xread(0, 0); xread(0, 1)
    for tau in range(7):
        for hh in range(2): trread(0, tau, hh)
    for j in range(16):
        if j in (4, 8, 12): stamp(A)
        sl = XR + 8*(j % 2)
        def mf(acc, a, b):
            A(f"v_mfma_f32_16x16x32_bf16 {v(acc,4)}, {v(a,4)}, {v(b,4)}, {'0' if j == 0 else v(acc,4)}")
        flip = (j < 15 and (j + 1) % 4 == 0)
        A.wait_lg(('x', j), ('a', j, 0), ('a', j, 1))
        for tau in range(7):
            if tau % 2 == 0 and tau: A.wait_lg(('a', j, tau), ('a', j, min(tau+1, 6)))
            mf(ACC + 8*tau, AF + 4*tau, sl)
            if tau == 0:
                if j > 0: trread(j, 6, 0)
                if j % 2 == 1 and j < 15:
                    full_eval((j+1)//2)
                if flip: A(f"v_xor_b32 v4, 0x10000, v4"); A(f"v_xor_b32 v5, 0x10000, v5")
            elif j < 15: trread(j+1, tau-1, 0)
            if flip: A(f"v_xor_b32 v{AB+tau}, 0x10000, v{AB+tau}")
            if tau == 6 and j % 2 == 1:
                A(f"ds_write_b32 v35, v{DN + j//2} offset:{F_DONE}", tag='dn')
            if tau == 5 and j % 2 == 0 and j < 14:
                full_issue(j//2 + 1)
            mf(ACC + 8*tau + 4, AF + 4*tau, sl + 4)
            if j == 9:
                A(f"ds_read_b64 {v(B1+2*tau,2)}, v{B1+2*tau}", tag='b1')
            if j in (10, 12, 13, 14):
                if j == 10 and tau == 0: A.wait_lg('b1')
                kk = {10: 0, 12: 1, 13: 2, 14: 3}[j]
                if kk % 2 == 0: A(f"v_lshlrev_b32 v{BF+4*tau+kk}, 16, v{B1+2*tau+kk//2}")
                else: A(f"v_and_b32 v{BF+4*tau+kk}, 0xffff0000, v{B1+2*tau+kk//2}")
            if tau == 0:
                if j > 0: trread(j, 6, 1)
            elif j < 15: trread(j+1, tau-1, 1)
            if tau < 2:
                mf(ACS + 4*tau, AF + 4*tau, ONES)
                if j < 15: xread(j+1, tau)
            if j == 15 and tau == 4:
                for t2 in range(2):
                    A(f"ds_write_b128 v{CSA+t2}, {v(ACS+4*t2,4)}", tag='cw')
                A(f"ds_write_b32 v35, v34 offset:{F_CS}", tag='fl')
    stamp(A)
    if OPT.get('iso'):
        n = A.nst; finish(A); A.nst = n
    spin(A, 2, F_ST, 1, FL)
    for nt in range(2):
        A(f"ds_read_b64 {v(MN+4*nt,2)}, v160 offset:{128*nt}")
    spin(A, 2, F_CS, 4, FL)
    CS = 44
    for tau in range(7):
        A(f"ds_read_b128 {v(CS+4*tau,4)}, v{CSA+tau}", tag=('cs', tau))
    for nt in range(2): A(f"v_mov_b32 v{MN+4*nt+2}, v{MN+4*nt+1}")
    stamp(A)
    OUT = 192
    bc = "op_sel_hi:[1,0,1]"
    groups = [((0,0),(1,0)), ((2,0),(3,0)), ((4,0),(5,0)), ((6,0),(6,1)), ((0,1),(1,1)), ((2,1),(3,1)), ((4,1),(5,1))]
    for gi, grp in enumerate(groups):
        o = OUT + 4 * (gi % 4)
        chains = []
        for ti, (tau, nt) in enumerate(grp):
            A.wait_lg(('cs', tau))
            for pr in range(2):
                a = ACC + 8*tau + 4*nt + 2*pr
                t = TM + 2*(2*ti + pr)
                chains.append([
                    f"v_pk_fma_f32 {v(a,2)}, {v(CS+4*tau+2*pr,2)}, {v(MN+4*nt,2)}, {v(a,2)} {bc}",
                    f"v_pk_fma_f32 {v(a,2)}, {v(a,2)}, {v(MN+4*nt+2,2)}, {v(BF+4*tau+2*pr,2)} {bc}",
                    f"v_pk_mul_f32 {v(t,2)}, {v(a,2)}, {v(a,2)}",
                    f"v_pk_fma_f32 {v(t,2)}, {v(t,2)}, {v(C1,2)}, {v(C2,2)} op_sel_hi:[1,0,0]",
                    f"v_pk_mul_f32 {v(t,2)}, {v(t,2)}, {v(a,2)}",
                    f"v_exp_f32 v{t}, v{t}",
                    f"v_exp_f32 v{t+1}, v{t+1}",
                    f"v_pk_add_f32 {v(t,2)}, {v(t,2)}, {v(C3,2)} op_sel_hi:[1,0]",
                    f"v_rcp_f32 v{t}, v{t}",
                    f"v_rcp_f32 v{t+1}, v{t+1}",
                    f"v_pk_mul_f32 {v(t,2)}, {v(t,2)}, {v(a,2)}",
                    f"v_cvt_pk_bf16_f32 v{o+2*ti+pr}, v{t}, v{t+1}"])
        for ins in zip(*chains):
            for x in ins: A(x)
        A(f"v_permlane16_swap_b32 v{o}, v{o+2}")
        A(f"v_permlane16_swap_b32 v{o+1}, v{o+3}")
        so = 's59' if (grp[0][1] == 1) else '0'
        A(f"buffer_store_dwordx4 {v(o,4)}, v{SA+grp[0][0]//2}, s[44:47], {so} offen {OPT.get('hst','sc1')}", tag='hs')
    stamp(A)
    LA = int(OPT.get('LA', 3))
    NSTEP = 14
    A(f"ds_read_b32 v237, v2 offset:{F_NON}")
    srd(A, 36, 84, 1835008)
    srd(A, 40, 4, 2097152)
    srd(A, 64, 86, 1024)
    srd(A, 52, 88, 2097152)
    srd(A, 60, 24, FLSZ, WS_FLAG)
    A("v_lshlrev_b32 v236, 4, v1")
    for l in range(4):
        A(f"s_add_u32 s49, s3, {l}")
        A("s_and_b32 s49, s49, 3")
        A("s_mul_i32 s49, s49, 57344")
        A(f"v_add_u32 v{4+l}, s49, v236")
    A(f"s_mul_i32 s48, s80, {4*57344}")
    A("s_lshl_b32 s49, s3, 10")
    A("s_add_u32 s48, s48, s49")
    w2_voffs(A, 8, 12)
    A("s_lshl_b32 s50, s3, 15")
    A("v_bfe_u32 v16, v1, 2, 2")
    A("v_lshrrev_b32 v17, 1, v16")
    A("v_and_b32 v18, 1, v3")
    A("v_lshl_or_b32 v17, v18, 1, v17")
    A("v_lshl_add_u32 v18, v3, 3, v16")
    A("v_lshlrev_b32 v18, 7, v18")
    A("v_and_b32 v20, 3, v1")
    A("v_lshl_add_u32 v18, v20, 3, v18")
    A("v_add_u32 v18, s50, v18")
    for mt in range(4):
        A(f"v_xor_b32 v20, {mt}, v17")
        A(f"v_lshl_add_u32 v{12+mt}, v20, 5, v18")
    A("s_lshl_b32 s49, s80, 6")
    A("s_lshl_b32 s56, s3, 4")
    A("s_add_u32 s49, s49, s56")
    A("v_add_u32 v16, s49, v19")
    A("v_lshlrev_b32 v16, 10, v16")
    A("v_and_b32 v17, 1, v3")
    A("v_lshl_add_u32 v16, v17, 5, v16")
    A("v_lshrrev_b32 v17, 1, v3")
    A("v_lshl_add_u32 v16, v17, 4, v16")
    A("s_lshl_b32 s49, s81, 7")
    A("v_add_u32 v16, s49, v16")
    A("v_lshlrev_b32 v17, 3, v3")
    A("v_mov_b32 v44, 1")
    A("v_mov_b32 v45, v35")
    A("v_mov_b32 v46, v2")
    A("v_add_u32 v47, s50, v236")
    A("v_bfe_u32 v18, v1, 2, 2")
    A("v_lshl_add_u32 v18, v3, 2, v18")
    A("v_bfe_u32 v20, v18, 1, 2")
    A("v_xor_b32 v20, s3, v20")
    A("v_lshlrev_b32 v18, 7, v18")
    A("v_lshl_add_u32 v18, v20, 5, v18")
    A("v_and_b32 v20, 3, v1")
    A("v_lshl_add_u32 v18, v20, 3, v18")
    A(f"v_add_u32 v18, {L_CV}, v18")
    for k in range(1, 4):
        A(f"s_add_u32 s56, s3, {k}")
        A("s_and_b32 s56, s56, 3")
        A(f"s_lshl_b32 s56, s56, 15")
        A(f"s_add_u32 s56, s56, {(4-k)*4096}")
        A(f"v_add_u32 v{247+k}, s56, v236")
    A("s_lshl_b32 s56, s82, 1")
    A("s_lshr_b32 s57, s3, 1")
    A("s_add_u32 s56, s56, s57")
    A("s_lshl_b32 s56, s56, 10")
    A("s_lshl_b32 s57, s83, 3")
    A("s_add_u32 s56, s56, s57")
    A("s_and_b32 s57, s3, 1")
    A("s_lshl_b32 s57, s57, 2")
    A("s_add_u32 s56, s56, s57")
    A("v_lshlrev_b32 v238, 7, v1")
    A("v_and_b32 v239, 31, v1")
    A("v_lshlrev_b32 v239, 2, v239")
    spin(A, 46, F_NON, 1, 237, cmp='ne', val='0')
    A.wait_vm0()
    A("s_mov_b64 exec, 0xff")
    A(f"buffer_store_dword v237, v238, s[60:63], s56 offen {OPT.get('hst','sc1')}")
    A("s_mov_b64 exec, -1")
    stamp(A)
    A("buffer_load_dwordx4 v[20:23], v16, s[40:43], 0 offen")
    A("buffer_load_dwordx4 v[24:27], v16, s[40:43], 0 offen offset:64")
    for mt in range(4):
        A(f"buffer_load_dwordx2 {v(240+2*mt,2)}, v17, s[64:67], s49 offen offset:{32*mt}")
    A(f"s_setprio {OPT.get('gprio', 1)}")
    spin(A, 45, F_PRE, 1, 28, sleep=1)
    NRG = int(OPT.get('NRG', 3))
    NH = LA + 1
    AF, ACC, AR, HB = 28, 48, 112, 112 + 16*NRG
    assert HB + 16*NH <= 236, HB + 16*NH
    def afr(j): return AR + 16*j if j < NRG else AF
    def trread2(j, mt):
        for hh in range(2):
            A(f"ds_read_b64_tr_b16 {v(afr(j)+4*mt+2*hh,2)}, v{12+mt} offset:{(j % NR)*4096 + hh*512}", tag=('a', j, mt))
    def hloads(j):
        hb = HB + 16 * (j % NH)
        def first():
            rstep(A, 58, j)
            A("s_lshl_b32 s58, s58, 12")
            A("s_add_u32 s58, s58, s48")
        fs = [first]
        for nt in range(4):
            fs.append(lambda nt=nt: A(f"buffer_load_dwordx4 {v(hb+4*nt,4)}, v{4+nt}, s[44:47], s58 offen {OPT.get('hld','sc1')}", tag=('h', j)))
        return fs
    def wloads(j):
        def first():
            rstep(A, 59, j)
            A("s_lshl_b32 s59, s59, 17")
            A("s_add_u32 s59, s59, s50")
            A(f"s_add_u32 m0, s50, {(j % NR)*4096}")
            A(f"buffer_load_dwordx4 v8, s[36:39], s59 offen lds", tag=('w', j))
        return [first] + [(lambda q=q: A(f"buffer_load_dwordx4 v{8+q}, s[36:39], s59 offen offset:{1024*q} lds", tag=('w', j))) for q in range(1, 4)]
    for j in range(NRG + 1):
        for mt in range(4): trread2(j, mt)
        if j >= 1:
            A.wait_lg(('a', j-1, 3))
            for f in wloads(j - 1 + NR): f()
    A.wait_lg0()
    for f in wloads(NRG + NR) if NRG + NR < NSTEP else []: f()
    nextw = NRG + NR + 1
    A("s_lshl_b32 s56, s80, 10")
    A("s_lshl_b32 s57, s81, 7")
    A("s_add_u32 s56, s56, s57")
    FINE = bool(OPT.get('fine'))
    def need(j):
        T = (128*j + 127) // 112
        mask = (1 << (2*T + 2)) - 1
        L = A.newlabel('nd')
        A(f"s_and_b32 s76, s75, {mask}")
        A(f"s_cbranch_scc0 {L}_d")
        A("s_mov_b32 s79, 0")
        A(f"{L}:")
        A("buffer_load_dword v238, v239, s[60:63], s74 offen sc1"); A.vm.pop()
        A("s_waitcnt vmcnt(0)")
        A("v_cmp_ne_u32 vcc, v237, v238")
        A("s_mov_b32 s75, vcc_lo")
        A(f"s_and_b32 s76, s75, {mask}")
        A(f"s_cbranch_scc0 {L}_d")
        A(f"s_sleep {OPT.get('hsleep', 3)}")
        A("s_add_u32 s79, s79, 1")
        A("s_cmp_lt_u32 s79, 0x4000")
        A(f"s_cbranch_scc1 {L}")
        A(f"{L}_d:")
    if FINE:
        A("s_mov_b32 s74, s56")
        A("s_mov_b32 s75, -1")
        need(int(OPT.get('first', 1)))
        stamp(A)
        for j in range(LA):
            need(j)
            for f in hloads(j): f()
    else:
        A("s_cmp_lg_u32 s3, 0")
        A("s_cbranch_scc1 K_g1")
        vm = list(A.vm)
        gpoll(A, 239, 60, 's56', 238, 237, int(OPT.get('hsleep', 4)))
        A.vm = vm
        A(f"ds_write_b32 v46, v44 offset:{F_HR}")
        A("K_g1:")
        spin(A, 46, F_HR, 1, 238, sleep=1)
        stamp(A)
        for j in range(LA):
            for f in hloads(j): f()
    for j in range(NSTEP):
        if j in (4, 9): stamp(A)
        fs = hloads(j + LA) if j + LA < NSTEP else []
        if nextw < NSTEP and j - 1 >= nextw - NR:
            fs = fs + wloads(nextw); nextw += 1
        if j == int(OPT.get('GO', 7)): A(f"ds_write_b32 v45, v44 offset:{F_GO}", tag='go')
        A.wait_vm(('h', j), ('w', j + 1))
        if FINE and j + LA < NSTEP:
            if j >= LA and j - LA + 2*LA < NSTEP:
                A(f"v_cmp_ne_u32 vcc, v237, v{251 + (j % 3)}")
                A("s_and_b32 s75, s75, vcc_lo")
            need(j + LA)
            if j + 2*LA < NSTEP:
                A(f"buffer_load_dword v{251 + ((j + LA) % 3)}, v239, s[60:63], s74 offen sc1", tag=('h', j + LA))
        hb = HB + 16 * (j % NH)
        af = afr(j)
        if j + 1 < NSTEP:
            for mt in range(4):
                A.wait_lg(('a', j, mt))
                for nt in range(4):
                    acc = ACC + 16*nt + 4*mt
                    A(f"v_mfma_f32_16x16x32_bf16 {v(acc,4)}, {v(af+4*mt,4)}, {v(hb+4*nt,4)}, {'0' if j == 0 else v(acc,4)}")
                    if fs and nt < 3: fs.pop(0)()
                if j + 1 > NRG: trread2(j + 1, mt)
            while fs: fs.pop(0)()
        else:
            A.wait_lg0()
            pend = []
            for nt in (1, 2, 3, 0):
                for mt in range(4):
                    acc = ACC + 16*nt + 4*mt
                    A(f"v_mfma_f32_16x16x32_bf16 {v(acc,4)}, {v(af+4*mt,4)}, {v(hb+4*nt,4)}, {v(acc,4)}")
                    if len(pend) >= 4:
                        a2, o2 = pend.pop(0)
                        A(f"ds_write_b128 v47, {v(a2,4)} offset:{o2}")
                    if nt: pend.append((acc, (4*nt+mt)*1024))
            for a2, o2 in pend: A(f"ds_write_b128 v47, {v(a2,4)} offset:{o2}")
    assert nextw >= NSTEP
    A(f"ds_write_b32 v45, v44 offset:{F_RED}")
    stamp(A)
    BB, XX, SS, T = 176, 192, 208, 128
    for mt in range(4):
        for k in range(2):
            A(f"v_lshlrev_b32 v{BB+4*mt+2*k}, 16, v{240+2*mt+k}")
            A(f"v_and_b32 v{BB+4*mt+2*k+1}, 0xffff0000, v{240+2*mt+k}")
    for r in range(0, 16, 2):
        A(f"v_pk_add_f32 {v(ACC+r,2)}, {v(ACC+r,2)}, {v(BB+r,2)}")
    for k in range(8):
        A(f"v_lshlrev_b32 v{XX+2*k}, 16, v{20+k}")
        A(f"v_and_b32 v{XX+2*k+1}, 0xffff0000, v{20+k}")
    A(f"v_mov_b32 v232, {f2u(-LOG2E)}")
    A(f"v_mov_b32 v234, 1.0")
    spin(A, 46, F_RED, 4, 8)
    PR = 128
    for k in range(1, 4):
        for mt in range(4):
            A(f"ds_read_b128 {v(PR+16*(k-1)+4*mt,4)}, v{247+k} offset:{mt*1024}", tag=('p', k))
    for k in range(1, 4):
        A.wait_lg(('p', k))
        for r in range(0, 16, 2):
            A(f"v_pk_add_f32 {v(ACC+r,2)}, {v(ACC+r,2)}, {v(PR+16*(k-1)+r,2)}")
    for r in range(0, 16, 2):
        A(f"v_pk_mul_f32 {v(T+r,2)}, {v(ACC+r,2)}, {v(232,2)} op_sel_hi:[1,0]")
    for r in range(16): A(f"v_exp_f32 v{T+r}, v{T+r}")
    for r in range(0, 16, 2):
        A(f"v_pk_add_f32 {v(T+r,2)}, {v(T+r,2)}, {v(234,2)} op_sel_hi:[1,0]")
    for r in range(16): A(f"v_rcp_f32 v{T+r}, v{T+r}")
    for r in range(0, 16, 2):
        A(f"v_pk_mul_f32 {v(ACC+r,2)}, {v(ACC+r,2)}, {v(T+r,2)}")
    stamp(A)
    spin(A, 46, F_SR, 4, 8)
    stamp(A)
    for mt in range(4):
        A(f"ds_read_b64_tr_b16 {v(224+2*mt,2)}, v18 offset:{(mt>>1)*CVS + (mt&1)*2048}", tag='s')
    A.wait_lg('s')
    for mt in range(4):
        for k in range(2):
            A(f"v_lshlrev_b32 v{SS+4*mt+2*k}, 16, v{224+2*mt+k}")
            A(f"v_and_b32 v{SS+4*mt+2*k+1}, 0xffff0000, v{224+2*mt+k}")
    for r in range(0, 16, 2):
        A(f"v_pk_mul_f32 {v(ACC+r,2)}, {v(ACC+r,2)}, {v(SS+r,2)}")
    O = 160
    for r in range(0, 16, 2):
        A(f"v_cvt_pk_bf16_f32 v{O+r//2}, v{ACC+r}, v{ACC+r+1}")
    for pr in range(2):
        A(f"v_permlane16_swap_b32 v{O+4*pr}, v{O+4*pr+2}")
        A(f"v_permlane16_swap_b32 v{O+4*pr+1}, v{O+4*pr+3}")
    for k in range(8):
        A(f"v_lshlrev_b32 v{T+2*k}, 16, v{O+k}")
        A(f"v_and_b32 v{T+2*k+1}, 0xffff0000, v{O+k}")
    for k in range(8):
        A(f"v_pk_add_f32 {v(T+2*k,2)}, {v(T+2*k,2)}, {v(XX+2*k,2)}")
    for k in range(8):
        A(f"v_cvt_pk_bf16_f32 v{O+k}, v{T+2*k}, v{T+2*k+1}")
    A(f"buffer_store_dwordx4 {v(O,4)}, v16, s[52:55], 0 offen {OPT.get('sto','sc1')}")
    A(f"buffer_store_dwordx4 {v(O+4,4)}, v16, s[52:55], 0 offen offset:64 {OPT.get('sto','sc1')}")
    A("s_or_b32 s56, s2, s3")
    A("s_cmp_lg_u32 s56, 0")
    A("s_cbranch_scc1 K_g9")
    A("v_mov_b32 v238, 0")
    A("s_mov_b32 s56, 0x30000")
    A("s_mov_b64 exec, 1")
    A("buffer_store_dword v237, v238, s[60:63], s56 offen sc1")
    A("s_mov_b64 exec, -1")
    A("K_g9:")
    finish(A)

def build():
    A = Asm()
    A(f".globl {KN}\n.p2align 8\n.type {KN},@function")
    A(f"{KN}:")
    A("K_start:")
    prologue(A)
    loader(A)
    gemm(A)
    xwave(A)
    kgen(A)
    uload(A)
    conv(A)
    A("K_end:")
    A("s_endpgm")
    hdr = open('cdna_kernels/' + NAME + '.s.ref').read().split('; Override launch')[0] if os.path.exists('cdna_kernels/' + NAME + '.s.ref') else ''
    txt = hdr + f"; @launch grid=(256,1,1) block=(512,1,1) lds={L_SIZE}\n"
    txt += '.amdgcn_target "amdgcn-amd-amdhsa--gfx950"\n.text\n' + A.text() + 'CODE_END:\n.section .rodata,"a"\n'
    txt += f""".p2align 6
.amdhsa_kernel {KN}
  .amdhsa_next_free_vgpr 256
  .amdhsa_next_free_sgpr 102
  .amdhsa_accum_offset 256
  .amdhsa_group_segment_fixed_size 0
  .amdhsa_kernarg_size 136
  .amdhsa_user_sgpr_count 2
  .amdhsa_user_sgpr_kernarg_segment_ptr 1
  .amdhsa_system_sgpr_workgroup_id_x 1
.end_amdhsa_kernel
"""
    return txt

if __name__ == '__main__':
    out = sys.argv[1] if len(sys.argv) > 1 else f'cdna_kernels/{NAME}.s'
    open(out, 'w').write(build())
```

```python
import sys, os, struct
sys.path.insert(0, os.path.dirname(__file__))
from asmlib import Asm

NAME = 'recurrent_scan__ssm_conv_s4__mixer_channel_mlp__prompt'
KN = NAME + '_kernel'
WS_XN = 0
WS_H = 0x800000
WS_ST = 0x1000000
WS_FLAG = 0x1400000
WS_MB = 0x40000
FLSZ = 0xC0000
WS_DBG = 0x1800000
SRD3 = '0x00020000'
LOG2E = 1.4426950408889634
DEBUG = os.environ.get('KDEBUG', '0') == '1'
OPT = dict(kv.split('=') for kv in os.environ.get('KOPT', '').split(',') if kv)

def v(a, n=1): return f'v{a}' if n == 1 else f'v[{a}:{a+n-1}]'
def f2u(x): return '0x%08x' % struct.unpack('<I', struct.pack('<f', x))[0]
def srd(A, d, base, size, off=0):
    if off:
        A(f's_add_u32 s{d}, s{base}, {off}'); A(f's_addc_u32 s{d+1}, s{base+1}, 0')
    else:
        A(f's_mov_b32 s{d}, s{base}'); A(f's_mov_b32 s{d+1}, s{base+1}')
    A(f's_mov_b32 s{d+2}, {size}'); A(f's_mov_b32 s{d+3}, {SRD3}')
def bf16r(A, d, x, t):
    A(f'v_cvt_pk_bf16_f32 v{t}, v{x}, v{x}'); A(f'v_lshlrev_b32 v{d}, 16, v{t}')

def stamp(A, real=False):
    if not DEBUG: return
    A(f"{'s_memrealtime' if real else 's_memtime'} s[94:95]")
    A("s_waitcnt lgkmcnt(0)"); A.lg = []
    A(f"v_writelane_b32 v255, s94, {A.nst}")
    A.nst += 1
    assert A.nst <= 32
def finish(A):
    if DEBUG:
        A.wait_vm0()
        stamp(A); stamp(A, True)
        srd(A, 96, 24, 0x100000, WS_DBG)
        A("s_lshl_b32 s94, s2, 3"); A("s_add_u32 s94, s94, s3"); A("s_lshl_b32 s94, s94, 7")
        A("v_lshlrev_b32 v254, 2, v1")
        A(f"s_mov_b64 exec, {(1 << A.nst) - 1}")
        A("buffer_store_dword v255, v254, s[96:99], s94 offen")
    A("s_endpgm")

L_CV = 131072
CVS = 2 * 4160 + 4576
F = L_CV + 2 * CVS
F_FULL, F_DONE, F_XD, F_PRE, F_NON, F_KR, F_UR, F_XCH, F_CS, F_ST, F_SR, F_GO, F_RED = 0, 32, 48, 64, 80, 84, 92, 112, 128, 144, 160, 176, 192
F_HR, F_XR, F_XT = 100, 104, 108
F_FX = 208
F_PF = 240
L_CS = F + 256
L_ST = L_CS + 448
L_S2 = L_ST + 1024
L_B1 = L_S2 + 1024
L_SIZE = L_B1 + 256
SPARE = 28672
NR = 7

XROWS = [(0,0),(0,1),(0,2),(0,3),(1,0),(1,1),(1,2),(1,3),(2,0),(2,2),(4,0),(6,0),(3,0),(3,2),(5,0),(7,0),
         (8,0),(10,0),(12,0),(14,0),(9,0),(11,0),(13,0),(15,0),(16,0)]

def spin(A, areg, off, n, t, sleep=0, cmp='eq', val='1'):
    L = A.newlabel('sp')
    A(f"{L}:")
    if n == 1: A(f"ds_read_b32 v{t}, v{areg} offset:{off}")
    elif n == 2: A(f"ds_read2_b32 {v(t,2)}, v{areg} offset0:{off[0]//4} offset1:{off[1]//4}")
    else: A(f"ds_read_b128 {v(t,4)}, v{areg} offset:{off}")
    A("s_waitcnt lgkmcnt(0)")
    if n == 2: A(f"v_min_u32 v{t}, v{t}, v{t+1}")
    if n == 4:
        A(f"v_min_u32 v{t}, v{t}, v{t+1}"); A(f"v_min3_u32 v{t}, v{t}, v{t+2}, v{t+3}")
    A(f"v_cmp_{cmp}_u32 vcc, {val}, v{t}")
    if sleep:
        A(f"s_cbranch_vccnz {L}_d"); A(f"s_sleep {sleep}"); A(f"s_branch {L}"); A(f"{L}_d:")
    else:
        A(f"s_cbranch_vccz {L}")
    A.lg = []

def gpoll(A, vaddr, srdr, soff, t, nonce, sleep):
    L = A.newlabel('gp')
    A("s_mov_b32 s79, 0")
    A(f"{L}:")
    A(f"buffer_load_dword v{t}, v{vaddr}, s[{srdr}:{srdr+3}], {soff} offen sc1")
    A("s_waitcnt vmcnt(0)")
    A(f"v_cmp_ne_u32 vcc, v{nonce}, v{t}")
    A(f"s_cbranch_vccz {L}_d")
    A(f"s_sleep {sleep}")
    A("s_add_u32 s79, s79, 1")
    A("s_cmp_lt_u32 s79, 0x4000")
    A(f"s_cbranch_scc1 {L}")
    A(f"{L}_d:")
    A.vm = []

def prologue(A):
    A("s_cmp_ge_u32 s2, 256")
    A("s_cbranch_scc1 K_end")
    A.nst = 0
    A("s_load_dwordx16 s[4:19], s[0:1], 0")
    A("s_load_dwordx4 s[20:23], s[0:1], 80")
    A("s_load_dwordx2 s[24:25], s[0:1], 128")
    A("s_load_dwordx4 s[84:87], s[0:1], 96")
    A("s_load_dwordx4 s[88:91], s[0:1], 112")
    A("s_load_dwordx2 s[92:93], s[0:1], 64")
    A("v_lshrrev_b32 v2, 6, v0")
    A("v_and_b32 v1, 63, v0")
    A("v_mov_b32 v3, 0")
    A("v_readfirstlane_b32 s3, v2")
    A("v_min_u32 v4, 63, v1")
    A("v_lshlrev_b32 v4, 2, v4")
    A(f"v_add_u32 v4, {F}, v4")
    A("ds_write_b32 v4, v3")
    A("s_and_b32 s26, s2, 7")
    A("s_lshr_b32 s27, s2, 3")
    A("s_lshl_b32 s28, s26, 5")
    A("s_add_u32 s28, s28, s27")
    m1, m2 = OPT.get('map', 'ab')
    A("s_lshr_b32 s29, s26, 1")
    A("s_and_b32 s30, s26, 1")
    if m1 == 'a':
        A("s_lshl_b32 s82, s29, 2"); A("s_and_b32 s31, s27, 3"); A("s_add_u32 s82, s82, s31")
        A("s_lshl_b32 s83, s30, 3"); A("s_lshr_b32 s31, s27, 2"); A("s_add_u32 s83, s83, s31")
    elif m1 == 'c':
        A("s_lshr_b32 s82, s26, 2"); A("s_lshl_b32 s82, s82, 3"); A("s_and_b32 s31, s27, 7"); A("s_add_u32 s82, s82, s31")
        A("s_and_b32 s83, s26, 3"); A("s_lshl_b32 s83, s83, 2"); A("s_lshr_b32 s31, s27, 3"); A("s_add_u32 s83, s83, s31")
    else:
        A("s_lshl_b32 s82, s26, 1"); A("s_and_b32 s31, s27, 1"); A("s_add_u32 s82, s82, s31")
        A("s_lshr_b32 s83, s27, 1")
    if m2 == 'a':
        A("s_lshl_b32 s80, s29, 3"); A("s_and_b32 s31, s27, 7"); A("s_add_u32 s80, s80, s31")
        A("s_lshl_b32 s81, s30, 2"); A("s_lshr_b32 s31, s27, 3"); A("s_add_u32 s81, s81, s31")
    else:
        A("s_lshl_b32 s80, s26, 2"); A("s_and_b32 s31, s27, 3"); A("s_add_u32 s80, s80, s31")
        A("s_lshr_b32 s81, s27, 2")
    A(f"s_mul_i32 s78, s81, {OPT.get('rmul', 7)}")
    A("s_lshr_b32 s78, s78, 2")
    p1_voffs(A, 8, 20)
    A("v_mov_b32 v16, 1")
    A("s_cmp_eq_u32 s3, 6")
    A("s_cselect_b64 vcc, -1, 0")
    A(f"s_cselect_b32 s46, {F + F_FX}, {F + F_FULL}"[:0] + f"s_mov_b32 s46, {F + F_FULL}")
    A(f"s_cselect_b32 s46, {F + F_FX}, s46")
    A("s_cselect_b32 s47, 16384, 0")
    A(f"s_mov_b32 s48, {16*3584}")
    A("s_cselect_b32 s48, 32768, s48")
    A(f"s_cselect_b32 s49, {(128 - 4*32768) & 0xffffffff}, 0")
    A("s_mov_b32 s38, 1835008")
    A("s_cselect_b32 s38, 2097152, s38")
    A(f"s_mov_b32 s39, {SRD3}")
    for q in range(4): A(f"v_cndmask_b32 v{8+q}, v{8+q}, v{12+q}, vcc")
    A("v_mov_b32 v18, s46")
    A(f"v_mov_b32 v17, {F}")
    A("s_mov_b32 s57, 0")
    stamp(A, True); stamp(A)
    A("s_waitcnt lgkmcnt(0)")
    A("s_cmp_eq_u32 s3, 6")
    A("s_cselect_b32 s36, s4, s20")
    A("s_cselect_b32 s37, s5, s21")
    A("s_cmp_lt_u32 s3, 6")
    A("s_cbranch_scc1 K_disp")
    p1_stream(A)
    A("s_cmp_eq_u32 s3, 6")
    A("s_cbranch_scc1 K_w6")
    A("s_branch K_w7")
    A("K_disp:")
    A("s_barrier")
    A.nst = 2
    stamp(A)
    A.reset_counters()
    A("s_cmp_lt_u32 s3, 4")
    A("s_cbranch_scc1 K_gemm")
    A("s_cmp_eq_u32 s3, 4")
    A("s_cbranch_scc1 K_x")
    A("s_branch K_k5")

def w2_voffs(A, d, t):
    A(f"v_lshrrev_b32 v{t}, 3, v1")
    A(f"v_and_b32 v{t+1}, 7, v1")
    A(f"v_bfe_u32 v{t+2}, v1, 4, 1")
    A(f"v_lshlrev_b32 v{t+2}, 1, v{t+2}")
    A(f"v_xor_b32 v{t+1}, v{t+1}, v{t+2}")
    A(f"v_lshlrev_b32 v{t}, 10, v{t}")
    A("s_lshl_b32 s49, s81, 7")
    A(f"v_add_u32 v{t}, s49, v{t}")
    for q in range(4):
        A(f"v_xor_b32 v{t+2}, {4*(q&1)}, v{t+1}")
        A(f"v_lshl_add_u32 v{d+q}, v{t+2}, 4, v{t}")
        if q: A(f"v_add_u32 v{d+q}, {q*(8192-1024)}, v{d+q}")

def p1_voffs(A, d, t):
    A(f"v_and_b32 v{t}, 15, v1")
    A(f"v_lshrrev_b32 v{t+1}, 4, v1")
    A("s_mul_i32 s53, s83, 224")
    A("s_and_b32 s53, s53, 0xffffffc0")
    A(f"v_mul_u32_u24 v{t+2}, 3584, v{t+1}")
    A(f"v_add_u32 v{t+2}, s53, v{t+2}")
    A(f"v_lshlrev_b32 v{t+3}, 1, v{t+1}")
    A(f"v_xor_b32 v{t+3}, v{t+3}, v{t}")
    for q in range(4):
        A(f"v_xor_b32 v{t+4}, {8*((q>>1)&1)}, v{t+3}")
        A(f"v_lshl_add_u32 v{d+q}, v{t+4}, 4, v{t+2}")
        if q: A(f"v_add_u32 v{d+q}, {q*(4*3584-1024)}, v{d+q}")
    A(f"v_lshrrev_b32 v{t+2}, 3, v1")
    A(f"v_and_b32 v{t+4}, 7, v1")
    A(f"v_xor_b32 v{t+3}, v{t+1}, v{t+4}")
    A("s_lshl_b32 s52, s82, 7")
    A(f"v_add_u32 v{t+2}, s52, v{t+2}")
    A(f"v_lshlrev_b32 v{t+2}, 10, v{t+2}")
    for q in range(4):
        A(f"v_xor_b32 v{t+4}, {4*(q&1)}, v{t+3}")
        A(f"v_lshl_add_u32 v{d+4+q}, v{t+4}, 4, v{t+2}")
        if q: A(f"v_add_u32 v{d+4+q}, {q*(8192-1024)}, v{d+4+q}")

NG = int(OPT.get('NG', 0))

def rstep(A, d, j):
    A(f"s_add_u32 s{d}, s78, {j}")
    A(f"s_sub_u32 s77, s{d}, 14")
    A(f"s_cmp_ge_u32 s{d}, 14")
    A(f"s_cselect_b32 s{d}, s77, s{d}")

def wait_free(A, n):
    L1 = A.newlabel('fr')
    A(f"{L1}:")
    A(f"ds_read_b128 v[20:23], v17 offset:{F_DONE}")
    A("s_waitcnt lgkmcnt(0)")
    A("v_min_u32 v20, v20, v21")
    A("v_min3_u32 v20, v20, v22, v23")
    A(f"v_cmp_le_u32 vcc, {n}, v20")
    A(f"s_cbranch_vccnz {L1}_d"); A(f"s_sleep {OPT.get('fsleep', 2)}"); A(f"s_branch {L1}"); A(f"{L1}_d:")
    A.lg = []

def p1_stream(A):
    A.reset_counters()
    A("s_setprio 3")
    def issue(u):
        base = (u % 4) * 32768
        for qq in range(4):
            A(f"s_add_u32 m0, s47, {base + qq*4096}")
            for q in range(4):
                A(f"buffer_load_dwordx4 v{8+q}, s[36:39], s57 offen offset:{1024*q} lds", tag=('u', u))
            A("s_add_u32 s57, s57, s48")
        A("s_add_u32 s57, s57, s49")
    def post(u):
        A.wait_vm(('u', u))
        A(f"ds_write_b32 v18, v16 offset:{4*u}")
    if OPT.get('early', '1') == '1': issue(0)
    A("s_barrier")
    if OPT.get('early', '1') != '1': issue(0)
    A.nst = 2
    stamp(A)
    issue(1); post(0)
    srd(A, 40, 22, 3584)
    A("v_lshlrev_b32 v19, 2, v1")
    A("s_mul_i32 s53, s83, 224")
    A(f"s_mov_b32 m0, {L_B1}")
    A("buffer_load_dword v19, s[40:43], s53 offen lds", tag='b1')
    for u in range(2, 8):
        if u >= 4: wait_free(A, u - 3)
        issue(u); post(u-1)
    post(7)

def loader(A):
    A("K_w7:")
    A.reset_counters(); A.nst = 3
    srd(A, 40, 84, 1835008)
    w2_voffs(A, 8, 4)
    stamp(A)
    A(f"s_setprio {OPT.get('lprio', 1)}")
    for w in range(4):
        wait_free(A, 5 + w)
        for j in range(NR):
            A(f"s_mov_b32 m0, {w*32768 + j*4096}")
            rstep(A, 57, j)
            A("s_lshl_b32 s57, s57, 17")
            A(f"s_add_u32 s57, s57, {w*32768}")
            for q in range(4):
                A(f"buffer_load_dwordx4 v{8+q}, s[40:43], s57 offen offset:{1024*q} lds", tag=('w', w))
        if w:
            A.wait_vm(('w', w-1)); A(f"ds_write_b32 v17, v16 offset:{F_PRE + 4*(w-1)}")
    A.wait_vm(('w', 3)); A(f"ds_write_b32 v17, v16 offset:{F_PRE + 12}")
    stamp(A)
    A("s_branch K_conv")

def xwave(A):
    A("K_x:")
    if OPT.get('iso'): A("s_endpgm")
    A.reset_counters(); A.nst = 3
    A(f"s_setprio {OPT.get('x0prio', 3)}")
    srd(A, 32, 4, 2097152)
    srd(A, 36, 24, 2097152, WS_XN)
    srd(A, 44, 24, FLSZ, WS_FLAG)
    A("v_lshlrev_b32 v2, 4, v1")
    A("v_mov_b32 v60, 0")
    A("s_mov_b32 s40, 0x30000")
    A("buffer_load_dword v61, v60, s[44:47], s40 offen sc1", tag='e')
    A("s_lshl_b32 s29, s28, 13")
    A("v_add_u32 v3, 4096, v2")
    X = 160
    for t in range(8):
        A(f"buffer_load_dwordx4 {v(X+4*t,4)}, v{2 + t//4}, s[32:35], s29 offen offset:{(t%4)*1024}", tag=('x', t))
    A("s_getpc_b64 s[40:41]")
    A("K_pc:")
    A("s_sub_u32 s40, s40, K_pc-K_start")
    A("s_subb_u32 s41, s41, 0")
    A("s_mov_b32 s42, CODE_END-K_start")
    A(f"s_mov_b32 s43, {SRD3}")
    A("v_lshlrev_b32 v4, 7, v1")
    A("s_and_b32 s48, s27, 3")
    A("s_lshl_b32 s48, s48, 13")
    A("buffer_load_dword v5, v4, s[40:43], s48 offen", tag='c')
    A(f"v_mov_b32 v6, {F}")
    A("s_lshl_b32 s31, s28, 2")
    A("s_load_dword s63, s[18:19], s31")
    A("s_lshl_b32 s31, s28, 9")
    A("s_add_u32 s31, s31, 256")
    A("v_lshlrev_b32 v4, 2, v1")
    for i in range(6):
        srd(A, 40, 6 + 2*i, 131072)
        A(f"buffer_load_dword v{52+i}, v4, s[40:43], s31 offen", tag='p')
    A("v_mov_b32 v4, 0x3f803f80")
    S, Q = 64, 72
    A.wait_vm('e')
    A("v_add_u32 v61, 1, v61")
    A("v_max_u32 v61, 1, v61")
    A(f"ds_write_b32 v6, v61 offset:{F_NON}")
    for t in range(8):
        A.wait_vm(('x', t))
        for k in range(4):
            A(f"v_dot2_f32_bf16 v{S+t}, v{X+4*t+k}, v4, {'0' if k == 0 else 'v%d' % (S+t)}")
            A(f"v_dot2_f32_bf16 v{Q+t}, v{X+4*t+k}, v{X+4*t+k}, {'0' if k == 0 else 'v%d' % (Q+t)}")
    for B in (S, Q):
        for t in range(4): A(f"v_permlane32_swap_b32 v{B+t}, v{B+t+4}")
    for B in (S, Q):
        for t in range(4): A(f"v_add_f32 v{B+t}, v{B+t}, v{B+t+4}")
    for B in (S, Q):
        for t in range(2): A(f"v_permlane16_swap_b32 v{B+t}, v{B+t+2}")
    for B in (S, Q):
        for t in range(2): A(f"v_add_f32 v{B+t}, v{B+t}, v{B+t+2}")
    for sh in (8, 4, 2, 1):
        for r in (S, S+1, Q, Q+1):
            A(f"v_add_f32_dpp v{r}, v{r}, v{r} row_ror:{sh} row_mask:0xf bank_mask:0xf")
    seqs = []
    for t in range(2):
        m, q, G = S+t, Q+t, 80 + 4*t
        t1, t2, t3, t4 = 88+4*t, 89+4*t, 90+4*t, 91+4*t
        L = []
        def br(d, x): L.extend([f'v_cvt_pk_bf16_f32 v{t4}, v{x}, v{x}', f'v_lshlrev_b32 v{d}, 16, v{t4}'])
        L.append(f"v_mul_f32 v{m}, {f2u(1/512)}, v{m}")
        L.append(f"v_mul_f32 v{q}, {f2u(1/512)}, v{q}")
        L.append(f"v_fma_f32 v{q}, -v{m}, v{m}, v{q}")
        L.append(f"v_max_f32 v{q}, 0, v{q}")
        br(t1, q)
        L.append(f"v_add_f32 v{t1}, {f2u(1e-5)}, v{t1}")
        br(t1, t1)
        L.append(f"v_sqrt_f32 v{t1}, v{t1}")
        L.append(f"v_cvt_pk_bf16_f32 v{G}, v{m}, v{t1}")
        L.append(f"v_and_b32 v{t1}, 0xffff0000, v{G}")
        L.append(f"v_rcp_f32 v{t2}, v{t1}")
        L.append(f"v_lshlrev_b32 v{t3}, 16, v{G}")
        L.append(f"v_sub_f32 v{m}, v{m}, v{t3}")
        L.append(f"v_mul_f32 v{m}, v{m}, v{t2}")
        L.append(f"v_mul_f32 v{q}, v{q}, v{t2}")
        L.append(f"v_mul_f32 v{q}, v{q}, v{t2}")
        br(q, q)
        L.append(f"v_add_f32 v{q}, {f2u(1e-5)}, v{q}")
        br(q, q)
        L.append(f"v_sqrt_f32 v{q}, v{q}")
        L.append(f"v_mov_b32 v{G+1}, v61")
        L.append(f"v_cvt_pk_bf16_f32 v{G+2}, v{m}, v{q}")
        L.append(f"v_mov_b32 v{G+3}, v61")
        seqs.append(L)
    for x, y in zip(*seqs): A(x); A(y)
    A("v_and_b32 v8, 15, v1")
    A("v_lshlrev_b32 v8, 11, v8")
    A("v_lshrrev_b32 v9, 4, v1")
    A("v_lshl_add_u32 v8, v9, 5, v8")
    A("s_lshr_b32 s41, s28, 4")
    A("s_lshl_b32 s41, s41, 15")
    A("s_and_b32 s42, s28, 15")
    A("s_lshl_b32 s42, s42, 7")
    A("s_add_u32 s41, s41, s42")
    A(f"s_add_u32 s41, s41, {WS_MB}")
    for t in range(2):
        A(f"buffer_store_dwordx4 {v(80+4*t,4)}, v8, s[44:47], s41 offen offset:{16*t} {OPT.get('hst','sc1')}")
    stamp(A)
    for t in range(2):
        for rho in range(4):
            A(f"v_readlane_b32 s{64 + t + 2*rho}, v{90+4*t}, {16*rho}")
            A(f"v_readlane_b32 s{48 + t + 2*rho}, v{89+4*t}, {16*rho}")
    FF, O = 96, 112
    for i in range(4):
        for h, t in enumerate((7 - 2*i, 6 - 2*i)):
            for k in range(4):
                lo, hi, x = FF + 8*h + 2*k, FF + 8*h + 2*k + 1, X + 4*t + k
                A(f"v_lshlrev_b32 v{lo}, 16, v{x}")
                A(f"v_and_b32 v{hi}, 0xffff0000, v{x}")
                A(f"v_subrev_f32 v{lo}, s{64+t}, v{lo}")
                A(f"v_subrev_f32 v{hi}, s{64+t}, v{hi}")
                if not OPT.get('fastln'):
                    A(f"v_cvt_pk_bf16_f32 v{x}, v{lo}, v{hi}")
                    A(f"v_lshlrev_b32 v{lo}, 16, v{x}")
                    A(f"v_and_b32 v{hi}, 0xffff0000, v{x}")
                A(f"v_mul_f32 v{lo}, s{48+t}, v{lo}")
                A(f"v_mul_f32 v{hi}, s{48+t}, v{hi}")
        for dl in range(8):
            A(f"v_cvt_pk_bf16_f32 v{O+4*dl+i}, v{FF+dl}, v{FF+8+dl}")
    for dl in range(8):
        A(f"buffer_store_dwordx4 {v(O+4*dl,4)}, v{2 + dl//4}, s[36:39], s29 offen offset:{1024*(dl%4)} sc1")
    A("s_lshl_b32 s42, s28, 2")
    A("s_add_u32 s42, s42, 0x8000")
    spin(A, 6, F_PF, 1, 9, sleep=1)
    A.wait_vm0()
    A("s_mov_b64 exec, 1")
    A("buffer_store_dword v61, v60, s[44:47], s42 offen sc1")
    A("s_mov_b64 exec, -1")
    stamp(A)
    A("s_mov_b32 s29, 1")
    A("s_branch K_k6")

def kgen(A):
    A("K_w6:")
    A.reset_counters(); A.nst = 3
    stamp(A)
    srd(A, 36, 24, 2097152, WS_XN)
    srd(A, 44, 24, FLSZ, WS_FLAG)
    A(f"v_mov_b32 v6, {F}")
    A("v_lshlrev_b32 v2, 4, v1")
    spin(A, 6, F_NON, 1, 61, sleep=1, cmp='ne', val='0')
    A("s_lshl_b32 s41, s82, 4")
    A("s_add_u32 s41, s41, s83")
    A("s_lshl_b32 s41, s41, 11")
    A(f"s_add_u32 s41, s41, {WS_MB}")
    A("s_mov_b32 s79, 0")
    A("K_x2:")
    A("buffer_load_dwordx4 v[64:67], v2, s[44:47], s41 offen sc1")
    A("buffer_load_dwordx4 v[68:71], v2, s[44:47], s41 offen offset:1024 sc1")
    A("s_waitcnt vmcnt(0)")
    A("v_xor_b32 v72, v61, v65")
    A("v_xor_b32 v73, v61, v67")
    A("v_xor_b32 v74, v61, v69")
    A("v_xor_b32 v75, v61, v71")
    A("v_or3_b32 v72, v72, v73, v74")
    A("v_or_b32 v72, v72, v75")
    A("v_cmp_ne_u32 vcc, 0, v72")
    A("s_cbranch_vccz K_x3")
    A("s_sleep 6")
    A("s_add_u32 s79, s79, 1")
    A("s_cmp_lt_u32 s79, 0x4000")
    A("s_cbranch_scc1 K_x2")
    A("K_x3:")
    A.reset_counters()
    A(f"s_setprio {OPT.get('xprio', 3)}")
    for i in range(2):
        g, o = 64 + 4*i, 72 + 8*i
        A(f"v_and_b32 v{o+4}, 0xffff0000, v{g}")
        A(f"v_lshlrev_b32 v{o+5}, 16, v{g}")
        A(f"v_and_b32 v{o+6}, 0xffff0000, v{g+2}")
        A(f"v_lshlrev_b32 v{o+7}, 16, v{g+2}")
        A(f"v_rcp_f32 v{o}, v{o+4}")
        A(f"v_rcp_f32 v{o+3}, v{o+6}")
        A(f"v_fma_f32 v{o+2}, -v{o+7}, v{o+4}, -v{o+5}")
        A(f"v_mul_f32 v{o+3}, v{o+3}, v{o}")
    A("v_lshlrev_b32 v8, 3, v1")
    A(f"v_add_u32 v8, {L_ST}, v8")
    A("v_mov_b32 v7, 1")
    for i in range(2):
        A(f"ds_write_b64 v8, {v(74+8*i,2)} offset:{1024 + 512*i}")
    A(f"ds_write_b32 v6, v7 offset:{F_ST}")
    stamp(A)
    A("s_branch K_uload")
    A("K_k5:")
    if OPT.get('iso'): A("s_endpgm")
    A.reset_counters(); A.nst = 3
    A("s_setprio 3")
    A("s_mov_b32 s29, 0")
    A("s_lshl_b32 s31, s28, 2")
    A("s_load_dword s63, s[18:19], s31")
    A("s_lshl_b32 s31, s28, 9")
    A("v_lshlrev_b32 v2, 2, v1")
    for i in range(6):
        srd(A, 32, 6 + 2*i, 131072)
        A(f"buffer_load_dword v{52+i}, v2, s[32:35], s31 offen", tag='p')
    srd(A, 36, 20, 0 if OPT.get('now1t') else 1835008)
    A("v_lshlrev_b32 v5, 4, v1")
    A("s_mul_i32 s40, s2, 7168")
    for i in range(7):
        if i == 4: A("s_add_u32 s40, s40, 4096")
        A(f"buffer_load_dwordx4 {v(208+4*i,4)}, v5, s[36:39], s40 offen offset:{1024*(i%4)}", tag='t')
    srd(A, 40, 24, 2097152, WS_ST)
    A("s_lshl_b32 s44, s28, 13")
    A("v_mov_b32 v8, -1\nv_mov_b32 v9, -1\nv_mov_b32 v10, -1\nv_mov_b32 v11, -1")
    for i in range(8):
        if i == 4: A("s_add_u32 s44, s44, 4096")
        A(f"buffer_store_dwordx4 v[8:11], v5, s[40:43], s44 offen offset:{1024*(i%4)} sc1", tag='t')
    A("K_k6:")
    A(f"v_mov_b32 v3, {F}")
    A(f"s_mul_i32 s54, s29, {CVS}")
    A(f"s_add_u32 s54, s54, {L_CV}")
    A("s_lshl_b32 s61, s29, 16")
    A(f"s_add_u32 s61, s61, {SPARE}")
    A("s_mov_b32 s45, 32768")
    WA, RA = 244, 252
    A("v_and_b32 v5, 31, v1")
    A("v_lshlrev_b32 v5, 7, v5")
    A("v_lshrrev_b32 v6, 5, v1")
    A("v_mul_u32_u24 v6, s45, v6")
    A("v_add3_u32 v5, v5, v6, s61")
    A("v_and_b32 v6, 7, v1")
    for c in range(8):
        A(f"v_xor_b32 v7, {c}, v6")
        A(f"v_lshl_add_u32 v{WA+c}, v7, 4, v5")
    A("v_bfe_u32 v5, v1, 2, 2")
    A("v_lshrrev_b32 v6, 5, v1")
    A("v_lshlrev_b32 v6, 2, v6")
    A("v_lshrrev_b32 v7, 1, v5")
    A("v_add_u32 v6, v6, v7")
    A("v_and_b32 v5, 1, v5")
    A("v_lshlrev_b32 v5, 2, v5")
    A("v_bfe_u32 v7, v1, 4, 1")
    A("v_lshl_add_u32 v5, v7, 1, v5")
    A("v_bfe_u32 v7, v1, 1, 1")
    A("v_add_u32 v5, v5, v7")
    A("v_and_b32 v7, 1, v1")
    A("v_lshlrev_b32 v7, 3, v7")
    A("v_add_u32 v7, s61, v7")
    for hh in range(2):
        if hh: A("v_add_u32 v6, 2, v6")
        A(f"v_xor_b32 v15, v5, v6")
        A(f"v_lshl_add_u32 v15, v15, 4, v7")
        A(f"v_lshl_add_u32 v{RA+hh}, v6, 7, v15")
        A(f"v_add_u32 v{18+hh}, s45, v{RA+hh}")
    A("s_waitcnt lgkmcnt(0)")
    A("s_lshl_b32 s62, s29, 4")
    A("s_lshr_b32 s60, s63, s62")
    A("s_lshl_b32 s60, s60, 16")
    A(f"v_mov_b32 v14, {f2u(LOG2E)}")
    A("v_mul_f32 v14, s60, v14")
    A("v_exp_f32 v14, v14")
    bf16r(A, 14, 14, 15)
    XV, PKB = 60, 112
    A.wait_vm('p')
    A("s_setprio 3")
    A.nst = 5
    stamp(A)
    Z = {1: (20, 22), 2: (24, 26), 3: (28, 30), 8: (32, 34), 256: (36, 38), 4: (41, 43), 128: (21, 23)}
    def smul(d, x, y):
        A(f"v_mul_f32 v{d[0]}, v{x[0]}, v{y[0]}")
        A(f"v_mul_f32 v{d[1]}, v{x[0]}, v{y[1]}")
        A(f"v_fma_f32 v{d[0]}, -v{x[1]}, v{y[1]}, v{d[0]}")
        A(f"v_fmac_f32 v{d[1]}, v{x[1]}, v{y[0]}")
    def cm2(l):
        for d, x, m in l:
            A(f"v_pk_mul_f32 {v(d,2)}, {v(x,2)}, {v(m[0],2)} op_sel_hi:[1,0]")
            A(f"v_pk_mul_f32 {v(d+2,2)}, {v(x,2)}, {v(m[1],2)} op_sel_hi:[1,0]")
        for d, x, m in l:
            A(f"v_pk_fma_f32 {v(d,2)}, {v(x+2,2)}, {v(m[1],2)}, {v(d,2)} op_sel_hi:[1,0,1] neg_lo:[0,1,0] neg_hi:[0,1,0]")
            A(f"v_pk_fma_f32 {v(d+2,2)}, {v(x+2,2)}, {v(m[0],2)}, {v(d+2,2)} op_sel_hi:[1,0,1]")
    pairs = [(a, 0) for a in range(0, 17, 2)] + [(0, 1), (0, 2), (0, 3), (2, 2)]
    XP = {ae: XV + 4*i for i, ae in enumerate(pairs)}
    def xre(row):
        a, e = XROWS[row]
        return XP[(a & ~1, e)] + (a & 1)
    for half in range(2):
        PW, PX = PKB + 64*half, PKB + 64*half + 32
        for i in range(6):
            if half == 0: A(f"v_lshlrev_b32 v{8+i}, 16, v{52+i}")
            else: A(f"v_and_b32 v{8+i}, 0xffff0000, v{52+i}")
        for i in range(4): A(f"v_mul_f32 v{8+i}, v14, v{8+i}")
        A(f"v_mul_f32 v8, {f2u(LOG2E)}, v8")
        A(f"v_mul_f32 v9, 0.15915494, v9")
        zs = ((4, 25, 27), (1, 29, 31), (128, 33, 35))
        for o, e, f in zs:
            A(f"v_mul_f32 v{e}, {f2u(float(o))}, v8"); A(f"v_mul_f32 v{f}, {f2u(float(o))}, v9")
        for o, e, f in zs:
            A(f"v_exp_f32 v{e}, v{e}"); A(f"v_fract_f32 v{f}, v{f}")
        for o, e, f in zs:
            A(f"v_cos_f32 v{Z[o][0]}, v{f}"); A(f"v_sin_f32 v{Z[o][1]}, v{f}")
        for o, e, f in zs:
            A(f"v_mul_f32 v{Z[o][0]}, v{e}, v{Z[o][0]}"); A(f"v_mul_f32 v{Z[o][1]}, v{e}, v{Z[o][1]}")
        y0, y1 = (XP[(0,0)], XP[(0,0)]+2), (XP[(0,0)]+1, XP[(0,0)]+3)
        smul(Z[8], Z[4], Z[4]); smul(y0, (12, 13), (10, 11)); smul(Z[256], Z[128], Z[128]); smul(Z[2], Z[1], Z[1])
        smul(y1, y0, Z[128]); smul(Z[3], Z[2], Z[1])
        A("v_mov_b32 v40, 1.0"); A("v_mov_b32 v42, 0")
        if half == 1:
            A.wait_vm0()
            A("v_mov_b32 v4, 1")
            A("s_lshl_b32 s44, s29, 2")
            A("v_add_u32 v5, s44, v3")
            A(f"ds_write_b32 v5, v4 offset:{F_PF}")
        xs = [(XP[(a+2, 0)], XP[(a, 0)], Z[256]) for a in range(0, 16, 2)] + [(XP[(a, e)], XP[(a, 0)], Z[e]) for (a, e) in pairs[9:]]
        cur = 40
        for i in range(16):
            A(f"v_cvt_pk_bf16_f32 v{PW+i}, v{cur}, v{cur+1}")
            A(f"v_cvt_pk_bf16_f32 v{PW+16+i}, v{cur+2}, v{cur+3}")
            nxt = 44 if cur == 40 else 40
            l = ([(nxt, cur, Z[8])] if i < 15 else []) + ([xs.pop(0)] if xs else [])
            cm2(l); cur = nxt
        for i in range(13):
            r0, r1 = xre(2*i), xre(min(2*i+1, 24))
            A(f"v_cvt_pk_bf16_f32 v{PX+i}, v{r0}, v{r1}")
            A(f"v_cvt_pk_bf16_f32 v{PX+16+i}, -v{r0+2}, -v{r1+2}")
    stamp(A)
    A(f"s_setprio {OPT.get('kprio', 2)}")
    A("v_mov_b32 v48, v18\nv_mov_b32 v49, v19")
    if not OPT.get('now2t'):
        A("s_cmp_eq_u32 s29, 0")
        A("s_mov_b32 s36, s84"); A("s_mov_b32 s37, s85")
        A("s_cselect_b32 s38, 1835008, 0")
        A(f"s_mov_b32 s39, {SRD3}")
        A("v_lshlrev_b32 v5, 4, v1")
        A("s_mul_i32 s40, s2, 7168")
        for i in range(7):
            if i == 4: A("s_add_u32 s40, s40, 4096")
            A(f"buffer_load_dwordx4 {v(60+4*i,4)}, v5, s[36:39], s40 offen offset:{1024*(i%4)}", tag='t')
        A.wait_vm0()
    if OPT.get('l2pf'):
        spin(A, 3, F_DONE, 4, 4, sleep=3, cmp='le', val=str(OPT.get('l2pf')))
        A("s_mul_i32 s40, s27, 57344")
        if OPT.get('dense'):
            for i in range(56):
                A(f"buffer_load_dwordx4 {v(60+4*(i%8),4)}, v5, s[36:39], s40 offen offset:{1024*(i%4)}")
                if i % 4 == 3: A("s_add_u32 s40, s40, 4096")
        else:
            A("v_lshlrev_b32 v5, 7, v1")
            for i in range(7):
                A(f"buffer_load_dword v{60+i}, v5, s[36:39], s40 offen")
                A("s_add_u32 s40, s40, 8192")
        A.wait_vm0()
    spin(A, 3, F_DONE, 4, 4, sleep=3, cmp='le', val='8')
    FA, FB, D = 16, 60, 92
    def flush(PK):
        for part in range(2):
            for q in range(4):
                A(f"ds_write_b128 v{WA+4*part+q}, {v(PK+16*part+4*q,4)}", tag='w')
    def frags(Fr, tag):
        for st in range(8):
            for hh in range(2):
                A(f"ds_read_b64_tr_b16 {v(Fr+4*st+2*hh,2)}, v{(RA if st < 4 else 48)+hh} offset:{(st&3)*1024}", tag=(tag, st))
    for half in range(2):
        flush(PKB + 64*half); frags(FB, 'fb')
        flush(PKB + 64*half + 32); frags(FA, 'fa')
        for st in range(8):
            A.wait_lg(('fa', st))
            A(f"v_mfma_f32_32x32x16_bf16 {v(D,16)}, {v(FA+4*st,4)}, {v(FB+4*st,4)}, {'0' if (st == 0 and half == 0) else v(D,16)}")
    stamp(A)
    A("v_lshrrev_b32 v7, 5, v1")
    A("v_lshlrev_b32 v2, 4, v1")
    A("v_mov_b32 v112, 0\nv_mov_b32 v113, 0\nv_mov_b32 v114, 0\nv_mov_b32 v115, 0")
    A("v_bfe_u32 v11, v1, 1, 1")
    A("v_mul_u32_u24 v11, 4160, v11")
    A("v_and_b32 v12, 1, v1")
    A("v_lshl_add_u32 v11, v12, 4, v11")
    A("v_add_u32 v11, s54, v11")
    A("ds_write_b128 v11, v[112:115]")
    A("s_add_u32 s61, s54, 32")
    A("v_and_b32 v10, 31, v1")
    A("v_lshlrev_b32 v10, 3, v10")
    A("v_lshl_add_u32 v10, v7, 8, v10")
    A("v_add_u32 v10, s61, v10")
    T = 16
    def dup(dst, r): A(f"v_cvt_pk_bf16_f32 v{dst}, v{r}, v{r}")
    A("s_mov_b32 s64, 0x55555555\ns_mov_b32 s65, 0x55555555")
    A("s_mov_b32 s66, 0x11111111\ns_mov_b32 s67, 0x11111111")
    for r in range(8, 13):
        dup(T + 2*(r-8), D + r); dup(T + 2*(r-8) + 1, D + r)
    for r in (6, 7): dup(T + 10 + (r-6), D + r)
    for r in (4, 5): dup(T + 12 + (r-4), D + r)
    A(f"v_cvt_pk_bf16_f32 v{T+14}, v{D}, v{D+1}")
    A(f"v_cvt_pk_bf16_f32 v{T+15}, v{D+2}, v{D+3}")
    A("s_mov_b64 exec, 1")
    A(f"ds_write_b64 v10, {v(T+8,2)} offset:{2*(2048-4)}")
    A("s_mov_b64 exec, s[64:65]")
    for r in range(8, 12):
        o = 1024 + 256*(r-8)
        A(f"ds_write_b64 v10, {v(T+2*(r-8),2)} offset:{2*(o-4)}")
        A(f"ds_write_b64 v10, {v(T+2*(r-8),2)} offset:{2*o}")
    A("s_mov_b64 exec, s[66:67]")
    for r in range(8, 12):
        A(f"ds_write_b16 v10, v{T+2*(r-8)} offset:{2*(1024 + 256*(r-8) + 4)}")
    A("s_mov_b64 exec, -1")
    for r in (6, 7):
        o = 512 + 256*(r-6)
        A(f"ds_write_b32 v10, v{T+10+(r-6)} offset:{2*(o-2)}")
        A(f"ds_write_b32 v10, v{T+10+(r-6)} offset:{2*o}")
    A("s_mov_b64 exec, s[64:65]")
    for r in (6, 7):
        A(f"ds_write_b16 v10, v{T+10+(r-6)} offset:{2*(512 + 256*(r-6) + 2)}")
    A("s_mov_b64 exec, -1")
    A(f"ds_write_b16 v10, v{T+12} offset:{2*(256-1)}")
    A(f"ds_write_b32 v10, v{T+12} offset:{2*256}")
    A(f"ds_write_b16 v10, v{T+13} offset:{2*(256+2)}")
    A(f"ds_write_b64 v10, {v(T+14,2)}")
    A("s_add_u32 s61, s54, 28")
    A("v_add_u32 v4, s61, v2")
    for i in range(4):
        A(f"ds_read_b32 v{112+8*i+3}, v4 offset:{1024*i}", tag=('k', i))
        A(f"ds_read_b128 {v(112+8*i+4,4)}, v4 offset:{1024*i+4}", tag=('k', i))
    for i in range(4):
        A.wait_lg(('k', i))
        for k in range(4):
            A(f"v_alignbit_b32 v{144+4*i+k}, v{112+8*i+4+k}, v{112+8*i+3+k}, 16")
    for i in range(4):
        A(f"ds_write_b128 v4, {v(144+4*i,4)} offset:{1024*i + 4 + 4160}")
    A("v_mov_b32 v5, 1")
    A("s_lshl_b32 s61, s29, 2")
    A("v_add_u32 v6, s61, v3")
    A(f"ds_write_b32 v6, v5 offset:{F_KR}")
    stamp(A)
    A("s_branch K_conv")

def uload(A):
    A("K_uload:")
    A.reset_counters(); A.nst = 8
    A(f"s_setprio {OPT.get('uprio', 3)}")
    A(f"v_mov_b32 v3, {F}")
    A("v_lshlrev_b32 v4, 4, v1")
    A("s_mov_b32 s56, 0x8000")
    A("s_mov_b32 s79, 0")
    A("K_u2:")
    A("buffer_load_dwordx4 v[8:11], v4, s[44:47], s56 offen sc1")
    A("s_waitcnt vmcnt(0)")
    for r in range(4): A(f"v_xor_b32 v{8+r}, v61, v{8+r}")
    A("v_or3_b32 v8, v8, v9, v10")
    A("v_or_b32 v8, v8, v11")
    A("v_cmp_ne_u32 vcc, 0, v8")
    A("s_cbranch_vccz K_u3")
    A(f"s_sleep {OPT.get('xsleep', 8)}")
    A("s_add_u32 s79, s79, 1")
    A("s_cmp_lt_u32 s79, 0x4000")
    A("s_cbranch_scc1 K_u2")
    A("K_u3:")
    stamp(A)
    A("v_sub_u32 v5, 63, v1")
    A("v_lshlrev_b32 v5, 13, v5")
    A("s_and_b32 s56, s28, 3")
    A("s_lshl_b32 s56, s56, 11")
    A("s_lshr_b32 s57, s28, 2")
    A("s_lshl_b32 s57, s57, 4")
    A("s_add_u32 s56, s56, s57")
    A("v_add_u32 v5, s56, v5")
    for c in range(2):
        for q in range(4):
            A(f"s_mov_b32 m0, {L_CV + c*CVS + 2*4160 + 1024*q}")
            A(f"s_mov_b32 s56, {((3-q) << 19) + 1024*c}")
            A(f"buffer_load_dwordx4 v5, s[36:39], s56 offen sc1 lds")
    A("v_mov_b32 v8, 0\nv_mov_b32 v9, 0\nv_mov_b32 v10, 0\nv_mov_b32 v11, 0")
    A("v_min_u32 v7, 29, v1")
    A("v_lshlrev_b32 v7, 4, v7")
    A(f"v_add_u32 v7, {L_CV + 2*4160 + 4096}, v7")
    A("ds_write_b128 v7, v[8:11]")
    A(f"ds_write_b128 v7, v[8:11] offset:{CVS}")
    A("v_mov_b32 v8, 1\nv_mov_b32 v9, 1")
    A("s_waitcnt vmcnt(0) lgkmcnt(0)")
    A(f"ds_write2_b32 v3, v8, v9 offset0:{F_UR//4} offset1:{F_UR//4+1}")

def conv(A):
    A("K_conv:")
    A.reset_counters(); A.nst = 10
    A("s_sub_u32 s48, s3, 4")
    A("s_lshr_b32 s49, s48, 1")
    A("s_and_b32 s50, s48, 1")
    A("s_lshl_b32 s51, s28, 1")
    A("s_add_u32 s51, s51, s49")
    A("s_lshl_b32 s52, s28, 2")
    A("s_load_dword s53, s[92:93], s52")
    A(f"s_mul_i32 s54, s49, {CVS}")
    A(f"s_add_u32 s54, s54, {L_CV}")
    A("v_and_b32 v2, 15, v1")
    A("v_lshrrev_b32 v3, 4, v1")
    A("v_lshlrev_b32 v4, 4, v1")
    A("v_mov_b32 v17, 1")
    A("s_lshl_b32 s56, s48, 2")
    A(f"s_add_u32 s56, s56, {F}")
    A("v_mov_b32 v18, s56")
    A("v_xor_b32 v19, 4, v18")
    A("s_lshl_b32 s56, s49, 2")
    A(f"s_add_u32 s56, s56, {F}")
    A("v_mov_b32 v22, s56")
    A("v_lshrrev_b32 v6, 1, v2")
    A("v_lshlrev_b32 v6, 2, v6")
    A("v_lshl_add_u32 v6, v3, 4, v6")
    A("v_and_b32 v7, 1, v2")
    A("v_sub_u32 v7, 1, v7")
    A("v_mul_u32_u24 v7, 4160, v7")
    A("v_add_u32 v6, v6, v7")
    A("s_lshl_b32 s56, s50, 8")
    A("s_add_u32 s56, s56, s54")
    A("s_add_u32 s57, s56, 4")
    A("v_add_u32 v12, s57, v6")
    for qq in range(1, 4): A(f"v_add_u32 v{12+qq}, {1024*qq}, v12")
    A("v_lshlrev_b32 v6, 4, v3")
    A("v_lshlrev_b32 v7, 5, v2")
    A("v_sub_u32 v6, v6, v7")
    A(f"s_add_u32 s57, s56, {2*4160 + 480}")
    A("v_add_u32 v16, s57, v6")
    A("v_lshlrev_b32 v8, 5, v2")
    A("v_lshl_add_u32 v8, v3, 3, v8")
    A("s_lshl_b32 s56, s50, 11")
    A(f"s_add_u32 s57, s54, {2*4160 + 4088 - 1536}")
    A("s_sub_u32 s57, s57, s56")
    A("v_sub_u32 v8, s57, v8")
    A("s_lshl_b32 s56, s48, 15")
    A(f"s_add_u32 s56, s56, {SPARE}")
    A("v_add_u32 v6, s56, v4")
    A("v_xor_b32 v7, 0x8000, v6")
    srd(A, 40, 24, 2097152, WS_ST)
    srd(A, 44, 24, FLSZ, WS_FLAG)
    spin(A, 22, (F_KR, F_UR), 2, 20, sleep=1)
    A(f"v_mov_b32 v23, {F}")
    A(f"ds_read_b32 v61, v23 offset:{F_NON}")
    A("s_lshl_b32 s56, s49, 4")
    A("s_lshr_b32 s53, s53, s56")
    A("s_lshl_b32 s53, s53, 16")
    stamp(A)
    ACC, FR = 24, 64
    def reads(pl):
        b = FR + 64 * (pl % 2)
        fs = []
        for k in range(8):
            o = 128*(k & 1) + 16*pl
            fs.append(lambda k=k, o=o: A(f"ds_read2_b32 {v(b+4*k,2)}, v{12+k//2} offset0:{o} offset1:{o+1}"))
            fs.append(lambda k=k, o=o: A(f"ds_read2_b32 {v(b+4*k+2,2)}, v{12+k//2} offset0:{o+2} offset1:{o+3}"))
            fs.append(lambda k=k: A(f"ds_read_b128 {v(b+32+4*k,4)}, v16 offset:{3584 - 512*k + 64*pl}"))
        return fs
    XN, T, P1 = 192, 200, 216
    for a in range(4):
        A(f"ds_read_b64 {v(XN+2*a,2)}, v8 offset:{1536 - 512*a}", tag='xn')
    for f in reads(0): f()
    A.wait_lg('xn')
    for a in range(4):
        A(f"v_and_b32 v{T+4*a}, 0xffff0000, v{XN+2*a+1}")
        A(f"v_lshlrev_b32 v{T+4*a+1}, 16, v{XN+2*a+1}")
        A(f"v_and_b32 v{T+4*a+2}, 0xffff0000, v{XN+2*a}")
        A(f"v_lshlrev_b32 v{T+4*a+3}, 16, v{XN+2*a}")
    for r in range(16): A(f"v_mul_f32 v{T+r}, s53, v{T+r}")
    for k in range(8): A(f"v_cvt_pk_bf16_f32 v{P1+k}, v{T+2*k}, v{T+2*k+1}")
    for k in range(8):
        A(f"v_lshlrev_b32 v{T+2*k}, 16, v{P1+k}")
        A(f"v_and_b32 v{T+2*k+1}, 0xffff0000, v{P1+k}")
    A(f"s_setprio {OPT.get('cprio2', 0)}")
    for pl in range(4):
        A.wait_lg0()
        fs = reads(pl + 1) if pl < 3 else []
        b = FR + 64 * (pl % 2)
        first = set()
        for q in range(8):
            for w in range(8 - q):
                ib = q + w
                c = '0' if (pl == 0 and ib not in first) else v(ACC+4*ib, 4)
                first.add(ib)
                A(f"v_mfma_f32_16x16x32_bf16 {v(ACC+4*ib,4)}, {v(b+4*q,4)}, {v(b+32+4*w,4)}, {c}")
                if fs: fs.pop(0)()
    stamp(A)
    A("s_setprio 3")
    FF = 64
    A("s_cmp_eq_u32 s50, 0")
    A("s_cbranch_scc1 K_x0")
    for ph, lab in ((1, None), (0, 'K_x0')):
        if lab: A(f"{lab}:")
        send, keep = (4, 0) if ph == 0 else (0, 4)
        for a in range(4):
            A(f"ds_write_b128 v6, {v(ACC+4*(send+a),4)} offset:{1024*a}")
        A(f"ds_write_b32 v18, v17 offset:{F_XCH}")
        for r in range(16):
            A(f"v_mov_b32 v{FF+r}, v{ACC+4*keep+r}")
        if not lab: A("s_branch K_xe")
    A("K_xe:")
    A("v_and_b32 v8, 1, v3")
    A("v_lshlrev_b32 v8, 9, v8")
    A("v_lshl_add_u32 v8, v2, 5, v8")
    A("v_lshrrev_b32 v9, 1, v3")
    A("v_lshl_add_u32 v8, v9, 4, v8")
    A("s_lshl_b32 s56, s51, 12")
    A("s_lshl_b32 s57, s50, 11")
    A("s_add_u32 s56, s56, s57")
    spin(A, 19, F_XCH, 1, 20)
    R = 80
    for a in range(4):
        A(f"ds_read_b128 {v(R+4*a,4)}, v7 offset:{1024*a}", tag='r')
    A.wait_lg('r')
    for r in range(16): A(f"v_add_f32 v{FF+r}, v{FF+r}, v{R+r}")
    for k in range(8): A(f"v_cvt_pk_bf16_f32 v{P1+k}, v{FF+2*k}, v{FF+2*k+1}")
    for k in range(8):
        A(f"v_lshlrev_b32 v{FF+2*k}, 16, v{P1+k}")
        A(f"v_and_b32 v{FF+2*k+1}, 0xffff0000, v{P1+k}")
    for r in range(16): A(f"v_add_f32 v{FF+r}, v{FF+r}, v{T+r}")
    for k in range(8): A(f"v_cvt_pk_bf16_f32 v{P1+k}, v{FF+2*k}, v{FF+2*k+1}")
    for pr in range(2):
        A(f"v_permlane16_swap_b32 v{P1+4*pr}, v{P1+4*pr+2}")
        A(f"v_permlane16_swap_b32 v{P1+4*pr+1}, v{P1+4*pr+3}")
    for pr in range(2):
        A(f"buffer_store_dwordx4 {v(P1+4*pr,4)}, v8, s[40:43], s56 offen offset:{1024*pr} sc1")
    A("v_lshrrev_b32 v8, 3, v1")
    A("v_and_b32 v9, 7, v1")
    A("v_lshlrev_b32 v10, 12, v8")
    A("v_lshl_add_u32 v10, v9, 4, v10")
    A("v_bfe_u32 v11, v8, 1, 2")
    A("v_lshlrev_b32 v11, 1, v11")
    A("v_xor_b32 v11, v11, v9")
    A("v_lshlrev_b32 v11, 4, v11")
    A("v_lshl_add_u32 v11, v8, 7, v11")
    A("s_lshl_b32 s57, s50, 11")
    A("s_add_u32 s57, s57, s54")
    A("v_add_u32 v11, s57, v11")
    stamp(A)
    A("s_lshl_b32 s56, s81, 6")
    A("s_lshl_b32 s57, s48, 4")
    A("s_add_u32 s56, s56, s57")
    A("s_lshl_b32 s56, s56, 12")
    A("s_lshl_b32 s57, s80, 7")
    A("s_add_u32 s56, s56, s57")
    A("s_add_u32 s59, s56, 32768")
    spin(A, 18, F_GO, 1, 20, sleep=4)
    A("s_mov_b32 s79, 0")
    A("K_sp:")
    A("buffer_load_dwordx4 v[64:67], v10, s[40:43], s56 offen sc1")
    A("buffer_load_dwordx4 v[68:71], v10, s[40:43], s59 offen sc1")
    A("s_waitcnt vmcnt(0)")
    A("v_max3_u32 v12, v64, v65, v66")
    A("v_max3_u32 v13, v67, v68, v69")
    A("v_max3_u32 v12, v12, v70, v71")
    A("v_max_u32 v12, v12, v13")
    A("v_cmp_eq_u32 vcc, -1, v12")
    A("s_cbranch_vccz K_spd")
    A(f"s_sleep {OPT.get('ssleep', 4)}")
    A("s_add_u32 s79, s79, 1")
    A("s_cmp_lt_u32 s79, 0x1000")
    A("s_cbranch_scc1 K_sp")
    A("K_spd:")
    stamp(A)
    A("ds_write_b128 v11, v[64:67]")
    A("ds_write_b128 v11, v[68:71] offset:1024")
    A(f"ds_write_b32 v18, v17 offset:{F_SR}")
    finish(A)

def gemm(A):
    A("K_gemm:")
    A.reset_counters(); A.nst = 3
    A("s_setprio 2")
    A("v_and_b32 v19, 15, v1")
    A("v_lshrrev_b32 v3, 4, v1")
    srd(A, 40, 22, 3584)
    srd(A, 44, 24, 7340032, WS_H)
    A("v_bfe_u32 v6, v1, 2, 2")
    A("v_and_b32 v9, 1, v3")
    A("v_lshl_or_b32 v9, v9, 2, v6")
    A("v_lshl_add_u32 v10, v3, 3, v6")
    A("v_lshlrev_b32 v10, 8, v10")
    A("v_and_b32 v11, 3, v1")
    A("v_lshl_add_u32 v10, v11, 3, v10")
    A("s_and_b32 s68, s83, 1")
    AB, B1, ONES, FL, AF, ACC, XR = 12, 20, 36, 40, 44, 72, 128
    MN0, RE, BF, ACS, ARS, AQS, SA, C1, C2, C3, CSA, TM = 144, 148, 164, 192, 200, 208, 216, 220, 222, 224, 226, 236
    A("s_mul_i32 s53, s83, 224")
    A("v_lshlrev_b32 v7, 3, v3")
    for tau in range(7):
        A(f"s_lshl_b32 s59, s3, 1")
        A(f"s_add_u32 s59, s59, {tau}")
        A(f"s_sub_u32 s67, s59, 7")
        A(f"s_cmp_ge_u32 s59, 7")
        A(f"s_cselect_b32 s{60+tau}, s67, s59")
        A(f"s_add_u32 s59, s{60+tau}, s68")
        A(f"v_xor_b32 v11, s59, v9")
        A(f"v_lshl_add_u32 v{AB+tau}, v11, 5, v10")
        A(f"s_lshl_b32 s59, s{60+tau}, 6")
        A(f"s_add_u32 s59, s59, {L_CS}")
        A(f"v_lshl_add_u32 v{CSA+tau}, v3, 4, s59")
        A(f"s_lshl_b32 s59, s{60+tau}, 5")
        A(f"s_add_u32 s59, s59, {L_B1}")
        A(f"v_add_u32 v{B1+2*tau}, s59, v7")
    A("v_lshrrev_b32 v6, 1, v19")
    A("v_xor_b32 v6, v6, v3")
    A("v_lshlrev_b32 v6, 4, v6")
    A("v_lshl_add_u32 v6, v19, 7, v6")
    A("s_lshl_b32 s59, s3, 12")
    A("s_add_u32 s59, s59, 16384")
    A("v_add_u32 v4, s59, v6")
    A("v_xor_b32 v5, 64, v4")
    for i in range(4): A(f"v_mov_b32 v{ONES+i}, 0x3f803f80")
    A("v_mov_b32 v34, 1")
    A(f"s_lshl_b32 s59, s3, 2")
    A(f"s_add_u32 s59, s59, {F}")
    A("v_mov_b32 v35, s59")
    A(f"v_mov_b32 v2, {F}")
    MN = 152
    k0 = -2.0 * LOG2E * 0.7978845608028654
    A(f"v_mov_b32 v{C1}, {f2u(k0*0.044715)}")
    A(f"v_mov_b32 v{C2}, {f2u(k0)}")
    A(f"v_mov_b32 v{C3}, 1.0")
    A("s_lshl_b32 s59, s3, 8")
    A(f"s_add_u32 s59, s59, {L_S2}")
    A("v_lshl_add_u32 v160, v19, 3, s59")
    A("s_lshl_b32 s52, s82, 3")
    A("s_lshl_b32 s53, s3, 1")
    A("s_add_u32 s52, s52, s53")
    A("s_mul_i32 s52, s52, 57344")
    A("s_mul_i32 s53, s83, 3584")
    A("s_add_u32 s52, s52, s53")
    A("v_lshrrev_b32 v8, 1, v3")
    A("v_lshlrev_b32 v8, 8, v8")
    A("v_lshl_add_u32 v8, v19, 4, v8")
    A("v_add_u32 v8, s52, v8")
    A("v_and_b32 v10, 1, v3")
    A("v_cmp_eq_u32 vcc, 1, v10")
    for pr in range(4):
        A(f"s_lshl_b32 s59, s{60+2*pr}, 9")
        if pr < 3: A(f"s_lshl_b32 s67, s{60+2*pr+1}, 9")
        else: A(f"s_add_u32 s67, s59, 57344")
        A(f"v_mov_b32 v10, s59")
        A(f"v_mov_b32 v11, s67")
        A(f"v_cndmask_b32 v10, v10, v11, vcc")
        A(f"v_add_u32 v{SA+pr}, v10, v8")
    A("s_mov_b32 s59, 57344")
    DN = 206
    for u in range(9): A(f"v_mov_b32 v{DN+u}, {u+1}")
    def full_issue(u):
        if OPT.get('nofl'): return
        A(f"ds_read2_b32 {v(FL,2)}, v2 offset0:{u} offset1:{F_FX//4 + u}", tag=('fu', u))
    def full_eval(u):
        if OPT.get('nofl'): return
        L1, L2 = A.newlabel('fu'), A.newlabel('fu')
        A.wait_lg(('fu', u))
        A(f"v_and_b32 v{FL}, v{FL}, v{FL+1}")
        A(f"v_cmp_eq_u32 vcc, 1, v{FL}")
        A(f"s_cbranch_vccnz {L2}")
        A(f"{L1}:")
        A(f"ds_read2_b32 {v(FL,2)}, v2 offset0:{u} offset1:{F_FX//4 + u}")
        A.lg.pop()
        A("s_waitcnt lgkmcnt(0)")
        A(f"v_and_b32 v{FL}, v{FL}, v{FL+1}")
        A(f"v_cmp_eq_u32 vcc, 1, v{FL}")
        A(f"s_cbranch_vccz {L1}")
        A(f"{L2}:")
    def trread(j, tau, hh):
        if OPT.get('iso') == 'nord' and j > 0: return
        off = ((j//2) % 2) * 32768 + (j % 2) * 8192 + hh * 1024
        A(f"ds_read_b64_tr_b16 {v(AF+4*tau+2*hh,2)}, v{AB+tau} offset:{off}", tag=('a', j, tau))
    def xread(j, nt):
        off = ((j//2) % 2) * 32768 + nt * 2048
        A(f"ds_read_b128 {v(XR+8*(j%2)+4*nt,4)}, v{4 + j%2} offset:{off}", tag=('x', j))
    spin(A, 2, (F_FULL, F_FX), 2, FL, sleep=1)
    stamp(A)
    xread(0, 0); xread(0, 1)
    for tau in range(7):
        for hh in range(2): trread(0, tau, hh)
    for j in range(16):
        if j in (4, 8, 12): stamp(A)
        sl = XR + 8*(j % 2)
        def mf(acc, a, b):
            A(f"v_mfma_f32_16x16x32_bf16 {v(acc,4)}, {v(a,4)}, {v(b,4)}, {'0' if j == 0 else v(acc,4)}")
        flip = (j < 15 and (j + 1) % 4 == 0)
        A.wait_lg(('x', j), ('a', j, 0), ('a', j, 1))
        for tau in range(7):
            if tau % 2 == 0 and tau: A.wait_lg(('a', j, tau), ('a', j, min(tau+1, 6)))
            mf(ACC + 8*tau, AF + 4*tau, sl)
            if tau == 0:
                if j > 0: trread(j, 6, 0)
                if j % 2 == 1 and j < 15:
                    full_eval((j+1)//2)
                if flip: A(f"v_xor_b32 v4, 0x10000, v4"); A(f"v_xor_b32 v5, 0x10000, v5")
            elif j < 15: trread(j+1, tau-1, 0)
            if flip: A(f"v_xor_b32 v{AB+tau}, 0x10000, v{AB+tau}")
            if tau == 6 and j % 2 == 1:
                A(f"ds_write_b32 v35, v{DN + j//2} offset:{F_DONE}", tag='dn')
            if tau == 5 and j % 2 == 0 and j < 14:
                full_issue(j//2 + 1)
            mf(ACC + 8*tau + 4, AF + 4*tau, sl + 4)
            if j == 9:
                A(f"ds_read_b64 {v(B1+2*tau,2)}, v{B1+2*tau}", tag='b1')
            if j in (10, 12, 13, 14):
                if j == 10 and tau == 0: A.wait_lg('b1')
                kk = {10: 0, 12: 1, 13: 2, 14: 3}[j]
                if kk % 2 == 0: A(f"v_lshlrev_b32 v{BF+4*tau+kk}, 16, v{B1+2*tau+kk//2}")
                else: A(f"v_and_b32 v{BF+4*tau+kk}, 0xffff0000, v{B1+2*tau+kk//2}")
            if tau == 0:
                if j > 0: trread(j, 6, 1)
            elif j < 15: trread(j+1, tau-1, 1)
            if tau < 2:
                mf(ACS + 4*tau, AF + 4*tau, ONES)
                if j < 15: xread(j+1, tau)
            if j == 15 and tau == 4:
                for t2 in range(2):
                    A(f"ds_write_b128 v{CSA+t2}, {v(ACS+4*t2,4)}", tag='cw')
                A(f"ds_write_b32 v35, v34 offset:{F_CS}", tag='fl')
    stamp(A)
    if OPT.get('iso'):
        n = A.nst; finish(A); A.nst = n
    spin(A, 2, F_ST, 1, FL)
    for nt in range(2):
        A(f"ds_read_b64 {v(MN+4*nt,2)}, v160 offset:{128*nt}")
    spin(A, 2, F_CS, 4, FL)
    CS = 44
    for tau in range(7):
        A(f"ds_read_b128 {v(CS+4*tau,4)}, v{CSA+tau}", tag=('cs', tau))
    for nt in range(2): A(f"v_mov_b32 v{MN+4*nt+2}, v{MN+4*nt+1}")
    stamp(A)
    OUT = 192
    bc = "op_sel_hi:[1,0,1]"
    groups = [((0,0),(1,0)), ((2,0),(3,0)), ((4,0),(5,0)), ((6,0),(6,1)), ((0,1),(1,1)), ((2,1),(3,1)), ((4,1),(5,1))]
    for gi, grp in enumerate(groups):
        o = OUT + 4 * (gi % 4)
        chains = []
        for ti, (tau, nt) in enumerate(grp):
            A.wait_lg(('cs', tau))
            for pr in range(2):
                a = ACC + 8*tau + 4*nt + 2*pr
                t = TM + 2*(2*ti + pr)
                chains.append([
                    f"v_pk_fma_f32 {v(a,2)}, {v(CS+4*tau+2*pr,2)}, {v(MN+4*nt,2)}, {v(a,2)} {bc}",
                    f"v_pk_fma_f32 {v(a,2)}, {v(a,2)}, {v(MN+4*nt+2,2)}, {v(BF+4*tau+2*pr,2)} {bc}",
                    f"v_pk_mul_f32 {v(t,2)}, {v(a,2)}, {v(a,2)}",
                    f"v_pk_fma_f32 {v(t,2)}, {v(t,2)}, {v(C1,2)}, {v(C2,2)} op_sel_hi:[1,0,0]",
                    f"v_pk_mul_f32 {v(t,2)}, {v(t,2)}, {v(a,2)}",
                    f"v_exp_f32 v{t}, v{t}",
                    f"v_exp_f32 v{t+1}, v{t+1}",
                    f"v_pk_add_f32 {v(t,2)}, {v(t,2)}, {v(C3,2)} op_sel_hi:[1,0]",
                    f"v_rcp_f32 v{t}, v{t}",
                    f"v_rcp_f32 v{t+1}, v{t+1}",
                    f"v_pk_mul_f32 {v(t,2)}, {v(t,2)}, {v(a,2)}",
                    f"v_cvt_pk_bf16_f32 v{o+2*ti+pr}, v{t}, v{t+1}"])
        for ins in zip(*chains):
            for x in ins: A(x)
        A(f"v_permlane16_swap_b32 v{o}, v{o+2}")
        A(f"v_permlane16_swap_b32 v{o+1}, v{o+3}")
        so = 's59' if (grp[0][1] == 1) else '0'
        A(f"buffer_store_dwordx4 {v(o,4)}, v{SA+grp[0][0]//2}, s[44:47], {so} offen {OPT.get('hst','sc1')}", tag='hs')
    stamp(A)
    LA = int(OPT.get('LA', 3))
    NSTEP = 14
    A(f"ds_read_b32 v237, v2 offset:{F_NON}")
    srd(A, 36, 84, 1835008)
    srd(A, 40, 4, 2097152)
    srd(A, 64, 86, 1024)
    srd(A, 52, 88, 2097152)
    srd(A, 60, 24, FLSZ, WS_FLAG)
    A("v_lshlrev_b32 v236, 4, v1")
    for l in range(4):
        A(f"s_add_u32 s49, s3, {l}")
        A("s_and_b32 s49, s49, 3")
        A("s_mul_i32 s49, s49, 57344")
        A(f"v_add_u32 v{4+l}, s49, v236")
    A(f"s_mul_i32 s48, s80, {4*57344}")
    A("s_lshl_b32 s49, s3, 10")
    A("s_add_u32 s48, s48, s49")
    w2_voffs(A, 8, 12)
    A("s_lshl_b32 s50, s3, 15")
    A("v_bfe_u32 v16, v1, 2, 2")
    A("v_lshrrev_b32 v17, 1, v16")
    A("v_and_b32 v18, 1, v3")
    A("v_lshl_or_b32 v17, v18, 1, v17")
    A("v_lshl_add_u32 v18, v3, 3, v16")
    A("v_lshlrev_b32 v18, 7, v18")
    A("v_and_b32 v20, 3, v1")
    A("v_lshl_add_u32 v18, v20, 3, v18")
    A("v_add_u32 v18, s50, v18")
    for mt in range(4):
        A(f"v_xor_b32 v20, {mt}, v17")
        A(f"v_lshl_add_u32 v{12+mt}, v20, 5, v18")
    A("s_lshl_b32 s49, s80, 6")
    A("s_lshl_b32 s56, s3, 4")
    A("s_add_u32 s49, s49, s56")
    A("v_add_u32 v16, s49, v19")
    A("v_lshlrev_b32 v16, 10, v16")
    A("v_and_b32 v17, 1, v3")
    A("v_lshl_add_u32 v16, v17, 5, v16")
    A("v_lshrrev_b32 v17, 1, v3")
    A("v_lshl_add_u32 v16, v17, 4, v16")
    A("s_lshl_b32 s49, s81, 7")
    A("v_add_u32 v16, s49, v16")
    A("v_lshlrev_b32 v17, 3, v3")
    A("v_mov_b32 v44, 1")
    A("v_mov_b32 v45, v35")
    A("v_mov_b32 v46, v2")
    A("v_add_u32 v47, s50, v236")
    A("v_bfe_u32 v18, v1, 2, 2")
    A("v_lshl_add_u32 v18, v3, 2, v18")
    A("v_bfe_u32 v20, v18, 1, 2")
    A("v_xor_b32 v20, s3, v20")
    A("v_lshlrev_b32 v18, 7, v18")
    A("v_lshl_add_u32 v18, v20, 5, v18")
    A("v_and_b32 v20, 3, v1")
    A("v_lshl_add_u32 v18, v20, 3, v18")
    A(f"v_add_u32 v18, {L_CV}, v18")
    for k in range(1, 4):
        A(f"s_add_u32 s56, s3, {k}")
        A("s_and_b32 s56, s56, 3")
        A(f"s_lshl_b32 s56, s56, 15")
        A(f"s_add_u32 s56, s56, {(4-k)*4096}")
        A(f"v_add_u32 v{247+k}, s56, v236")
    A("s_lshl_b32 s56, s82, 1")
    A("s_lshr_b32 s57, s3, 1")
    A("s_add_u32 s56, s56, s57")
    A("s_lshl_b32 s56, s56, 10")
    A("s_lshl_b32 s57, s83, 3")
    A("s_add_u32 s56, s56, s57")
    A("s_and_b32 s57, s3, 1")
    A("s_lshl_b32 s57, s57, 2")
    A("s_add_u32 s56, s56, s57")
    A("v_lshlrev_b32 v238, 7, v1")
    A("v_and_b32 v239, 31, v1")
    A("v_lshlrev_b32 v239, 2, v239")
    spin(A, 46, F_NON, 1, 237, cmp='ne', val='0')
    A.wait_vm0()
    A("s_mov_b64 exec, 0xff")
    A(f"buffer_store_dword v237, v238, s[60:63], s56 offen {OPT.get('hst','sc1')}")
    A("s_mov_b64 exec, -1")
    stamp(A)
    A("buffer_load_dwordx4 v[20:23], v16, s[40:43], 0 offen")
    A("buffer_load_dwordx4 v[24:27], v16, s[40:43], 0 offen offset:64")
    for mt in range(4):
        A(f"buffer_load_dwordx2 {v(240+2*mt,2)}, v17, s[64:67], s49 offen offset:{32*mt}")
    A(f"s_setprio {OPT.get('gprio', 1)}")
    spin(A, 45, F_PRE, 1, 28, sleep=1)
    NRG = int(OPT.get('NRG', 3))
    NH = LA + 1
    AF, ACC, AR, HB = 28, 48, 112, 112 + 16*NRG
    assert HB + 16*NH <= 236, HB + 16*NH
    def afr(j): return AR + 16*j if j < NRG else AF
    def trread2(j, mt):
        for hh in range(2):
            A(f"ds_read_b64_tr_b16 {v(afr(j)+4*mt+2*hh,2)}, v{12+mt} offset:{(j % NR)*4096 + hh*512}", tag=('a', j, mt))
    def hloads(j):
        hb = HB + 16 * (j % NH)
        def first():
            rstep(A, 58, j)
            A("s_lshl_b32 s58, s58, 12")
            A("s_add_u32 s58, s58, s48")
        fs = [first]
        for nt in range(4):
            fs.append(lambda nt=nt: A(f"buffer_load_dwordx4 {v(hb+4*nt,4)}, v{4+nt}, s[44:47], s58 offen {OPT.get('hld','sc1')}", tag=('h', j)))
        return fs
    def wloads(j):
        def first():
            rstep(A, 59, j)
            A("s_lshl_b32 s59, s59, 17")
            A("s_add_u32 s59, s59, s50")
            A(f"s_add_u32 m0, s50, {(j % NR)*4096}")
            A(f"buffer_load_dwordx4 v8, s[36:39], s59 offen lds", tag=('w', j))
        return [first] + [(lambda q=q: A(f"buffer_load_dwordx4 v{8+q}, s[36:39], s59 offen offset:{1024*q} lds", tag=('w', j))) for q in range(1, 4)]
    for j in range(NRG + 1):
        for mt in range(4): trread2(j, mt)
        if j >= 1:
            A.wait_lg(('a', j-1, 3))
            for f in wloads(j - 1 + NR): f()
    A.wait_lg0()
    for f in wloads(NRG + NR) if NRG + NR < NSTEP else []: f()
    nextw = NRG + NR + 1
    A("s_lshl_b32 s56, s80, 10")
    A("s_lshl_b32 s57, s81, 7")
    A("s_add_u32 s56, s56, s57")
    FINE = bool(OPT.get('fine'))
    def need(j):
        T = (128*j + 127) // 112
        mask = (1 << (2*T + 2)) - 1
        L = A.newlabel('nd')
        A(f"s_and_b32 s76, s75, {mask}")
        A(f"s_cbranch_scc0 {L}_d")
        A("s_mov_b32 s79, 0")
        A(f"{L}:")
        A("buffer_load_dword v238, v239, s[60:63], s74 offen sc1"); A.vm.pop()
        A("s_waitcnt vmcnt(0)")
        A("v_cmp_ne_u32 vcc, v237, v238")
        A("s_mov_b32 s75, vcc_lo")
        A(f"s_and_b32 s76, s75, {mask}")
        A(f"s_cbranch_scc0 {L}_d")
        A(f"s_sleep {OPT.get('hsleep', 3)}")
        A("s_add_u32 s79, s79, 1")
        A("s_cmp_lt_u32 s79, 0x4000")
        A(f"s_cbranch_scc1 {L}")
        A(f"{L}_d:")
    if FINE:
        A("s_mov_b32 s74, s56")
        A("s_mov_b32 s75, -1")
        need(int(OPT.get('first', 1)))
        stamp(A)
        for j in range(LA):
            need(j)
            for f in hloads(j): f()
    else:
        A("s_cmp_lg_u32 s3, 0")
        A("s_cbranch_scc1 K_g1")
        vm = list(A.vm)
        gpoll(A, 239, 60, 's56', 238, 237, int(OPT.get('hsleep', 4)))
        A.vm = vm
        A(f"ds_write_b32 v46, v44 offset:{F_HR}")
        A("K_g1:")
        spin(A, 46, F_HR, 1, 238, sleep=1)
        stamp(A)
        for j in range(LA):
            for f in hloads(j): f()
    for j in range(NSTEP):
        if j in (4, 9): stamp(A)
        fs = hloads(j + LA) if j + LA < NSTEP else []
        if nextw < NSTEP and j - 1 >= nextw - NR:
            fs = fs + wloads(nextw); nextw += 1
        if j == int(OPT.get('GO', 7)): A(f"ds_write_b32 v45, v44 offset:{F_GO}", tag='go')
        A.wait_vm(('h', j), ('w', j + 1))
        if FINE and j + LA < NSTEP:
            if j >= LA and j - LA + 2*LA < NSTEP:
                A(f"v_cmp_ne_u32 vcc, v237, v{251 + (j % 3)}")
                A("s_and_b32 s75, s75, vcc_lo")
            need(j + LA)
            if j + 2*LA < NSTEP:
                A(f"buffer_load_dword v{251 + ((j + LA) % 3)}, v239, s[60:63], s74 offen sc1", tag=('h', j + LA))
        hb = HB + 16 * (j % NH)
        af = afr(j)
        if j + 1 < NSTEP:
            for mt in range(4):
                A.wait_lg(('a', j, mt))
                for nt in range(4):
                    acc = ACC + 16*nt + 4*mt
                    A(f"v_mfma_f32_16x16x32_bf16 {v(acc,4)}, {v(af+4*mt,4)}, {v(hb+4*nt,4)}, {'0' if j == 0 else v(acc,4)}")
                    if fs and nt < 3: fs.pop(0)()
                if j + 1 > NRG: trread2(j + 1, mt)
            while fs: fs.pop(0)()
        else:
            A.wait_lg0()
            pend = []
            for nt in (1, 2, 3, 0):
                for mt in range(4):
                    acc = ACC + 16*nt + 4*mt
                    A(f"v_mfma_f32_16x16x32_bf16 {v(acc,4)}, {v(af+4*mt,4)}, {v(hb+4*nt,4)}, {v(acc,4)}")
                    if len(pend) >= 4:
                        a2, o2 = pend.pop(0)
                        A(f"ds_write_b128 v47, {v(a2,4)} offset:{o2}")
                    if nt: pend.append((acc, (4*nt+mt)*1024))
            for a2, o2 in pend: A(f"ds_write_b128 v47, {v(a2,4)} offset:{o2}")
    assert nextw >= NSTEP
    A(f"ds_write_b32 v45, v44 offset:{F_RED}")
    stamp(A)
    BB, XX, SS, T = 176, 192, 208, 128
    for mt in range(4):
        for k in range(2):
            A(f"v_lshlrev_b32 v{BB+4*mt+2*k}, 16, v{240+2*mt+k}")
            A(f"v_and_b32 v{BB+4*mt+2*k+1}, 0xffff0000, v{240+2*mt+k}")
    for r in range(0, 16, 2):
        A(f"v_pk_add_f32 {v(ACC+r,2)}, {v(ACC+r,2)}, {v(BB+r,2)}")
    for k in range(8):
        A(f"v_lshlrev_b32 v{XX+2*k}, 16, v{20+k}")
        A(f"v_and_b32 v{XX+2*k+1}, 0xffff0000, v{20+k}")
    A(f"v_mov_b32 v232, {f2u(-LOG2E)}")
    A(f"v_mov_b32 v234, 1.0")
    spin(A, 46, F_RED, 4, 8)
    PR = 128
    for k in range(1, 4):
        for mt in range(4):
            A(f"ds_read_b128 {v(PR+16*(k-1)+4*mt,4)}, v{247+k} offset:{mt*1024}", tag=('p', k))
    for k in range(1, 4):
        A.wait_lg(('p', k))
        for r in range(0, 16, 2):
            A(f"v_pk_add_f32 {v(ACC+r,2)}, {v(ACC+r,2)}, {v(PR+16*(k-1)+r,2)}")
    for r in range(0, 16, 2):
        A(f"v_pk_mul_f32 {v(T+r,2)}, {v(ACC+r,2)}, {v(232,2)} op_sel_hi:[1,0]")
    for r in range(16): A(f"v_exp_f32 v{T+r}, v{T+r}")
    for r in range(0, 16, 2):
        A(f"v_pk_add_f32 {v(T+r,2)}, {v(T+r,2)}, {v(234,2)} op_sel_hi:[1,0]")
    for r in range(16): A(f"v_rcp_f32 v{T+r}, v{T+r}")
    for r in range(0, 16, 2):
        A(f"v_pk_mul_f32 {v(ACC+r,2)}, {v(ACC+r,2)}, {v(T+r,2)}")
    stamp(A)
    spin(A, 46, F_SR, 4, 8)
    stamp(A)
    for mt in range(4):
        A(f"ds_read_b64_tr_b16 {v(224+2*mt,2)}, v18 offset:{(mt>>1)*CVS + (mt&1)*2048}", tag='s')
    A.wait_lg('s')
    for mt in range(4):
        for k in range(2):
            A(f"v_lshlrev_b32 v{SS+4*mt+2*k}, 16, v{224+2*mt+k}")
            A(f"v_and_b32 v{SS+4*mt+2*k+1}, 0xffff0000, v{224+2*mt+k}")
    for r in range(0, 16, 2):
        A(f"v_pk_mul_f32 {v(ACC+r,2)}, {v(ACC+r,2)}, {v(SS+r,2)}")
    O = 160
    for r in range(0, 16, 2):
        A(f"v_cvt_pk_bf16_f32 v{O+r//2}, v{ACC+r}, v{ACC+r+1}")
    for pr in range(2):
        A(f"v_permlane16_swap_b32 v{O+4*pr}, v{O+4*pr+2}")
        A(f"v_permlane16_swap_b32 v{O+4*pr+1}, v{O+4*pr+3}")
    for k in range(8):
        A(f"v_lshlrev_b32 v{T+2*k}, 16, v{O+k}")
        A(f"v_and_b32 v{T+2*k+1}, 0xffff0000, v{O+k}")
    for k in range(8):
        A(f"v_pk_add_f32 {v(T+2*k,2)}, {v(T+2*k,2)}, {v(XX+2*k,2)}")
    for k in range(8):
        A(f"v_cvt_pk_bf16_f32 v{O+k}, v{T+2*k}, v{T+2*k+1}")
    A(f"buffer_store_dwordx4 {v(O,4)}, v16, s[52:55], 0 offen {OPT.get('sto','')}")
    A(f"buffer_store_dwordx4 {v(O+4,4)}, v16, s[52:55], 0 offen offset:64 {OPT.get('sto','')}")
    A("s_or_b32 s56, s2, s3")
    A("s_cmp_lg_u32 s56, 0")
    A("s_cbranch_scc1 K_g9")
    A("v_mov_b32 v238, 0")
    A("s_mov_b32 s56, 0x30000")
    A("s_mov_b64 exec, 1")
    A("buffer_store_dword v237, v238, s[60:63], s56 offen sc1")
    A("s_mov_b64 exec, -1")
    A("K_g9:")
    finish(A)

def build():
    A = Asm()
    A(f".globl {KN}\n.p2align 8\n.type {KN},@function")
    A(f"{KN}:")
    A("K_start:")
    prologue(A)
    loader(A)
    gemm(A)
    xwave(A)
    kgen(A)
    uload(A)
    conv(A)
    A("K_end:")
    A("s_endpgm")
    hdr = open('cdna_kernels/' + NAME + '.s.ref').read().split('; Override launch')[0] if os.path.exists('cdna_kernels/' + NAME + '.s.ref') else ''
    txt = hdr + f"; @launch grid=(256,1,1) block=(512,1,1) lds={L_SIZE}\n"
    txt += '.amdgcn_target "amdgcn-amd-amdhsa--gfx950"\n.text\n' + A.text() + 'CODE_END:\n.section .rodata,"a"\n'
    txt += f""".p2align 6
.amdhsa_kernel {KN}
  .amdhsa_next_free_vgpr 256
  .amdhsa_next_free_sgpr 102
  .amdhsa_accum_offset 256
  .amdhsa_group_segment_fixed_size 0
  .amdhsa_kernarg_size 136
  .amdhsa_user_sgpr_count 2
  .amdhsa_user_sgpr_kernarg_segment_ptr 1
  .amdhsa_system_sgpr_workgroup_id_x 1
.end_amdhsa_kernel
"""
    return txt

if __name__ == '__main__':
    out = sys.argv[1] if len(sys.argv) > 1 else f'cdna_kernels/{NAME}.s'
    open(out, 'w').write(build())
```

```python
import sys, os, struct
sys.path.insert(0, os.path.dirname(__file__))
from asmlib import Asm

NAME = 'recurrent_scan__ssm_conv_s4__mixer_channel_mlp__prompt'
KN = NAME + '_kernel'
WS_XN = 0
WS_H = 0x800000
WS_ST = 0x1000000
WS_FLAG = 0x1400000
WS_MB = 0x40000
FLSZ = 0xC0000
WS_DBG = 0x1800000
SRD3 = '0x00020000'
LOG2E = 1.4426950408889634
DEBUG = os.environ.get('KDEBUG', '0') == '1'
OPT = dict(kv.split('=') for kv in os.environ.get('KOPT', '').split(',') if kv)

def v(a, n=1): return f'v{a}' if n == 1 else f'v[{a}:{a+n-1}]'
def f2u(x): return '0x%08x' % struct.unpack('<I', struct.pack('<f', x))[0]
def srd(A, d, base, size, off=0):
    if off:
        A(f's_add_u32 s{d}, s{base}, {off}'); A(f's_addc_u32 s{d+1}, s{base+1}, 0')
    else:
        A(f's_mov_b32 s{d}, s{base}'); A(f's_mov_b32 s{d+1}, s{base+1}')
    A(f's_mov_b32 s{d+2}, {size}'); A(f's_mov_b32 s{d+3}, {SRD3}')
def bf16r(A, d, x, t):
    A(f'v_cvt_pk_bf16_f32 v{t}, v{x}, v{x}'); A(f'v_lshlrev_b32 v{d}, 16, v{t}')

def stamp(A, real=False):
    if not DEBUG: return
    A(f"{'s_memrealtime' if real else 's_memtime'} s[94:95]")
    A("s_waitcnt lgkmcnt(0)"); A.lg = []
    A(f"v_writelane_b32 v255, s94, {A.nst}")
    A.nst += 1
    assert A.nst <= 32
def finish(A):
    if DEBUG:
        A.wait_vm0()
        stamp(A); stamp(A, True)
        srd(A, 96, 24, 0x100000, WS_DBG)
        A("s_lshl_b32 s94, s2, 3"); A("s_add_u32 s94, s94, s3"); A("s_lshl_b32 s94, s94, 7")
        A("v_lshlrev_b32 v254, 2, v1")
        A(f"s_mov_b64 exec, {(1 << A.nst) - 1}")
        A("buffer_store_dword v255, v254, s[96:99], s94 offen")
    A("s_endpgm")

L_CV = 131072
CVS = 2 * 4160 + 4576
F = L_CV + 2 * CVS
F_FULL, F_DONE, F_XD, F_PRE, F_NON, F_KR, F_UR, F_XCH, F_CS, F_ST, F_SR, F_GO, F_RED = 0, 32, 48, 64, 80, 84, 92, 112, 128, 144, 160, 176, 192
F_HR, F_XR, F_XT = 100, 104, 108
F_FX = 208
F_PF = 240
F_G2 = 256
L_CS = F + 288
L_ST = L_CS + 448
L_S2 = L_ST + 1024
L_B1 = L_S2 + 1024
L_SIZE = L_B1 + 256
SPARE = 28672
NR = 7

XROWS = [(0,0),(0,1),(0,2),(0,3),(1,0),(1,1),(1,2),(1,3),(2,0),(2,2),(4,0),(6,0),(3,0),(3,2),(5,0),(7,0),
         (8,0),(10,0),(12,0),(14,0),(9,0),(11,0),(13,0),(15,0),(16,0)]

def spin(A, areg, off, n, t, sleep=0, cmp='eq', val='1'):
    L = A.newlabel('sp')
    A(f"{L}:")
    if n == 1: A(f"ds_read_b32 v{t}, v{areg} offset:{off}")
    elif n == 2: A(f"ds_read2_b32 {v(t,2)}, v{areg} offset0:{off[0]//4} offset1:{off[1]//4}")
    else: A(f"ds_read_b128 {v(t,4)}, v{areg} offset:{off}")
    A("s_waitcnt lgkmcnt(0)")
    if n == 2: A(f"v_min_u32 v{t}, v{t}, v{t+1}")
    if n == 4:
        A(f"v_min_u32 v{t}, v{t}, v{t+1}"); A(f"v_min3_u32 v{t}, v{t}, v{t+2}, v{t+3}")
    A(f"v_cmp_{cmp}_u32 vcc, {val}, v{t}")
    A(f"s_cbranch_vccnz {L}_d")
    if sleep: A(f"s_sleep {sleep * int(OPT.get('sm', 1))}")
    A("s_add_u32 s72, s72, 1")
    A("s_cmp_lt_u32 s72, 0x80000")
    A(f"s_cbranch_scc1 {L}")
    A(f"{L}_d:")
    A.lg = []

def gpoll(A, vaddr, srdr, soff, t, nonce, sleep):
    L = A.newlabel('gp')
    A("s_mov_b32 s79, 0")
    A(f"{L}:")
    A(f"buffer_load_dword v{t}, v{vaddr}, s[{srdr}:{srdr+3}], {soff} offen sc1")
    A("s_waitcnt vmcnt(0)")
    A(f"v_cmp_ne_u32 vcc, v{nonce}, v{t}")
    A(f"s_cbranch_vccz {L}_d")
    A(f"s_sleep {sleep}")
    A("s_add_u32 s79, s79, 1")
    A("s_cmp_lt_u32 s79, 0x4000")
    A(f"s_cbranch_scc1 {L}")
    A(f"{L}_d:")
    A.vm = []

def prologue(A):
    A("s_cmp_ge_u32 s2, 256")
    A("s_cbranch_scc1 K_end")
    A.nst = 0
    A("s_load_dwordx16 s[4:19], s[0:1], 0")
    A("s_load_dwordx4 s[20:23], s[0:1], 80")
    A("s_load_dwordx2 s[24:25], s[0:1], 128")
    A("s_load_dwordx4 s[84:87], s[0:1], 96")
    A("s_load_dwordx4 s[88:91], s[0:1], 112")
    A("s_load_dwordx2 s[92:93], s[0:1], 64")
    A("s_getpc_b64 s[40:41]")
    A("K_pc:")
    A("s_sub_u32 s40, s40, K_pc-K_start")
    A("s_subb_u32 s41, s41, 0")
    A("s_mov_b32 s42, CODE_END-K_start")
    A(f"s_mov_b32 s43, {SRD3}")
    A("v_lshlrev_b32 v5, 7, v0")
    if OPT.get('cpf', 'part') == 'part':
        A("s_and_b32 s44, s2, 0x18")
        A("s_lshl_b32 s44, s44, 10")
        A("v_and_b32 v5, 0x1fff, v5")
        A("v_lshrrev_b32 v6, 6, v0")
        A("v_lshl_add_u32 v5, v6, 15, v5")
        A("buffer_load_dword v254, v5, s[40:43], s44 offen")
    else:
        A("buffer_load_dword v254, v5, s[40:43], 0 offen")
    A("v_lshrrev_b32 v2, 6, v0")
    A("v_and_b32 v1, 63, v0")
    A("v_mov_b32 v3, 0")
    A("v_readfirstlane_b32 s3, v2")
    A("v_min_u32 v4, 35, v1")
    A("v_lshlrev_b32 v4, 3, v4")
    A(f"v_add_u32 v4, {F}, v4")
    A("v_mov_b32 v6, 0\nv_mov_b32 v7, 0")
    A("ds_write_b64 v4, v[6:7]")
    A("s_mov_b32 s72, 0")
    A("s_and_b32 s26, s2, 7")
    A("s_lshr_b32 s27, s2, 3")
    A("s_lshl_b32 s28, s26, 5")
    A("s_add_u32 s28, s28, s27")
    m1, m2 = OPT.get('map', 'bb')
    A("s_lshr_b32 s29, s26, 1")
    A("s_and_b32 s30, s26, 1")
    if m1 == 'a':
        A("s_lshl_b32 s82, s29, 2"); A("s_and_b32 s31, s27, 3"); A("s_add_u32 s82, s82, s31")
        A("s_lshl_b32 s83, s30, 3"); A("s_lshr_b32 s31, s27, 2"); A("s_add_u32 s83, s83, s31")
    elif m1 == 'c':
        A("s_lshr_b32 s82, s26, 2"); A("s_lshl_b32 s82, s82, 3"); A("s_and_b32 s31, s27, 7"); A("s_add_u32 s82, s82, s31")
        A("s_and_b32 s83, s26, 3"); A("s_lshl_b32 s83, s83, 2"); A("s_lshr_b32 s31, s27, 3"); A("s_add_u32 s83, s83, s31")
    else:
        A("s_lshl_b32 s82, s26, 1"); A("s_and_b32 s31, s27, 1"); A("s_add_u32 s82, s82, s31")
        A("s_lshr_b32 s83, s27, 1")
    if m2 == 'a':
        A("s_lshl_b32 s80, s29, 3"); A("s_and_b32 s31, s27, 7"); A("s_add_u32 s80, s80, s31")
        A("s_lshl_b32 s81, s30, 2"); A("s_lshr_b32 s31, s27, 3"); A("s_add_u32 s81, s81, s31")
    else:
        A("s_lshl_b32 s80, s26, 2"); A("s_and_b32 s31, s27, 3"); A("s_add_u32 s80, s80, s31")
        A("s_lshr_b32 s81, s27, 2")
    A(f"s_mul_i32 s78, s81, {OPT.get('rmul', 7)}")
    A("s_lshr_b32 s78, s78, 2")
    stamp(A, True); stamp(A)
    A("s_waitcnt lgkmcnt(0)")
    A("s_barrier")
    stamp(A)
    A.reset_counters()
    A("s_cmp_lt_u32 s3, 4")
    A("s_cbranch_scc1 K_gemm")
    A("s_cmp_eq_u32 s3, 4")
    A("s_cbranch_scc1 K_x")
    A("s_cmp_lt_u32 s3, 7")
    A("s_cbranch_scc1 K_kgen")

def w2_voffs(A, d, t):
    A(f"v_lshrrev_b32 v{t}, 3, v1")
    A(f"v_and_b32 v{t+1}, 7, v1")
    A(f"v_bfe_u32 v{t+2}, v1, 4, 1")
    A(f"v_lshlrev_b32 v{t+2}, 1, v{t+2}")
    A(f"v_xor_b32 v{t+1}, v{t+1}, v{t+2}")
    A(f"v_lshlrev_b32 v{t}, 10, v{t}")
    A("s_lshl_b32 s49, s81, 7")
    A(f"v_add_u32 v{t}, s49, v{t}")
    for q in range(4):
        A(f"v_xor_b32 v{t+2}, {4*(q&1)}, v{t+1}")
        A(f"v_lshl_add_u32 v{d+q}, v{t+2}, 4, v{t}")
        if q: A(f"v_add_u32 v{d+q}, {q*(8192-1024)}, v{d+q}")

def p1_voffs(A, d, t):
    A(f"v_and_b32 v{t}, 15, v1")
    A(f"v_lshrrev_b32 v{t+1}, 4, v1")
    A("s_mul_i32 s53, s83, 224")
    A("s_and_b32 s53, s53, 0xffffffc0")
    A(f"v_mul_u32_u24 v{t+2}, 3584, v{t+1}")
    A(f"v_add_u32 v{t+2}, s53, v{t+2}")
    A(f"v_lshlrev_b32 v{t+3}, 1, v{t+1}")
    A(f"v_xor_b32 v{t+3}, v{t+3}, v{t}")
    for q in range(4):
        A(f"v_xor_b32 v{t+4}, {8*((q>>1)&1)}, v{t+3}")
        A(f"v_lshl_add_u32 v{d+q}, v{t+4}, 4, v{t+2}")
        if q: A(f"v_add_u32 v{d+q}, {q*(4*3584-1024)}, v{d+q}")
    A(f"v_lshrrev_b32 v{t+2}, 3, v1")
    A(f"v_and_b32 v{t+4}, 7, v1")
    A(f"v_xor_b32 v{t+3}, v{t+1}, v{t+4}")
    A("s_lshl_b32 s52, s82, 7")
    A(f"v_add_u32 v{t+2}, s52, v{t+2}")
    A(f"v_lshlrev_b32 v{t+2}, 10, v{t+2}")
    for q in range(4):
        A(f"v_xor_b32 v{t+4}, {4*(q&1)}, v{t+3}")
        A(f"v_lshl_add_u32 v{d+4+q}, v{t+4}, 4, v{t+2}")
        if q: A(f"v_add_u32 v{d+4+q}, {q*(8192-1024)}, v{d+4+q}")

NG = int(OPT.get('NG', 0))

def rstep(A, d, j):
    A(f"s_add_u32 s{d}, s78, {j}")
    A(f"s_sub_u32 s77, s{d}, 14")
    A(f"s_cmp_ge_u32 s{d}, 14")
    A(f"s_cselect_b32 s{d}, s77, s{d}")

def wait_free(A, n):
    L1 = A.newlabel('fr')
    A(f"{L1}:")
    A(f"ds_read_b128 v[20:23], v17 offset:{F_DONE}")
    A("s_waitcnt lgkmcnt(0)")
    A("v_min_u32 v20, v20, v21")
    A("v_min3_u32 v20, v20, v22, v23")
    A(f"v_cmp_le_u32 vcc, {n}, v20")
    A(f"s_cbranch_vccnz {L1}_d"); A(f"s_sleep {OPT.get('fsleep', 2)}")
    A("s_add_u32 s72, s72, 1"); A("s_cmp_lt_u32 s72, 0x80000"); A(f"s_cbranch_scc1 {L1}"); A(f"{L1}_d:")
    A.lg = []

def p1_stream(A, isx):
    A("s_setprio 3")
    if isx: srd(A, 36, 4, 2097152)
    else: srd(A, 36, 20, 1835008)
    p1_voffs(A, 8, 2)
    A("v_mov_b32 v16, 1")
    A(f"v_mov_b32 v17, {F}")
    if OPT.get('iso') in ('1', 'nord'):
        for u in range(8): A(f"ds_write_b32 v17, v16 offset:{(F_FX if isx else F_FULL) + 4*u}")
        A("s_endpgm")
    PQ = int(OPT.get('PQ', 2))
    def issue(u, then=None):
        base = (u % 4) * 32768
        for qq in range(4):
            if then is not None and qq == PQ: post(then)
            A(f"s_mov_b32 m0, {base + qq*4096 + (16384 if isx else 0)}")
            A(f"s_mov_b32 s57, {128*u + 32768*qq if isx else (64*u + 16*qq)*3584}")
            for q in range(4):
                A(f"buffer_load_dwordx4 v{(12 if isx else 8)+q}, s[36:39], s57 offen offset:{1024*q} lds", tag=('u', u))
    def post(u):
        A.wait_vm(('u', u))
        A(f"ds_write_b32 v17, v16 offset:{(F_FX if isx else F_FULL) + 4*u}")
    issue(0); issue(1, 0)
    if not isx:
        srd(A, 40, 22, 3584)
        A("v_lshlrev_b32 v18, 2, v1")
        A("s_mul_i32 s53, s83, 224")
        A(f"s_mov_b32 m0, {L_B1}")
        A("buffer_load_dword v18, s[40:43], s53 offen lds", tag='b1')
    GA = OPT.get('ga', '0') == '1'
    if GA:
        post(1); wait_free(A, 1); issue(4)
    for u in range(5 if GA else 2, 8):
        if u >= 4 and not OPT.get('oldpost'):
            L = A.newlabel('ad')
            A(f"ds_read_b128 v[20:23], v17 offset:{F_DONE}")
            A("s_waitcnt lgkmcnt(0)")
            A("v_min_u32 v20, v20, v21")
            A("v_min3_u32 v20, v20, v22, v23")
            A(f"v_cmp_le_u32 vcc, {u-3}, v20")
            A(f"s_cbranch_vccnz {L}")
            A("s_waitcnt vmcnt(0)")
            A(f"ds_write_b32 v17, v16 offset:{(F_FX if isx else F_FULL) + 4*(u-1)}")
            wait_free(A, u - 3)
            A(f"{L}:")
            issue(u, u-1)
        else:
            if u >= 4: wait_free(A, u - 3)
            issue(u, u-1)
    post(7)
    if OPT.get('iso'): A("s_endpgm")

def loader(A):
    A.reset_counters(); A.nst = 3
    p1_stream(A, False)
    srd(A, 40, 84, 1835008)
    w2_voffs(A, 8, 4)
    stamp(A)
    A(f"s_setprio {OPT.get('lprio', 1)}")
    for w in range(4):
        wait_free(A, 5 + w)
        for j in range(NR):
            A(f"s_mov_b32 m0, {w*32768 + j*4096}")
            rstep(A, 57, j)
            A("s_lshl_b32 s57, s57, 17")
            A(f"s_add_u32 s57, s57, {w*32768}")
            for q in range(4):
                A(f"buffer_load_dwordx4 v{8+q}, s[40:43], s57 offen offset:{1024*q} lds", tag=('w', w))
        if w:
            A.wait_vm(('w', w-1)); A(f"ds_write_b32 v17, v16 offset:{F_PRE + 4*(w-1)}")
    A.wait_vm(('w', 3)); A(f"ds_write_b32 v17, v16 offset:{F_PRE + 12}")
    stamp(A)
    A("s_branch K_conv")

def xwave(A):
    if OPT.get('al'): A(".p2align 6")
    A("K_x:")
    if OPT.get('iso') == 'ldx': OPT['xonly'] = 1
    if OPT.get('sx'): A("s_nop 0")
    if OPT.get('iso') and OPT.get('iso') not in ('ldx', 'ldxk'): A("s_endpgm")
    A.reset_counters(); A.nst = 3
    A(f"s_setprio {OPT.get('x0prio', 3)}")
    srd(A, 32, 4, 2097152)
    srd(A, 36, 24, 2097152, WS_XN)
    srd(A, 44, 24, FLSZ, WS_FLAG)
    A("v_lshlrev_b32 v2, 4, v1")
    A("v_mov_b32 v60, 0")
    A("s_mov_b32 s40, 0x30000")
    A("buffer_load_dword v61, v60, s[44:47], s40 offen sc1", tag='e')
    A("s_lshl_b32 s29, s28, 13")
    A("v_add_u32 v3, 4096, v2")
    X = 160
    for t in range(8):
        A(f"buffer_load_dwordx4 {v(X+4*t,4)}, v{2 + t//4}, s[32:35], s29 offen offset:{(t%4)*1024}", tag=('x', t))
    A(f"v_mov_b32 v6, {F}")
    A("s_lshl_b32 s31, s28, 2")
    A("s_load_dword s63, s[18:19], s31")
    A("s_lshl_b32 s31, s28, 9")
    A("s_add_u32 s31, s31, 256")
    A("v_lshlrev_b32 v4, 2, v1")
    for i in range(6):
        srd(A, 40, 6 + 2*i, 131072)
        A(f"buffer_load_dword v{52+i}, v4, s[40:43], s31 offen", tag='p')
    A("v_mov_b32 v4, 0x3f803f80")
    S, Q = 64, 72
    A.wait_vm('e')
    A("v_add_u32 v61, 1, v61")
    A("v_max_u32 v61, 1, v61")
    A(f"ds_write_b32 v6, v61 offset:{F_NON}")
    for t in range(8):
        A.wait_vm(('x', t))
        for k in range(4):
            A(f"v_dot2_f32_bf16 v{S+t}, v{X+4*t+k}, v4, {'0' if k == 0 else 'v%d' % (S+t)}")
            A(f"v_dot2_f32_bf16 v{Q+t}, v{X+4*t+k}, v{X+4*t+k}, {'0' if k == 0 else 'v%d' % (Q+t)}")
    for B in (S, Q):
        for t in range(4): A(f"v_permlane32_swap_b32 v{B+t}, v{B+t+4}")
    for B in (S, Q):
        for t in range(4): A(f"v_add_f32 v{B+t}, v{B+t}, v{B+t+4}")
    for B in (S, Q):
        for t in range(2): A(f"v_permlane16_swap_b32 v{B+t}, v{B+t+2}")
    for B in (S, Q):
        for t in range(2): A(f"v_add_f32 v{B+t}, v{B+t}, v{B+t+2}")
    for sh in (8, 4, 2, 1):
        for r in (S, S+1, Q, Q+1):
            A(f"v_add_f32_dpp v{r}, v{r}, v{r} row_ror:{sh} row_mask:0xf bank_mask:0xf")
    seqs = []
    for t in range(2):
        m, q, G = S+t, Q+t, 80 + 4*t
        t1, t2, t3, t4 = 88+4*t, 89+4*t, 90+4*t, 91+4*t
        L = []
        def br(d, x): L.extend([f'v_cvt_pk_bf16_f32 v{t4}, v{x}, v{x}', f'v_lshlrev_b32 v{d}, 16, v{t4}'])
        L.append(f"v_mul_f32 v{m}, {f2u(1/512)}, v{m}")
        L.append(f"v_mul_f32 v{q}, {f2u(1/512)}, v{q}")
        L.append(f"v_fma_f32 v{q}, -v{m}, v{m}, v{q}")
        L.append(f"v_max_f32 v{q}, 0, v{q}")
        br(t1, q)
        L.append(f"v_add_f32 v{t1}, {f2u(1e-5)}, v{t1}")
        br(t1, t1)
        L.append(f"v_sqrt_f32 v{t1}, v{t1}")
        L.append(f"v_cvt_pk_bf16_f32 v{G}, v{m}, v{t1}")
        L.append(f"v_and_b32 v{t1}, 0xffff0000, v{G}")
        L.append(f"v_rcp_f32 v{t2}, v{t1}")
        L.append(f"v_lshlrev_b32 v{t3}, 16, v{G}")
        L.append(f"v_sub_f32 v{m}, v{m}, v{t3}")
        L.append(f"v_mul_f32 v{m}, v{m}, v{t2}")
        L.append(f"v_mul_f32 v{q}, v{q}, v{t2}")
        L.append(f"v_mul_f32 v{q}, v{q}, v{t2}")
        br(q, q)
        L.append(f"v_add_f32 v{q}, {f2u(1e-5)}, v{q}")
        br(q, q)
        L.append(f"v_sqrt_f32 v{q}, v{q}")
        L.append(f"v_mov_b32 v{G+1}, v61")
        L.append(f"v_cvt_pk_bf16_f32 v{G+2}, v{m}, v{q}")
        L.append(f"v_mov_b32 v{G+3}, v61")
        seqs.append(L)
    for x, y in zip(*seqs): A(x); A(y)
    A("v_and_b32 v8, 15, v1")
    A("v_lshlrev_b32 v8, 11, v8")
    A("v_lshrrev_b32 v9, 4, v1")
    A("v_lshl_add_u32 v8, v9, 5, v8")
    A("s_lshr_b32 s41, s28, 4")
    A("s_lshl_b32 s41, s41, 15")
    A("s_and_b32 s42, s28, 15")
    A("s_lshl_b32 s42, s42, 7")
    A("s_add_u32 s41, s41, s42")
    A(f"s_add_u32 s41, s41, {WS_MB}")
    for t in range(2):
        A(f"buffer_store_dwordx4 {v(80+4*t,4)}, v8, s[44:47], s41 offen offset:{16*t} sc1")
    stamp(A)
    for t in range(2):
        for rho in range(4):
            A(f"v_readlane_b32 s{64 + t + 2*rho}, v{90+4*t}, {16*rho}")
            A(f"v_readlane_b32 s{48 + t + 2*rho}, v{89+4*t}, {16*rho}")
    FF, O = 96, 112
    for i in range(4):
        for h, t in enumerate((7 - 2*i, 6 - 2*i)):
            for k in range(4):
                lo, hi, x = FF + 8*h + 2*k, FF + 8*h + 2*k + 1, X + 4*t + k
                A(f"v_lshlrev_b32 v{lo}, 16, v{x}")
                A(f"v_and_b32 v{hi}, 0xffff0000, v{x}")
                A(f"v_subrev_f32 v{lo}, s{64+t}, v{lo}")
                A(f"v_subrev_f32 v{hi}, s{64+t}, v{hi}")
                if not OPT.get('fastln'):
                    A(f"v_cvt_pk_bf16_f32 v{x}, v{lo}, v{hi}")
                    A(f"v_lshlrev_b32 v{lo}, 16, v{x}")
                    A(f"v_and_b32 v{hi}, 0xffff0000, v{x}")
                A(f"v_mul_f32 v{lo}, s{48+t}, v{lo}")
                A(f"v_mul_f32 v{hi}, s{48+t}, v{hi}")
        for dl in range(8):
            A(f"v_cvt_pk_bf16_f32 v{O+4*dl+i}, v{FF+dl}, v{FF+8+dl}")
    for dl in range(8):
        A(f"buffer_store_dwordx4 {v(O+4*dl,4)}, v{2 + dl//4}, s[36:39], s29 offen offset:{1024*(dl%4)} sc1")
    A("s_lshl_b32 s42, s28, 2")
    A("s_add_u32 s42, s42, 0x8000")
    if OPT.get('latepf'): spin(A, 6, F_DONE, 4, 12, sleep=1, cmp='le', val='2')
    elif OPT.get('iso') != 'ldx': spin(A, 6, F_PF, 1, 9, sleep=1)
    A.wait_vm0()
    A("s_mov_b64 exec, 1")
    A("buffer_store_dword v61, v60, s[44:47], s42 offen sc1")
    A("s_mov_b64 exec, -1")
    stamp(A)
    if OPT.get('iso') == 'ldx': A("s_endpgm")
    A("s_mov_b32 s29, 1")
    A("s_branch K_k6")

def kgen(A):
    if OPT.get('al'): A(".p2align 6")
    A("K_kgen:")
    if OPT.get('sk'): A("s_nop 0")
    A.reset_counters(); A.nst = 3
    A("s_cmp_eq_u32 s3, 5")
    A("s_cbranch_scc1 K_k5")
    p1_stream(A, True)
    stamp(A)
    srd(A, 36, 24, 2097152, WS_XN)
    srd(A, 44, 24, FLSZ, WS_FLAG)
    A(f"v_mov_b32 v6, {F}")
    A("v_lshlrev_b32 v2, 4, v1")
    spin(A, 6, F_NON, 1, 61, sleep=1, cmp='ne', val='0')
    A("s_lshl_b32 s41, s82, 4")
    A("s_add_u32 s41, s41, s83")
    A("s_lshl_b32 s41, s41, 11")
    A(f"s_add_u32 s41, s41, {WS_MB}")
    A("s_mov_b32 s79, 0")
    A("K_x2:")
    A("buffer_load_dwordx4 v[64:67], v2, s[44:47], s41 offen sc1")
    A("buffer_load_dwordx4 v[68:71], v2, s[44:47], s41 offen offset:1024 sc1")
    A("s_waitcnt vmcnt(0)")
    A("v_xor_b32 v72, v61, v65")
    A("v_xor_b32 v73, v61, v67")
    A("v_xor_b32 v74, v61, v69")
    A("v_xor_b32 v75, v61, v71")
    A("v_or3_b32 v72, v72, v73, v74")
    A("v_or_b32 v72, v72, v75")
    A("v_cmp_ne_u32 vcc, 0, v72")
    A("s_cbranch_vccz K_x3")
    A("s_sleep 6")
    A("s_add_u32 s79, s79, 1")
    A("s_cmp_lt_u32 s79, 0x4000")
    A("s_cbranch_scc1 K_x2")
    A("K_x3:")
    A.reset_counters()
    A(f"s_setprio {OPT.get('xprio', 3)}")
    for i in range(2):
        g, o = 64 + 4*i, 72 + 8*i
        A(f"v_and_b32 v{o+4}, 0xffff0000, v{g}")
        A(f"v_lshlrev_b32 v{o+5}, 16, v{g}")
        A(f"v_and_b32 v{o+6}, 0xffff0000, v{g+2}")
        A(f"v_lshlrev_b32 v{o+7}, 16, v{g+2}")
        A(f"v_rcp_f32 v{o}, v{o+4}")
        A(f"v_rcp_f32 v{o+3}, v{o+6}")
        A(f"v_fma_f32 v{o+2}, -v{o+7}, v{o+4}, -v{o+5}")
        A(f"v_mul_f32 v{o+3}, v{o+3}, v{o}")
    A("v_lshlrev_b32 v8, 3, v1")
    A(f"v_add_u32 v8, {L_ST}, v8")
    A("v_mov_b32 v7, 1")
    for i in range(2):
        A(f"ds_write_b64 v8, {v(74+8*i,2)} offset:{1024 + 512*i}")
    A(f"ds_write_b32 v6, v7 offset:{F_ST}")
    stamp(A)
    A("s_branch K_uload")
    A("K_k5:")
    if OPT.get('iso') and OPT.get('iso') != 'ldxk': A("s_endpgm")
    A.reset_counters(); A.nst = 3
    A("s_setprio 3")
    A("s_mov_b32 s29, 0")
    A("s_lshl_b32 s31, s28, 2")
    A("s_load_dword s63, s[18:19], s31")
    A("s_lshl_b32 s31, s28, 9")
    A("v_lshlrev_b32 v2, 2, v1")
    for i in range(6):
        srd(A, 32, 6 + 2*i, 131072)
        A(f"buffer_load_dword v{52+i}, v2, s[32:35], s31 offen", tag='p')
    srd(A, 36, 20, 0 if OPT.get('now1t') else 1835008)
    A("v_lshlrev_b32 v5, 4, v1")
    A("s_mul_i32 s40, s2, 7168")
    for i in range(7):
        if i == 4: A("s_add_u32 s40, s40, 4096")
        A(f"buffer_load_dwordx4 {v(208+4*i,4)}, v5, s[36:39], s40 offen offset:{1024*(i%4)}", tag='t')
    if not OPT.get('latepf'):
        srd(A, 40, 24, 2097152, WS_ST)
        A("s_lshl_b32 s44, s28, 13")
        A("v_mov_b32 v8, -1\nv_mov_b32 v9, -1\nv_mov_b32 v10, -1\nv_mov_b32 v11, -1")
        for i in range(8):
            if i == 4: A("s_add_u32 s44, s44, 4096")
            A(f"buffer_store_dwordx4 v[8:11], v5, s[40:43], s44 offen offset:{1024*(i%4)} sc1", tag='t')
    A("K_k6:")
    A(f"v_mov_b32 v3, {F}")
    A(f"s_mul_i32 s54, s29, {CVS}")
    A(f"s_add_u32 s54, s54, {L_CV}")
    A("s_lshl_b32 s61, s29, 16")
    A(f"s_add_u32 s61, s61, {SPARE}")
    A("s_mov_b32 s45, 32768")
    WA, RA = 244, 252
    A("v_and_b32 v5, 31, v1")
    A("v_lshlrev_b32 v5, 7, v5")
    A("v_lshrrev_b32 v6, 5, v1")
    A("v_mul_u32_u24 v6, s45, v6")
    A("v_add3_u32 v5, v5, v6, s61")
    A("v_and_b32 v6, 7, v1")
    for c in range(8):
        A(f"v_xor_b32 v7, {c}, v6")
        A(f"v_lshl_add_u32 v{WA+c}, v7, 4, v5")
    A("v_bfe_u32 v5, v1, 2, 2")
    A("v_lshrrev_b32 v6, 5, v1")
    A("v_lshlrev_b32 v6, 2, v6")
    A("v_lshrrev_b32 v7, 1, v5")
    A("v_add_u32 v6, v6, v7")
    A("v_and_b32 v5, 1, v5")
    A("v_lshlrev_b32 v5, 2, v5")
    A("v_bfe_u32 v7, v1, 4, 1")
    A("v_lshl_add_u32 v5, v7, 1, v5")
    A("v_bfe_u32 v7, v1, 1, 1")
    A("v_add_u32 v5, v5, v7")
    A("v_and_b32 v7, 1, v1")
    A("v_lshlrev_b32 v7, 3, v7")
    A("v_add_u32 v7, s61, v7")
    for hh in range(2):
        if hh: A("v_add_u32 v6, 2, v6")
        A(f"v_xor_b32 v15, v5, v6")
        A(f"v_lshl_add_u32 v15, v15, 4, v7")
        A(f"v_lshl_add_u32 v{RA+hh}, v6, 7, v15")
        A(f"v_add_u32 v{18+hh}, s45, v{RA+hh}")
    A("s_waitcnt lgkmcnt(0)")
    A("s_lshl_b32 s62, s29, 4")
    A("s_lshr_b32 s60, s63, s62")
    A("s_lshl_b32 s60, s60, 16")
    A(f"v_mov_b32 v14, {f2u(LOG2E)}")
    A("v_mul_f32 v14, s60, v14")
    A("v_exp_f32 v14, v14")
    bf16r(A, 14, 14, 15)
    XV, PKB = 60, 112
    A.wait_vm('p')
    A("s_setprio 3")
    A.nst = 5
    stamp(A)
    Z = {1: (20, 22), 2: (24, 26), 3: (28, 30), 8: (32, 34), 256: (36, 38), 4: (41, 43), 128: (21, 23)}
    def smul(d, x, y):
        A(f"v_mul_f32 v{d[0]}, v{x[0]}, v{y[0]}")
        A(f"v_mul_f32 v{d[1]}, v{x[0]}, v{y[1]}")
        A(f"v_fma_f32 v{d[0]}, -v{x[1]}, v{y[1]}, v{d[0]}")
        A(f"v_fmac_f32 v{d[1]}, v{x[1]}, v{y[0]}")
    def cm2(l):
        for d, x, m in l:
            A(f"v_pk_mul_f32 {v(d,2)}, {v(x,2)}, {v(m[0],2)} op_sel_hi:[1,0]")
            A(f"v_pk_mul_f32 {v(d+2,2)}, {v(x,2)}, {v(m[1],2)} op_sel_hi:[1,0]")
        for d, x, m in l:
            A(f"v_pk_fma_f32 {v(d,2)}, {v(x+2,2)}, {v(m[1],2)}, {v(d,2)} op_sel_hi:[1,0,1] neg_lo:[0,1,0] neg_hi:[0,1,0]")
            A(f"v_pk_fma_f32 {v(d+2,2)}, {v(x+2,2)}, {v(m[0],2)}, {v(d+2,2)} op_sel_hi:[1,0,1]")
    pairs = [(a, 0) for a in range(0, 17, 2)] + [(0, 1), (0, 2), (0, 3), (2, 2)]
    XP = {ae: XV + 4*i for i, ae in enumerate(pairs)}
    def xre(row):
        a, e = XROWS[row]
        return XP[(a & ~1, e)] + (a & 1)
    for half in range(2):
        PW, PX = PKB + 64*half, PKB + 64*half + 32
        for i in range(6):
            if half == 0: A(f"v_lshlrev_b32 v{8+i}, 16, v{52+i}")
            else: A(f"v_and_b32 v{8+i}, 0xffff0000, v{52+i}")
        for i in range(4): A(f"v_mul_f32 v{8+i}, v14, v{8+i}")
        A(f"v_mul_f32 v8, {f2u(LOG2E)}, v8")
        A(f"v_mul_f32 v9, 0.15915494, v9")
        zs = ((4, 25, 27), (1, 29, 31), (128, 33, 35))
        for o, e, f in zs:
            A(f"v_mul_f32 v{e}, {f2u(float(o))}, v8"); A(f"v_mul_f32 v{f}, {f2u(float(o))}, v9")
        for o, e, f in zs:
            A(f"v_exp_f32 v{e}, v{e}"); A(f"v_fract_f32 v{f}, v{f}")
        for o, e, f in zs:
            A(f"v_cos_f32 v{Z[o][0]}, v{f}"); A(f"v_sin_f32 v{Z[o][1]}, v{f}")
        for o, e, f in zs:
            A(f"v_mul_f32 v{Z[o][0]}, v{e}, v{Z[o][0]}"); A(f"v_mul_f32 v{Z[o][1]}, v{e}, v{Z[o][1]}")
        y0, y1 = (XP[(0,0)], XP[(0,0)]+2), (XP[(0,0)]+1, XP[(0,0)]+3)
        smul(Z[8], Z[4], Z[4]); smul(y0, (12, 13), (10, 11)); smul(Z[256], Z[128], Z[128]); smul(Z[2], Z[1], Z[1])
        smul(y1, y0, Z[128]); smul(Z[3], Z[2], Z[1])
        A("v_mov_b32 v40, 1.0"); A("v_mov_b32 v42, 0")
        if half == 1:
            A.wait_vm0()
            A("v_mov_b32 v4, 1")
            A("s_lshl_b32 s44, s29, 2")
            A("v_add_u32 v5, s44, v3")
            A(f"ds_write_b32 v5, v4 offset:{F_PF}")
        xs = [(XP[(a+2, 0)], XP[(a, 0)], Z[256]) for a in range(0, 16, 2)] + [(XP[(a, e)], XP[(a, 0)], Z[e]) for (a, e) in pairs[9:]]
        cur = 40
        for i in range(16):
            A(f"v_cvt_pk_bf16_f32 v{PW+i}, v{cur}, v{cur+1}")
            A(f"v_cvt_pk_bf16_f32 v{PW+16+i}, v{cur+2}, v{cur+3}")
            nxt = 44 if cur == 40 else 40
            l = ([(nxt, cur, Z[8])] if i < 15 else []) + ([xs.pop(0)] if xs else [])
            cm2(l); cur = nxt
        for i in range(13):
            r0, r1 = xre(2*i), xre(min(2*i+1, 24))
            A(f"v_cvt_pk_bf16_f32 v{PX+i}, v{r0}, v{r1}")
            A(f"v_cvt_pk_bf16_f32 v{PX+16+i}, -v{r0+2}, -v{r1+2}")
    stamp(A)
    A(f"s_setprio {OPT.get('kprio', 2)}")
    A("v_mov_b32 v48, v18\nv_mov_b32 v49, v19")
    if not OPT.get('now2t'):
        A("s_cmp_eq_u32 s29, 0")
        A("s_mov_b32 s36, s84"); A("s_mov_b32 s37, s85")
        A("s_cselect_b32 s38, 1835008, 0")
        A(f"s_mov_b32 s39, {SRD3}")
        A("v_lshlrev_b32 v5, 4, v1")
        A("s_mul_i32 s40, s2, 7168")
        for i in range(7):
            if i == 4: A("s_add_u32 s40, s40, 4096")
            A(f"buffer_load_dwordx4 {v(60+4*i,4)}, v5, s[36:39], s40 offen offset:{1024*(i%4)}", tag='t')
        A.wait_vm0()
    if OPT.get('l2pf'):
        spin(A, 3, F_DONE, 4, 4, sleep=3, cmp='le', val=str(OPT.get('l2pf')))
        A("s_mul_i32 s40, s27, 57344")
        if OPT.get('dense'):
            for i in range(56):
                A(f"buffer_load_dwordx4 {v(60+4*(i%8),4)}, v5, s[36:39], s40 offen offset:{1024*(i%4)}")
                if i % 4 == 3: A("s_add_u32 s40, s40, 4096")
        else:
            A("v_lshlrev_b32 v5, 7, v1")
            for i in range(7):
                A(f"buffer_load_dword v{60+i}, v5, s[36:39], s40 offen")
                A("s_add_u32 s40, s40, 8192")
        A.wait_vm0()
    if OPT.get('iso'): A("s_endpgm")
    spin(A, 3, F_DONE, 4, 4, sleep=3, cmp='le', val='8')
    FA, FB, D = 16, 60, 92
    def flush(PK):
        for part in range(2):
            for q in range(4):
                A(f"ds_write_b128 v{WA+4*part+q}, {v(PK+16*part+4*q,4)}", tag='w')
    def frags(Fr, tag):
        for st in range(8):
            for hh in range(2):
                A(f"ds_read_b64_tr_b16 {v(Fr+4*st+2*hh,2)}, v{(RA if st < 4 else 48)+hh} offset:{(st&3)*1024}", tag=(tag, st))
    for half in range(2):
        flush(PKB + 64*half); frags(FB, 'fb')
        flush(PKB + 64*half + 32); frags(FA, 'fa')
        for st in range(8):
            A.wait_lg(('fa', st))
            A(f"v_mfma_f32_32x32x16_bf16 {v(D,16)}, {v(FA+4*st,4)}, {v(FB+4*st,4)}, {'0' if (st == 0 and half == 0) else v(D,16)}")
    stamp(A)
    A("v_lshrrev_b32 v7, 5, v1")
    A("v_lshlrev_b32 v2, 4, v1")
    A("v_mov_b32 v112, 0\nv_mov_b32 v113, 0\nv_mov_b32 v114, 0\nv_mov_b32 v115, 0")
    A("v_bfe_u32 v11, v1, 1, 1")
    A("v_mul_u32_u24 v11, 4160, v11")
    A("v_and_b32 v12, 1, v1")
    A("v_lshl_add_u32 v11, v12, 4, v11")
    A("v_add_u32 v11, s54, v11")
    A("ds_write_b128 v11, v[112:115]")
    A("s_add_u32 s61, s54, 32")
    A("v_and_b32 v10, 31, v1")
    A("v_lshlrev_b32 v10, 3, v10")
    A("v_lshl_add_u32 v10, v7, 8, v10")
    A("v_add_u32 v10, s61, v10")
    T = 16
    def dup(dst, r): A(f"v_cvt_pk_bf16_f32 v{dst}, v{r}, v{r}")
    A("s_mov_b32 s64, 0x55555555\ns_mov_b32 s65, 0x55555555")
    A("s_mov_b32 s66, 0x11111111\ns_mov_b32 s67, 0x11111111")
    for r in range(8, 13):
        dup(T + 2*(r-8), D + r); dup(T + 2*(r-8) + 1, D + r)
    for r in (6, 7): dup(T + 10 + (r-6), D + r)
    for r in (4, 5): dup(T + 12 + (r-4), D + r)
    A(f"v_cvt_pk_bf16_f32 v{T+14}, v{D}, v{D+1}")
    A(f"v_cvt_pk_bf16_f32 v{T+15}, v{D+2}, v{D+3}")
    A("s_mov_b64 exec, 1")
    A(f"ds_write_b64 v10, {v(T+8,2)} offset:{2*(2048-4)}")
    A("s_mov_b64 exec, s[64:65]")
    for r in range(8, 12):
        o = 1024 + 256*(r-8)
        A(f"ds_write_b64 v10, {v(T+2*(r-8),2)} offset:{2*(o-4)}")
        A(f"ds_write_b64 v10, {v(T+2*(r-8),2)} offset:{2*o}")
    A("s_mov_b64 exec, s[66:67]")
    for r in range(8, 12):
        A(f"ds_write_b16 v10, v{T+2*(r-8)} offset:{2*(1024 + 256*(r-8) + 4)}")
    A("s_mov_b64 exec, -1")
    for r in (6, 7):
        o = 512 + 256*(r-6)
        A(f"ds_write_b32 v10, v{T+10+(r-6)} offset:{2*(o-2)}")
        A(f"ds_write_b32 v10, v{T+10+(r-6)} offset:{2*o}")
    A("s_mov_b64 exec, s[64:65]")
    for r in (6, 7):
        A(f"ds_write_b16 v10, v{T+10+(r-6)} offset:{2*(512 + 256*(r-6) + 2)}")
    A("s_mov_b64 exec, -1")
    A(f"ds_write_b16 v10, v{T+12} offset:{2*(256-1)}")
    A(f"ds_write_b32 v10, v{T+12} offset:{2*256}")
    A(f"ds_write_b16 v10, v{T+13} offset:{2*(256+2)}")
    A(f"ds_write_b64 v10, {v(T+14,2)}")
    A("s_add_u32 s61, s54, 28")
    A("v_add_u32 v4, s61, v2")
    for i in range(4):
        A(f"ds_read_b32 v{112+8*i+3}, v4 offset:{1024*i}", tag=('k', i))
        A(f"ds_read_b128 {v(112+8*i+4,4)}, v4 offset:{1024*i+4}", tag=('k', i))
    for i in range(4):
        A.wait_lg(('k', i))
        for k in range(4):
            A(f"v_alignbit_b32 v{144+4*i+k}, v{112+8*i+4+k}, v{112+8*i+3+k}, 16")
    for i in range(4):
        A(f"ds_write_b128 v4, {v(144+4*i,4)} offset:{1024*i + 4 + 4160}")
    A("v_mov_b32 v5, 1")
    A("s_lshl_b32 s61, s29, 2")
    A("v_add_u32 v6, s61, v3")
    A(f"ds_write_b32 v6, v5 offset:{F_KR}")
    stamp(A)
    A("s_branch K_conv")

def uload(A):
    A("K_uload:")
    A.reset_counters(); A.nst = 8
    A(f"s_setprio {OPT.get('uprio', 3)}")
    A(f"v_mov_b32 v3, {F}")
    A("v_lshlrev_b32 v4, 4, v1")
    A("s_mov_b32 s56, 0x8000")
    A("s_mov_b32 s79, 0")
    A("K_u2:")
    A("buffer_load_dwordx4 v[8:11], v4, s[44:47], s56 offen sc1")
    A("s_waitcnt vmcnt(0)")
    for r in range(4): A(f"v_xor_b32 v{8+r}, v61, v{8+r}")
    A("v_or3_b32 v8, v8, v9, v10")
    A("v_or_b32 v8, v8, v11")
    A("v_cmp_ne_u32 vcc, 0, v8")
    A("s_cbranch_vccz K_u3")
    A(f"s_sleep {OPT.get('xsleep', 8)}")
    A("s_add_u32 s79, s79, 1")
    A("s_cmp_lt_u32 s79, 0x4000")
    A("s_cbranch_scc1 K_u2")
    A("K_u3:")
    stamp(A)
    A("v_sub_u32 v5, 63, v1")
    A("v_lshlrev_b32 v5, 13, v5")
    A("s_and_b32 s56, s28, 3")
    A("s_lshl_b32 s56, s56, 11")
    A("s_lshr_b32 s57, s28, 2")
    A("s_lshl_b32 s57, s57, 4")
    A("s_add_u32 s56, s56, s57")
    A("v_add_u32 v5, s56, v5")
    for c in range(2):
        for q in range(4):
            A(f"s_mov_b32 m0, {L_CV + c*CVS + 2*4160 + 1024*q}")
            A(f"s_mov_b32 s56, {((3-q) << 19) + 1024*c}")
            A(f"buffer_load_dwordx4 v5, s[36:39], s56 offen sc1 lds")
    A("v_mov_b32 v8, 0\nv_mov_b32 v9, 0\nv_mov_b32 v10, 0\nv_mov_b32 v11, 0")
    A("v_min_u32 v7, 29, v1")
    A("v_lshlrev_b32 v7, 4, v7")
    A(f"v_add_u32 v7, {L_CV + 2*4160 + 4096}, v7")
    A("ds_write_b128 v7, v[8:11]")
    A(f"ds_write_b128 v7, v[8:11] offset:{CVS}")
    A("v_mov_b32 v8, 1\nv_mov_b32 v9, 1")
    A("s_waitcnt vmcnt(0) lgkmcnt(0)")
    A(f"ds_write2_b32 v3, v8, v9 offset0:{F_UR//4} offset1:{F_UR//4+1}")

def conv(A):
    A("K_conv:")
    A.reset_counters(); A.nst = 10
    A("s_sub_u32 s48, s3, 4")
    A("s_lshr_b32 s49, s48, 1")
    A("s_and_b32 s50, s48, 1")
    A("s_lshl_b32 s51, s28, 1")
    A("s_add_u32 s51, s51, s49")
    A("s_lshl_b32 s52, s28, 2")
    A("s_load_dword s53, s[92:93], s52")
    A(f"s_mul_i32 s54, s49, {CVS}")
    A(f"s_add_u32 s54, s54, {L_CV}")
    A("v_and_b32 v2, 15, v1")
    A("v_lshrrev_b32 v3, 4, v1")
    A("v_lshlrev_b32 v4, 4, v1")
    A("v_mov_b32 v17, 1")
    A("s_lshl_b32 s56, s48, 2")
    A(f"s_add_u32 s56, s56, {F}")
    A("v_mov_b32 v18, s56")
    A("v_xor_b32 v19, 4, v18")
    A("s_lshl_b32 s56, s49, 2")
    A(f"s_add_u32 s56, s56, {F}")
    A("v_mov_b32 v22, s56")
    A("v_lshrrev_b32 v6, 1, v2")
    A("v_lshlrev_b32 v6, 2, v6")
    A("v_lshl_add_u32 v6, v3, 4, v6")
    A("v_and_b32 v7, 1, v2")
    A("v_sub_u32 v7, 1, v7")
    A("v_mul_u32_u24 v7, 4160, v7")
    A("v_add_u32 v6, v6, v7")
    A("s_lshl_b32 s56, s50, 8")
    A("s_add_u32 s56, s56, s54")
    A("s_add_u32 s57, s56, 4")
    A("v_add_u32 v12, s57, v6")
    for qq in range(1, 4): A(f"v_add_u32 v{12+qq}, {1024*qq}, v12")
    A("v_lshlrev_b32 v6, 4, v3")
    A("v_lshlrev_b32 v7, 5, v2")
    A("v_sub_u32 v6, v6, v7")
    A(f"s_add_u32 s57, s56, {2*4160 + 480}")
    A("v_add_u32 v16, s57, v6")
    A("v_lshlrev_b32 v8, 5, v2")
    A("v_lshl_add_u32 v8, v3, 3, v8")
    A("s_lshl_b32 s56, s50, 11")
    A(f"s_add_u32 s57, s54, {2*4160 + 4088 - 1536}")
    A("s_sub_u32 s57, s57, s56")
    A("v_sub_u32 v8, s57, v8")
    A("s_lshl_b32 s56, s48, 15")
    A(f"s_add_u32 s56, s56, {SPARE}")
    A("v_add_u32 v6, s56, v4")
    A("v_xor_b32 v7, 0x8000, v6")
    srd(A, 40, 24, 2097152, WS_ST)
    srd(A, 44, 24, FLSZ, WS_FLAG)
    spin(A, 22, (F_KR, F_UR), 2, 20, sleep=1)
    A(f"v_mov_b32 v23, {F}")
    A(f"ds_read_b32 v61, v23 offset:{F_NON}")
    A("s_lshl_b32 s56, s49, 4")
    A("s_lshr_b32 s53, s53, s56")
    A("s_lshl_b32 s53, s53, 16")
    stamp(A)
    ACC, FR = 24, 64
    def reads(pl):
        b = FR + 64 * (pl % 2)
        fs = []
        for k in range(8):
            o = 128*(k & 1) + 16*pl
            fs.append(lambda k=k, o=o: A(f"ds_read2_b32 {v(b+4*k,2)}, v{12+k//2} offset0:{o} offset1:{o+1}"))
            fs.append(lambda k=k, o=o: A(f"ds_read2_b32 {v(b+4*k+2,2)}, v{12+k//2} offset0:{o+2} offset1:{o+3}"))
            fs.append(lambda k=k: A(f"ds_read_b128 {v(b+32+4*k,4)}, v16 offset:{3584 - 512*k + 64*pl}"))
        return fs
    XN, T, P1 = 192, 200, 216
    for a in range(4):
        A(f"ds_read_b64 {v(XN+2*a,2)}, v8 offset:{1536 - 512*a}", tag='xn')
    for f in reads(0): f()
    A.wait_lg('xn')
    for a in range(4):
        A(f"v_and_b32 v{T+4*a}, 0xffff0000, v{XN+2*a+1}")
        A(f"v_lshlrev_b32 v{T+4*a+1}, 16, v{XN+2*a+1}")
        A(f"v_and_b32 v{T+4*a+2}, 0xffff0000, v{XN+2*a}")
        A(f"v_lshlrev_b32 v{T+4*a+3}, 16, v{XN+2*a}")
    for r in range(16): A(f"v_mul_f32 v{T+r}, s53, v{T+r}")
    for k in range(8): A(f"v_cvt_pk_bf16_f32 v{P1+k}, v{T+2*k}, v{T+2*k+1}")
    for k in range(8):
        A(f"v_lshlrev_b32 v{T+2*k}, 16, v{P1+k}")
        A(f"v_and_b32 v{T+2*k+1}, 0xffff0000, v{P1+k}")
    A(f"s_setprio {OPT.get('cprio2', 0)}")
    if OPT.get('s3'): A("s_nop 0")
    for pl in range(4):
        A.wait_lg0()
        fs = reads(pl + 1) if pl < 3 else []
        b = FR + 64 * (pl % 2)
        first = set()
        for q in range(8):
            for w in range(8 - q):
                ib = q + w
                c = '0' if (pl == 0 and ib not in first) else v(ACC+4*ib, 4)
                first.add(ib)
                A(f"v_mfma_f32_16x16x32_bf16 {v(ACC+4*ib,4)}, {v(b+4*q,4)}, {v(b+32+4*w,4)}, {c}")
                if fs: fs.pop(0)()
    stamp(A)
    A("s_setprio 3")
    FF = 64
    A("s_cmp_eq_u32 s50, 0")
    A("s_cbranch_scc1 K_x0")
    for ph, lab in ((1, None), (0, 'K_x0')):
        if lab: A(f"{lab}:")
        send, keep = (4, 0) if ph == 0 else (0, 4)
        for a in range(4):
            A(f"ds_write_b128 v6, {v(ACC+4*(send+a),4)} offset:{1024*a}")
        A(f"ds_write_b32 v18, v17 offset:{F_XCH}")
        for r in range(16):
            A(f"v_mov_b32 v{FF+r}, v{ACC+4*keep+r}")
        if not lab: A("s_branch K_xe")
    A("K_xe:")
    A("v_and_b32 v8, 1, v3")
    A("v_lshlrev_b32 v8, 9, v8")
    A("v_lshl_add_u32 v8, v2, 5, v8")
    A("v_lshrrev_b32 v9, 1, v3")
    A("v_lshl_add_u32 v8, v9, 4, v8")
    A("s_lshl_b32 s56, s51, 12")
    A("s_lshl_b32 s57, s50, 11")
    A("s_add_u32 s56, s56, s57")
    spin(A, 19, F_XCH, 1, 20)
    R = 80
    for a in range(4):
        A(f"ds_read_b128 {v(R+4*a,4)}, v7 offset:{1024*a}", tag='r')
    A.wait_lg('r')
    for r in range(16): A(f"v_add_f32 v{FF+r}, v{FF+r}, v{R+r}")
    for k in range(8): A(f"v_cvt_pk_bf16_f32 v{P1+k}, v{FF+2*k}, v{FF+2*k+1}")
    for k in range(8):
        A(f"v_lshlrev_b32 v{FF+2*k}, 16, v{P1+k}")
        A(f"v_and_b32 v{FF+2*k+1}, 0xffff0000, v{P1+k}")
    for r in range(16): A(f"v_add_f32 v{FF+r}, v{FF+r}, v{T+r}")
    for k in range(8): A(f"v_cvt_pk_bf16_f32 v{P1+k}, v{FF+2*k}, v{FF+2*k+1}")
    for pr in range(2):
        A(f"v_permlane16_swap_b32 v{P1+4*pr}, v{P1+4*pr+2}")
        A(f"v_permlane16_swap_b32 v{P1+4*pr+1}, v{P1+4*pr+3}")
    for pr in range(2):
        A(f"buffer_store_dwordx4 {v(P1+4*pr,4)}, v8, s[40:43], s56 offen offset:{1024*pr} sc1")
    A("v_lshrrev_b32 v8, 3, v1")
    A("v_and_b32 v9, 7, v1")
    A("v_lshlrev_b32 v10, 12, v8")
    A("v_lshl_add_u32 v10, v9, 4, v10")
    A("v_bfe_u32 v11, v8, 1, 2")
    A("v_lshlrev_b32 v11, 1, v11")
    A("v_xor_b32 v11, v11, v9")
    A("v_lshlrev_b32 v11, 4, v11")
    A("v_lshl_add_u32 v11, v8, 7, v11")
    A("s_lshl_b32 s57, s50, 11")
    A("s_add_u32 s57, s57, s54")
    A("v_add_u32 v11, s57, v11")
    stamp(A)
    A("s_lshl_b32 s56, s81, 6")
    A("s_lshl_b32 s57, s48, 4")
    A("s_add_u32 s56, s56, s57")
    A("s_lshl_b32 s56, s56, 12")
    A("s_lshl_b32 s57, s80, 7")
    A("s_add_u32 s56, s56, s57")
    A("s_add_u32 s59, s56, 32768")
    spin(A, 18, F_GO, 1, 20, sleep=4)
    A("s_mov_b32 s79, 0")
    A("K_sp:")
    A("buffer_load_dwordx4 v[64:67], v10, s[40:43], s56 offen sc1")
    A("buffer_load_dwordx4 v[68:71], v10, s[40:43], s59 offen sc1")
    A("s_waitcnt vmcnt(0)")
    A("v_max3_u32 v12, v64, v65, v66")
    A("v_max3_u32 v13, v67, v68, v69")
    A("v_max3_u32 v12, v12, v70, v71")
    A("v_max_u32 v12, v12, v13")
    A("v_cmp_eq_u32 vcc, -1, v12")
    A("s_cbranch_vccz K_spd")
    A(f"s_sleep {OPT.get('ssleep', 4)}")
    A("s_add_u32 s79, s79, 1")
    A("s_cmp_lt_u32 s79, 0x1000")
    A("s_cbranch_scc1 K_sp")
    A("K_spd:")
    stamp(A)
    A("ds_write_b128 v11, v[64:67]")
    A("ds_write_b128 v11, v[68:71] offset:1024")
    A(f"ds_write_b32 v18, v17 offset:{F_SR}")
    finish(A)

def gemm(A):
    if OPT.get('al'): A(".p2align 6")
    A("K_gemm:")
    if OPT.get('sg'): A("s_nop 0")
    A.reset_counters(); A.nst = 3
    A("s_setprio 2")
    GA = OPT.get('ga', '0') == '1' and OPT.get('iso') not in ('1', 'nord')
    if GA:
        srd(A, 32, 4, 2097152)
        srd(A, 36, 20, 1835008)
        p1_voffs(A, 144, 4)
        A("s_lshl_b32 s54, s3, 12")
        A(f"s_mul_i32 s57, s3, {16*3584}")
        A("s_lshl_b32 s56, s3, 15")
        for u in (2, 3):
            A(f"s_add_u32 m0, s54, {u*32768}")
            A(f"s_add_u32 s55, s57, {u*64*3584}")
            for q in range(4):
                A(f"buffer_load_dwordx4 v{144+q}, s[36:39], s55 offen offset:{1024*q} lds", tag=('u', u))
            A(f"s_add_u32 m0, s54, {u*32768 + 16384}")
            A(f"s_add_u32 s55, s56, {u*128}")
            for q in range(4):
                A(f"buffer_load_dwordx4 v{148+q}, s[32:35], s55 offen offset:{1024*q} lds", tag=('u', u))
    A("v_and_b32 v19, 15, v1")
    A("v_lshrrev_b32 v3, 4, v1")
    srd(A, 40, 22, 3584)
    srd(A, 44, 24, 7340032, WS_H)
    A("v_bfe_u32 v6, v1, 2, 2")
    A("v_and_b32 v9, 1, v3")
    A("v_lshl_or_b32 v9, v9, 2, v6")
    A("v_lshl_add_u32 v10, v3, 3, v6")
    A("v_lshlrev_b32 v10, 8, v10")
    A("v_and_b32 v11, 3, v1")
    A("v_lshl_add_u32 v10, v11, 3, v10")
    A("s_and_b32 s68, s83, 1")
    AB, B1, ONES, FL, AF, ACC, XR = 12, 20, 36, 40, 44, 72, 128
    MN0, RE, BF, ACS, ARS, AQS, SA, C1, C2, C3, CSA, TM = 144, 148, 164, 192, 200, 208, 216, 220, 222, 224, 226, 236
    A("s_mul_i32 s53, s83, 224")
    A("v_lshlrev_b32 v7, 3, v3")
    for tau in range(7):
        A(f"s_lshl_b32 s59, s3, 1")
        A(f"s_add_u32 s59, s59, {tau}")
        A(f"s_sub_u32 s67, s59, 7")
        A(f"s_cmp_ge_u32 s59, 7")
        A(f"s_cselect_b32 s{60+tau}, s67, s59")
        A(f"s_add_u32 s59, s{60+tau}, s68")
        A(f"v_xor_b32 v11, s59, v9")
        A(f"v_lshl_add_u32 v{AB+tau}, v11, 5, v10")
        A(f"s_lshl_b32 s59, s{60+tau}, 6")
        A(f"s_add_u32 s59, s59, {L_CS}")
        A(f"v_lshl_add_u32 v{CSA+tau}, v3, 4, s59")
        A(f"s_lshl_b32 s59, s{60+tau}, 5")
        A(f"s_add_u32 s59, s59, {L_B1}")
        A(f"v_add_u32 v{B1+2*tau}, s59, v7")
    A("v_lshrrev_b32 v6, 1, v19")
    A("v_xor_b32 v6, v6, v3")
    A("v_lshlrev_b32 v6, 4, v6")
    A("v_lshl_add_u32 v6, v19, 7, v6")
    A("s_lshl_b32 s59, s3, 12")
    A("s_add_u32 s59, s59, 16384")
    A("v_add_u32 v4, s59, v6")
    A("v_xor_b32 v5, 64, v4")
    for i in range(4): A(f"v_mov_b32 v{ONES+i}, 0x3f803f80")
    A("v_mov_b32 v34, 1")
    A(f"s_lshl_b32 s59, s3, 2")
    A(f"s_add_u32 s59, s59, {F}")
    A("v_mov_b32 v35, s59")
    A(f"v_mov_b32 v2, {F}")
    MN = 152
    k0 = -2.0 * LOG2E * 0.7978845608028654
    A(f"v_mov_b32 v{C1}, {f2u(k0*0.044715)}")
    A(f"v_mov_b32 v{C2}, {f2u(k0)}")
    A(f"v_mov_b32 v{C3}, 1.0")
    A("s_lshl_b32 s59, s3, 8")
    A(f"s_add_u32 s59, s59, {L_S2}")
    A("v_lshl_add_u32 v160, v19, 3, s59")
    A("s_lshl_b32 s52, s82, 3")
    A("s_lshl_b32 s53, s3, 1")
    A("s_add_u32 s52, s52, s53")
    A("s_mul_i32 s52, s52, 57344")
    A("s_mul_i32 s53, s83, 3584")
    A("s_add_u32 s52, s52, s53")
    A("v_lshrrev_b32 v8, 1, v3")
    A("v_lshlrev_b32 v8, 8, v8")
    A("v_lshl_add_u32 v8, v19, 4, v8")
    A("v_add_u32 v8, s52, v8")
    A("v_and_b32 v10, 1, v3")
    A("v_cmp_eq_u32 vcc, 1, v10")
    for pr in range(4):
        A(f"s_lshl_b32 s59, s{60+2*pr}, 9")
        if pr < 3: A(f"s_lshl_b32 s67, s{60+2*pr+1}, 9")
        else: A(f"s_add_u32 s67, s59, 57344")
        A(f"v_mov_b32 v10, s59")
        A(f"v_mov_b32 v11, s67")
        A(f"v_cndmask_b32 v10, v10, v11, vcc")
        A(f"v_add_u32 v{SA+pr}, v10, v8")
    A("s_mov_b32 s59, 57344")
    DN = 206
    for u in range(9): A(f"v_mov_b32 v{DN+u}, {u+1}")
    def full_issue(u):
        if OPT.get('nofl'): return
        if GA and u in (2, 3): return
        A(f"ds_read2_b32 {v(FL,2)}, v2 offset0:{u} offset1:{F_FX//4 + u}", tag=('fu', u))
    def full_eval(u):
        if OPT.get('nofl'): return
        if GA and u in (2, 3):
            spin(A, 2, F_G2 + 16*(u-2), 4, FL); return
        L1, L2 = A.newlabel('fu'), A.newlabel('fu')
        A.wait_lg(('fu', u))
        A(f"v_and_b32 v{FL}, v{FL}, v{FL+1}")
        A(f"v_cmp_eq_u32 vcc, 1, v{FL}")
        A(f"s_cbranch_vccnz {L2}")
        A(f"{L1}:")
        A(f"ds_read2_b32 {v(FL,2)}, v2 offset0:{u} offset1:{F_FX//4 + u}")
        A.lg.pop()
        A("s_waitcnt lgkmcnt(0)")
        A(f"v_and_b32 v{FL}, v{FL}, v{FL+1}")
        A(f"v_cmp_eq_u32 vcc, 1, v{FL}")
        A(f"s_cbranch_vccnz {L2}")
        A("s_add_u32 s72, s72, 1"); A("s_cmp_lt_u32 s72, 0x80000"); A(f"s_cbranch_scc1 {L1}")
        A(f"{L2}:")
    def trread(j, tau, hh):
        if OPT.get('iso') == 'nord' and j > 0: return
        off = ((j//2) % 2) * 32768 + (j % 2) * 8192 + hh * 1024
        A(f"ds_read_b64_tr_b16 {v(AF+4*tau+2*hh,2)}, v{AB+tau} offset:{off}", tag=('a', j, tau))
    def xread(j, nt):
        off = ((j//2) % 2) * 32768 + nt * 2048
        A(f"ds_read_b128 {v(XR+8*(j%2)+4*nt,4)}, v{4 + j%2} offset:{off}", tag=('x', j))
    spin(A, 2, (F_FULL, F_FX), 2, FL, sleep=1)
    if OPT.get('latepf'):
        srd(A, 32, 24, 2097152, WS_ST)
        A("s_lshl_b32 s36, s28, 13"); A("s_lshl_b32 s37, s3, 11"); A("s_add_u32 s36, s36, s37")
        A("v_mov_b32 v8, -1\nv_mov_b32 v9, -1\nv_mov_b32 v10, -1\nv_mov_b32 v11, -1")
        A("v_lshlrev_b32 v6, 4, v1")
        for i in range(2): A(f"buffer_store_dwordx4 v[8:11], v6, s[32:35], s36 offen offset:{1024*i} sc1", tag='pf')
    stamp(A)
    xread(0, 0); xread(0, 1)
    for tau in range(7):
        for hh in range(2): trread(0, tau, hh)
    for j in range(16):
        if j in (4, 8, 12): stamp(A)
        sl = XR + 8*(j % 2)
        def mf(acc, a, b):
            A(f"v_mfma_f32_16x16x32_bf16 {v(acc,4)}, {v(a,4)}, {v(b,4)}, {'0' if j == 0 else v(acc,4)}")
        flip = (j < 15 and (j + 1) % 4 == 0)
        A.wait_lg(('x', j), ('a', j, 0), ('a', j, 1))
        for tau in range(7):
            if tau % 2 == 0 and tau: A.wait_lg(('a', j, tau), ('a', j, min(tau+1, 6)))
            mf(ACC + 8*tau, AF + 4*tau, sl)
            if tau == 0:
                if j > 0: trread(j, 6, 0)
                if j % 2 == 1 and j < 15:
                    full_eval((j+1)//2)
                if flip: A(f"v_xor_b32 v4, 0x10000, v4"); A(f"v_xor_b32 v5, 0x10000, v5")
            elif j < 15: trread(j+1, tau-1, 0)
            if flip: A(f"v_xor_b32 v{AB+tau}, 0x10000, v{AB+tau}")
            if tau == 6 and j == 3 and OPT.get('latepf'): A.wait_vm('pf')
            if tau == 6 and j % 2 == 1:
                A(f"ds_write_b32 v35, v{DN + j//2} offset:{F_DONE}", tag='dn')
            if GA and tau == 3 and j in (2, 4):
                A.wait_vm(('u', j//2 + 1))
                A(f"ds_write_b32 v35, v34 offset:{F_G2 + 16*(j//2 - 1)}", tag='g2')
            if tau == 5 and j % 2 == 0 and j < 14:
                full_issue(j//2 + 1)
            mf(ACC + 8*tau + 4, AF + 4*tau, sl + 4)
            if OPT.get('hpt') and j == int(OPT.get('hpt')):
                A(f"buffer_load_dwordx4 v[244:247], v{SA + (0,1,2,3,0,1,2)[tau]}, s[44:47], {'0' if tau < 4 else 's59'} offen")
            if j == 9:
                A(f"ds_read_b64 {v(B1+2*tau,2)}, v{B1+2*tau}", tag='b1')
            if j in (10, 12, 13, 14):
                if j == 10 and tau == 0: A.wait_lg('b1')
                kk = {10: 0, 12: 1, 13: 2, 14: 3}[j]
                if kk % 2 == 0: A(f"v_lshlrev_b32 v{BF+4*tau+kk}, 16, v{B1+2*tau+kk//2}")
                else: A(f"v_and_b32 v{BF+4*tau+kk}, 0xffff0000, v{B1+2*tau+kk//2}")
            if tau == 0:
                if j > 0: trread(j, 6, 1)
            elif j < 15: trread(j+1, tau-1, 1)
            if tau < 2:
                mf(ACS + 4*tau, AF + 4*tau, ONES)
                if j < 15: xread(j+1, tau)
            if j == 15 and tau == 4:
                for t2 in range(2):
                    A(f"ds_write_b128 v{CSA+t2}, {v(ACS+4*t2,4)}", tag='cw')
                A(f"ds_write_b32 v35, v34 offset:{F_CS}", tag='fl')
    stamp(A)
    if OPT.get('iso'):
        n = A.nst; finish(A); A.nst = n
    spin(A, 2, F_ST, 1, FL)
    for nt in range(2):
        A(f"ds_read_b64 {v(MN+4*nt,2)}, v160 offset:{128*nt}")
    spin(A, 2, F_CS, 4, FL)
    CS = 44
    for tau in range(7):
        A(f"ds_read_b128 {v(CS+4*tau,4)}, v{CSA+tau}", tag=('cs', tau))
    for nt in range(2): A(f"v_mov_b32 v{MN+4*nt+2}, v{MN+4*nt+1}")
    stamp(A)
    OUT = 192
    if OPT.get('s1'): A("s_nop 0")
    bc = "op_sel_hi:[1,0,1]"
    groups = [((0,0),(1,0)), ((2,0),(3,0)), ((4,0),(5,0)), ((6,0),(6,1)), ((0,1),(1,1)), ((2,1),(3,1)), ((4,1),(5,1))]
    for gi, grp in enumerate(groups):
        o = OUT + 4 * (gi % 4)
        chains = []
        for ti, (tau, nt) in enumerate(grp):
            A.wait_lg(('cs', tau))
            for pr in range(2):
                a = ACC + 8*tau + 4*nt + 2*pr
                t = TM + 2*(2*ti + pr)
                chains.append([
                    f"v_pk_fma_f32 {v(a,2)}, {v(CS+4*tau+2*pr,2)}, {v(MN+4*nt,2)}, {v(a,2)} {bc}",
                    f"v_pk_fma_f32 {v(a,2)}, {v(a,2)}, {v(MN+4*nt+2,2)}, {v(BF+4*tau+2*pr,2)} {bc}",
                    f"v_pk_mul_f32 {v(t,2)}, {v(a,2)}, {v(a,2)}",
                    f"v_pk_fma_f32 {v(t,2)}, {v(t,2)}, {v(C1,2)}, {v(C2,2)} op_sel_hi:[1,0,0]",
                    f"v_pk_mul_f32 {v(t,2)}, {v(t,2)}, {v(a,2)}",
                    f"v_exp_f32 v{t}, v{t}",
                    f"v_exp_f32 v{t+1}, v{t+1}",
                    f"v_pk_add_f32 {v(t,2)}, {v(t,2)}, {v(C3,2)} op_sel_hi:[1,0]",
                    f"v_rcp_f32 v{t}, v{t}",
                    f"v_rcp_f32 v{t+1}, v{t+1}",
                    f"v_pk_mul_f32 {v(t,2)}, {v(t,2)}, {v(a,2)}",
                    f"v_cvt_pk_bf16_f32 v{o+2*ti+pr}, v{t}, v{t+1}"])
        for ins in zip(*chains):
            for x in ins: A(x)
        A(f"v_permlane16_swap_b32 v{o}, v{o+2}")
        A(f"v_permlane16_swap_b32 v{o+1}, v{o+3}")
        so = 's59' if (grp[0][1] == 1) else '0'
        A(f"buffer_store_dwordx4 {v(o,4)}, v{SA+grp[0][0]//2}, s[44:47], {so} offen {OPT.get('hst','sc1')}", tag='hs')
    stamp(A)
    LA = int(OPT.get('LA', 3))
    NSTEP = 14
    A(f"ds_read_b32 v237, v2 offset:{F_NON}")
    srd(A, 36, 84, 1835008)
    srd(A, 40, 4, 2097152)
    srd(A, 64, 86, 1024)
    srd(A, 52, 88, 2097152)
    srd(A, 60, 24, FLSZ, WS_FLAG)
    A("v_lshlrev_b32 v236, 4, v1")
    for l in range(4):
        A(f"s_add_u32 s49, s3, {l}")
        A("s_and_b32 s49, s49, 3")
        A("s_mul_i32 s49, s49, 57344")
        A(f"v_add_u32 v{4+l}, s49, v236")
    A(f"s_mul_i32 s48, s80, {4*57344}")
    A("s_lshl_b32 s49, s3, 10")
    A("s_add_u32 s48, s48, s49")
    w2_voffs(A, 8, 12)
    A("s_lshl_b32 s50, s3, 15")
    A("v_bfe_u32 v16, v1, 2, 2")
    A("v_lshrrev_b32 v17, 1, v16")
    A("v_and_b32 v18, 1, v3")
    A("v_lshl_or_b32 v17, v18, 1, v17")
    A("v_lshl_add_u32 v18, v3, 3, v16")
    A("v_lshlrev_b32 v18, 7, v18")
    A("v_and_b32 v20, 3, v1")
    A("v_lshl_add_u32 v18, v20, 3, v18")
    A("v_add_u32 v18, s50, v18")
    for mt in range(4):
        A(f"v_xor_b32 v20, {mt}, v17")
        A(f"v_lshl_add_u32 v{12+mt}, v20, 5, v18")
    A("s_lshl_b32 s49, s80, 6")
    A("s_lshl_b32 s56, s3, 4")
    A("s_add_u32 s49, s49, s56")
    A("v_add_u32 v16, s49, v19")
    A("v_lshlrev_b32 v16, 10, v16")
    A("v_and_b32 v17, 1, v3")
    A("v_lshl_add_u32 v16, v17, 5, v16")
    A("v_lshrrev_b32 v17, 1, v3")
    A("v_lshl_add_u32 v16, v17, 4, v16")
    A("s_lshl_b32 s49, s81, 7")
    A("v_add_u32 v16, s49, v16")
    A("v_lshlrev_b32 v17, 3, v3")
    A("v_mov_b32 v44, 1")
    A("v_mov_b32 v45, v35")
    A("v_mov_b32 v46, v2")
    A("v_add_u32 v47, s50, v236")
    A("v_bfe_u32 v18, v1, 2, 2")
    A("v_lshl_add_u32 v18, v3, 2, v18")
    A("v_bfe_u32 v20, v18, 1, 2")
    A("v_xor_b32 v20, s3, v20")
    A("v_lshlrev_b32 v18, 7, v18")
    A("v_lshl_add_u32 v18, v20, 5, v18")
    A("v_and_b32 v20, 3, v1")
    A("v_lshl_add_u32 v18, v20, 3, v18")
    A(f"v_add_u32 v18, {L_CV}, v18")
    for k in range(1, 4):
        A(f"s_add_u32 s56, s3, {k}")
        A("s_and_b32 s56, s56, 3")
        A(f"s_lshl_b32 s56, s56, 15")
        A(f"s_add_u32 s56, s56, {(4-k)*4096}")
        A(f"v_add_u32 v{247+k}, s56, v236")
    A("s_lshl_b32 s56, s82, 1")
    A("s_lshr_b32 s57, s3, 1")
    A("s_add_u32 s56, s56, s57")
    A("s_lshl_b32 s56, s56, 10")
    A("s_lshl_b32 s57, s83, 3")
    A("s_add_u32 s56, s56, s57")
    A("s_and_b32 s57, s3, 1")
    A("s_lshl_b32 s57, s57, 2")
    A("s_add_u32 s56, s56, s57")
    A("v_lshlrev_b32 v238, 7, v1")
    A("v_and_b32 v239, 31, v1")
    A("v_lshlrev_b32 v239, 2, v239")
    spin(A, 46, F_NON, 1, 237, cmp='ne', val='0')
    A.wait_vm0()
    A("s_mov_b64 exec, 0xff")
    A(f"buffer_store_dword v237, v238, s[60:63], s56 offen {OPT.get('hst','sc1')}")
    A("s_mov_b64 exec, -1")
    stamp(A)
    A("buffer_load_dwordx4 v[20:23], v16, s[40:43], 0 offen")
    A("buffer_load_dwordx4 v[24:27], v16, s[40:43], 0 offen offset:64")
    for mt in range(4):
        A(f"buffer_load_dwordx2 {v(240+2*mt,2)}, v17, s[64:67], s49 offen offset:{32*mt}")
    A(f"s_setprio {OPT.get('gprio', 1)}")
    spin(A, 45, F_PRE, 1, 28, sleep=1)
    NRG = int(OPT.get('NRG', 3))
    NH = LA + 1
    AF, ACC, AR, HB = 28, 48, 112, 112 + 16*NRG
    assert HB + 16*NH <= 236, HB + 16*NH
    def afr(j): return AR + 16*j if j < NRG else AF
    def trread2(j, mt):
        for hh in range(2):
            A(f"ds_read_b64_tr_b16 {v(afr(j)+4*mt+2*hh,2)}, v{12+mt} offset:{(j % NR)*4096 + hh*512}", tag=('a', j, mt))
    def hloads(j):
        hb = HB + 16 * (j % NH)
        def first():
            rstep(A, 58, j)
            A("s_lshl_b32 s58, s58, 12")
            A("s_add_u32 s58, s58, s48")
        fs = [first]
        for nt in range(4):
            fs.append(lambda nt=nt: A(f"buffer_load_dwordx4 {v(hb+4*nt,4)}, v{4+nt}, s[44:47], s58 offen {OPT.get('hld','sc1')}", tag=('h', j)))
        return fs
    def wloads(j):
        def first():
            rstep(A, 59, j)
            A("s_lshl_b32 s59, s59, 17")
            A("s_add_u32 s59, s59, s50")
            A(f"s_add_u32 m0, s50, {(j % NR)*4096}")
            A(f"buffer_load_dwordx4 v8, s[36:39], s59 offen lds", tag=('w', j))
        return [first] + [(lambda q=q: A(f"buffer_load_dwordx4 v{8+q}, s[36:39], s59 offen offset:{1024*q} lds", tag=('w', j))) for q in range(1, 4)]
    for j in range(NRG + 1):
        for mt in range(4): trread2(j, mt)
        if j >= 1:
            A.wait_lg(('a', j-1, 3))
            for f in wloads(j - 1 + NR): f()
    A.wait_lg0()
    for f in wloads(NRG + NR) if NRG + NR < NSTEP else []: f()
    nextw = NRG + NR + 1
    A("s_lshl_b32 s56, s80, 10")
    A("s_lshl_b32 s57, s81, 7")
    A("s_add_u32 s56, s56, s57")
    FINE = bool(OPT.get('fine'))
    def need(j):
        T = (128*j + 127) // 112
        mask = (1 << (2*T + 2)) - 1
        L = A.newlabel('nd')
        A(f"s_and_b32 s76, s75, {mask}")
        A(f"s_cbranch_scc0 {L}_d")
        A("s_mov_b32 s79, 0")
        A(f"{L}:")
        A("buffer_load_dword v238, v239, s[60:63], s74 offen sc1"); A.vm.pop()
        A("s_waitcnt vmcnt(0)")
        A("v_cmp_ne_u32 vcc, v237, v238")
        A("s_mov_b32 s75, vcc_lo")
        A(f"s_and_b32 s76, s75, {mask}")
        A(f"s_cbranch_scc0 {L}_d")
        A(f"s_sleep {OPT.get('hsleep', 3)}")
        A("s_add_u32 s79, s79, 1")
        A("s_cmp_lt_u32 s79, 0x4000")
        A(f"s_cbranch_scc1 {L}")
        A(f"{L}_d:")
    if FINE:
        A("s_mov_b32 s74, s56")
        A("s_mov_b32 s75, -1")
        need(int(OPT.get('first', 1)))
        stamp(A)
        for j in range(LA):
            need(j)
            for f in hloads(j): f()
    else:
        A("s_cmp_lg_u32 s3, 0")
        A("s_cbranch_scc1 K_g1")
        vm = list(A.vm)
        gpoll(A, 239, 60, 's56', 238, 237, int(OPT.get('hsleep', 4)))
        A.vm = vm
        A(f"ds_write_b32 v46, v44 offset:{F_HR}")
        A("K_g1:")
        spin(A, 46, F_HR, 1, 238, sleep=1)
        stamp(A)
        for j in range(LA):
            for f in hloads(j): f()
    if OPT.get('s2'): A("s_nop 0")
    for j in range(NSTEP):
        if j in (4, 9): stamp(A)
        fs = hloads(j + LA) if j + LA < NSTEP else []
        if nextw < NSTEP and j - 1 >= nextw - NR:
            fs = fs + wloads(nextw); nextw += 1
        if j == int(OPT.get('GO', 7)): A(f"ds_write_b32 v45, v44 offset:{F_GO}", tag='go')
        if OPT.get('burst') == '2':
            while fs: fs.pop(0)()
        A.wait_vm(('h', j), ('w', j + 1))
        if FINE and j + LA < NSTEP:
            if j >= LA and j - LA + 2*LA < NSTEP:
                A(f"v_cmp_ne_u32 vcc, v237, v{251 + (j % 3)}")
                A("s_and_b32 s75, s75, vcc_lo")
            need(j + LA)
            if j + 2*LA < NSTEP:
                A(f"buffer_load_dword v{251 + ((j + LA) % 3)}, v239, s[60:63], s74 offen sc1", tag=('h', j + LA))
        hb = HB + 16 * (j % NH)
        af = afr(j)
        if OPT.get('burst', '1') == '1':
            while fs: fs.pop(0)()
        if j + 1 < NSTEP:
            for mt in range(4):
                A.wait_lg(('a', j, mt))
                for nt in range(4):
                    acc = ACC + 16*nt + 4*mt
                    A(f"v_mfma_f32_16x16x32_bf16 {v(acc,4)}, {v(af+4*mt,4)}, {v(hb+4*nt,4)}, {'0' if j == 0 else v(acc,4)}")
                    if fs and nt < 3: fs.pop(0)()
                if j + 1 > NRG: trread2(j + 1, mt)
            while fs: fs.pop(0)()
        else:
            A.wait_lg0()
            pend = []
            for nt in (1, 2, 3, 0):
                for mt in range(4):
                    acc = ACC + 16*nt + 4*mt
                    A(f"v_mfma_f32_16x16x32_bf16 {v(acc,4)}, {v(af+4*mt,4)}, {v(hb+4*nt,4)}, {v(acc,4)}")
                    if len(pend) >= 4:
                        a2, o2 = pend.pop(0)
                        A(f"ds_write_b128 v47, {v(a2,4)} offset:{o2}")
                    if nt: pend.append((acc, (4*nt+mt)*1024))
            for a2, o2 in pend: A(f"ds_write_b128 v47, {v(a2,4)} offset:{o2}")
    assert nextw >= NSTEP
    A(f"ds_write_b32 v45, v44 offset:{F_RED}")
    stamp(A)
    BB, XX, SS, T = 176, 192, 208, 128
    for mt in range(4):
        for k in range(2):
            A(f"v_lshlrev_b32 v{BB+4*mt+2*k}, 16, v{240+2*mt+k}")
            A(f"v_and_b32 v{BB+4*mt+2*k+1}, 0xffff0000, v{240+2*mt+k}")
    for r in range(0, 16, 2):
        A(f"v_pk_add_f32 {v(ACC+r,2)}, {v(ACC+r,2)}, {v(BB+r,2)}")
    for k in range(8):
        A(f"v_lshlrev_b32 v{XX+2*k}, 16, v{20+k}")
        A(f"v_and_b32 v{XX+2*k+1}, 0xffff0000, v{20+k}")
    A(f"v_mov_b32 v232, {f2u(-LOG2E)}")
    A(f"v_mov_b32 v234, 1.0")
    spin(A, 46, F_RED, 4, 8)
    PR = 128
    for k in range(1, 4):
        for mt in range(4):
            A(f"ds_read_b128 {v(PR+16*(k-1)+4*mt,4)}, v{247+k} offset:{mt*1024}", tag=('p', k))
    for k in range(1, 4):
        A.wait_lg(('p', k))
        for r in range(0, 16, 2):
            A(f"v_pk_add_f32 {v(ACC+r,2)}, {v(ACC+r,2)}, {v(PR+16*(k-1)+r,2)}")
    for r in range(0, 16, 2):
        A(f"v_pk_mul_f32 {v(T+r,2)}, {v(ACC+r,2)}, {v(232,2)} op_sel_hi:[1,0]")
    for r in range(16): A(f"v_exp_f32 v{T+r}, v{T+r}")
    for r in range(0, 16, 2):
        A(f"v_pk_add_f32 {v(T+r,2)}, {v(T+r,2)}, {v(234,2)} op_sel_hi:[1,0]")
    for r in range(16): A(f"v_rcp_f32 v{T+r}, v{T+r}")
    for r in range(0, 16, 2):
        A(f"v_pk_mul_f32 {v(ACC+r,2)}, {v(ACC+r,2)}, {v(T+r,2)}")
    stamp(A)
    spin(A, 46, F_SR, 4, 8)
    stamp(A)
    for mt in range(4):
        A(f"ds_read_b64_tr_b16 {v(224+2*mt,2)}, v18 offset:{(mt>>1)*CVS + (mt&1)*2048}", tag='s')
    A.wait_lg('s')
    for mt in range(4):
        for k in range(2):
            A(f"v_lshlrev_b32 v{SS+4*mt+2*k}, 16, v{224+2*mt+k}")
            A(f"v_and_b32 v{SS+4*mt+2*k+1}, 0xffff0000, v{224+2*mt+k}")
    for r in range(0, 16, 2):
        A(f"v_pk_mul_f32 {v(ACC+r,2)}, {v(ACC+r,2)}, {v(SS+r,2)}")
    O = 160
    for r in range(0, 16, 2):
        A(f"v_cvt_pk_bf16_f32 v{O+r//2}, v{ACC+r}, v{ACC+r+1}")
    for pr in range(2):
        A(f"v_permlane16_swap_b32 v{O+4*pr}, v{O+4*pr+2}")
        A(f"v_permlane16_swap_b32 v{O+4*pr+1}, v{O+4*pr+3}")
    for k in range(8):
        A(f"v_lshlrev_b32 v{T+2*k}, 16, v{O+k}")
        A(f"v_and_b32 v{T+2*k+1}, 0xffff0000, v{O+k}")
    for k in range(8):
        A(f"v_pk_add_f32 {v(T+2*k,2)}, {v(T+2*k,2)}, {v(XX+2*k,2)}")
    for k in range(8):
        A(f"v_cvt_pk_bf16_f32 v{O+k}, v{T+2*k}, v{T+2*k+1}")
    A(f"buffer_store_dwordx4 {v(O,4)}, v16, s[52:55], 0 offen {OPT.get('sto','')}")
    A(f"buffer_store_dwordx4 {v(O+4,4)}, v16, s[52:55], 0 offen offset:64 {OPT.get('sto','')}")
    A("s_or_b32 s56, s2, s3")
    A("s_cmp_lg_u32 s56, 0")
    A("s_cbranch_scc1 K_g9")
    A("v_mov_b32 v238, 0")
    A("s_mov_b32 s56, 0x30000")
    A("s_mov_b64 exec, 1")
    A("buffer_store_dword v237, v238, s[60:63], s56 offen sc1")
    A("s_mov_b64 exec, -1")
    A("K_g9:")
    finish(A)

def build():
    A = Asm()
    A(f".globl {KN}\n.p2align 8\n.type {KN},@function")
    A(f"{KN}:")
    A("K_start:")
    prologue(A)
    loader(A)
    gemm(A)
    xwave(A)
    kgen(A)
    uload(A)
    conv(A)
    A("K_end:")
    A("s_endpgm")
    hdr = open('cdna_kernels/' + NAME + '.s.ref').read().split('; Override launch')[0] if os.path.exists('cdna_kernels/' + NAME + '.s.ref') else ''
    txt = hdr + f"; @launch grid=(256,1,1) block=(512,1,1) lds={L_SIZE}\n"
    txt += '.amdgcn_target "amdgcn-amd-amdhsa--gfx950"\n.text\n' + A.text() + 'CODE_END:\n.section .rodata,"a"\n'
    txt += f""".p2align 6
.amdhsa_kernel {KN}
  .amdhsa_next_free_vgpr 256
  .amdhsa_next_free_sgpr 102
  .amdhsa_accum_offset 256
  .amdhsa_group_segment_fixed_size 0
  .amdhsa_kernarg_size 136
  .amdhsa_user_sgpr_count 2
  .amdhsa_user_sgpr_kernarg_segment_ptr 1
  .amdhsa_system_sgpr_workgroup_id_x 1
.end_amdhsa_kernel
"""
    return txt

if __name__ == '__main__':
    out = sys.argv[1] if len(sys.argv) > 1 else f'cdna_kernels/{NAME}.s'
    open(out, 'w').write(build())
```

```python
import sys, os, struct
sys.path.insert(0, os.path.dirname(__file__))
from asmlib import Asm

NAME = 'recurrent_scan__ssm_conv_s4__mixer_channel_mlp__prompt'
KN = NAME + '_kernel'
WS_XN = 0
WS_H = 0x800000
WS_ST = 0x1000000
WS_FLAG = 0x1400000
WS_MB = 0x40000
FLSZ = 0xC0000
WS_DBG = 0x1800000
SRD3 = '0x00020000'
LOG2E = 1.4426950408889634
DEBUG = os.environ.get('KDEBUG', '0') == '1'
OPT = dict(kv.split('=') for kv in os.environ.get('KOPT', '').split(',') if kv)

def v(a, n=1): return f'v{a}' if n == 1 else f'v[{a}:{a+n-1}]'
def f2u(x): return '0x%08x' % struct.unpack('<I', struct.pack('<f', x))[0]
def srd(A, d, base, size, off=0):
    if off:
        A(f's_add_u32 s{d}, s{base}, {off}'); A(f's_addc_u32 s{d+1}, s{base+1}, 0')
    else:
        A(f's_mov_b32 s{d}, s{base}'); A(f's_mov_b32 s{d+1}, s{base+1}')
    A(f's_mov_b32 s{d+2}, {size}'); A(f's_mov_b32 s{d+3}, {SRD3}')
def bf16r(A, d, x, t):
    A(f'v_cvt_pk_bf16_f32 v{t}, v{x}, v{x}'); A(f'v_lshlrev_b32 v{d}, 16, v{t}')

def stamp(A, real=False):
    if not DEBUG: return
    A(f"{'s_memrealtime' if real else 's_memtime'} s[94:95]")
    A("s_waitcnt lgkmcnt(0)"); A.lg = []
    A(f"v_writelane_b32 v255, s94, {A.nst}")
    A.nst += 1
    assert A.nst <= 32
def finish(A):
    if DEBUG:
        A.wait_vm0()
        stamp(A); stamp(A, True)
        srd(A, 96, 24, 0x100000, WS_DBG)
        A("s_lshl_b32 s94, s2, 3"); A("s_add_u32 s94, s94, s3"); A("s_lshl_b32 s94, s94, 7")
        A("v_lshlrev_b32 v254, 2, v1")
        A(f"s_mov_b64 exec, {(1 << A.nst) - 1}")
        A("buffer_store_dword v255, v254, s[96:99], s94 offen")
    A("s_endpgm")

L_CV = 131072
CVS = 2 * 4160 + 4576
F = L_CV + 2 * CVS
F_FULL, F_DONE, F_XD, F_PRE, F_NON, F_KR, F_UR, F_XCH, F_CS, F_ST, F_SR, F_GO, F_RED = 0, 32, 48, 64, 80, 84, 92, 112, 128, 144, 160, 176, 192
F_HR, F_XR, F_XT = 100, 104, 108
F_FX = 208
F_PF = 240
F_G2 = 256
L_CS = F + 288
L_ST = L_CS + 448
L_S2 = L_ST + 1024
L_B1 = L_S2 + 1024
L_SIZE = L_B1 + 256
SPARE = 28672
NR = 7

XROWS = [(0,0),(0,1),(0,2),(0,3),(1,0),(1,1),(1,2),(1,3),(2,0),(2,2),(4,0),(6,0),(3,0),(3,2),(5,0),(7,0),
         (8,0),(10,0),(12,0),(14,0),(9,0),(11,0),(13,0),(15,0),(16,0)]

def spin(A, areg, off, n, t, sleep=0, cmp='eq', val='1'):
    L = A.newlabel('sp')
    A(f"{L}:")
    if n == 1: A(f"ds_read_b32 v{t}, v{areg} offset:{off}")
    elif n == 2: A(f"ds_read2_b32 {v(t,2)}, v{areg} offset0:{off[0]//4} offset1:{off[1]//4}")
    else: A(f"ds_read_b128 {v(t,4)}, v{areg} offset:{off}")
    A("s_waitcnt lgkmcnt(0)")
    if n == 2: A(f"v_min_u32 v{t}, v{t}, v{t+1}")
    if n == 4:
        A(f"v_min_u32 v{t}, v{t}, v{t+1}"); A(f"v_min3_u32 v{t}, v{t}, v{t+2}, v{t+3}")
    A(f"v_cmp_{cmp}_u32 vcc, {val}, v{t}")
    A(f"s_cbranch_vccnz {L}_d")
    if sleep: A(f"s_sleep {sleep * int(OPT.get('sm', 1))}")
    A("s_add_u32 s72, s72, 1")
    A("s_cmp_lt_u32 s72, 0x80000")
    A(f"s_cbranch_scc1 {L}")
    A(f"{L}_d:")
    A.lg = []

def gpoll(A, vaddr, srdr, soff, t, nonce, sleep):
    L = A.newlabel('gp')
    A("s_mov_b32 s79, 0")
    A(f"{L}:")
    A(f"buffer_load_dword v{t}, v{vaddr}, s[{srdr}:{srdr+3}], {soff} offen sc1")
    A("s_waitcnt vmcnt(0)")
    A(f"v_cmp_ne_u32 vcc, v{nonce}, v{t}")
    A(f"s_cbranch_vccz {L}_d")
    A(f"s_sleep {sleep}")
    A("s_add_u32 s79, s79, 1")
    A("s_cmp_lt_u32 s79, 0x4000")
    A(f"s_cbranch_scc1 {L}")
    A(f"{L}_d:")
    A.vm = []

def prologue(A):
    A("s_cmp_ge_u32 s2, 256")
    A("s_cbranch_scc1 K_end")
    A.nst = 0
    A("s_load_dwordx16 s[4:19], s[0:1], 0")
    A("s_load_dwordx4 s[20:23], s[0:1], 80")
    A("s_load_dwordx2 s[24:25], s[0:1], 128")
    A("s_load_dwordx4 s[84:87], s[0:1], 96")
    A("s_load_dwordx4 s[88:91], s[0:1], 112")
    A("s_load_dwordx2 s[92:93], s[0:1], 64")
    A("s_getpc_b64 s[40:41]")
    A("K_pc:")
    A("s_sub_u32 s40, s40, K_pc-K_start")
    A("s_subb_u32 s41, s41, 0")
    A("s_mov_b32 s42, CODE_END-K_start")
    A(f"s_mov_b32 s43, {SRD3}")
    A("v_lshlrev_b32 v5, 7, v0")
    if OPT.get('cpf', 'part') == 'part':
        A("s_and_b32 s44, s2, 0x18")
        A("s_lshl_b32 s44, s44, 10")
        A("v_and_b32 v5, 0x1fff, v5")
        A("v_lshrrev_b32 v6, 6, v0")
        A("v_lshl_add_u32 v5, v6, 15, v5")
        A("buffer_load_dword v254, v5, s[40:43], s44 offen")
    else:
        A("buffer_load_dword v254, v5, s[40:43], 0 offen")
    A("v_lshrrev_b32 v2, 6, v0")
    A("v_and_b32 v1, 63, v0")
    A("v_mov_b32 v3, 0")
    A("v_readfirstlane_b32 s3, v2")
    A("v_min_u32 v4, 35, v1")
    A("v_lshlrev_b32 v4, 3, v4")
    A(f"v_add_u32 v4, {F}, v4")
    A("v_mov_b32 v6, 0\nv_mov_b32 v7, 0")
    A("ds_write_b64 v4, v[6:7]")
    A("s_mov_b32 s72, 0")
    A("s_and_b32 s26, s2, 7")
    A("s_lshr_b32 s27, s2, 3")
    A("s_lshl_b32 s28, s26, 5")
    A("s_add_u32 s28, s28, s27")
    m1, m2 = OPT.get('map', 'bb')
    A("s_lshr_b32 s29, s26, 1")
    A("s_and_b32 s30, s26, 1")
    if m1 == 'a':
        A("s_lshl_b32 s82, s29, 2"); A("s_and_b32 s31, s27, 3"); A("s_add_u32 s82, s82, s31")
        A("s_lshl_b32 s83, s30, 3"); A("s_lshr_b32 s31, s27, 2"); A("s_add_u32 s83, s83, s31")
    elif m1 == 'c':
        A("s_lshr_b32 s82, s26, 2"); A("s_lshl_b32 s82, s82, 3"); A("s_and_b32 s31, s27, 7"); A("s_add_u32 s82, s82, s31")
        A("s_and_b32 s83, s26, 3"); A("s_lshl_b32 s83, s83, 2"); A("s_lshr_b32 s31, s27, 3"); A("s_add_u32 s83, s83, s31")
    else:
        A("s_lshl_b32 s82, s26, 1"); A("s_and_b32 s31, s27, 1"); A("s_add_u32 s82, s82, s31")
        A("s_lshr_b32 s83, s27, 1")
    if m2 == 'a':
        A("s_lshl_b32 s80, s29, 3"); A("s_and_b32 s31, s27, 7"); A("s_add_u32 s80, s80, s31")
        A("s_lshl_b32 s81, s30, 2"); A("s_lshr_b32 s31, s27, 3"); A("s_add_u32 s81, s81, s31")
    else:
        A("s_lshl_b32 s80, s26, 2"); A("s_and_b32 s31, s27, 3"); A("s_add_u32 s80, s80, s31")
        A("s_lshr_b32 s81, s27, 2")
    A(f"s_mul_i32 s78, s81, {OPT.get('rmul', 7)}")
    A("s_lshr_b32 s78, s78, 2")
    stamp(A, True); stamp(A)
    A("s_waitcnt lgkmcnt(0)")
    A("s_barrier")
    stamp(A)
    A.reset_counters()
    A("s_cmp_lt_u32 s3, 4")
    A("s_cbranch_scc1 K_gemm")
    A("s_cmp_eq_u32 s3, 4")
    A("s_cbranch_scc1 K_x")
    A("s_cmp_lt_u32 s3, 7")
    A("s_cbranch_scc1 K_kgen")

def w2_voffs(A, d, t):
    A(f"v_lshrrev_b32 v{t}, 3, v1")
    A(f"v_and_b32 v{t+1}, 7, v1")
    A(f"v_bfe_u32 v{t+2}, v1, 4, 1")
    A(f"v_lshlrev_b32 v{t+2}, 1, v{t+2}")
    A(f"v_xor_b32 v{t+1}, v{t+1}, v{t+2}")
    A(f"v_lshlrev_b32 v{t}, 10, v{t}")
    A("s_lshl_b32 s49, s81, 7")
    A(f"v_add_u32 v{t}, s49, v{t}")
    for q in range(4):
        A(f"v_xor_b32 v{t+2}, {4*(q&1)}, v{t+1}")
        A(f"v_lshl_add_u32 v{d+q}, v{t+2}, 4, v{t}")
        if q: A(f"v_add_u32 v{d+q}, {q*(8192-1024)}, v{d+q}")

def p1_voffs(A, d, t):
    A(f"v_and_b32 v{t}, 15, v1")
    A(f"v_lshrrev_b32 v{t+1}, 4, v1")
    A("s_mul_i32 s53, s83, 224")
    A("s_and_b32 s53, s53, 0xffffffc0")
    A(f"v_mul_u32_u24 v{t+2}, 3584, v{t+1}")
    A(f"v_add_u32 v{t+2}, s53, v{t+2}")
    A(f"v_lshlrev_b32 v{t+3}, 1, v{t+1}")
    A(f"v_xor_b32 v{t+3}, v{t+3}, v{t}")
    for q in range(4):
        A(f"v_xor_b32 v{t+4}, {8*((q>>1)&1)}, v{t+3}")
        A(f"v_lshl_add_u32 v{d+q}, v{t+4}, 4, v{t+2}")
        if q: A(f"v_add_u32 v{d+q}, {q*(4*3584-1024)}, v{d+q}")
    A(f"v_lshrrev_b32 v{t+2}, 3, v1")
    A(f"v_and_b32 v{t+4}, 7, v1")
    A(f"v_xor_b32 v{t+3}, v{t+1}, v{t+4}")
    A("s_lshl_b32 s52, s82, 7")
    A(f"v_add_u32 v{t+2}, s52, v{t+2}")
    A(f"v_lshlrev_b32 v{t+2}, 10, v{t+2}")
    for q in range(4):
        A(f"v_xor_b32 v{t+4}, {4*(q&1)}, v{t+3}")
        A(f"v_lshl_add_u32 v{d+4+q}, v{t+4}, 4, v{t+2}")
        if q: A(f"v_add_u32 v{d+4+q}, {q*(8192-1024)}, v{d+4+q}")

NG = int(OPT.get('NG', 0))

def rstep(A, d, j):
    A(f"s_add_u32 s{d}, s78, {j}")
    A(f"s_sub_u32 s77, s{d}, 14")
    A(f"s_cmp_ge_u32 s{d}, 14")
    A(f"s_cselect_b32 s{d}, s77, s{d}")

def wait_free(A, n):
    L1 = A.newlabel('fr')
    A(f"{L1}:")
    A(f"ds_read_b128 v[20:23], v17 offset:{F_DONE}")
    A("s_waitcnt lgkmcnt(0)")
    A("v_min_u32 v20, v20, v21")
    A("v_min3_u32 v20, v20, v22, v23")
    A(f"v_cmp_le_u32 vcc, {n}, v20")
    A(f"s_cbranch_vccnz {L1}_d"); A(f"s_sleep {OPT.get('fsleep', 2)}")
    A("s_add_u32 s72, s72, 1"); A("s_cmp_lt_u32 s72, 0x80000"); A(f"s_cbranch_scc1 {L1}"); A(f"{L1}_d:")
    A.lg = []

def p1_stream(A, isx):
    A("s_setprio 3")
    if isx: srd(A, 36, 4, 2097152)
    else: srd(A, 36, 20, 1835008)
    p1_voffs(A, 8, 2)
    A("v_mov_b32 v16, 1")
    A(f"v_mov_b32 v17, {F}")
    if OPT.get('iso') in ('1', 'nord'):
        for u in range(8): A(f"ds_write_b32 v17, v16 offset:{(F_FX if isx else F_FULL) + 4*u}")
        A("s_endpgm")
    PQ = int(OPT.get('PQ', 2))
    def issue(u, then=None):
        base = (u % 4) * 32768
        for qq in range(4):
            if then is not None and qq == PQ: post(then)
            A(f"s_mov_b32 m0, {base + qq*4096 + (16384 if isx else 0)}")
            A(f"s_mov_b32 s57, {128*u + 32768*qq if isx else (64*u + 16*qq)*3584}")
            for q in range(4):
                A(f"buffer_load_dwordx4 v{(12 if isx else 8)+q}, s[36:39], s57 offen offset:{1024*q} lds", tag=('u', u))
    def post(u):
        A.wait_vm(('u', u))
        A(f"ds_write_b32 v17, v16 offset:{(F_FX if isx else F_FULL) + 4*u}")
    issue(0); issue(1, 0)
    if not isx:
        srd(A, 40, 22, 3584)
        A("v_lshlrev_b32 v18, 2, v1")
        A("s_mul_i32 s53, s83, 224")
        A(f"s_mov_b32 m0, {L_B1}")
        A("buffer_load_dword v18, s[40:43], s53 offen lds", tag='b1')
    GA = OPT.get('ga', '0') == '1'
    if GA:
        post(1); wait_free(A, 1); issue(4)
    for u in range(5 if GA else 2, 8):
        if u >= 4 and not OPT.get('oldpost'):
            L = A.newlabel('ad')
            A(f"ds_read_b128 v[20:23], v17 offset:{F_DONE}")
            A("s_waitcnt lgkmcnt(0)")
            A("v_min_u32 v20, v20, v21")
            A("v_min3_u32 v20, v20, v22, v23")
            A(f"v_cmp_le_u32 vcc, {u-3}, v20")
            A(f"s_cbranch_vccnz {L}")
            A("s_waitcnt vmcnt(0)")
            A(f"ds_write_b32 v17, v16 offset:{(F_FX if isx else F_FULL) + 4*(u-1)}")
            wait_free(A, u - 3)
            A(f"{L}:")
            issue(u, u-1)
        else:
            if u >= 4: wait_free(A, u - 3)
            issue(u, u-1)
    post(7)
    if OPT.get('iso'): A("s_endpgm")

def loader(A):
    A.reset_counters(); A.nst = 3
    p1_stream(A, False)
    srd(A, 40, 84, 1835008)
    w2_voffs(A, 8, 4)
    stamp(A)
    A(f"s_setprio {OPT.get('lprio', 1)}")
    for w in range(4):
        wait_free(A, 5 + w)
        for j in range(NR):
            A(f"s_mov_b32 m0, {w*32768 + j*4096}")
            rstep(A, 57, j)
            A("s_lshl_b32 s57, s57, 17")
            A(f"s_add_u32 s57, s57, {w*32768}")
            for q in range(4):
                A(f"buffer_load_dwordx4 v{8+q}, s[40:43], s57 offen offset:{1024*q} lds", tag=('w', w))
        if w:
            A.wait_vm(('w', w-1)); A(f"ds_write_b32 v17, v16 offset:{F_PRE + 4*(w-1)}")
    A.wait_vm(('w', 3)); A(f"ds_write_b32 v17, v16 offset:{F_PRE + 12}")
    stamp(A)
    A("s_branch K_conv")

def xwave(A):
    if OPT.get('al'): A(".p2align 6")
    A("K_x:")
    if OPT.get('iso') == 'ldx': OPT['xonly'] = 1
    if OPT.get('sx'): A("s_nop 0")
    if OPT.get('iso') and OPT.get('iso') not in ('ldx', 'ldxk'): A("s_endpgm")
    A.reset_counters(); A.nst = 3
    A(f"s_setprio {OPT.get('x0prio', 3)}")
    srd(A, 32, 4, 2097152)
    srd(A, 36, 24, 2097152, WS_XN)
    srd(A, 44, 24, FLSZ, WS_FLAG)
    A("v_lshlrev_b32 v2, 4, v1")
    A("v_mov_b32 v60, 0")
    A("s_mov_b32 s40, 0x30000")
    A("buffer_load_dword v61, v60, s[44:47], s40 offen sc1", tag='e')
    A("s_lshl_b32 s29, s28, 13")
    A("v_add_u32 v3, 4096, v2")
    X = 160
    for t in range(8):
        A(f"buffer_load_dwordx4 {v(X+4*t,4)}, v{2 + t//4}, s[32:35], s29 offen offset:{(t%4)*1024}", tag=('x', t))
    A(f"v_mov_b32 v6, {F}")
    A("s_lshl_b32 s31, s28, 2")
    A("s_load_dword s63, s[18:19], s31")
    A("s_lshl_b32 s31, s28, 9")
    A("s_add_u32 s31, s31, 256")
    A("v_lshlrev_b32 v4, 2, v1")
    for i in range(6):
        srd(A, 40, 6 + 2*i, 131072)
        A(f"buffer_load_dword v{52+i}, v4, s[40:43], s31 offen", tag='p')
    A("v_mov_b32 v4, 0x3f803f80")
    S, Q = 64, 72
    A.wait_vm('e')
    A("v_add_u32 v61, 1, v61")
    A("v_max_u32 v61, 1, v61")
    A(f"ds_write_b32 v6, v61 offset:{F_NON}")
    for t in range(8):
        A.wait_vm(('x', t))
        for k in range(4):
            A(f"v_dot2_f32_bf16 v{S+t}, v{X+4*t+k}, v4, {'0' if k == 0 else 'v%d' % (S+t)}")
            A(f"v_dot2_f32_bf16 v{Q+t}, v{X+4*t+k}, v{X+4*t+k}, {'0' if k == 0 else 'v%d' % (Q+t)}")
    for B in (S, Q):
        for t in range(4): A(f"v_permlane32_swap_b32 v{B+t}, v{B+t+4}")
    for B in (S, Q):
        for t in range(4): A(f"v_add_f32 v{B+t}, v{B+t}, v{B+t+4}")
    for B in (S, Q):
        for t in range(2): A(f"v_permlane16_swap_b32 v{B+t}, v{B+t+2}")
    for B in (S, Q):
        for t in range(2): A(f"v_add_f32 v{B+t}, v{B+t}, v{B+t+2}")
    for sh in (8, 4, 2, 1):
        for r in (S, S+1, Q, Q+1):
            A(f"v_add_f32_dpp v{r}, v{r}, v{r} row_ror:{sh} row_mask:0xf bank_mask:0xf")
    seqs = []
    for t in range(2):
        m, q, G = S+t, Q+t, 80 + 4*t
        t1, t2, t3, t4 = 88+4*t, 89+4*t, 90+4*t, 91+4*t
        L = []
        def br(d, x): L.extend([f'v_cvt_pk_bf16_f32 v{t4}, v{x}, v{x}', f'v_lshlrev_b32 v{d}, 16, v{t4}'])
        L.append(f"v_mul_f32 v{m}, {f2u(1/512)}, v{m}")
        L.append(f"v_mul_f32 v{q}, {f2u(1/512)}, v{q}")
        L.append(f"v_fma_f32 v{q}, -v{m}, v{m}, v{q}")
        L.append(f"v_max_f32 v{q}, 0, v{q}")
        br(t1, q)
        L.append(f"v_add_f32 v{t1}, {f2u(1e-5)}, v{t1}")
        br(t1, t1)
        L.append(f"v_sqrt_f32 v{t1}, v{t1}")
        L.append(f"v_cvt_pk_bf16_f32 v{G}, v{m}, v{t1}")
        L.append(f"v_and_b32 v{t1}, 0xffff0000, v{G}")
        L.append(f"v_rcp_f32 v{t2}, v{t1}")
        L.append(f"v_lshlrev_b32 v{t3}, 16, v{G}")
        L.append(f"v_sub_f32 v{m}, v{m}, v{t3}")
        L.append(f"v_mul_f32 v{m}, v{m}, v{t2}")
        L.append(f"v_mul_f32 v{q}, v{q}, v{t2}")
        L.append(f"v_mul_f32 v{q}, v{q}, v{t2}")
        br(q, q)
        L.append(f"v_add_f32 v{q}, {f2u(1e-5)}, v{q}")
        br(q, q)
        L.append(f"v_sqrt_f32 v{q}, v{q}")
        L.append(f"v_mov_b32 v{G+1}, v61")
        L.append(f"v_cvt_pk_bf16_f32 v{G+2}, v{m}, v{q}")
        L.append(f"v_mov_b32 v{G+3}, v61")
        seqs.append(L)
    for x, y in zip(*seqs): A(x); A(y)
    A("v_and_b32 v8, 15, v1")
    A("v_lshlrev_b32 v8, 11, v8")
    A("v_lshrrev_b32 v9, 4, v1")
    A("v_lshl_add_u32 v8, v9, 5, v8")
    A("s_lshr_b32 s41, s28, 4")
    A("s_lshl_b32 s41, s41, 15")
    A("s_and_b32 s42, s28, 15")
    A("s_lshl_b32 s42, s42, 7")
    A("s_add_u32 s41, s41, s42")
    A(f"s_add_u32 s41, s41, {WS_MB}")
    for t in range(2):
        A(f"buffer_store_dwordx4 {v(80+4*t,4)}, v8, s[44:47], s41 offen offset:{16*t} sc1")
    stamp(A)
    for t in range(2):
        for rho in range(4):
            A(f"v_readlane_b32 s{64 + t + 2*rho}, v{90+4*t}, {16*rho}")
            A(f"v_readlane_b32 s{48 + t + 2*rho}, v{89+4*t}, {16*rho}")
    FF, O = 96, 112
    for i in range(4):
        for h, t in enumerate((7 - 2*i, 6 - 2*i)):
            for k in range(4):
                lo, hi, x = FF + 8*h + 2*k, FF + 8*h + 2*k + 1, X + 4*t + k
                A(f"v_lshlrev_b32 v{lo}, 16, v{x}")
                A(f"v_and_b32 v{hi}, 0xffff0000, v{x}")
                A(f"v_subrev_f32 v{lo}, s{64+t}, v{lo}")
                A(f"v_subrev_f32 v{hi}, s{64+t}, v{hi}")
                if not OPT.get('fastln'):
                    A(f"v_cvt_pk_bf16_f32 v{x}, v{lo}, v{hi}")
                    A(f"v_lshlrev_b32 v{lo}, 16, v{x}")
                    A(f"v_and_b32 v{hi}, 0xffff0000, v{x}")
                A(f"v_mul_f32 v{lo}, s{48+t}, v{lo}")
                A(f"v_mul_f32 v{hi}, s{48+t}, v{hi}")
        for dl in range(8):
            A(f"v_cvt_pk_bf16_f32 v{O+4*dl+i}, v{FF+dl}, v{FF+8+dl}")
    for dl in range(8):
        A(f"buffer_store_dwordx4 {v(O+4*dl,4)}, v{2 + dl//4}, s[36:39], s29 offen offset:{1024*(dl%4)} sc1")
    A("s_lshl_b32 s42, s28, 2")
    A("s_add_u32 s42, s42, 0x8000")
    if OPT.get('latepf'): spin(A, 6, F_DONE, 4, 12, sleep=1, cmp='le', val='2')
    elif OPT.get('iso') != 'ldx': spin(A, 6, F_PF, 1, 9, sleep=1)
    A.wait_vm0()
    A("s_mov_b64 exec, 1")
    A("buffer_store_dword v61, v60, s[44:47], s42 offen sc1")
    A("s_mov_b64 exec, -1")
    stamp(A)
    if OPT.get('iso') == 'ldx': A("s_endpgm")
    A("s_mov_b32 s29, 1")
    A("s_branch K_k6")

def kgen(A):
    if OPT.get('al'): A(".p2align 6")
    A("K_kgen:")
    if OPT.get('sk'): A("s_nop 0")
    A.reset_counters(); A.nst = 3
    A("s_cmp_eq_u32 s3, 5")
    A("s_cbranch_scc1 K_k5")
    p1_stream(A, True)
    stamp(A)
    srd(A, 36, 24, 2097152, WS_XN)
    srd(A, 44, 24, FLSZ, WS_FLAG)
    A(f"v_mov_b32 v6, {F}")
    A("v_lshlrev_b32 v2, 4, v1")
    spin(A, 6, F_NON, 1, 61, sleep=1, cmp='ne', val='0')
    A("s_lshl_b32 s41, s82, 4")
    A("s_add_u32 s41, s41, s83")
    A("s_lshl_b32 s41, s41, 11")
    A(f"s_add_u32 s41, s41, {WS_MB}")
    A("s_mov_b32 s79, 0")
    A("K_x2:")
    A("buffer_load_dwordx4 v[64:67], v2, s[44:47], s41 offen sc1")
    A("buffer_load_dwordx4 v[68:71], v2, s[44:47], s41 offen offset:1024 sc1")
    A("s_waitcnt vmcnt(0)")
    A("v_xor_b32 v72, v61, v65")
    A("v_xor_b32 v73, v61, v67")
    A("v_xor_b32 v74, v61, v69")
    A("v_xor_b32 v75, v61, v71")
    A("v_or3_b32 v72, v72, v73, v74")
    A("v_or_b32 v72, v72, v75")
    A("v_cmp_ne_u32 vcc, 0, v72")
    A("s_cbranch_vccz K_x3")
    A("s_sleep 6")
    A("s_add_u32 s79, s79, 1")
    A("s_cmp_lt_u32 s79, 0x4000")
    A("s_cbranch_scc1 K_x2")
    A("K_x3:")
    A.reset_counters()
    A(f"s_setprio {OPT.get('xprio', 3)}")
    for i in range(2):
        g, o = 64 + 4*i, 72 + 8*i
        A(f"v_and_b32 v{o+4}, 0xffff0000, v{g}")
        A(f"v_lshlrev_b32 v{o+5}, 16, v{g}")
        A(f"v_and_b32 v{o+6}, 0xffff0000, v{g+2}")
        A(f"v_lshlrev_b32 v{o+7}, 16, v{g+2}")
        A(f"v_rcp_f32 v{o}, v{o+4}")
        A(f"v_rcp_f32 v{o+3}, v{o+6}")
        A(f"v_fma_f32 v{o+2}, -v{o+7}, v{o+4}, -v{o+5}")
        A(f"v_mul_f32 v{o+3}, v{o+3}, v{o}")
    A("v_lshlrev_b32 v8, 3, v1")
    A(f"v_add_u32 v8, {L_ST}, v8")
    A("v_mov_b32 v7, 1")
    for i in range(2):
        A(f"ds_write_b64 v8, {v(74+8*i,2)} offset:{1024 + 512*i}")
    A(f"ds_write_b32 v6, v7 offset:{F_ST}")
    stamp(A)
    A("s_branch K_uload")
    A("K_k5:")
    if OPT.get('iso') and OPT.get('iso') != 'ldxk': A("s_endpgm")
    A.reset_counters(); A.nst = 3
    A("s_setprio 3")
    A("s_mov_b32 s29, 0")
    A("s_lshl_b32 s31, s28, 2")
    A("s_load_dword s63, s[18:19], s31")
    A("s_lshl_b32 s31, s28, 9")
    A("v_lshlrev_b32 v2, 2, v1")
    for i in range(6):
        srd(A, 32, 6 + 2*i, 131072)
        A(f"buffer_load_dword v{52+i}, v2, s[32:35], s31 offen", tag='p')
    srd(A, 36, 20, 0 if OPT.get('now1t') else 1835008)
    A("v_lshlrev_b32 v5, 4, v1")
    A("s_mul_i32 s40, s2, 7168")
    for i in range(7):
        if i == 4: A("s_add_u32 s40, s40, 4096")
        A(f"buffer_load_dwordx4 {v(208+4*i,4)}, v5, s[36:39], s40 offen offset:{1024*(i%4)}", tag='t')
    if not OPT.get('latepf'):
        srd(A, 40, 24, 2097152, WS_ST)
        A("s_lshl_b32 s44, s28, 13")
        A("v_mov_b32 v8, -1\nv_mov_b32 v9, -1\nv_mov_b32 v10, -1\nv_mov_b32 v11, -1")
        for i in range(8):
            if i == 4: A("s_add_u32 s44, s44, 4096")
            A(f"buffer_store_dwordx4 v[8:11], v5, s[40:43], s44 offen offset:{1024*(i%4)} sc1", tag='t')
    A("K_k6:")
    A(f"v_mov_b32 v3, {F}")
    A(f"s_mul_i32 s54, s29, {CVS}")
    A(f"s_add_u32 s54, s54, {L_CV}")
    A("s_lshl_b32 s61, s29, 16")
    A(f"s_add_u32 s61, s61, {SPARE}")
    A("s_mov_b32 s45, 32768")
    WA, RA = 244, 252
    A("v_and_b32 v5, 31, v1")
    A("v_lshlrev_b32 v5, 7, v5")
    A("v_lshrrev_b32 v6, 5, v1")
    A("v_mul_u32_u24 v6, s45, v6")
    A("v_add3_u32 v5, v5, v6, s61")
    A("v_and_b32 v6, 7, v1")
    for c in range(8):
        A(f"v_xor_b32 v7, {c}, v6")
        A(f"v_lshl_add_u32 v{WA+c}, v7, 4, v5")
    A("v_bfe_u32 v5, v1, 2, 2")
    A("v_lshrrev_b32 v6, 5, v1")
    A("v_lshlrev_b32 v6, 2, v6")
    A("v_lshrrev_b32 v7, 1, v5")
    A("v_add_u32 v6, v6, v7")
    A("v_and_b32 v5, 1, v5")
    A("v_lshlrev_b32 v5, 2, v5")
    A("v_bfe_u32 v7, v1, 4, 1")
    A("v_lshl_add_u32 v5, v7, 1, v5")
    A("v_bfe_u32 v7, v1, 1, 1")
    A("v_add_u32 v5, v5, v7")
    A("v_and_b32 v7, 1, v1")
    A("v_lshlrev_b32 v7, 3, v7")
    A("v_add_u32 v7, s61, v7")
    for hh in range(2):
        if hh: A("v_add_u32 v6, 2, v6")
        A(f"v_xor_b32 v15, v5, v6")
        A(f"v_lshl_add_u32 v15, v15, 4, v7")
        A(f"v_lshl_add_u32 v{RA+hh}, v6, 7, v15")
        A(f"v_add_u32 v{18+hh}, s45, v{RA+hh}")
    A("s_waitcnt lgkmcnt(0)")
    A("s_lshl_b32 s62, s29, 4")
    A("s_lshr_b32 s60, s63, s62")
    A("s_lshl_b32 s60, s60, 16")
    A(f"v_mov_b32 v14, {f2u(LOG2E)}")
    A("v_mul_f32 v14, s60, v14")
    A("v_exp_f32 v14, v14")
    bf16r(A, 14, 14, 15)
    XV, PKB = 60, 112
    A.wait_vm('p')
    A("s_setprio 3")
    A.nst = 5
    stamp(A)
    Z = {1: (20, 22), 2: (24, 26), 3: (28, 30), 8: (32, 34), 256: (36, 38), 4: (41, 43), 128: (21, 23)}
    def smul(d, x, y):
        A(f"v_mul_f32 v{d[0]}, v{x[0]}, v{y[0]}")
        A(f"v_mul_f32 v{d[1]}, v{x[0]}, v{y[1]}")
        A(f"v_fma_f32 v{d[0]}, -v{x[1]}, v{y[1]}, v{d[0]}")
        A(f"v_fmac_f32 v{d[1]}, v{x[1]}, v{y[0]}")
    def cm2(l):
        for d, x, m in l:
            A(f"v_pk_mul_f32 {v(d,2)}, {v(x,2)}, {v(m[0],2)} op_sel_hi:[1,0]")
            A(f"v_pk_mul_f32 {v(d+2,2)}, {v(x,2)}, {v(m[1],2)} op_sel_hi:[1,0]")
        for d, x, m in l:
            A(f"v_pk_fma_f32 {v(d,2)}, {v(x+2,2)}, {v(m[1],2)}, {v(d,2)} op_sel_hi:[1,0,1] neg_lo:[0,1,0] neg_hi:[0,1,0]")
            A(f"v_pk_fma_f32 {v(d+2,2)}, {v(x+2,2)}, {v(m[0],2)}, {v(d+2,2)} op_sel_hi:[1,0,1]")
    pairs = [(a, 0) for a in range(0, 17, 2)] + [(0, 1), (0, 2), (0, 3), (2, 2)]
    XP = {ae: XV + 4*i for i, ae in enumerate(pairs)}
    def xre(row):
        a, e = XROWS[row]
        return XP[(a & ~1, e)] + (a & 1)
    for half in range(2):
        PW, PX = PKB + 64*half, PKB + 64*half + 32
        for i in range(6):
            if half == 0: A(f"v_lshlrev_b32 v{8+i}, 16, v{52+i}")
            else: A(f"v_and_b32 v{8+i}, 0xffff0000, v{52+i}")
        for i in range(4): A(f"v_mul_f32 v{8+i}, v14, v{8+i}")
        A(f"v_mul_f32 v8, {f2u(LOG2E)}, v8")
        A(f"v_mul_f32 v9, 0.15915494, v9")
        zs = ((4, 25, 27), (1, 29, 31), (128, 33, 35))
        for o, e, f in zs:
            A(f"v_mul_f32 v{e}, {f2u(float(o))}, v8"); A(f"v_mul_f32 v{f}, {f2u(float(o))}, v9")
        for o, e, f in zs:
            A(f"v_exp_f32 v{e}, v{e}"); A(f"v_fract_f32 v{f}, v{f}")
        for o, e, f in zs:
            A(f"v_cos_f32 v{Z[o][0]}, v{f}"); A(f"v_sin_f32 v{Z[o][1]}, v{f}")
        for o, e, f in zs:
            A(f"v_mul_f32 v{Z[o][0]}, v{e}, v{Z[o][0]}"); A(f"v_mul_f32 v{Z[o][1]}, v{e}, v{Z[o][1]}")
        y0, y1 = (XP[(0,0)], XP[(0,0)]+2), (XP[(0,0)]+1, XP[(0,0)]+3)
        smul(Z[8], Z[4], Z[4]); smul(y0, (12, 13), (10, 11)); smul(Z[256], Z[128], Z[128]); smul(Z[2], Z[1], Z[1])
        smul(y1, y0, Z[128]); smul(Z[3], Z[2], Z[1])
        A("v_mov_b32 v40, 1.0"); A("v_mov_b32 v42, 0")
        if half == 1:
            A.wait_vm0()
            A("v_mov_b32 v4, 1")
            A("s_lshl_b32 s44, s29, 2")
            A("v_add_u32 v5, s44, v3")
            A(f"ds_write_b32 v5, v4 offset:{F_PF}")
        xs = [(XP[(a+2, 0)], XP[(a, 0)], Z[256]) for a in range(0, 16, 2)] + [(XP[(a, e)], XP[(a, 0)], Z[e]) for (a, e) in pairs[9:]]
        cur = 40
        for i in range(16):
            A(f"v_cvt_pk_bf16_f32 v{PW+i}, v{cur}, v{cur+1}")
            A(f"v_cvt_pk_bf16_f32 v{PW+16+i}, v{cur+2}, v{cur+3}")
            nxt = 44 if cur == 40 else 40
            l = ([(nxt, cur, Z[8])] if i < 15 else []) + ([xs.pop(0)] if xs else [])
            cm2(l); cur = nxt
        for i in range(13):
            r0, r1 = xre(2*i), xre(min(2*i+1, 24))
            A(f"v_cvt_pk_bf16_f32 v{PX+i}, v{r0}, v{r1}")
            A(f"v_cvt_pk_bf16_f32 v{PX+16+i}, -v{r0+2}, -v{r1+2}")
    stamp(A)
    A(f"s_setprio {OPT.get('kprio', 2)}")
    A("v_mov_b32 v48, v18\nv_mov_b32 v49, v19")
    if not OPT.get('now2t'):
        A("s_cmp_eq_u32 s29, 0")
        A("s_mov_b32 s36, s84"); A("s_mov_b32 s37, s85")
        A("s_cselect_b32 s38, 1835008, 0")
        A(f"s_mov_b32 s39, {SRD3}")
        A("v_lshlrev_b32 v5, 4, v1")
        A("s_mul_i32 s40, s2, 7168")
        for i in range(7):
            if i == 4: A("s_add_u32 s40, s40, 4096")
            A(f"buffer_load_dwordx4 {v(60+4*i,4)}, v5, s[36:39], s40 offen offset:{1024*(i%4)}", tag='t')
        A.wait_vm0()
    if OPT.get('l2pf'):
        spin(A, 3, F_DONE, 4, 4, sleep=3, cmp='le', val=str(OPT.get('l2pf')))
        A("s_mul_i32 s40, s27, 57344")
        if OPT.get('dense'):
            for i in range(56):
                A(f"buffer_load_dwordx4 {v(60+4*(i%8),4)}, v5, s[36:39], s40 offen offset:{1024*(i%4)}")
                if i % 4 == 3: A("s_add_u32 s40, s40, 4096")
        else:
            A("v_lshlrev_b32 v5, 7, v1")
            for i in range(7):
                A(f"buffer_load_dword v{60+i}, v5, s[36:39], s40 offen")
                A("s_add_u32 s40, s40, 8192")
        A.wait_vm0()
    if OPT.get('iso'): A("s_endpgm")
    spin(A, 3, F_DONE, 4, 4, sleep=3, cmp='le', val='8')
    FA, FB, D = 16, 60, 92
    def flush(PK):
        for part in range(2):
            for q in range(4):
                A(f"ds_write_b128 v{WA+4*part+q}, {v(PK+16*part+4*q,4)}", tag='w')
    def frags(Fr, tag):
        for st in range(8):
            for hh in range(2):
                A(f"ds_read_b64_tr_b16 {v(Fr+4*st+2*hh,2)}, v{(RA if st < 4 else 48)+hh} offset:{(st&3)*1024}", tag=(tag, st))
    for half in range(2):
        flush(PKB + 64*half); frags(FB, 'fb')
        flush(PKB + 64*half + 32); frags(FA, 'fa')
        for st in range(8):
            A.wait_lg(('fa', st))
            A(f"v_mfma_f32_32x32x16_bf16 {v(D,16)}, {v(FA+4*st,4)}, {v(FB+4*st,4)}, {'0' if (st == 0 and half == 0) else v(D,16)}")
    stamp(A)
    A("v_lshrrev_b32 v7, 5, v1")
    A("v_lshlrev_b32 v2, 4, v1")
    A("v_mov_b32 v112, 0\nv_mov_b32 v113, 0\nv_mov_b32 v114, 0\nv_mov_b32 v115, 0")
    A("v_bfe_u32 v11, v1, 1, 1")
    A("v_mul_u32_u24 v11, 4160, v11")
    A("v_and_b32 v12, 1, v1")
    A("v_lshl_add_u32 v11, v12, 4, v11")
    A("v_add_u32 v11, s54, v11")
    A("ds_write_b128 v11, v[112:115]")
    A("s_add_u32 s61, s54, 32")
    A("v_and_b32 v10, 31, v1")
    A("v_lshlrev_b32 v10, 3, v10")
    A("v_lshl_add_u32 v10, v7, 8, v10")
    A("v_add_u32 v10, s61, v10")
    T = 16
    def dup(dst, r): A(f"v_cvt_pk_bf16_f32 v{dst}, v{r}, v{r}")
    A("s_mov_b32 s64, 0x55555555\ns_mov_b32 s65, 0x55555555")
    A("s_mov_b32 s66, 0x11111111\ns_mov_b32 s67, 0x11111111")
    for r in range(8, 13):
        dup(T + 2*(r-8), D + r); dup(T + 2*(r-8) + 1, D + r)
    for r in (6, 7): dup(T + 10 + (r-6), D + r)
    for r in (4, 5): dup(T + 12 + (r-4), D + r)
    A(f"v_cvt_pk_bf16_f32 v{T+14}, v{D}, v{D+1}")
    A(f"v_cvt_pk_bf16_f32 v{T+15}, v{D+2}, v{D+3}")
    A("s_mov_b64 exec, 1")
    A(f"ds_write_b64 v10, {v(T+8,2)} offset:{2*(2048-4)}")
    A("s_mov_b64 exec, s[64:65]")
    for r in range(8, 12):
        o = 1024 + 256*(r-8)
        A(f"ds_write_b64 v10, {v(T+2*(r-8),2)} offset:{2*(o-4)}")
        A(f"ds_write_b64 v10, {v(T+2*(r-8),2)} offset:{2*o}")
    A("s_mov_b64 exec, s[66:67]")
    for r in range(8, 12):
        A(f"ds_write_b16 v10, v{T+2*(r-8)} offset:{2*(1024 + 256*(r-8) + 4)}")
    A("s_mov_b64 exec, -1")
    for r in (6, 7):
        o = 512 + 256*(r-6)
        A(f"ds_write_b32 v10, v{T+10+(r-6)} offset:{2*(o-2)}")
        A(f"ds_write_b32 v10, v{T+10+(r-6)} offset:{2*o}")
    A("s_mov_b64 exec, s[64:65]")
    for r in (6, 7):
        A(f"ds_write_b16 v10, v{T+10+(r-6)} offset:{2*(512 + 256*(r-6) + 2)}")
    A("s_mov_b64 exec, -1")
    A(f"ds_write_b16 v10, v{T+12} offset:{2*(256-1)}")
    A(f"ds_write_b32 v10, v{T+12} offset:{2*256}")
    A(f"ds_write_b16 v10, v{T+13} offset:{2*(256+2)}")
    A(f"ds_write_b64 v10, {v(T+14,2)}")
    A("s_add_u32 s61, s54, 28")
    A("v_add_u32 v4, s61, v2")
    for i in range(4):
        A(f"ds_read_b32 v{112+8*i+3}, v4 offset:{1024*i}", tag=('k', i))
        A(f"ds_read_b128 {v(112+8*i+4,4)}, v4 offset:{1024*i+4}", tag=('k', i))
    for i in range(4):
        A.wait_lg(('k', i))
        for k in range(4):
            A(f"v_alignbit_b32 v{144+4*i+k}, v{112+8*i+4+k}, v{112+8*i+3+k}, 16")
    for i in range(4):
        A(f"ds_write_b128 v4, {v(144+4*i,4)} offset:{1024*i + 4 + 4160}")
    A("v_mov_b32 v5, 1")
    A("s_lshl_b32 s61, s29, 2")
    A("v_add_u32 v6, s61, v3")
    A(f"ds_write_b32 v6, v5 offset:{F_KR}")
    stamp(A)
    A("s_branch K_conv")

def uload(A):
    A("K_uload:")
    A.reset_counters(); A.nst = 8
    A(f"s_setprio {OPT.get('uprio', 3)}")
    A(f"v_mov_b32 v3, {F}")
    A("v_lshlrev_b32 v4, 4, v1")
    A("s_mov_b32 s56, 0x8000")
    A("s_mov_b32 s79, 0")
    A("K_u2:")
    A("buffer_load_dwordx4 v[8:11], v4, s[44:47], s56 offen sc1")
    A("s_waitcnt vmcnt(0)")
    for r in range(4): A(f"v_xor_b32 v{8+r}, v61, v{8+r}")
    A("v_or3_b32 v8, v8, v9, v10")
    A("v_or_b32 v8, v8, v11")
    A("v_cmp_ne_u32 vcc, 0, v8")
    A("s_cbranch_vccz K_u3")
    A(f"s_sleep {OPT.get('xsleep', 8)}")
    A("s_add_u32 s79, s79, 1")
    A("s_cmp_lt_u32 s79, 0x4000")
    A("s_cbranch_scc1 K_u2")
    A("K_u3:")
    stamp(A)
    A("v_sub_u32 v5, 63, v1")
    A("v_lshlrev_b32 v5, 13, v5")
    A("s_and_b32 s56, s28, 3")
    A("s_lshl_b32 s56, s56, 11")
    A("s_lshr_b32 s57, s28, 2")
    A("s_lshl_b32 s57, s57, 4")
    A("s_add_u32 s56, s56, s57")
    A("v_add_u32 v5, s56, v5")
    for c in range(2):
        for q in range(4):
            A(f"s_mov_b32 m0, {L_CV + c*CVS + 2*4160 + 1024*q}")
            A(f"s_mov_b32 s56, {((3-q) << 19) + 1024*c}")
            A(f"buffer_load_dwordx4 v5, s[36:39], s56 offen sc1 lds")
    A("v_mov_b32 v8, 0\nv_mov_b32 v9, 0\nv_mov_b32 v10, 0\nv_mov_b32 v11, 0")
    A("v_min_u32 v7, 29, v1")
    A("v_lshlrev_b32 v7, 4, v7")
    A(f"v_add_u32 v7, {L_CV + 2*4160 + 4096}, v7")
    A("ds_write_b128 v7, v[8:11]")
    A(f"ds_write_b128 v7, v[8:11] offset:{CVS}")
    A("v_mov_b32 v8, 1\nv_mov_b32 v9, 1")
    A("s_waitcnt vmcnt(0) lgkmcnt(0)")
    A(f"ds_write2_b32 v3, v8, v9 offset0:{F_UR//4} offset1:{F_UR//4+1}")

def conv(A):
    A("K_conv:")
    A.reset_counters(); A.nst = 10
    A("s_sub_u32 s48, s3, 4")
    A("s_lshr_b32 s49, s48, 1")
    A("s_and_b32 s50, s48, 1")
    A("s_lshl_b32 s51, s28, 1")
    A("s_add_u32 s51, s51, s49")
    A("s_lshl_b32 s52, s28, 2")
    A("s_load_dword s53, s[92:93], s52")
    A(f"s_mul_i32 s54, s49, {CVS}")
    A(f"s_add_u32 s54, s54, {L_CV}")
    A("v_and_b32 v2, 15, v1")
    A("v_lshrrev_b32 v3, 4, v1")
    A("v_lshlrev_b32 v4, 4, v1")
    A("v_mov_b32 v17, 1")
    A("s_lshl_b32 s56, s48, 2")
    A(f"s_add_u32 s56, s56, {F}")
    A("v_mov_b32 v18, s56")
    A("v_xor_b32 v19, 4, v18")
    A("s_lshl_b32 s56, s49, 2")
    A(f"s_add_u32 s56, s56, {F}")
    A("v_mov_b32 v22, s56")
    A("v_lshrrev_b32 v6, 1, v2")
    A("v_lshlrev_b32 v6, 2, v6")
    A("v_lshl_add_u32 v6, v3, 4, v6")
    A("v_and_b32 v7, 1, v2")
    A("v_sub_u32 v7, 1, v7")
    A("v_mul_u32_u24 v7, 4160, v7")
    A("v_add_u32 v6, v6, v7")
    A("s_lshl_b32 s56, s50, 8")
    A("s_add_u32 s56, s56, s54")
    A("s_add_u32 s57, s56, 4")
    A("v_add_u32 v12, s57, v6")
    for qq in range(1, 4): A(f"v_add_u32 v{12+qq}, {1024*qq}, v12")
    A("v_lshlrev_b32 v6, 4, v3")
    A("v_lshlrev_b32 v7, 5, v2")
    A("v_sub_u32 v6, v6, v7")
    A(f"s_add_u32 s57, s56, {2*4160 + 480}")
    A("v_add_u32 v16, s57, v6")
    A("v_lshlrev_b32 v8, 5, v2")
    A("v_lshl_add_u32 v8, v3, 3, v8")
    A("s_lshl_b32 s56, s50, 11")
    A(f"s_add_u32 s57, s54, {2*4160 + 4088 - 1536}")
    A("s_sub_u32 s57, s57, s56")
    A("v_sub_u32 v8, s57, v8")
    A("s_lshl_b32 s56, s48, 15")
    A(f"s_add_u32 s56, s56, {SPARE}")
    A("v_add_u32 v6, s56, v4")
    A("v_xor_b32 v7, 0x8000, v6")
    srd(A, 40, 24, 2097152, WS_ST)
    srd(A, 44, 24, FLSZ, WS_FLAG)
    spin(A, 22, (F_KR, F_UR), 2, 20, sleep=1)
    A(f"v_mov_b32 v23, {F}")
    A(f"ds_read_b32 v61, v23 offset:{F_NON}")
    A("s_lshl_b32 s56, s49, 4")
    A("s_lshr_b32 s53, s53, s56")
    A("s_lshl_b32 s53, s53, 16")
    stamp(A)
    ACC, FR = 24, 64
    def reads(pl):
        b = FR + 64 * (pl % 2)
        fs = []
        for k in range(8):
            o = 128*(k & 1) + 16*pl
            fs.append(lambda k=k, o=o: A(f"ds_read2_b32 {v(b+4*k,2)}, v{12+k//2} offset0:{o} offset1:{o+1}"))
            fs.append(lambda k=k, o=o: A(f"ds_read2_b32 {v(b+4*k+2,2)}, v{12+k//2} offset0:{o+2} offset1:{o+3}"))
            fs.append(lambda k=k: A(f"ds_read_b128 {v(b+32+4*k,4)}, v16 offset:{3584 - 512*k + 64*pl}"))
        return fs
    XN, T, P1 = 192, 200, 216
    for a in range(4):
        A(f"ds_read_b64 {v(XN+2*a,2)}, v8 offset:{1536 - 512*a}", tag='xn')
    for f in reads(0): f()
    A.wait_lg('xn')
    for a in range(4):
        A(f"v_and_b32 v{T+4*a}, 0xffff0000, v{XN+2*a+1}")
        A(f"v_lshlrev_b32 v{T+4*a+1}, 16, v{XN+2*a+1}")
        A(f"v_and_b32 v{T+4*a+2}, 0xffff0000, v{XN+2*a}")
        A(f"v_lshlrev_b32 v{T+4*a+3}, 16, v{XN+2*a}")
    for r in range(16): A(f"v_mul_f32 v{T+r}, s53, v{T+r}")
    for k in range(8): A(f"v_cvt_pk_bf16_f32 v{P1+k}, v{T+2*k}, v{T+2*k+1}")
    for k in range(8):
        A(f"v_lshlrev_b32 v{T+2*k}, 16, v{P1+k}")
        A(f"v_and_b32 v{T+2*k+1}, 0xffff0000, v{P1+k}")
    A(f"s_setprio {OPT.get('cprio2', 0)}")
    if OPT.get('s3'): A("s_nop 0")
    for pl in range(4):
        A.wait_lg0()
        fs = reads(pl + 1) if pl < 3 else []
        b = FR + 64 * (pl % 2)
        first = set()
        for q in range(8):
            for w in range(8 - q):
                ib = q + w
                c = '0' if (pl == 0 and ib not in first) else v(ACC+4*ib, 4)
                first.add(ib)
                A(f"v_mfma_f32_16x16x32_bf16 {v(ACC+4*ib,4)}, {v(b+4*q,4)}, {v(b+32+4*w,4)}, {c}")
                if fs: fs.pop(0)()
    stamp(A)
    A("s_setprio 3")
    FF = 64
    A("s_cmp_eq_u32 s50, 0")
    A("s_cbranch_scc1 K_x0")
    for ph, lab in ((1, None), (0, 'K_x0')):
        if lab: A(f"{lab}:")
        send, keep = (4, 0) if ph == 0 else (0, 4)
        for a in range(4):
            A(f"ds_write_b128 v6, {v(ACC+4*(send+a),4)} offset:{1024*a}")
        A(f"ds_write_b32 v18, v17 offset:{F_XCH}")
        for r in range(16):
            A(f"v_mov_b32 v{FF+r}, v{ACC+4*keep+r}")
        if not lab: A("s_branch K_xe")
    A("K_xe:")
    A("v_and_b32 v8, 1, v3")
    A("v_lshlrev_b32 v8, 9, v8")
    A("v_lshl_add_u32 v8, v2, 5, v8")
    A("v_lshrrev_b32 v9, 1, v3")
    A("v_lshl_add_u32 v8, v9, 4, v8")
    A("s_lshl_b32 s56, s51, 12")
    A("s_lshl_b32 s57, s50, 11")
    A("s_add_u32 s56, s56, s57")
    spin(A, 19, F_XCH, 1, 20)
    R = 80
    for a in range(4):
        A(f"ds_read_b128 {v(R+4*a,4)}, v7 offset:{1024*a}", tag='r')
    A.wait_lg('r')
    for r in range(16): A(f"v_add_f32 v{FF+r}, v{FF+r}, v{R+r}")
    for k in range(8): A(f"v_cvt_pk_bf16_f32 v{P1+k}, v{FF+2*k}, v{FF+2*k+1}")
    for k in range(8):
        A(f"v_lshlrev_b32 v{FF+2*k}, 16, v{P1+k}")
        A(f"v_and_b32 v{FF+2*k+1}, 0xffff0000, v{P1+k}")
    for r in range(16): A(f"v_add_f32 v{FF+r}, v{FF+r}, v{T+r}")
    for k in range(8): A(f"v_cvt_pk_bf16_f32 v{P1+k}, v{FF+2*k}, v{FF+2*k+1}")
    for pr in range(2):
        A(f"v_permlane16_swap_b32 v{P1+4*pr}, v{P1+4*pr+2}")
        A(f"v_permlane16_swap_b32 v{P1+4*pr+1}, v{P1+4*pr+3}")
    for pr in range(2):
        A(f"buffer_store_dwordx4 {v(P1+4*pr,4)}, v8, s[40:43], s56 offen offset:{1024*pr} sc1")
    A("v_lshrrev_b32 v8, 3, v1")
    A("v_and_b32 v9, 7, v1")
    A("v_lshlrev_b32 v10, 12, v8")
    A("v_lshl_add_u32 v10, v9, 4, v10")
    A("v_bfe_u32 v11, v8, 1, 2")
    A("v_lshlrev_b32 v11, 1, v11")
    A("v_xor_b32 v11, v11, v9")
    A("v_lshlrev_b32 v11, 4, v11")
    A("v_lshl_add_u32 v11, v8, 7, v11")
    A("s_lshl_b32 s57, s50, 11")
    A("s_add_u32 s57, s57, s54")
    A("v_add_u32 v11, s57, v11")
    stamp(A)
    A("s_lshl_b32 s56, s81, 6")
    A("s_lshl_b32 s57, s48, 4")
    A("s_add_u32 s56, s56, s57")
    A("s_lshl_b32 s56, s56, 12")
    A("s_lshl_b32 s57, s80, 7")
    A("s_add_u32 s56, s56, s57")
    A("s_add_u32 s59, s56, 32768")
    spin(A, 18, F_GO, 1, 20, sleep=4)
    A("s_mov_b32 s79, 0")
    A("K_sp:")
    A("buffer_load_dwordx4 v[64:67], v10, s[40:43], s56 offen sc1")
    A("buffer_load_dwordx4 v[68:71], v10, s[40:43], s59 offen sc1")
    A("s_waitcnt vmcnt(0)")
    A("v_max3_u32 v12, v64, v65, v66")
    A("v_max3_u32 v13, v67, v68, v69")
    A("v_max3_u32 v12, v12, v70, v71")
    A("v_max_u32 v12, v12, v13")
    A("v_cmp_eq_u32 vcc, -1, v12")
    A("s_cbranch_vccz K_spd")
    A(f"s_sleep {OPT.get('ssleep', 4)}")
    A("s_add_u32 s79, s79, 1")
    A("s_cmp_lt_u32 s79, 0x1000")
    A("s_cbranch_scc1 K_sp")
    A("K_spd:")
    stamp(A)
    A("ds_write_b128 v11, v[64:67]")
    A("ds_write_b128 v11, v[68:71] offset:1024")
    A(f"ds_write_b32 v18, v17 offset:{F_SR}")
    finish(A)

def gemm(A):
    if OPT.get('al'): A(".p2align 6")
    A("K_gemm:")
    if OPT.get('sg'): A("s_nop 0")
    A.reset_counters(); A.nst = 3
    A("s_setprio 2")
    GA = OPT.get('ga', '0') == '1' and OPT.get('iso') not in ('1', 'nord')
    if GA:
        srd(A, 32, 4, 2097152)
        srd(A, 36, 20, 1835008)
        p1_voffs(A, 144, 4)
        A("s_lshl_b32 s54, s3, 12")
        A(f"s_mul_i32 s57, s3, {16*3584}")
        A("s_lshl_b32 s56, s3, 15")
        for u in (2, 3):
            A(f"s_add_u32 m0, s54, {u*32768}")
            A(f"s_add_u32 s55, s57, {u*64*3584}")
            for q in range(4):
                A(f"buffer_load_dwordx4 v{144+q}, s[36:39], s55 offen offset:{1024*q} lds", tag=('u', u))
            A(f"s_add_u32 m0, s54, {u*32768 + 16384}")
            A(f"s_add_u32 s55, s56, {u*128}")
            for q in range(4):
                A(f"buffer_load_dwordx4 v{148+q}, s[32:35], s55 offen offset:{1024*q} lds", tag=('u', u))
    if OPT.get('tlb', '1') == '1':
        A("s_cmp_lg_u32 s3, 0")
        A("s_cbranch_scc1 K_t1")
        srd(A, 32, 24, 0x1600000)
        A("v_lshlrev_b32 v6, 21, v1")
        A("s_lshl_b32 s36, s2, 7")
        A("buffer_load_dword v253, v6, s[32:35], s36 offen")
        A("v_mov_b32 v6, 0")
        A("s_mov_b64 exec, 1")
        for ptr, sz in ((88, 2097152), (84, 1835008), (86, 1024), (92, 1024)):
            srd(A, 32, ptr, sz)
            A(f"buffer_load_dword v253, v6, s[32:35], 0 offen")
        A("s_mov_b64 exec, -1")
        A("K_t1:")
        A.reset_counters()
    A("v_and_b32 v19, 15, v1")
    A("v_lshrrev_b32 v3, 4, v1")
    srd(A, 40, 22, 3584)
    srd(A, 44, 24, 7340032, WS_H)
    A("v_bfe_u32 v6, v1, 2, 2")
    A("v_and_b32 v9, 1, v3")
    A("v_lshl_or_b32 v9, v9, 2, v6")
    A("v_lshl_add_u32 v10, v3, 3, v6")
    A("v_lshlrev_b32 v10, 8, v10")
    A("v_and_b32 v11, 3, v1")
    A("v_lshl_add_u32 v10, v11, 3, v10")
    A("s_and_b32 s68, s83, 1")
    AB, B1, ONES, FL, AF, ACC, XR = 12, 20, 36, 40, 44, 72, 128
    MN0, RE, BF, ACS, ARS, AQS, SA, C1, C2, C3, CSA, TM = 144, 148, 164, 192, 200, 208, 216, 220, 222, 224, 226, 236
    A("s_mul_i32 s53, s83, 224")
    A("v_lshlrev_b32 v7, 3, v3")
    for tau in range(7):
        A(f"s_lshl_b32 s59, s3, 1")
        A(f"s_add_u32 s59, s59, {tau}")
        A(f"s_sub_u32 s67, s59, 7")
        A(f"s_cmp_ge_u32 s59, 7")
        A(f"s_cselect_b32 s{60+tau}, s67, s59")
        A(f"s_add_u32 s59, s{60+tau}, s68")
        A(f"v_xor_b32 v11, s59, v9")
        A(f"v_lshl_add_u32 v{AB+tau}, v11, 5, v10")
        A(f"s_lshl_b32 s59, s{60+tau}, 6")
        A(f"s_add_u32 s59, s59, {L_CS}")
        A(f"v_lshl_add_u32 v{CSA+tau}, v3, 4, s59")
        A(f"s_lshl_b32 s59, s{60+tau}, 5")
        A(f"s_add_u32 s59, s59, {L_B1}")
        A(f"v_add_u32 v{B1+2*tau}, s59, v7")
    A("v_lshrrev_b32 v6, 1, v19")
    A("v_xor_b32 v6, v6, v3")
    A("v_lshlrev_b32 v6, 4, v6")
    A("v_lshl_add_u32 v6, v19, 7, v6")
    A("s_lshl_b32 s59, s3, 12")
    A("s_add_u32 s59, s59, 16384")
    A("v_add_u32 v4, s59, v6")
    A("v_xor_b32 v5, 64, v4")
    for i in range(4): A(f"v_mov_b32 v{ONES+i}, 0x3f803f80")
    A("v_mov_b32 v34, 1")
    A(f"s_lshl_b32 s59, s3, 2")
    A(f"s_add_u32 s59, s59, {F}")
    A("v_mov_b32 v35, s59")
    A(f"v_mov_b32 v2, {F}")
    MN = 152
    k0 = -2.0 * LOG2E * 0.7978845608028654
    A(f"v_mov_b32 v{C1}, {f2u(k0*0.044715)}")
    A(f"v_mov_b32 v{C2}, {f2u(k0)}")
    A(f"v_mov_b32 v{C3}, 1.0")
    A("s_lshl_b32 s59, s3, 8")
    A(f"s_add_u32 s59, s59, {L_S2}")
    A("v_lshl_add_u32 v160, v19, 3, s59")
    A("s_lshl_b32 s52, s82, 3")
    A("s_lshl_b32 s53, s3, 1")
    A("s_add_u32 s52, s52, s53")
    A("s_mul_i32 s52, s52, 57344")
    A("s_mul_i32 s53, s83, 3584")
    A("s_add_u32 s52, s52, s53")
    A("v_lshrrev_b32 v8, 1, v3")
    A("v_lshlrev_b32 v8, 8, v8")
    A("v_lshl_add_u32 v8, v19, 4, v8")
    A("v_add_u32 v8, s52, v8")
    A("v_and_b32 v10, 1, v3")
    A("v_cmp_eq_u32 vcc, 1, v10")
    for pr in range(4):
        A(f"s_lshl_b32 s59, s{60+2*pr}, 9")
        if pr < 3: A(f"s_lshl_b32 s67, s{60+2*pr+1}, 9")
        else: A(f"s_add_u32 s67, s59, 57344")
        A(f"v_mov_b32 v10, s59")
        A(f"v_mov_b32 v11, s67")
        A(f"v_cndmask_b32 v10, v10, v11, vcc")
        A(f"v_add_u32 v{SA+pr}, v10, v8")
    A("s_mov_b32 s59, 57344")
    DN = 206
    for u in range(9): A(f"v_mov_b32 v{DN+u}, {u+1}")
    def full_issue(u):
        if OPT.get('nofl'): return
        if GA and u in (2, 3): return
        A(f"ds_read2_b32 {v(FL,2)}, v2 offset0:{u} offset1:{F_FX//4 + u}", tag=('fu', u))
    def full_eval(u):
        if OPT.get('nofl'): return
        if GA and u in (2, 3):
            spin(A, 2, F_G2 + 16*(u-2), 4, FL); return
        L1, L2 = A.newlabel('fu'), A.newlabel('fu')
        A.wait_lg(('fu', u))
        A(f"v_and_b32 v{FL}, v{FL}, v{FL+1}")
        A(f"v_cmp_eq_u32 vcc, 1, v{FL}")
        A(f"s_cbranch_vccnz {L2}")
        A(f"{L1}:")
        A(f"ds_read2_b32 {v(FL,2)}, v2 offset0:{u} offset1:{F_FX//4 + u}")
        A.lg.pop()
        A("s_waitcnt lgkmcnt(0)")
        A(f"v_and_b32 v{FL}, v{FL}, v{FL+1}")
        A(f"v_cmp_eq_u32 vcc, 1, v{FL}")
        A(f"s_cbranch_vccnz {L2}")
        A("s_add_u32 s72, s72, 1"); A("s_cmp_lt_u32 s72, 0x80000"); A(f"s_cbranch_scc1 {L1}")
        A(f"{L2}:")
    def trread(j, tau, hh):
        if OPT.get('iso') == 'nord' and j > 0: return
        off = ((j//2) % 2) * 32768 + (j % 2) * 8192 + hh * 1024
        A(f"ds_read_b64_tr_b16 {v(AF+4*tau+2*hh,2)}, v{AB+tau} offset:{off}", tag=('a', j, tau))
    def xread(j, nt):
        off = ((j//2) % 2) * 32768 + nt * 2048
        A(f"ds_read_b128 {v(XR+8*(j%2)+4*nt,4)}, v{4 + j%2} offset:{off}", tag=('x', j))
    spin(A, 2, (F_FULL, F_FX), 2, FL, sleep=1)
    if OPT.get('latepf'):
        srd(A, 32, 24, 2097152, WS_ST)
        A("s_lshl_b32 s36, s28, 13"); A("s_lshl_b32 s37, s3, 11"); A("s_add_u32 s36, s36, s37")
        A("v_mov_b32 v8, -1\nv_mov_b32 v9, -1\nv_mov_b32 v10, -1\nv_mov_b32 v11, -1")
        A("v_lshlrev_b32 v6, 4, v1")
        for i in range(2): A(f"buffer_store_dwordx4 v[8:11], v6, s[32:35], s36 offen offset:{1024*i} sc1", tag='pf')
    stamp(A)
    xread(0, 0); xread(0, 1)
    for tau in range(7):
        for hh in range(2): trread(0, tau, hh)
    for j in range(16):
        if j in (4, 8, 12): stamp(A)
        sl = XR + 8*(j % 2)
        def mf(acc, a, b):
            A(f"v_mfma_f32_16x16x32_bf16 {v(acc,4)}, {v(a,4)}, {v(b,4)}, {'0' if j == 0 else v(acc,4)}")
        flip = (j < 15 and (j + 1) % 4 == 0)
        A.wait_lg(('x', j), ('a', j, 0), ('a', j, 1))
        for tau in range(7):
            if tau % 2 == 0 and tau: A.wait_lg(('a', j, tau), ('a', j, min(tau+1, 6)))
            mf(ACC + 8*tau, AF + 4*tau, sl)
            if tau == 0:
                if j > 0: trread(j, 6, 0)
                if j % 2 == 1 and j < 15:
                    full_eval((j+1)//2)
                if flip: A(f"v_xor_b32 v4, 0x10000, v4"); A(f"v_xor_b32 v5, 0x10000, v5")
            elif j < 15: trread(j+1, tau-1, 0)
            if flip: A(f"v_xor_b32 v{AB+tau}, 0x10000, v{AB+tau}")
            if tau == 6 and j == 3 and OPT.get('latepf'): A.wait_vm('pf')
            if tau == 6 and j % 2 == 1:
                A(f"ds_write_b32 v35, v{DN + j//2} offset:{F_DONE}", tag='dn')
            if GA and tau == 3 and j in (2, 4):
                A.wait_vm(('u', j//2 + 1))
                A(f"ds_write_b32 v35, v34 offset:{F_G2 + 16*(j//2 - 1)}", tag='g2')
            if tau == 5 and j % 2 == 0 and j < 14:
                full_issue(j//2 + 1)
            mf(ACC + 8*tau + 4, AF + 4*tau, sl + 4)
            if OPT.get('hpt') and j == int(OPT.get('hpt')):
                A(f"buffer_load_dwordx4 v[244:247], v{SA + (0,1,2,3,0,1,2)[tau]}, s[44:47], {'0' if tau < 4 else 's59'} offen")
            if j == 9:
                A(f"ds_read_b64 {v(B1+2*tau,2)}, v{B1+2*tau}", tag='b1')
            if j in (10, 12, 13, 14):
                if j == 10 and tau == 0: A.wait_lg('b1')
                kk = {10: 0, 12: 1, 13: 2, 14: 3}[j]
                if kk % 2 == 0: A(f"v_lshlrev_b32 v{BF+4*tau+kk}, 16, v{B1+2*tau+kk//2}")
                else: A(f"v_and_b32 v{BF+4*tau+kk}, 0xffff0000, v{B1+2*tau+kk//2}")
            if tau == 0:
                if j > 0: trread(j, 6, 1)
            elif j < 15: trread(j+1, tau-1, 1)
            if tau < 2:
                mf(ACS + 4*tau, AF + 4*tau, ONES)
                if j < 15: xread(j+1, tau)
            if j == 15 and tau == 4:
                for t2 in range(2):
                    A(f"ds_write_b128 v{CSA+t2}, {v(ACS+4*t2,4)}", tag='cw')
                A(f"ds_write_b32 v35, v34 offset:{F_CS}", tag='fl')
    stamp(A)
    if OPT.get('iso'):
        n = A.nst; finish(A); A.nst = n
    spin(A, 2, F_ST, 1, FL)
    for nt in range(2):
        A(f"ds_read_b64 {v(MN+4*nt,2)}, v160 offset:{128*nt}")
    spin(A, 2, F_CS, 4, FL)
    CS = 44
    for tau in range(7):
        A(f"ds_read_b128 {v(CS+4*tau,4)}, v{CSA+tau}", tag=('cs', tau))
    for nt in range(2): A(f"v_mov_b32 v{MN+4*nt+2}, v{MN+4*nt+1}")
    stamp(A)
    OUT = 192
    if OPT.get('s1'): A("s_nop 0")
    bc = "op_sel_hi:[1,0,1]"
    groups = [((0,0),(1,0)), ((2,0),(3,0)), ((4,0),(5,0)), ((6,0),(6,1)), ((0,1),(1,1)), ((2,1),(3,1)), ((4,1),(5,1))]
    for gi, grp in enumerate(groups):
        o = OUT + 4 * (gi % 4)
        chains = []
        for ti, (tau, nt) in enumerate(grp):
            A.wait_lg(('cs', tau))
            for pr in range(2):
                a = ACC + 8*tau + 4*nt + 2*pr
                t = TM + 2*(2*ti + pr)
                chains.append([
                    f"v_pk_fma_f32 {v(a,2)}, {v(CS+4*tau+2*pr,2)}, {v(MN+4*nt,2)}, {v(a,2)} {bc}",
                    f"v_pk_fma_f32 {v(a,2)}, {v(a,2)}, {v(MN+4*nt+2,2)}, {v(BF+4*tau+2*pr,2)} {bc}",
                    f"v_pk_mul_f32 {v(t,2)}, {v(a,2)}, {v(a,2)}",
                    f"v_pk_fma_f32 {v(t,2)}, {v(t,2)}, {v(C1,2)}, {v(C2,2)} op_sel_hi:[1,0,0]",
                    f"v_pk_mul_f32 {v(t,2)}, {v(t,2)}, {v(a,2)}",
                    f"v_exp_f32 v{t}, v{t}",
                    f"v_exp_f32 v{t+1}, v{t+1}",
                    f"v_pk_add_f32 {v(t,2)}, {v(t,2)}, {v(C3,2)} op_sel_hi:[1,0]",
                    f"v_rcp_f32 v{t}, v{t}",
                    f"v_rcp_f32 v{t+1}, v{t+1}",
                    f"v_pk_mul_f32 {v(t,2)}, {v(t,2)}, {v(a,2)}",
                    f"v_cvt_pk_bf16_f32 v{o+2*ti+pr}, v{t}, v{t+1}"])
        for ins in zip(*chains):
            for x in ins: A(x)
        A(f"v_permlane16_swap_b32 v{o}, v{o+2}")
        A(f"v_permlane16_swap_b32 v{o+1}, v{o+3}")
        so = 's59' if (grp[0][1] == 1) else '0'
        A(f"buffer_store_dwordx4 {v(o,4)}, v{SA+grp[0][0]//2}, s[44:47], {so} offen {OPT.get('hst','sc1')}", tag='hs')
    stamp(A)
    LA = int(OPT.get('LA', 3))
    NSTEP = 14
    A(f"ds_read_b32 v237, v2 offset:{F_NON}")
    srd(A, 36, 84, 1835008)
    srd(A, 40, 4, 2097152)
    srd(A, 64, 86, 1024)
    srd(A, 52, 88, 2097152)
    srd(A, 60, 24, FLSZ, WS_FLAG)
    A("v_lshlrev_b32 v236, 4, v1")
    for l in range(4):
        A(f"s_add_u32 s49, s3, {l}")
        A("s_and_b32 s49, s49, 3")
        A("s_mul_i32 s49, s49, 57344")
        A(f"v_add_u32 v{4+l}, s49, v236")
    A(f"s_mul_i32 s48, s80, {4*57344}")
    A("s_lshl_b32 s49, s3, 10")
    A("s_add_u32 s48, s48, s49")
    w2_voffs(A, 8, 12)
    A("s_lshl_b32 s50, s3, 15")
    A("v_bfe_u32 v16, v1, 2, 2")
    A("v_lshrrev_b32 v17, 1, v16")
    A("v_and_b32 v18, 1, v3")
    A("v_lshl_or_b32 v17, v18, 1, v17")
    A("v_lshl_add_u32 v18, v3, 3, v16")
    A("v_lshlrev_b32 v18, 7, v18")
    A("v_and_b32 v20, 3, v1")
    A("v_lshl_add_u32 v18, v20, 3, v18")
    A("v_add_u32 v18, s50, v18")
    for mt in range(4):
        A(f"v_xor_b32 v20, {mt}, v17")
        A(f"v_lshl_add_u32 v{12+mt}, v20, 5, v18")
    A("s_lshl_b32 s49, s80, 6")
    A("s_lshl_b32 s56, s3, 4")
    A("s_add_u32 s49, s49, s56")
    A("v_add_u32 v16, s49, v19")
    A("v_lshlrev_b32 v16, 10, v16")
    A("v_and_b32 v17, 1, v3")
    A("v_lshl_add_u32 v16, v17, 5, v16")
    A("v_lshrrev_b32 v17, 1, v3")
    A("v_lshl_add_u32 v16, v17, 4, v16")
    A("s_lshl_b32 s49, s81, 7")
    A("v_add_u32 v16, s49, v16")
    A("v_lshlrev_b32 v17, 3, v3")
    A("v_mov_b32 v44, 1")
    A("v_mov_b32 v45, v35")
    A("v_mov_b32 v46, v2")
    A("v_add_u32 v47, s50, v236")
    A("v_bfe_u32 v18, v1, 2, 2")
    A("v_lshl_add_u32 v18, v3, 2, v18")
    A("v_bfe_u32 v20, v18, 1, 2")
    A("v_xor_b32 v20, s3, v20")
    A("v_lshlrev_b32 v18, 7, v18")
    A("v_lshl_add_u32 v18, v20, 5, v18")
    A("v_and_b32 v20, 3, v1")
    A("v_lshl_add_u32 v18, v20, 3, v18")
    A(f"v_add_u32 v18, {L_CV}, v18")
    for k in range(1, 4):
        A(f"s_add_u32 s56, s3, {k}")
        A("s_and_b32 s56, s56, 3")
        A(f"s_lshl_b32 s56, s56, 15")
        A(f"s_add_u32 s56, s56, {(4-k)*4096}")
        A(f"v_add_u32 v{247+k}, s56, v236")
    A("s_lshl_b32 s56, s82, 1")
    A("s_lshr_b32 s57, s3, 1")
    A("s_add_u32 s56, s56, s57")
    A("s_lshl_b32 s56, s56, 10")
    A("s_lshl_b32 s57, s83, 3")
    A("s_add_u32 s56, s56, s57")
    A("s_and_b32 s57, s3, 1")
    A("s_lshl_b32 s57, s57, 2")
    A("s_add_u32 s56, s56, s57")
    A("v_lshlrev_b32 v238, 7, v1")
    A("v_and_b32 v239, 31, v1")
    A("v_lshlrev_b32 v239, 2, v239")
    spin(A, 46, F_NON, 1, 237, cmp='ne', val='0')
    A.wait_vm0()
    A("s_mov_b64 exec, 0xff")
    A(f"buffer_store_dword v237, v238, s[60:63], s56 offen {OPT.get('hst','sc1')}")
    A("s_mov_b64 exec, -1")
    stamp(A)
    A("buffer_load_dwordx4 v[20:23], v16, s[40:43], 0 offen")
    A("buffer_load_dwordx4 v[24:27], v16, s[40:43], 0 offen offset:64")
    for mt in range(4):
        A(f"buffer_load_dwordx2 {v(240+2*mt,2)}, v17, s[64:67], s49 offen offset:{32*mt}")
    A(f"s_setprio {OPT.get('gprio', 1)}")
    spin(A, 45, F_PRE, 1, 28, sleep=1)
    NRG = int(OPT.get('NRG', 3))
    NH = LA + 1
    AF, ACC, AR, HB = 28, 48, 112, 112 + 16*NRG
    assert HB + 16*NH <= 236, HB + 16*NH
    def afr(j): return AR + 16*j if j < NRG else AF
    def trread2(j, mt):
        for hh in range(2):
            A(f"ds_read_b64_tr_b16 {v(afr(j)+4*mt+2*hh,2)}, v{12+mt} offset:{(j % NR)*4096 + hh*512}", tag=('a', j, mt))
    def hloads(j):
        hb = HB + 16 * (j % NH)
        def first():
            rstep(A, 58, j)
            A("s_lshl_b32 s58, s58, 12")
            A("s_add_u32 s58, s58, s48")
        fs = [first]
        for nt in range(4):
            fs.append(lambda nt=nt: A(f"buffer_load_dwordx4 {v(hb+4*nt,4)}, v{4+nt}, s[44:47], s58 offen {OPT.get('hld','sc1')}", tag=('h', j)))
        return fs
    def wloads(j):
        def first():
            rstep(A, 59, j)
            A("s_lshl_b32 s59, s59, 17")
            A("s_add_u32 s59, s59, s50")
            A(f"s_add_u32 m0, s50, {(j % NR)*4096}")
            A(f"buffer_load_dwordx4 v8, s[36:39], s59 offen lds", tag=('w', j))
        return [first] + [(lambda q=q: A(f"buffer_load_dwordx4 v{8+q}, s[36:39], s59 offen offset:{1024*q} lds", tag=('w', j))) for q in range(1, 4)]
    for j in range(NRG + 1):
        for mt in range(4): trread2(j, mt)
        if j >= 1:
            A.wait_lg(('a', j-1, 3))
            for f in wloads(j - 1 + NR): f()
    A.wait_lg0()
    for f in wloads(NRG + NR) if NRG + NR < NSTEP else []: f()
    nextw = NRG + NR + 1
    A("s_lshl_b32 s56, s80, 10")
    A("s_lshl_b32 s57, s81, 7")
    A("s_add_u32 s56, s56, s57")
    FINE = bool(OPT.get('fine'))
    def need(j):
        T = (128*j + 127) // 112
        mask = (1 << (2*T + 2)) - 1
        L = A.newlabel('nd')
        A(f"s_and_b32 s76, s75, {mask}")
        A(f"s_cbranch_scc0 {L}_d")
        A("s_mov_b32 s79, 0")
        A(f"{L}:")
        A("buffer_load_dword v238, v239, s[60:63], s74 offen sc1"); A.vm.pop()
        A("s_waitcnt vmcnt(0)")
        A("v_cmp_ne_u32 vcc, v237, v238")
        A("s_mov_b32 s75, vcc_lo")
        A(f"s_and_b32 s76, s75, {mask}")
        A(f"s_cbranch_scc0 {L}_d")
        A(f"s_sleep {OPT.get('hsleep', 3)}")
        A("s_add_u32 s79, s79, 1")
        A("s_cmp_lt_u32 s79, 0x4000")
        A(f"s_cbranch_scc1 {L}")
        A(f"{L}_d:")
    if FINE:
        A("s_mov_b32 s74, s56")
        A("s_mov_b32 s75, -1")
        need(int(OPT.get('first', 1)))
        stamp(A)
        for j in range(LA):
            need(j)
            for f in hloads(j): f()
    else:
        A("s_cmp_lg_u32 s3, 0")
        A("s_cbranch_scc1 K_g1")
        vm = list(A.vm)
        gpoll(A, 239, 60, 's56', 238, 237, int(OPT.get('hsleep', 4)))
        A.vm = vm
        A(f"ds_write_b32 v46, v44 offset:{F_HR}")
        A("K_g1:")
        spin(A, 46, F_HR, 1, 238, sleep=1)
        stamp(A)
        for j in range(LA):
            for f in hloads(j): f()
    if OPT.get('s2'): A("s_nop 0")
    for j in range(NSTEP):
        if j in (4, 9): stamp(A)
        fs = hloads(j + LA) if j + LA < NSTEP else []
        if nextw < NSTEP and j - 1 >= nextw - NR:
            fs = fs + wloads(nextw); nextw += 1
        if j == int(OPT.get('GO', 7)): A(f"ds_write_b32 v45, v44 offset:{F_GO}", tag='go')
        if OPT.get('burst') == '2':
            while fs: fs.pop(0)()
        A.wait_vm(('h', j), ('w', j + 1))
        if FINE and j + LA < NSTEP:
            if j >= LA and j - LA + 2*LA < NSTEP:
                A(f"v_cmp_ne_u32 vcc, v237, v{251 + (j % 3)}")
                A("s_and_b32 s75, s75, vcc_lo")
            need(j + LA)
            if j + 2*LA < NSTEP:
                A(f"buffer_load_dword v{251 + ((j + LA) % 3)}, v239, s[60:63], s74 offen sc1", tag=('h', j + LA))
        hb = HB + 16 * (j % NH)
        af = afr(j)
        if OPT.get('burst', '1') == '1':
            while fs: fs.pop(0)()
        if j + 1 < NSTEP:
            for mt in range(4):
                A.wait_lg(('a', j, mt))
                for nt in range(4):
                    acc = ACC + 16*nt + 4*mt
                    A(f"v_mfma_f32_16x16x32_bf16 {v(acc,4)}, {v(af+4*mt,4)}, {v(hb+4*nt,4)}, {'0' if j == 0 else v(acc,4)}")
                    if fs and nt < 3: fs.pop(0)()
                if j + 1 > NRG: trread2(j + 1, mt)
            while fs: fs.pop(0)()
        else:
            A.wait_lg0()
            pend = []
            for nt in (1, 2, 3, 0):
                for mt in range(4):
                    acc = ACC + 16*nt + 4*mt
                    A(f"v_mfma_f32_16x16x32_bf16 {v(acc,4)}, {v(af+4*mt,4)}, {v(hb+4*nt,4)}, {v(acc,4)}")
                    if len(pend) >= 4:
                        a2, o2 = pend.pop(0)
                        A(f"ds_write_b128 v47, {v(a2,4)} offset:{o2}")
                    if nt: pend.append((acc, (4*nt+mt)*1024))
            for a2, o2 in pend: A(f"ds_write_b128 v47, {v(a2,4)} offset:{o2}")
    assert nextw >= NSTEP
    A(f"ds_write_b32 v45, v44 offset:{F_RED}")
    stamp(A)
    BB, XX, SS, T = 176, 192, 208, 128
    for mt in range(4):
        for k in range(2):
            A(f"v_lshlrev_b32 v{BB+4*mt+2*k}, 16, v{240+2*mt+k}")
            A(f"v_and_b32 v{BB+4*mt+2*k+1}, 0xffff0000, v{240+2*mt+k}")
    for r in range(0, 16, 2):
        A(f"v_pk_add_f32 {v(ACC+r,2)}, {v(ACC+r,2)}, {v(BB+r,2)}")
    for k in range(8):
        A(f"v_lshlrev_b32 v{XX+2*k}, 16, v{20+k}")
        A(f"v_and_b32 v{XX+2*k+1}, 0xffff0000, v{20+k}")
    A(f"v_mov_b32 v232, {f2u(-LOG2E)}")
    A(f"v_mov_b32 v234, 1.0")
    spin(A, 46, F_RED, 4, 8)
    PR = 128
    for k in range(1, 4):
        for mt in range(4):
            A(f"ds_read_b128 {v(PR+16*(k-1)+4*mt,4)}, v{247+k} offset:{mt*1024}", tag=('p', k))
    for k in range(1, 4):
        A.wait_lg(('p', k))
        for r in range(0, 16, 2):
            A(f"v_pk_add_f32 {v(ACC+r,2)}, {v(ACC+r,2)}, {v(PR+16*(k-1)+r,2)}")
    for r in range(0, 16, 2):
        A(f"v_pk_mul_f32 {v(T+r,2)}, {v(ACC+r,2)}, {v(232,2)} op_sel_hi:[1,0]")
    for r in range(16): A(f"v_exp_f32 v{T+r}, v{T+r}")
    for r in range(0, 16, 2):
        A(f"v_pk_add_f32 {v(T+r,2)}, {v(T+r,2)}, {v(234,2)} op_sel_hi:[1,0]")
    for r in range(16): A(f"v_rcp_f32 v{T+r}, v{T+r}")
    for r in range(0, 16, 2):
        A(f"v_pk_mul_f32 {v(ACC+r,2)}, {v(ACC+r,2)}, {v(T+r,2)}")
    stamp(A)
    spin(A, 46, F_SR, 4, 8)
    stamp(A)
    for mt in range(4):
        A(f"ds_read_b64_tr_b16 {v(224+2*mt,2)}, v18 offset:{(mt>>1)*CVS + (mt&1)*2048}", tag='s')
    A.wait_lg('s')
    for mt in range(4):
        for k in range(2):
            A(f"v_lshlrev_b32 v{SS+4*mt+2*k}, 16, v{224+2*mt+k}")
            A(f"v_and_b32 v{SS+4*mt+2*k+1}, 0xffff0000, v{224+2*mt+k}")
    for r in range(0, 16, 2):
        A(f"v_pk_mul_f32 {v(ACC+r,2)}, {v(ACC+r,2)}, {v(SS+r,2)}")
    O = 160
    for r in range(0, 16, 2):
        A(f"v_cvt_pk_bf16_f32 v{O+r//2}, v{ACC+r}, v{ACC+r+1}")
    for pr in range(2):
        A(f"v_permlane16_swap_b32 v{O+4*pr}, v{O+4*pr+2}")
        A(f"v_permlane16_swap_b32 v{O+4*pr+1}, v{O+4*pr+3}")
    for k in range(8):
        A(f"v_lshlrev_b32 v{T+2*k}, 16, v{O+k}")
        A(f"v_and_b32 v{T+2*k+1}, 0xffff0000, v{O+k}")
    for k in range(8):
        A(f"v_pk_add_f32 {v(T+2*k,2)}, {v(T+2*k,2)}, {v(XX+2*k,2)}")
    for k in range(8):
        A(f"v_cvt_pk_bf16_f32 v{O+k}, v{T+2*k}, v{T+2*k+1}")
    A(f"buffer_store_dwordx4 {v(O,4)}, v16, s[52:55], 0 offen {OPT.get('sto','')}")
    A(f"buffer_store_dwordx4 {v(O+4,4)}, v16, s[52:55], 0 offen offset:64 {OPT.get('sto','')}")
    A("s_or_b32 s56, s2, s3")
    A("s_cmp_lg_u32 s56, 0")
    A("s_cbranch_scc1 K_g9")
    A("v_mov_b32 v238, 0")
    A("s_mov_b32 s56, 0x30000")
    A("s_mov_b64 exec, 1")
    A("buffer_store_dword v237, v238, s[60:63], s56 offen sc1")
    A("s_mov_b64 exec, -1")
    A("K_g9:")
    finish(A)

def build():
    A = Asm()
    A(f".globl {KN}\n.p2align 8\n.type {KN},@function")
    A(f"{KN}:")
    A("K_start:")
    prologue(A)
    loader(A)
    gemm(A)
    xwave(A)
    kgen(A)
    uload(A)
    conv(A)
    A("K_end:")
    A("s_endpgm")
    hdr = open('cdna_kernels/' + NAME + '.s.ref').read().split('; Override launch')[0] if os.path.exists('cdna_kernels/' + NAME + '.s.ref') else ''
    txt = hdr + f"; @launch grid=(256,1,1) block=(512,1,1) lds={L_SIZE}\n"
    txt += '.amdgcn_target "amdgcn-amd-amdhsa--gfx950"\n.text\n' + A.text() + 'CODE_END:\n.section .rodata,"a"\n'
    txt += f""".p2align 6
.amdhsa_kernel {KN}
  .amdhsa_next_free_vgpr 256
  .amdhsa_next_free_sgpr 102
  .amdhsa_accum_offset 256
  .amdhsa_group_segment_fixed_size 0
  .amdhsa_kernarg_size 136
  .amdhsa_user_sgpr_count 2
  .amdhsa_user_sgpr_kernarg_segment_ptr 1
  .amdhsa_system_sgpr_workgroup_id_x 1
.end_amdhsa_kernel
"""
    return txt

if __name__ == '__main__':
    out = sys.argv[1] if len(sys.argv) > 1 else f'cdna_kernels/{NAME}.s'
    open(out, 'w').write(build())
```

```python
import sys, os, struct
sys.path.insert(0, os.path.dirname(__file__))
from asmlib import Asm

NAME = 'recurrent_scan__ssm_conv_s4__mixer_channel_mlp__prompt'
KN = NAME + '_kernel'
WS_XN = 0
WS_H = 0x800000
WS_ST = 0x1000000
WS_FLAG = 0x1400000
WS_MB = 0x40000
FLSZ = 0xC0000
WS_DBG = 0x1800000
SRD3 = '0x00020000'
LOG2E = 1.4426950408889634
DEBUG = os.environ.get('KDEBUG', '0') == '1'
OPT = dict(kv.split('=') for kv in os.environ.get('KOPT', '').split(',') if kv)

def v(a, n=1): return f'v{a}' if n == 1 else f'v[{a}:{a+n-1}]'
def f2u(x): return '0x%08x' % struct.unpack('<I', struct.pack('<f', x))[0]
def srd(A, d, base, size, off=0):
    if off:
        A(f's_add_u32 s{d}, s{base}, {off}'); A(f's_addc_u32 s{d+1}, s{base+1}, 0')
    else:
        A(f's_mov_b32 s{d}, s{base}'); A(f's_mov_b32 s{d+1}, s{base+1}')
    A(f's_mov_b32 s{d+2}, {size}'); A(f's_mov_b32 s{d+3}, {SRD3}')
def bf16r(A, d, x, t):
    A(f'v_cvt_pk_bf16_f32 v{t}, v{x}, v{x}'); A(f'v_lshlrev_b32 v{d}, 16, v{t}')

def stamp(A, real=False):
    if not DEBUG: return
    A(f"{'s_memrealtime' if real else 's_memtime'} s[94:95]")
    A("s_waitcnt lgkmcnt(0)"); A.lg = []
    A(f"v_writelane_b32 v255, s94, {A.nst}")
    A.nst += 1
    assert A.nst <= 32
def finish(A):
    if DEBUG:
        A.wait_vm0()
        stamp(A); stamp(A, True)
        srd(A, 96, 24, 0x100000, WS_DBG)
        A("s_lshl_b32 s94, s2, 3"); A("s_add_u32 s94, s94, s3"); A("s_lshl_b32 s94, s94, 7")
        A("v_lshlrev_b32 v254, 2, v1")
        A(f"s_mov_b64 exec, {(1 << A.nst) - 1}")
        A("buffer_store_dword v255, v254, s[96:99], s94 offen")
    A("s_endpgm")

L_CV = 131072
CVS = 2 * 4160 + 4576
F = L_CV + 2 * CVS
F_FULL, F_DONE, F_XD, F_PRE, F_NON, F_KR, F_UR, F_XCH, F_CS, F_ST, F_SR, F_GO, F_RED = 0, 32, 48, 64, 80, 84, 92, 112, 128, 144, 160, 176, 192
F_HR, F_XR, F_XT = 100, 104, 108
F_FX = 208
F_PF = 240
F_G2 = 256
L_CS = F + 288
L_ST = L_CS + 448
L_S2 = L_ST + 1024
L_B1 = L_S2 + 1024
L_SIZE = L_B1 + 256
SPARE = 28672
NR = 7

XROWS = [(0,0),(0,1),(0,2),(0,3),(1,0),(1,1),(1,2),(1,3),(2,0),(2,2),(4,0),(6,0),(3,0),(3,2),(5,0),(7,0),
         (8,0),(10,0),(12,0),(14,0),(9,0),(11,0),(13,0),(15,0),(16,0)]

def spin(A, areg, off, n, t, sleep=0, cmp='eq', val='1'):
    L = A.newlabel('sp')
    A(f"{L}:")
    if n == 1: A(f"ds_read_b32 v{t}, v{areg} offset:{off}")
    elif n == 2: A(f"ds_read2_b32 {v(t,2)}, v{areg} offset0:{off[0]//4} offset1:{off[1]//4}")
    else: A(f"ds_read_b128 {v(t,4)}, v{areg} offset:{off}")
    A("s_waitcnt lgkmcnt(0)")
    if n == 2: A(f"v_min_u32 v{t}, v{t}, v{t+1}")
    if n == 4:
        A(f"v_min_u32 v{t}, v{t}, v{t+1}"); A(f"v_min3_u32 v{t}, v{t}, v{t+2}, v{t+3}")
    A(f"v_cmp_{cmp}_u32 vcc, {val}, v{t}")
    A(f"s_cbranch_vccnz {L}_d")
    if sleep: A(f"s_sleep {sleep * int(OPT.get('sm', 1))}")
    A("s_add_u32 s72, s72, 1")
    A("s_cmp_lt_u32 s72, 0x80000")
    A(f"s_cbranch_scc1 {L}")
    A(f"{L}_d:")
    A.lg = []

def gpoll(A, vaddr, srdr, soff, t, nonce, sleep):
    L = A.newlabel('gp')
    A("s_mov_b32 s79, 0")
    A(f"{L}:")
    A(f"buffer_load_dword v{t}, v{vaddr}, s[{srdr}:{srdr+3}], {soff} offen sc1")
    A("s_waitcnt vmcnt(0)")
    A(f"v_cmp_ne_u32 vcc, v{nonce}, v{t}")
    A(f"s_cbranch_vccz {L}_d")
    A(f"s_sleep {sleep}")
    A("s_add_u32 s79, s79, 1")
    A("s_cmp_lt_u32 s79, 0x4000")
    A(f"s_cbranch_scc1 {L}")
    A(f"{L}_d:")
    A.vm = []

def prologue(A):
    A("s_cmp_ge_u32 s2, 256")
    A("s_cbranch_scc1 K_end")
    A.nst = 0
    A("s_load_dwordx16 s[4:19], s[0:1], 0")
    A("s_load_dwordx4 s[20:23], s[0:1], 80")
    A("s_load_dwordx2 s[24:25], s[0:1], 128")
    A("s_load_dwordx4 s[84:87], s[0:1], 96")
    A("s_load_dwordx4 s[88:91], s[0:1], 112")
    A("s_load_dwordx2 s[92:93], s[0:1], 64")
    A("s_getpc_b64 s[40:41]")
    A("K_pc:")
    A("s_sub_u32 s40, s40, K_pc-K_start")
    A("s_subb_u32 s41, s41, 0")
    A("s_mov_b32 s42, CODE_END-K_start")
    A(f"s_mov_b32 s43, {SRD3}")
    A("v_lshlrev_b32 v5, 7, v0")
    if OPT.get('cpf', 'part') == 'part':
        A("s_and_b32 s44, s2, 0x18")
        A("s_lshl_b32 s44, s44, 10")
        A("v_and_b32 v5, 0x1fff, v5")
        A("v_lshrrev_b32 v6, 6, v0")
        A("v_lshl_add_u32 v5, v6, 15, v5")
        A("buffer_load_dword v254, v5, s[40:43], s44 offen")
    else:
        A("buffer_load_dword v254, v5, s[40:43], 0 offen")
    A("v_lshrrev_b32 v2, 6, v0")
    A("v_and_b32 v1, 63, v0")
    A("v_mov_b32 v3, 0")
    A("v_readfirstlane_b32 s3, v2")
    A("v_min_u32 v4, 35, v1")
    A("v_lshlrev_b32 v4, 3, v4")
    A(f"v_add_u32 v4, {F}, v4")
    A("v_mov_b32 v6, 0\nv_mov_b32 v7, 0")
    A("ds_write_b64 v4, v[6:7]")
    A("s_mov_b32 s72, 0")
    A("s_and_b32 s26, s2, 7")
    A("s_lshr_b32 s27, s2, 3")
    A("s_lshl_b32 s28, s26, 5")
    A("s_add_u32 s28, s28, s27")
    m1, m2 = OPT.get('map', 'bb')
    A("s_lshr_b32 s29, s26, 1")
    A("s_and_b32 s30, s26, 1")
    if m1 == 'a':
        A("s_lshl_b32 s82, s29, 2"); A("s_and_b32 s31, s27, 3"); A("s_add_u32 s82, s82, s31")
        A("s_lshl_b32 s83, s30, 3"); A("s_lshr_b32 s31, s27, 2"); A("s_add_u32 s83, s83, s31")
    elif m1 == 'c':
        A("s_lshr_b32 s82, s26, 2"); A("s_lshl_b32 s82, s82, 3"); A("s_and_b32 s31, s27, 7"); A("s_add_u32 s82, s82, s31")
        A("s_and_b32 s83, s26, 3"); A("s_lshl_b32 s83, s83, 2"); A("s_lshr_b32 s31, s27, 3"); A("s_add_u32 s83, s83, s31")
    else:
        A("s_lshl_b32 s82, s26, 1"); A("s_and_b32 s31, s27, 1"); A("s_add_u32 s82, s82, s31")
        A("s_lshr_b32 s83, s27, 1")
    if m2 == 'a':
        A("s_lshl_b32 s80, s29, 3"); A("s_and_b32 s31, s27, 7"); A("s_add_u32 s80, s80, s31")
        A("s_lshl_b32 s81, s30, 2"); A("s_lshr_b32 s31, s27, 3"); A("s_add_u32 s81, s81, s31")
    else:
        A("s_lshl_b32 s80, s26, 2"); A("s_and_b32 s31, s27, 3"); A("s_add_u32 s80, s80, s31")
        A("s_lshr_b32 s81, s27, 2")
    A(f"s_mul_i32 s78, s81, {OPT.get('rmul', 7)}")
    A("s_lshr_b32 s78, s78, 2")
    stamp(A, True); stamp(A)
    A("s_waitcnt lgkmcnt(0)")
    A("s_barrier")
    stamp(A)
    A.reset_counters()
    A("s_cmp_lt_u32 s3, 4")
    A("s_cbranch_scc1 K_gemm")
    A("s_cmp_eq_u32 s3, 4")
    A("s_cbranch_scc1 K_x")
    A("s_cmp_lt_u32 s3, 7")
    A("s_cbranch_scc1 K_kgen")

def w2_voffs(A, d, t):
    A(f"v_lshrrev_b32 v{t}, 3, v1")
    A(f"v_and_b32 v{t+1}, 7, v1")
    A(f"v_bfe_u32 v{t+2}, v1, 4, 1")
    A(f"v_lshlrev_b32 v{t+2}, 1, v{t+2}")
    A(f"v_xor_b32 v{t+1}, v{t+1}, v{t+2}")
    A(f"v_lshlrev_b32 v{t}, 10, v{t}")
    A("s_lshl_b32 s49, s81, 7")
    A(f"v_add_u32 v{t}, s49, v{t}")
    for q in range(4):
        A(f"v_xor_b32 v{t+2}, {4*(q&1)}, v{t+1}")
        A(f"v_lshl_add_u32 v{d+q}, v{t+2}, 4, v{t}")
        if q: A(f"v_add_u32 v{d+q}, {q*(8192-1024)}, v{d+q}")

def p1_voffs(A, d, t):
    A(f"v_and_b32 v{t}, 15, v1")
    A(f"v_lshrrev_b32 v{t+1}, 4, v1")
    A("s_mul_i32 s53, s83, 224")
    A("s_and_b32 s53, s53, 0xffffffc0")
    A(f"v_mul_u32_u24 v{t+2}, 3584, v{t+1}")
    A(f"v_add_u32 v{t+2}, s53, v{t+2}")
    A(f"v_lshlrev_b32 v{t+3}, 1, v{t+1}")
    A(f"v_xor_b32 v{t+3}, v{t+3}, v{t}")
    for q in range(4):
        A(f"v_xor_b32 v{t+4}, {8*((q>>1)&1)}, v{t+3}")
        A(f"v_lshl_add_u32 v{d+q}, v{t+4}, 4, v{t+2}")
        if q: A(f"v_add_u32 v{d+q}, {q*(4*3584-1024)}, v{d+q}")
    A(f"v_lshrrev_b32 v{t+2}, 3, v1")
    A(f"v_and_b32 v{t+4}, 7, v1")
    A(f"v_xor_b32 v{t+3}, v{t+1}, v{t+4}")
    A("s_lshl_b32 s52, s82, 7")
    A(f"v_add_u32 v{t+2}, s52, v{t+2}")
    A(f"v_lshlrev_b32 v{t+2}, 10, v{t+2}")
    for q in range(4):
        A(f"v_xor_b32 v{t+4}, {4*(q&1)}, v{t+3}")
        A(f"v_lshl_add_u32 v{d+4+q}, v{t+4}, 4, v{t+2}")
        if q: A(f"v_add_u32 v{d+4+q}, {q*(8192-1024)}, v{d+4+q}")

NG = int(OPT.get('NG', 0))

def rstep(A, d, j):
    A(f"s_add_u32 s{d}, s78, {j}")
    A(f"s_sub_u32 s77, s{d}, 14")
    A(f"s_cmp_ge_u32 s{d}, 14")
    A(f"s_cselect_b32 s{d}, s77, s{d}")

def wait_free(A, n):
    if OPT.get('free'): return
    L1 = A.newlabel('fr')
    A(f"{L1}:")
    A(f"ds_read_b128 v[20:23], v17 offset:{F_DONE}")
    A("s_waitcnt lgkmcnt(0)")
    A("v_min_u32 v20, v20, v21")
    A("v_min3_u32 v20, v20, v22, v23")
    A(f"v_cmp_le_u32 vcc, {n}, v20")
    A(f"s_cbranch_vccnz {L1}_d"); A(f"s_sleep {OPT.get('fsleep', 2)}")
    A("s_add_u32 s72, s72, 1"); A("s_cmp_lt_u32 s72, 0x80000"); A(f"s_cbranch_scc1 {L1}"); A(f"{L1}_d:")
    A.lg = []

def p1_stream(A, isx):
    A("s_setprio 3")
    if isx: srd(A, 36, 4, 2097152)
    else: srd(A, 36, 20, 1835008)
    p1_voffs(A, 8, 2)
    A("v_mov_b32 v16, 1")
    A(f"v_mov_b32 v17, {F}")
    if OPT.get('iso') in ('1', 'nord'):
        for u in range(8): A(f"ds_write_b32 v17, v16 offset:{(F_FX if isx else F_FULL) + 4*u}")
        A("s_endpgm")
    PQ = int(OPT.get('PQ', 2))
    def issue(u, then=None):
        base = (u % 4) * 32768
        for qq in range(4):
            if then is not None and qq == PQ: post(then)
            A(f"s_mov_b32 m0, {(base + qq*4096 + (16384 if isx else 0)) if not OPT.get('dmaaway') else L_CV + qq*4096}")
            A(f"s_mov_b32 s57, {128*u + 32768*qq if isx else (64*u + 16*qq)*3584}")
            for q in range(4):
                A(f"buffer_load_dwordx4 v{(12 if isx else 8)+q}, s[36:39], s57 offen offset:{1024*q} lds", tag=('u', u))
    def post(u):
        A.wait_vm(('u', u))
        A(f"ds_write_b32 v17, v16 offset:{(F_FX if isx else F_FULL) + 4*u}")
    issue(0); issue(1, 0)
    if not isx:
        srd(A, 40, 22, 3584)
        A("v_lshlrev_b32 v18, 2, v1")
        A("s_mul_i32 s53, s83, 224")
        A(f"s_mov_b32 m0, {L_B1}")
        A("buffer_load_dword v18, s[40:43], s53 offen lds", tag='b1')
    GA = OPT.get('ga', '0') == '1'
    if GA:
        post(1); wait_free(A, 1); issue(4)
    for u in range(5 if GA else 2, 8):
        if u >= 4 and not OPT.get('oldpost'):
            L = A.newlabel('ad')
            A(f"ds_read_b128 v[20:23], v17 offset:{F_DONE}")
            A("s_waitcnt lgkmcnt(0)")
            A("v_min_u32 v20, v20, v21")
            A("v_min3_u32 v20, v20, v22, v23")
            A(f"v_cmp_le_u32 vcc, {u-3}, v20")
            A(f"s_cbranch_vccnz {L}")
            A("s_waitcnt vmcnt(0)")
            A(f"ds_write_b32 v17, v16 offset:{(F_FX if isx else F_FULL) + 4*(u-1)}")
            wait_free(A, u - 3)
            A(f"{L}:")
            issue(u, u-1)
        else:
            if u >= 4: wait_free(A, u - 3)
            issue(u, u-1)
    post(7)
    if OPT.get('iso'):
        n = A.nst; finish(A); A.nst = n

def loader(A):
    A.reset_counters(); A.nst = 3
    p1_stream(A, False)
    srd(A, 40, 84, 1835008)
    w2_voffs(A, 8, 4)
    stamp(A)
    A(f"s_setprio {OPT.get('lprio', 1)}")
    for w in range(4):
        wait_free(A, 5 + w)
        for j in range(NR):
            A(f"s_mov_b32 m0, {w*32768 + j*4096}")
            rstep(A, 57, j)
            A("s_lshl_b32 s57, s57, 17")
            A(f"s_add_u32 s57, s57, {w*32768}")
            for q in range(4):
                A(f"buffer_load_dwordx4 v{8+q}, s[40:43], s57 offen offset:{1024*q} lds", tag=('w', w))
        if w:
            A.wait_vm(('w', w-1)); A(f"ds_write_b32 v17, v16 offset:{F_PRE + 4*(w-1)}")
    A.wait_vm(('w', 3)); A(f"ds_write_b32 v17, v16 offset:{F_PRE + 12}")
    stamp(A)
    A("s_branch K_conv")

def xwave(A):
    if OPT.get('al'): A(".p2align 6")
    A("K_x:")
    if OPT.get('iso') == 'ldx': OPT['xonly'] = 1
    if OPT.get('sx'): A("s_nop 0")
    if OPT.get('iso') and OPT.get('iso') not in ('ldx', 'ldxk'): A("s_endpgm")
    A.reset_counters(); A.nst = 3
    A(f"s_setprio {OPT.get('x0prio', 3)}")
    srd(A, 32, 4, 2097152)
    srd(A, 36, 24, 2097152, WS_XN)
    srd(A, 44, 24, FLSZ, WS_FLAG)
    A("v_lshlrev_b32 v2, 4, v1")
    A("v_mov_b32 v60, 0")
    A("s_mov_b32 s40, 0x30000")
    A("buffer_load_dword v61, v60, s[44:47], s40 offen sc1", tag='e')
    A("s_lshl_b32 s29, s28, 13")
    A("v_add_u32 v3, 4096, v2")
    X = 160
    for t in range(8):
        A(f"buffer_load_dwordx4 {v(X+4*t,4)}, v{2 + t//4}, s[32:35], s29 offen offset:{(t%4)*1024}", tag=('x', t))
    A(f"v_mov_b32 v6, {F}")
    A("s_lshl_b32 s31, s28, 2")
    A("s_load_dword s63, s[18:19], s31")
    A("s_lshl_b32 s31, s28, 9")
    A("s_add_u32 s31, s31, 256")
    A("v_lshlrev_b32 v4, 2, v1")
    for i in range(6):
        srd(A, 40, 6 + 2*i, 131072)
        A(f"buffer_load_dword v{52+i}, v4, s[40:43], s31 offen", tag='p')
    A("v_mov_b32 v4, 0x3f803f80")
    S, Q = 64, 72
    A.wait_vm('e')
    A(f"s_setprio {OPT.get('lnprio', 1)}")
    A("v_add_u32 v61, 1, v61")
    A("v_max_u32 v61, 1, v61")
    A(f"ds_write_b32 v6, v61 offset:{F_NON}")
    for t in range(8):
        A.wait_vm(('x', t))
        for k in range(4):
            A(f"v_dot2_f32_bf16 v{S+t}, v{X+4*t+k}, v4, {'0' if k == 0 else 'v%d' % (S+t)}")
            A(f"v_dot2_f32_bf16 v{Q+t}, v{X+4*t+k}, v{X+4*t+k}, {'0' if k == 0 else 'v%d' % (Q+t)}")
    for B in (S, Q):
        for t in range(4): A(f"v_permlane32_swap_b32 v{B+t}, v{B+t+4}")
    for B in (S, Q):
        for t in range(4): A(f"v_add_f32 v{B+t}, v{B+t}, v{B+t+4}")
    for B in (S, Q):
        for t in range(2): A(f"v_permlane16_swap_b32 v{B+t}, v{B+t+2}")
    for B in (S, Q):
        for t in range(2): A(f"v_add_f32 v{B+t}, v{B+t}, v{B+t+2}")
    for sh in (8, 4, 2, 1):
        for r in (S, S+1, Q, Q+1):
            A(f"v_add_f32_dpp v{r}, v{r}, v{r} row_ror:{sh} row_mask:0xf bank_mask:0xf")
    seqs = []
    for t in range(2):
        m, q, G = S+t, Q+t, 80 + 4*t
        t1, t2, t3, t4 = 88+4*t, 89+4*t, 90+4*t, 91+4*t
        L = []
        def br(d, x): L.extend([f'v_cvt_pk_bf16_f32 v{t4}, v{x}, v{x}', f'v_lshlrev_b32 v{d}, 16, v{t4}'])
        L.append(f"v_mul_f32 v{m}, {f2u(1/512)}, v{m}")
        L.append(f"v_mul_f32 v{q}, {f2u(1/512)}, v{q}")
        L.append(f"v_fma_f32 v{q}, -v{m}, v{m}, v{q}")
        L.append(f"v_max_f32 v{q}, 0, v{q}")
        br(t1, q)
        L.append(f"v_add_f32 v{t1}, {f2u(1e-5)}, v{t1}")
        br(t1, t1)
        L.append(f"v_sqrt_f32 v{t1}, v{t1}")
        L.append(f"v_cvt_pk_bf16_f32 v{G}, v{m}, v{t1}")
        L.append(f"v_and_b32 v{t1}, 0xffff0000, v{G}")
        L.append(f"v_rcp_f32 v{t2}, v{t1}")
        L.append(f"v_lshlrev_b32 v{t3}, 16, v{G}")
        L.append(f"v_sub_f32 v{m}, v{m}, v{t3}")
        L.append(f"v_mul_f32 v{m}, v{m}, v{t2}")
        L.append(f"v_mul_f32 v{q}, v{q}, v{t2}")
        L.append(f"v_mul_f32 v{q}, v{q}, v{t2}")
        br(q, q)
        L.append(f"v_add_f32 v{q}, {f2u(1e-5)}, v{q}")
        br(q, q)
        L.append(f"v_sqrt_f32 v{q}, v{q}")
        L.append(f"v_mov_b32 v{G+1}, v61")
        L.append(f"v_cvt_pk_bf16_f32 v{G+2}, v{m}, v{q}")
        L.append(f"v_mov_b32 v{G+3}, v61")
        seqs.append(L)
    for x, y in zip(*seqs): A(x); A(y)
    A("v_and_b32 v8, 15, v1")
    A("v_lshlrev_b32 v8, 11, v8")
    A("v_lshrrev_b32 v9, 4, v1")
    A("v_lshl_add_u32 v8, v9, 5, v8")
    A("s_lshr_b32 s41, s28, 4")
    A("s_lshl_b32 s41, s41, 15")
    A("s_and_b32 s42, s28, 15")
    A("s_lshl_b32 s42, s42, 7")
    A("s_add_u32 s41, s41, s42")
    A(f"s_add_u32 s41, s41, {WS_MB}")
    for t in range(2):
        A(f"buffer_store_dwordx4 {v(80+4*t,4)}, v8, s[44:47], s41 offen offset:{16*t} sc1")
    stamp(A)
    for t in range(2):
        for rho in range(4):
            A(f"v_readlane_b32 s{64 + t + 2*rho}, v{90+4*t}, {16*rho}")
            A(f"v_readlane_b32 s{48 + t + 2*rho}, v{89+4*t}, {16*rho}")
    FF, O = 96, 112
    for i in range(4):
        for h, t in enumerate((7 - 2*i, 6 - 2*i)):
            for k in range(4):
                lo, hi, x = FF + 8*h + 2*k, FF + 8*h + 2*k + 1, X + 4*t + k
                A(f"v_lshlrev_b32 v{lo}, 16, v{x}")
                A(f"v_and_b32 v{hi}, 0xffff0000, v{x}")
                A(f"v_subrev_f32 v{lo}, s{64+t}, v{lo}")
                A(f"v_subrev_f32 v{hi}, s{64+t}, v{hi}")
                if not OPT.get('fastln'):
                    A(f"v_cvt_pk_bf16_f32 v{x}, v{lo}, v{hi}")
                    A(f"v_lshlrev_b32 v{lo}, 16, v{x}")
                    A(f"v_and_b32 v{hi}, 0xffff0000, v{x}")
                A(f"v_mul_f32 v{lo}, s{48+t}, v{lo}")
                A(f"v_mul_f32 v{hi}, s{48+t}, v{hi}")
        for dl in range(8):
            A(f"v_cvt_pk_bf16_f32 v{O+4*dl+i}, v{FF+dl}, v{FF+8+dl}")
    for dl in range(8):
        A(f"buffer_store_dwordx4 {v(O+4*dl,4)}, v{2 + dl//4}, s[36:39], s29 offen offset:{1024*(dl%4)} sc1")
    A("s_lshl_b32 s42, s28, 2")
    A("s_add_u32 s42, s42, 0x8000")
    if OPT.get('latepf'): spin(A, 6, F_DONE, 4, 12, sleep=1, cmp='le', val='2')
    elif OPT.get('iso') != 'ldx': spin(A, 6, F_PF, 1, 9, sleep=1)
    A.wait_vm0()
    A("s_mov_b64 exec, 1")
    A("buffer_store_dword v61, v60, s[44:47], s42 offen sc1")
    A("s_mov_b64 exec, -1")
    stamp(A)
    if OPT.get('iso') == 'ldx': A("s_endpgm")
    A("s_mov_b32 s29, 1")
    A("s_branch K_k6")

def kgen(A):
    if OPT.get('al'): A(".p2align 6")
    A("K_kgen:")
    if OPT.get('sk'): A("s_nop 0")
    A.reset_counters(); A.nst = 3
    A("s_cmp_eq_u32 s3, 5")
    A("s_cbranch_scc1 K_k5")
    p1_stream(A, True)
    stamp(A)
    srd(A, 36, 24, 2097152, WS_XN)
    srd(A, 44, 24, FLSZ, WS_FLAG)
    A(f"v_mov_b32 v6, {F}")
    A("v_lshlrev_b32 v2, 4, v1")
    spin(A, 6, F_NON, 1, 61, sleep=1, cmp='ne', val='0')
    A("s_lshl_b32 s41, s82, 4")
    A("s_add_u32 s41, s41, s83")
    A("s_lshl_b32 s41, s41, 11")
    A(f"s_add_u32 s41, s41, {WS_MB}")
    A("s_mov_b32 s79, 0")
    A("K_x2:")
    A("buffer_load_dwordx4 v[64:67], v2, s[44:47], s41 offen sc1")
    A("buffer_load_dwordx4 v[68:71], v2, s[44:47], s41 offen offset:1024 sc1")
    A("s_waitcnt vmcnt(0)")
    A("v_xor_b32 v72, v61, v65")
    A("v_xor_b32 v73, v61, v67")
    A("v_xor_b32 v74, v61, v69")
    A("v_xor_b32 v75, v61, v71")
    A("v_or3_b32 v72, v72, v73, v74")
    A("v_or_b32 v72, v72, v75")
    A("v_cmp_ne_u32 vcc, 0, v72")
    A("s_cbranch_vccz K_x3")
    A("s_sleep 6")
    A("s_add_u32 s79, s79, 1")
    A("s_cmp_lt_u32 s79, 0x4000")
    A("s_cbranch_scc1 K_x2")
    A("K_x3:")
    A.reset_counters()
    A(f"s_setprio {OPT.get('xprio', 3)}")
    for i in range(2):
        g, o = 64 + 4*i, 72 + 8*i
        A(f"v_and_b32 v{o+4}, 0xffff0000, v{g}")
        A(f"v_lshlrev_b32 v{o+5}, 16, v{g}")
        A(f"v_and_b32 v{o+6}, 0xffff0000, v{g+2}")
        A(f"v_lshlrev_b32 v{o+7}, 16, v{g+2}")
        A(f"v_rcp_f32 v{o}, v{o+4}")
        A(f"v_rcp_f32 v{o+3}, v{o+6}")
        A(f"v_fma_f32 v{o+2}, -v{o+7}, v{o+4}, -v{o+5}")
        A(f"v_mul_f32 v{o+3}, v{o+3}, v{o}")
    A("v_lshlrev_b32 v8, 3, v1")
    A(f"v_add_u32 v8, {L_ST}, v8")
    A("v_mov_b32 v7, 1")
    for i in range(2):
        A(f"ds_write_b64 v8, {v(74+8*i,2)} offset:{1024 + 512*i}")
    A(f"ds_write_b32 v6, v7 offset:{F_ST}")
    stamp(A)
    A("s_branch K_uload")
    A("K_k5:")
    if OPT.get('iso') and OPT.get('iso') != 'ldxk': A("s_endpgm")
    A.reset_counters(); A.nst = 3
    A("s_setprio 3")
    A("s_mov_b32 s29, 0")
    A("s_lshl_b32 s31, s28, 2")
    A("s_load_dword s63, s[18:19], s31")
    A("s_lshl_b32 s31, s28, 9")
    A("v_lshlrev_b32 v2, 2, v1")
    for i in range(6):
        srd(A, 32, 6 + 2*i, 131072)
        A(f"buffer_load_dword v{52+i}, v2, s[32:35], s31 offen", tag='p')
    srd(A, 36, 20, 0 if OPT.get('now1t') else 1835008)
    A("v_lshlrev_b32 v5, 4, v1")
    A("s_mul_i32 s40, s2, 7168")
    for i in range(7):
        if i == 4: A("s_add_u32 s40, s40, 4096")
        A(f"buffer_load_dwordx4 {v(208+4*i,4)}, v5, s[36:39], s40 offen offset:{1024*(i%4)}", tag='t')
    if not OPT.get('latepf'):
        srd(A, 40, 24, 2097152, WS_ST)
        A("s_lshl_b32 s44, s28, 13")
        A("v_mov_b32 v8, -1\nv_mov_b32 v9, -1\nv_mov_b32 v10, -1\nv_mov_b32 v11, -1")
        for i in range(8):
            if i == 4: A("s_add_u32 s44, s44, 4096")
            A(f"buffer_store_dwordx4 v[8:11], v5, s[40:43], s44 offen offset:{1024*(i%4)} sc1", tag='t')
    A("K_k6:")
    A(f"v_mov_b32 v3, {F}")
    A(f"s_mul_i32 s54, s29, {CVS}")
    A(f"s_add_u32 s54, s54, {L_CV}")
    A("s_lshl_b32 s61, s29, 16")
    A(f"s_add_u32 s61, s61, {SPARE}")
    A("s_mov_b32 s45, 32768")
    WA, RA = 244, 252
    A("v_and_b32 v5, 31, v1")
    A("v_lshlrev_b32 v5, 7, v5")
    A("v_lshrrev_b32 v6, 5, v1")
    A("v_mul_u32_u24 v6, s45, v6")
    A("v_add3_u32 v5, v5, v6, s61")
    A("v_and_b32 v6, 7, v1")
    for c in range(8):
        A(f"v_xor_b32 v7, {c}, v6")
        A(f"v_lshl_add_u32 v{WA+c}, v7, 4, v5")
    A("v_bfe_u32 v5, v1, 2, 2")
    A("v_lshrrev_b32 v6, 5, v1")
    A("v_lshlrev_b32 v6, 2, v6")
    A("v_lshrrev_b32 v7, 1, v5")
    A("v_add_u32 v6, v6, v7")
    A("v_and_b32 v5, 1, v5")
    A("v_lshlrev_b32 v5, 2, v5")
    A("v_bfe_u32 v7, v1, 4, 1")
    A("v_lshl_add_u32 v5, v7, 1, v5")
    A("v_bfe_u32 v7, v1, 1, 1")
    A("v_add_u32 v5, v5, v7")
    A("v_and_b32 v7, 1, v1")
    A("v_lshlrev_b32 v7, 3, v7")
    A("v_add_u32 v7, s61, v7")
    for hh in range(2):
        if hh: A("v_add_u32 v6, 2, v6")
        A(f"v_xor_b32 v15, v5, v6")
        A(f"v_lshl_add_u32 v15, v15, 4, v7")
        A(f"v_lshl_add_u32 v{RA+hh}, v6, 7, v15")
        A(f"v_add_u32 v{18+hh}, s45, v{RA+hh}")
    A("s_waitcnt lgkmcnt(0)")
    A("s_lshl_b32 s62, s29, 4")
    A("s_lshr_b32 s60, s63, s62")
    A("s_lshl_b32 s60, s60, 16")
    A(f"v_mov_b32 v14, {f2u(LOG2E)}")
    A("v_mul_f32 v14, s60, v14")
    A("v_exp_f32 v14, v14")
    bf16r(A, 14, 14, 15)
    XV, PKB = 60, 112
    A.wait_vm('p')
    A(f"s_setprio {OPT.get('chprio', 1)}")
    A.nst = 5
    stamp(A)
    Z = {1: (20, 22), 2: (24, 26), 3: (28, 30), 8: (32, 34), 256: (36, 38), 4: (41, 43), 128: (21, 23)}
    def smul(d, x, y):
        A(f"v_mul_f32 v{d[0]}, v{x[0]}, v{y[0]}")
        A(f"v_mul_f32 v{d[1]}, v{x[0]}, v{y[1]}")
        A(f"v_fma_f32 v{d[0]}, -v{x[1]}, v{y[1]}, v{d[0]}")
        A(f"v_fmac_f32 v{d[1]}, v{x[1]}, v{y[0]}")
    def cm2(l):
        for d, x, m in l:
            A(f"v_pk_mul_f32 {v(d,2)}, {v(x,2)}, {v(m[0],2)} op_sel_hi:[1,0]")
            A(f"v_pk_mul_f32 {v(d+2,2)}, {v(x,2)}, {v(m[1],2)} op_sel_hi:[1,0]")
        for d, x, m in l:
            A(f"v_pk_fma_f32 {v(d,2)}, {v(x+2,2)}, {v(m[1],2)}, {v(d,2)} op_sel_hi:[1,0,1] neg_lo:[0,1,0] neg_hi:[0,1,0]")
            A(f"v_pk_fma_f32 {v(d+2,2)}, {v(x+2,2)}, {v(m[0],2)}, {v(d+2,2)} op_sel_hi:[1,0,1]")
    pairs = [(a, 0) for a in range(0, 17, 2)] + [(0, 1), (0, 2), (0, 3), (2, 2)]
    XP = {ae: XV + 4*i for i, ae in enumerate(pairs)}
    def xre(row):
        a, e = XROWS[row]
        return XP[(a & ~1, e)] + (a & 1)
    for half in range(2):
        PW, PX = PKB + 64*half, PKB + 64*half + 32
        for i in range(6):
            if half == 0: A(f"v_lshlrev_b32 v{8+i}, 16, v{52+i}")
            else: A(f"v_and_b32 v{8+i}, 0xffff0000, v{52+i}")
        for i in range(4): A(f"v_mul_f32 v{8+i}, v14, v{8+i}")
        A(f"v_mul_f32 v8, {f2u(LOG2E)}, v8")
        A(f"v_mul_f32 v9, 0.15915494, v9")
        zs = ((4, 25, 27), (1, 29, 31), (128, 33, 35))
        for o, e, f in zs:
            A(f"v_mul_f32 v{e}, {f2u(float(o))}, v8"); A(f"v_mul_f32 v{f}, {f2u(float(o))}, v9")
        for o, e, f in zs:
            A(f"v_exp_f32 v{e}, v{e}"); A(f"v_fract_f32 v{f}, v{f}")
        for o, e, f in zs:
            A(f"v_cos_f32 v{Z[o][0]}, v{f}"); A(f"v_sin_f32 v{Z[o][1]}, v{f}")
        for o, e, f in zs:
            A(f"v_mul_f32 v{Z[o][0]}, v{e}, v{Z[o][0]}"); A(f"v_mul_f32 v{Z[o][1]}, v{e}, v{Z[o][1]}")
        y0, y1 = (XP[(0,0)], XP[(0,0)]+2), (XP[(0,0)]+1, XP[(0,0)]+3)
        smul(Z[8], Z[4], Z[4]); smul(y0, (12, 13), (10, 11)); smul(Z[256], Z[128], Z[128]); smul(Z[2], Z[1], Z[1])
        smul(y1, y0, Z[128]); smul(Z[3], Z[2], Z[1])
        A("v_mov_b32 v40, 1.0"); A("v_mov_b32 v42, 0")
        if half == 1:
            A.wait_vm0()
            A("v_mov_b32 v4, 1")
            A("s_lshl_b32 s44, s29, 2")
            A("v_add_u32 v5, s44, v3")
            A(f"ds_write_b32 v5, v4 offset:{F_PF}")
        xs = [(XP[(a+2, 0)], XP[(a, 0)], Z[256]) for a in range(0, 16, 2)] + [(XP[(a, e)], XP[(a, 0)], Z[e]) for (a, e) in pairs[9:]]
        cur = 40
        for i in range(16):
            A(f"v_cvt_pk_bf16_f32 v{PW+i}, v{cur}, v{cur+1}")
            A(f"v_cvt_pk_bf16_f32 v{PW+16+i}, v{cur+2}, v{cur+3}")
            nxt = 44 if cur == 40 else 40
            l = ([(nxt, cur, Z[8])] if i < 15 else []) + ([xs.pop(0)] if xs else [])
            cm2(l); cur = nxt
        for i in range(13):
            r0, r1 = xre(2*i), xre(min(2*i+1, 24))
            A(f"v_cvt_pk_bf16_f32 v{PX+i}, v{r0}, v{r1}")
            A(f"v_cvt_pk_bf16_f32 v{PX+16+i}, -v{r0+2}, -v{r1+2}")
    stamp(A)
    A(f"s_setprio {OPT.get('kprio', 2)}")
    A("v_mov_b32 v48, v18\nv_mov_b32 v49, v19")
    if not OPT.get('now2t'):
        A("s_cmp_eq_u32 s29, 0")
        A("s_mov_b32 s36, s84"); A("s_mov_b32 s37, s85")
        A("s_cselect_b32 s38, 1835008, 0")
        A(f"s_mov_b32 s39, {SRD3}")
        A("v_lshlrev_b32 v5, 4, v1")
        A("s_mul_i32 s40, s2, 7168")
        for i in range(7):
            if i == 4: A("s_add_u32 s40, s40, 4096")
            A(f"buffer_load_dwordx4 {v(60+4*i,4)}, v5, s[36:39], s40 offen offset:{1024*(i%4)}", tag='t')
        A.wait_vm0()
    if OPT.get('l2pf'):
        spin(A, 3, F_DONE, 4, 4, sleep=3, cmp='le', val=str(OPT.get('l2pf')))
        A("s_mul_i32 s40, s27, 57344")
        if OPT.get('dense'):
            for i in range(56):
                A(f"buffer_load_dwordx4 {v(60+4*(i%8),4)}, v5, s[36:39], s40 offen offset:{1024*(i%4)}")
                if i % 4 == 3: A("s_add_u32 s40, s40, 4096")
        else:
            A("v_lshlrev_b32 v5, 7, v1")
            for i in range(7):
                A(f"buffer_load_dword v{60+i}, v5, s[36:39], s40 offen")
                A("s_add_u32 s40, s40, 8192")
        A.wait_vm0()
    if OPT.get('iso'): A("s_endpgm")
    spin(A, 3, F_DONE, 4, 4, sleep=3, cmp='le', val='8')
    FA, FB, D = 16, 60, 92
    def flush(PK):
        for part in range(2):
            for q in range(4):
                A(f"ds_write_b128 v{WA+4*part+q}, {v(PK+16*part+4*q,4)}", tag='w')
    def frags(Fr, tag):
        for st in range(8):
            for hh in range(2):
                A(f"ds_read_b64_tr_b16 {v(Fr+4*st+2*hh,2)}, v{(RA if st < 4 else 48)+hh} offset:{(st&3)*1024}", tag=(tag, st))
    for half in range(2):
        flush(PKB + 64*half); frags(FB, 'fb')
        flush(PKB + 64*half + 32); frags(FA, 'fa')
        for st in range(8):
            A.wait_lg(('fa', st))
            A(f"v_mfma_f32_32x32x16_bf16 {v(D,16)}, {v(FA+4*st,4)}, {v(FB+4*st,4)}, {'0' if (st == 0 and half == 0) else v(D,16)}")
    stamp(A)
    A("v_lshrrev_b32 v7, 5, v1")
    A("v_lshlrev_b32 v2, 4, v1")
    A("v_mov_b32 v112, 0\nv_mov_b32 v113, 0\nv_mov_b32 v114, 0\nv_mov_b32 v115, 0")
    A("v_bfe_u32 v11, v1, 1, 1")
    A("v_mul_u32_u24 v11, 4160, v11")
    A("v_and_b32 v12, 1, v1")
    A("v_lshl_add_u32 v11, v12, 4, v11")
    A("v_add_u32 v11, s54, v11")
    A("ds_write_b128 v11, v[112:115]")
    A("s_add_u32 s61, s54, 32")
    A("v_and_b32 v10, 31, v1")
    A("v_lshlrev_b32 v10, 3, v10")
    A("v_lshl_add_u32 v10, v7, 8, v10")
    A("v_add_u32 v10, s61, v10")
    T = 16
    def dup(dst, r): A(f"v_cvt_pk_bf16_f32 v{dst}, v{r}, v{r}")
    A("s_mov_b32 s64, 0x55555555\ns_mov_b32 s65, 0x55555555")
    A("s_mov_b32 s66, 0x11111111\ns_mov_b32 s67, 0x11111111")
    for r in range(8, 13):
        dup(T + 2*(r-8), D + r); dup(T + 2*(r-8) + 1, D + r)
    for r in (6, 7): dup(T + 10 + (r-6), D + r)
    for r in (4, 5): dup(T + 12 + (r-4), D + r)
    A(f"v_cvt_pk_bf16_f32 v{T+14}, v{D}, v{D+1}")
    A(f"v_cvt_pk_bf16_f32 v{T+15}, v{D+2}, v{D+3}")
    A("s_mov_b64 exec, 1")
    A(f"ds_write_b64 v10, {v(T+8,2)} offset:{2*(2048-4)}")
    A("s_mov_b64 exec, s[64:65]")
    for r in range(8, 12):
        o = 1024 + 256*(r-8)
        A(f"ds_write_b64 v10, {v(T+2*(r-8),2)} offset:{2*(o-4)}")
        A(f"ds_write_b64 v10, {v(T+2*(r-8),2)} offset:{2*o}")
    A("s_mov_b64 exec, s[66:67]")
    for r in range(8, 12):
        A(f"ds_write_b16 v10, v{T+2*(r-8)} offset:{2*(1024 + 256*(r-8) + 4)}")
    A("s_mov_b64 exec, -1")
    for r in (6, 7):
        o = 512 + 256*(r-6)
        A(f"ds_write_b32 v10, v{T+10+(r-6)} offset:{2*(o-2)}")
        A(f"ds_write_b32 v10, v{T+10+(r-6)} offset:{2*o}")
    A("s_mov_b64 exec, s[64:65]")
    for r in (6, 7):
        A(f"ds_write_b16 v10, v{T+10+(r-6)} offset:{2*(512 + 256*(r-6) + 2)}")
    A("s_mov_b64 exec, -1")
    A(f"ds_write_b16 v10, v{T+12} offset:{2*(256-1)}")
    A(f"ds_write_b32 v10, v{T+12} offset:{2*256}")
    A(f"ds_write_b16 v10, v{T+13} offset:{2*(256+2)}")
    A(f"ds_write_b64 v10, {v(T+14,2)}")
    A("s_add_u32 s61, s54, 28")
    A("v_add_u32 v4, s61, v2")
    for i in range(4):
        A(f"ds_read_b32 v{112+8*i+3}, v4 offset:{1024*i}", tag=('k', i))
        A(f"ds_read_b128 {v(112+8*i+4,4)}, v4 offset:{1024*i+4}", tag=('k', i))
    for i in range(4):
        A.wait_lg(('k', i))
        for k in range(4):
            A(f"v_alignbit_b32 v{144+4*i+k}, v{112+8*i+4+k}, v{112+8*i+3+k}, 16")
    for i in range(4):
        A(f"ds_write_b128 v4, {v(144+4*i,4)} offset:{1024*i + 4 + 4160}")
    A("v_mov_b32 v5, 1")
    A("s_lshl_b32 s61, s29, 2")
    A("v_add_u32 v6, s61, v3")
    A(f"ds_write_b32 v6, v5 offset:{F_KR}")
    stamp(A)
    A("s_branch K_conv")

def uload(A):
    A("K_uload:")
    A.reset_counters(); A.nst = 8
    A(f"s_setprio {OPT.get('uprio', 3)}")
    A(f"v_mov_b32 v3, {F}")
    A("v_lshlrev_b32 v4, 4, v1")
    A("s_mov_b32 s56, 0x8000")
    A("s_mov_b32 s79, 0")
    A("K_u2:")
    A("buffer_load_dwordx4 v[8:11], v4, s[44:47], s56 offen sc1")
    A("s_waitcnt vmcnt(0)")
    for r in range(4): A(f"v_xor_b32 v{8+r}, v61, v{8+r}")
    A("v_or3_b32 v8, v8, v9, v10")
    A("v_or_b32 v8, v8, v11")
    A("v_cmp_ne_u32 vcc, 0, v8")
    A("s_cbranch_vccz K_u3")
    A(f"s_sleep {OPT.get('xsleep', 8)}")
    A("s_add_u32 s79, s79, 1")
    A("s_cmp_lt_u32 s79, 0x4000")
    A("s_cbranch_scc1 K_u2")
    A("K_u3:")
    stamp(A)
    A("v_sub_u32 v5, 63, v1")
    A("v_lshlrev_b32 v5, 13, v5")
    A("s_and_b32 s56, s28, 3")
    A("s_lshl_b32 s56, s56, 11")
    A("s_lshr_b32 s57, s28, 2")
    A("s_lshl_b32 s57, s57, 4")
    A("s_add_u32 s56, s56, s57")
    A("v_add_u32 v5, s56, v5")
    for c in range(2):
        for q in range(4):
            A(f"s_mov_b32 m0, {L_CV + c*CVS + 2*4160 + 1024*q}")
            A(f"s_mov_b32 s56, {((3-q) << 19) + 1024*c}")
            A(f"buffer_load_dwordx4 v5, s[36:39], s56 offen sc1 lds")
    A("v_mov_b32 v8, 0\nv_mov_b32 v9, 0\nv_mov_b32 v10, 0\nv_mov_b32 v11, 0")
    A("v_min_u32 v7, 29, v1")
    A("v_lshlrev_b32 v7, 4, v7")
    A(f"v_add_u32 v7, {L_CV + 2*4160 + 4096}, v7")
    A("ds_write_b128 v7, v[8:11]")
    A(f"ds_write_b128 v7, v[8:11] offset:{CVS}")
    A("v_mov_b32 v8, 1\nv_mov_b32 v9, 1")
    A("s_waitcnt vmcnt(0) lgkmcnt(0)")
    A(f"ds_write2_b32 v3, v8, v9 offset0:{F_UR//4} offset1:{F_UR//4+1}")

def conv(A):
    A("K_conv:")
    A.reset_counters(); A.nst = 10
    A("s_sub_u32 s48, s3, 4")
    A("s_lshr_b32 s49, s48, 1")
    A("s_and_b32 s50, s48, 1")
    A("s_lshl_b32 s51, s28, 1")
    A("s_add_u32 s51, s51, s49")
    A("s_lshl_b32 s52, s28, 2")
    A("s_load_dword s53, s[92:93], s52")
    A(f"s_mul_i32 s54, s49, {CVS}")
    A(f"s_add_u32 s54, s54, {L_CV}")
    A("v_and_b32 v2, 15, v1")
    A("v_lshrrev_b32 v3, 4, v1")
    A("v_lshlrev_b32 v4, 4, v1")
    A("v_mov_b32 v17, 1")
    A("s_lshl_b32 s56, s48, 2")
    A(f"s_add_u32 s56, s56, {F}")
    A("v_mov_b32 v18, s56")
    A("v_xor_b32 v19, 4, v18")
    A("s_lshl_b32 s56, s49, 2")
    A(f"s_add_u32 s56, s56, {F}")
    A("v_mov_b32 v22, s56")
    A("v_lshrrev_b32 v6, 1, v2")
    A("v_lshlrev_b32 v6, 2, v6")
    A("v_lshl_add_u32 v6, v3, 4, v6")
    A("v_and_b32 v7, 1, v2")
    A("v_sub_u32 v7, 1, v7")
    A("v_mul_u32_u24 v7, 4160, v7")
    A("v_add_u32 v6, v6, v7")
    A("s_lshl_b32 s56, s50, 8")
    A("s_add_u32 s56, s56, s54")
    A("s_add_u32 s57, s56, 4")
    A("v_add_u32 v12, s57, v6")
    for qq in range(1, 4): A(f"v_add_u32 v{12+qq}, {1024*qq}, v12")
    A("v_lshlrev_b32 v6, 4, v3")
    A("v_lshlrev_b32 v7, 5, v2")
    A("v_sub_u32 v6, v6, v7")
    A(f"s_add_u32 s57, s56, {2*4160 + 480}")
    A("v_add_u32 v16, s57, v6")
    A("v_lshlrev_b32 v8, 5, v2")
    A("v_lshl_add_u32 v8, v3, 3, v8")
    A("s_lshl_b32 s56, s50, 11")
    A(f"s_add_u32 s57, s54, {2*4160 + 4088 - 1536}")
    A("s_sub_u32 s57, s57, s56")
    A("v_sub_u32 v8, s57, v8")
    A("s_lshl_b32 s56, s48, 15")
    A(f"s_add_u32 s56, s56, {SPARE}")
    A("v_add_u32 v6, s56, v4")
    A("v_xor_b32 v7, 0x8000, v6")
    srd(A, 40, 24, 2097152, WS_ST)
    srd(A, 44, 24, FLSZ, WS_FLAG)
    spin(A, 22, (F_KR, F_UR), 2, 20, sleep=1)
    A(f"v_mov_b32 v23, {F}")
    A(f"ds_read_b32 v61, v23 offset:{F_NON}")
    A("s_lshl_b32 s56, s49, 4")
    A("s_lshr_b32 s53, s53, s56")
    A("s_lshl_b32 s53, s53, 16")
    stamp(A)
    ACC, FR = 24, 64
    def reads(pl):
        b = FR + 64 * (pl % 2)
        fs = []
        for k in range(8):
            o = 128*(k & 1) + 16*pl
            fs.append(lambda k=k, o=o: A(f"ds_read2_b32 {v(b+4*k,2)}, v{12+k//2} offset0:{o} offset1:{o+1}"))
            fs.append(lambda k=k, o=o: A(f"ds_read2_b32 {v(b+4*k+2,2)}, v{12+k//2} offset0:{o+2} offset1:{o+3}"))
            fs.append(lambda k=k: A(f"ds_read_b128 {v(b+32+4*k,4)}, v16 offset:{3584 - 512*k + 64*pl}"))
        return fs
    XN, T, P1 = 192, 200, 216
    for a in range(4):
        A(f"ds_read_b64 {v(XN+2*a,2)}, v8 offset:{1536 - 512*a}", tag='xn')
    for f in reads(0): f()
    A.wait_lg('xn')
    for a in range(4):
        A(f"v_and_b32 v{T+4*a}, 0xffff0000, v{XN+2*a+1}")
        A(f"v_lshlrev_b32 v{T+4*a+1}, 16, v{XN+2*a+1}")
        A(f"v_and_b32 v{T+4*a+2}, 0xffff0000, v{XN+2*a}")
        A(f"v_lshlrev_b32 v{T+4*a+3}, 16, v{XN+2*a}")
    for r in range(16): A(f"v_mul_f32 v{T+r}, s53, v{T+r}")
    for k in range(8): A(f"v_cvt_pk_bf16_f32 v{P1+k}, v{T+2*k}, v{T+2*k+1}")
    for k in range(8):
        A(f"v_lshlrev_b32 v{T+2*k}, 16, v{P1+k}")
        A(f"v_and_b32 v{T+2*k+1}, 0xffff0000, v{P1+k}")
    A(f"s_setprio {OPT.get('cprio2', 0)}")
    if OPT.get('s3'): A("s_nop 0")
    for pl in range(4):
        A.wait_lg0()
        fs = reads(pl + 1) if pl < 3 else []
        b = FR + 64 * (pl % 2)
        first = set()
        for q in range(8):
            for w in range(8 - q):
                ib = q + w
                c = '0' if (pl == 0 and ib not in first) else v(ACC+4*ib, 4)
                first.add(ib)
                A(f"v_mfma_f32_16x16x32_bf16 {v(ACC+4*ib,4)}, {v(b+4*q,4)}, {v(b+32+4*w,4)}, {c}")
                if fs: fs.pop(0)()
    stamp(A)
    A("s_setprio 3")
    FF = 64
    A("s_cmp_eq_u32 s50, 0")
    A("s_cbranch_scc1 K_x0")
    for ph, lab in ((1, None), (0, 'K_x0')):
        if lab: A(f"{lab}:")
        send, keep = (4, 0) if ph == 0 else (0, 4)
        for a in range(4):
            A(f"ds_write_b128 v6, {v(ACC+4*(send+a),4)} offset:{1024*a}")
        A(f"ds_write_b32 v18, v17 offset:{F_XCH}")
        for r in range(16):
            A(f"v_mov_b32 v{FF+r}, v{ACC+4*keep+r}")
        if not lab: A("s_branch K_xe")
    A("K_xe:")
    A("v_and_b32 v8, 1, v3")
    A("v_lshlrev_b32 v8, 9, v8")
    A("v_lshl_add_u32 v8, v2, 5, v8")
    A("v_lshrrev_b32 v9, 1, v3")
    A("v_lshl_add_u32 v8, v9, 4, v8")
    A("s_lshl_b32 s56, s51, 12")
    A("s_lshl_b32 s57, s50, 11")
    A("s_add_u32 s56, s56, s57")
    spin(A, 19, F_XCH, 1, 20)
    R = 80
    for a in range(4):
        A(f"ds_read_b128 {v(R+4*a,4)}, v7 offset:{1024*a}", tag='r')
    A.wait_lg('r')
    for r in range(16): A(f"v_add_f32 v{FF+r}, v{FF+r}, v{R+r}")
    for k in range(8): A(f"v_cvt_pk_bf16_f32 v{P1+k}, v{FF+2*k}, v{FF+2*k+1}")
    for k in range(8):
        A(f"v_lshlrev_b32 v{FF+2*k}, 16, v{P1+k}")
        A(f"v_and_b32 v{FF+2*k+1}, 0xffff0000, v{P1+k}")
    for r in range(16): A(f"v_add_f32 v{FF+r}, v{FF+r}, v{T+r}")
    for k in range(8): A(f"v_cvt_pk_bf16_f32 v{P1+k}, v{FF+2*k}, v{FF+2*k+1}")
    for pr in range(2):
        A(f"v_permlane16_swap_b32 v{P1+4*pr}, v{P1+4*pr+2}")
        A(f"v_permlane16_swap_b32 v{P1+4*pr+1}, v{P1+4*pr+3}")
    for pr in range(2):
        A(f"buffer_store_dwordx4 {v(P1+4*pr,4)}, v8, s[40:43], s56 offen offset:{1024*pr} sc1")
    A("v_lshrrev_b32 v8, 3, v1")
    A("v_and_b32 v9, 7, v1")
    A("v_lshlrev_b32 v10, 12, v8")
    A("v_lshl_add_u32 v10, v9, 4, v10")
    A("v_bfe_u32 v11, v8, 1, 2")
    A("v_lshlrev_b32 v11, 1, v11")
    A("v_xor_b32 v11, v11, v9")
    A("v_lshlrev_b32 v11, 4, v11")
    A("v_lshl_add_u32 v11, v8, 7, v11")
    A("s_lshl_b32 s57, s50, 11")
    A("s_add_u32 s57, s57, s54")
    A("v_add_u32 v11, s57, v11")
    stamp(A)
    A("s_lshl_b32 s56, s81, 6")
    A("s_lshl_b32 s57, s48, 4")
    A("s_add_u32 s56, s56, s57")
    A("s_lshl_b32 s56, s56, 12")
    A("s_lshl_b32 s57, s80, 7")
    A("s_add_u32 s56, s56, s57")
    A("s_add_u32 s59, s56, 32768")
    spin(A, 18, F_GO, 1, 20, sleep=4)
    A("s_mov_b32 s79, 0")
    A("K_sp:")
    A("buffer_load_dwordx4 v[64:67], v10, s[40:43], s56 offen sc1")
    A("buffer_load_dwordx4 v[68:71], v10, s[40:43], s59 offen sc1")
    A("s_waitcnt vmcnt(0)")
    A("v_max3_u32 v12, v64, v65, v66")
    A("v_max3_u32 v13, v67, v68, v69")
    A("v_max3_u32 v12, v12, v70, v71")
    A("v_max_u32 v12, v12, v13")
    A("v_cmp_eq_u32 vcc, -1, v12")
    A("s_cbranch_vccz K_spd")
    A(f"s_sleep {OPT.get('ssleep', 4)}")
    A("s_add_u32 s79, s79, 1")
    A("s_cmp_lt_u32 s79, 0x1000")
    A("s_cbranch_scc1 K_sp")
    A("K_spd:")
    stamp(A)
    A("ds_write_b128 v11, v[64:67]")
    A("ds_write_b128 v11, v[68:71] offset:1024")
    A(f"ds_write_b32 v18, v17 offset:{F_SR}")
    finish(A)

def gemm(A):
    if OPT.get('al'): A(".p2align 6")
    A("K_gemm:")
    if OPT.get('sg'): A("s_nop 0")
    A.reset_counters(); A.nst = 3
    A("s_setprio 2")
    GA = OPT.get('ga', '0') == '1' and OPT.get('iso') not in ('1', 'nord')
    if GA:
        srd(A, 32, 4, 2097152)
        srd(A, 36, 20, 1835008)
        p1_voffs(A, 144, 4)
        A("s_lshl_b32 s54, s3, 12")
        A(f"s_mul_i32 s57, s3, {16*3584}")
        A("s_lshl_b32 s56, s3, 15")
        for u in (2, 3):
            A(f"s_add_u32 m0, s54, {u*32768}")
            A(f"s_add_u32 s55, s57, {u*64*3584}")
            for q in range(4):
                A(f"buffer_load_dwordx4 v{144+q}, s[36:39], s55 offen offset:{1024*q} lds", tag=('u', u))
            A(f"s_add_u32 m0, s54, {u*32768 + 16384}")
            A(f"s_add_u32 s55, s56, {u*128}")
            for q in range(4):
                A(f"buffer_load_dwordx4 v{148+q}, s[32:35], s55 offen offset:{1024*q} lds", tag=('u', u))
    if OPT.get('tlb', '0') == '1':
        A("s_cmp_lg_u32 s3, 0")
        A("s_cbranch_scc1 K_t1")
        srd(A, 32, 24, 0x1600000)
        A("v_lshlrev_b32 v6, 21, v1")
        A("s_lshl_b32 s36, s2, 7")
        A("buffer_load_dword v253, v6, s[32:35], s36 offen")
        A("v_mov_b32 v6, 0")
        A("s_mov_b64 exec, 1")
        for ptr, sz in ((88, 2097152), (84, 1835008), (86, 1024), (92, 1024)):
            srd(A, 32, ptr, sz)
            A(f"buffer_load_dword v253, v6, s[32:35], 0 offen")
        A("s_mov_b64 exec, -1")
        A("K_t1:")
        A.reset_counters()
    A("v_and_b32 v19, 15, v1")
    A("v_lshrrev_b32 v3, 4, v1")
    srd(A, 40, 22, 3584)
    srd(A, 44, 24, 7340032, WS_H)
    A("v_bfe_u32 v6, v1, 2, 2")
    A("v_and_b32 v9, 1, v3")
    A("v_lshl_or_b32 v9, v9, 2, v6")
    A("v_lshl_add_u32 v10, v3, 3, v6")
    A("v_lshlrev_b32 v10, 8, v10")
    A("v_and_b32 v11, 3, v1")
    A("v_lshl_add_u32 v10, v11, 3, v10")
    A("s_and_b32 s68, s83, 1")
    AB, B1, ONES, FL, AF, ACC, XR = 12, 20, 36, 40, 44, 72, 128
    MN0, RE, BF, ACS, ARS, AQS, SA, C1, C2, C3, CSA, TM = 144, 148, 164, 192, 200, 208, 216, 220, 222, 224, 226, 236
    A("s_mul_i32 s53, s83, 224")
    A("v_lshlrev_b32 v7, 3, v3")
    for tau in range(7):
        A(f"s_lshl_b32 s59, s3, 1")
        A(f"s_add_u32 s59, s59, {tau}")
        A(f"s_sub_u32 s67, s59, 7")
        A(f"s_cmp_ge_u32 s59, 7")
        A(f"s_cselect_b32 s{60+tau}, s67, s59")
        A(f"s_add_u32 s59, s{60+tau}, s68")
        A(f"v_xor_b32 v11, s59, v9")
        A(f"v_lshl_add_u32 v{AB+tau}, v11, 5, v10")
        A(f"s_lshl_b32 s59, s{60+tau}, 6")
        A(f"s_add_u32 s59, s59, {L_CS}")
        A(f"v_lshl_add_u32 v{CSA+tau}, v3, 4, s59")
        A(f"s_lshl_b32 s59, s{60+tau}, 5")
        A(f"s_add_u32 s59, s59, {L_B1}")
        A(f"v_add_u32 v{B1+2*tau}, s59, v7")
    A("v_lshrrev_b32 v6, 1, v19")
    A("v_xor_b32 v6, v6, v3")
    A("v_lshlrev_b32 v6, 4, v6")
    A("v_lshl_add_u32 v6, v19, 7, v6")
    A("s_lshl_b32 s59, s3, 12")
    A("s_add_u32 s59, s59, 16384")
    A("v_add_u32 v4, s59, v6")
    A("v_xor_b32 v5, 64, v4")
    for i in range(4): A(f"v_mov_b32 v{ONES+i}, 0x3f803f80")
    A("v_mov_b32 v34, 1")
    A(f"s_lshl_b32 s59, s3, 2")
    A(f"s_add_u32 s59, s59, {F}")
    A("v_mov_b32 v35, s59")
    A(f"v_mov_b32 v2, {F}")
    MN = 152
    k0 = -2.0 * LOG2E * 0.7978845608028654
    A(f"v_mov_b32 v{C1}, {f2u(k0*0.044715)}")
    A(f"v_mov_b32 v{C2}, {f2u(k0)}")
    A(f"v_mov_b32 v{C3}, 1.0")
    A("s_lshl_b32 s59, s3, 8")
    A(f"s_add_u32 s59, s59, {L_S2}")
    A("v_lshl_add_u32 v160, v19, 3, s59")
    A("s_lshl_b32 s52, s82, 3")
    A("s_lshl_b32 s53, s3, 1")
    A("s_add_u32 s52, s52, s53")
    A("s_mul_i32 s52, s52, 57344")
    A("s_mul_i32 s53, s83, 3584")
    A("s_add_u32 s52, s52, s53")
    A("v_lshrrev_b32 v8, 1, v3")
    A("v_lshlrev_b32 v8, 8, v8")
    A("v_lshl_add_u32 v8, v19, 4, v8")
    A("v_add_u32 v8, s52, v8")
    A("v_and_b32 v10, 1, v3")
    A("v_cmp_eq_u32 vcc, 1, v10")
    for pr in range(4):
        A(f"s_lshl_b32 s59, s{60+2*pr}, 9")
        if pr < 3: A(f"s_lshl_b32 s67, s{60+2*pr+1}, 9")
        else: A(f"s_add_u32 s67, s59, 57344")
        A(f"v_mov_b32 v10, s59")
        A(f"v_mov_b32 v11, s67")
        A(f"v_cndmask_b32 v10, v10, v11, vcc")
        A(f"v_add_u32 v{SA+pr}, v10, v8")
    A("s_mov_b32 s59, 57344")
    EARLY = OPT.get('xearly', '0') == '1'
    if EARLY:
        srd(A, 32, 4, 2097152)
        srd(A, 36, 86, 1024)
        A("s_lshl_b32 s49, s80, 6")
        A("s_lshl_b32 s56, s3, 4")
        A("s_add_u32 s49, s49, s56")
        A("v_add_u32 v6, s49, v19")
        A("v_lshlrev_b32 v6, 10, v6")
        A("v_and_b32 v8, 1, v3")
        A("v_lshl_add_u32 v6, v8, 5, v6")
        A("v_lshrrev_b32 v8, 1, v3")
        A("v_lshl_add_u32 v6, v8, 4, v6")
        A("s_lshl_b32 s49, s81, 7")
        A("s_setprio 0")
        A("buffer_load_dwordx4 v[244:247], v6, s[32:35], s49 offen")
        A("buffer_load_dwordx4 v[248:251], v6, s[32:35], s49 offen offset:64")
        for mt in range(4):
            A(f"buffer_load_dwordx2 {v(144+2*mt,2)}, v7, s[36:39], s49 offen offset:{32*mt}")
        A("s_setprio 2")
    DN = 206
    for u in range(9): A(f"v_mov_b32 v{DN+u}, {u+1}")
    def full_issue(u):
        if OPT.get('nofl'): return
        if GA and u in (2, 3): return
        A(f"ds_read2_b32 {v(FL,2)}, v2 offset0:{u} offset1:{F_FX//4 + u}", tag=('fu', u))
    def full_eval(u):
        if OPT.get('nofl'): return
        if GA and u in (2, 3):
            spin(A, 2, F_G2 + 16*(u-2), 4, FL); return
        L1, L2 = A.newlabel('fu'), A.newlabel('fu')
        A.wait_lg(('fu', u))
        A(f"v_and_b32 v{FL}, v{FL}, v{FL+1}")
        A(f"v_cmp_eq_u32 vcc, 1, v{FL}")
        A(f"s_cbranch_vccnz {L2}")
        A(f"{L1}:")
        A(f"ds_read2_b32 {v(FL,2)}, v2 offset0:{u} offset1:{F_FX//4 + u}")
        A.lg.pop()
        A("s_waitcnt lgkmcnt(0)")
        A(f"v_and_b32 v{FL}, v{FL}, v{FL+1}")
        A(f"v_cmp_eq_u32 vcc, 1, v{FL}")
        A(f"s_cbranch_vccnz {L2}")
        A("s_add_u32 s72, s72, 1"); A("s_cmp_lt_u32 s72, 0x80000"); A(f"s_cbranch_scc1 {L1}")
        A(f"{L2}:")
    def trread(j, tau, hh):
        if (OPT.get('iso') == 'nord' or OPT.get('nord')) and j > 0: return
        if OPT.get('halfrd') and j > 0 and hh: return
        off = ((j//2) % 2) * 32768 + (j % 2) * 8192 + hh * 1024
        A(f"ds_read_b64_tr_b16 {v(AF+4*tau+2*hh,2)}, v{AB+tau} offset:{off}", tag=('a', j, tau))
    def xread(j, nt):
        off = ((j//2) % 2) * 32768 + nt * 2048
        A(f"ds_read_b128 {v(XR+8*(j%2)+4*nt,4)}, v{4 + j%2} offset:{off}", tag=('x', j))
    if not OPT.get('free'): spin(A, 2, (F_FULL, F_FX), 2, FL, sleep=1)
    if OPT.get('latepf'):
        srd(A, 32, 24, 2097152, WS_ST)
        A("s_lshl_b32 s36, s28, 13"); A("s_lshl_b32 s37, s3, 11"); A("s_add_u32 s36, s36, s37")
        A("v_mov_b32 v8, -1\nv_mov_b32 v9, -1\nv_mov_b32 v10, -1\nv_mov_b32 v11, -1")
        A("v_lshlrev_b32 v6, 4, v1")
        for i in range(2): A(f"buffer_store_dwordx4 v[8:11], v6, s[32:35], s36 offen offset:{1024*i} sc1", tag='pf')
    stamp(A)
    xread(0, 0); xread(0, 1)
    for tau in range(7):
        for hh in range(2): trread(0, tau, hh)
    for j in range(16):
        if j in (4, 8, 12): stamp(A)
        sl = XR + 8*(j % 2)
        def mf(acc, a, b):
            A(f"v_mfma_f32_16x16x32_bf16 {v(acc,4)}, {v(a,4)}, {v(b,4)}, {'0' if j == 0 else v(acc,4)}")
        flip = (j < 15 and (j + 1) % 4 == 0)
        A.wait_lg(('x', j), ('a', j, 0), ('a', j, 1))
        for tau in range(7):
            if tau % 2 == 0 and tau: A.wait_lg(('a', j, tau), ('a', j, min(tau+1, 6)))
            mf(ACC + 8*tau, AF + 4*tau, sl)
            if tau == 0:
                if j > 0: trread(j, 6, 0)
                if j % 2 == 1 and j < 15:
                    full_eval((j+1)//2)
                if flip: A(f"v_xor_b32 v4, 0x10000, v4"); A(f"v_xor_b32 v5, 0x10000, v5")
            elif j < 15: trread(j+1, tau-1, 0)
            if flip: A(f"v_xor_b32 v{AB+tau}, 0x10000, v{AB+tau}")
            if tau == 6 and j == 3 and OPT.get('latepf'): A.wait_vm('pf')
            dset = [int(c) for c in OPT.get('dset', '01234567')]
            if OPT.get('dpos', 'a') == 'a':
                if tau == 6 and j % 2 == 1 and j//2 in dset:
                    A(f"ds_write_b32 v35, v{DN + j//2} offset:{F_DONE}", tag='dn')
            elif tau == int(OPT.get('dpos')) and j % 2 == 0 and j > 0 and j//2 - 1 in dset:
                A(f"ds_write_b32 v35, v{DN + j//2 - 1} offset:{F_DONE}", tag='dn')
            if OPT.get('dpos', 'a') != 'a' and j == 15 and tau == 6:
                A(f"ds_write_b32 v35, v{DN + 7} offset:{F_DONE}", tag='dn')
            if GA and tau == 3 and j in (2, 4):
                A.wait_vm(('u', j//2 + 1))
                A(f"ds_write_b32 v35, v34 offset:{F_G2 + 16*(j//2 - 1)}", tag='g2')
            if tau == 5 and j % 2 == 0 and j < 14:
                full_issue(j//2 + 1)
            mf(ACC + 8*tau + 4, AF + 4*tau, sl + 4)
            if OPT.get('hpt') and j == int(OPT.get('hpt')):
                A(f"buffer_load_dwordx4 v[244:247], v{SA + (0,1,2,3,0,1,2)[tau]}, s[44:47], {'0' if tau < 4 else 's59'} offen")
            if j == 9:
                A(f"ds_read_b64 {v(B1+2*tau,2)}, v{B1+2*tau}", tag='b1')
            if j in (10, 12, 13, 14):
                if j == 10 and tau == 0: A.wait_lg('b1')
                kk = {10: 0, 12: 1, 13: 2, 14: 3}[j]
                if kk % 2 == 0: A(f"v_lshlrev_b32 v{BF+4*tau+kk}, 16, v{B1+2*tau+kk//2}")
                else: A(f"v_and_b32 v{BF+4*tau+kk}, 0xffff0000, v{B1+2*tau+kk//2}")
            if tau == 0:
                if j > 0: trread(j, 6, 1)
            elif j < 15: trread(j+1, tau-1, 1)
            if tau < 2:
                mf(ACS + 4*tau, AF + 4*tau, ONES)
                if j < 15: xread(j+1, tau)
            if j == 15 and tau == 4:
                for t2 in range(2):
                    A(f"ds_write_b128 v{CSA+t2}, {v(ACS+4*t2,4)}", tag='cw')
                A(f"ds_write_b32 v35, v34 offset:{F_CS}", tag='fl')
    stamp(A)
    if OPT.get('iso'):
        n = A.nst; finish(A); A.nst = n
    L = A.newlabel('ep')
    A(f"{L}:")
    A(f"ds_read_b128 {v(FL,4)}, v2 offset:{F_CS}")
    A(f"ds_read_b32 v6, v2 offset:{F_ST}")
    A("s_waitcnt lgkmcnt(0)")
    A(f"v_min3_u32 v{FL}, v{FL}, v{FL+1}, v6")
    A(f"v_min3_u32 v{FL}, v{FL}, v{FL+2}, v{FL+3}")
    A(f"v_cmp_eq_u32 vcc, 1, v{FL}")
    A(f"s_cbranch_vccnz {L}_d")
    A("s_add_u32 s72, s72, 1"); A("s_cmp_lt_u32 s72, 0x80000"); A(f"s_cbranch_scc1 {L}")
    A(f"{L}_d:")
    A.lg = []
    for nt in range(2):
        A(f"ds_read_b64 {v(MN+4*nt,2)}, v160 offset:{128*nt}", tag='mn')
    CS = 44
    for tau in range(7):
        A(f"ds_read_b128 {v(CS+4*tau,4)}, v{CSA+tau}", tag=('cs', tau))
    A.wait_lg('mn')
    for nt in range(2): A(f"v_mov_b32 v{MN+4*nt+2}, v{MN+4*nt+1}")
    stamp(A)
    OUT = 192
    if OPT.get('s1'): A("s_nop 0")
    bc = "op_sel_hi:[1,0,1]"
    groups = [((0,0),(1,0)), ((2,0),(3,0)), ((4,0),(5,0)), ((6,0),(6,1)), ((0,1),(1,1)), ((2,1),(3,1)), ((4,1),(5,1))]
    for gi, grp in enumerate(groups):
        o = OUT + 4 * (gi % 4)
        chains = []
        for ti, (tau, nt) in enumerate(grp):
            A.wait_lg(('cs', tau))
            for pr in range(2):
                a = ACC + 8*tau + 4*nt + 2*pr
                t = TM + 2*(2*ti + pr)
                chains.append([
                    f"v_pk_fma_f32 {v(a,2)}, {v(CS+4*tau+2*pr,2)}, {v(MN+4*nt,2)}, {v(a,2)} {bc}",
                    f"v_pk_fma_f32 {v(a,2)}, {v(a,2)}, {v(MN+4*nt+2,2)}, {v(BF+4*tau+2*pr,2)} {bc}",
                    f"v_pk_mul_f32 {v(t,2)}, {v(a,2)}, {v(a,2)}",
                    f"v_pk_fma_f32 {v(t,2)}, {v(t,2)}, {v(C1,2)}, {v(C2,2)} op_sel_hi:[1,0,0]",
                    f"v_pk_mul_f32 {v(t,2)}, {v(t,2)}, {v(a,2)}",
                    f"v_exp_f32 v{t}, v{t}",
                    f"v_exp_f32 v{t+1}, v{t+1}",
                    f"v_pk_add_f32 {v(t,2)}, {v(t,2)}, {v(C3,2)} op_sel_hi:[1,0]",
                    f"v_rcp_f32 v{t}, v{t}",
                    f"v_rcp_f32 v{t+1}, v{t+1}",
                    f"v_pk_mul_f32 {v(t,2)}, {v(t,2)}, {v(a,2)}",
                    f"v_cvt_pk_bf16_f32 v{o+2*ti+pr}, v{t}, v{t+1}"])
        for ins in zip(*chains):
            for x in ins: A(x)
        A(f"v_permlane16_swap_b32 v{o}, v{o+2}")
        A(f"v_permlane16_swap_b32 v{o+1}, v{o+3}")
        so = 's59' if (grp[0][1] == 1) else '0'
        A(f"buffer_store_dwordx4 {v(o,4)}, v{SA+grp[0][0]//2}, s[44:47], {so} offen {OPT.get('hst','sc1')}", tag='hs')
    stamp(A)
    LA = int(OPT.get('LA', 3))
    NSTEP = 14
    A(f"ds_read_b32 v237, v2 offset:{F_NON}")
    if EARLY:
        A("s_waitcnt vmcnt(7)")
        for k in range(8): A(f"v_mov_b32 v{48+k}, v{244+k}")
        for k in range(8): A(f"v_mov_b32 v{240+k}, v{144+k}")
    srd(A, 36, 84, 1835008)
    srd(A, 40, 4, 2097152)
    srd(A, 64, 86, 1024)
    srd(A, 52, 88, 2097152)
    srd(A, 60, 24, FLSZ, WS_FLAG)
    A("v_lshlrev_b32 v236, 4, v1")
    for l in range(4):
        A(f"s_add_u32 s49, s3, {l}")
        A("s_and_b32 s49, s49, 3")
        A("s_mul_i32 s49, s49, 57344")
        A(f"v_add_u32 v{4+l}, s49, v236")
    A(f"s_mul_i32 s48, s80, {4*57344}")
    A("s_lshl_b32 s49, s3, 10")
    A("s_add_u32 s48, s48, s49")
    w2_voffs(A, 8, 12)
    A("s_lshl_b32 s50, s3, 15")
    A("v_bfe_u32 v16, v1, 2, 2")
    A("v_lshrrev_b32 v17, 1, v16")
    A("v_and_b32 v18, 1, v3")
    A("v_lshl_or_b32 v17, v18, 1, v17")
    A("v_lshl_add_u32 v18, v3, 3, v16")
    A("v_lshlrev_b32 v18, 7, v18")
    A("v_and_b32 v20, 3, v1")
    A("v_lshl_add_u32 v18, v20, 3, v18")
    A("v_add_u32 v18, s50, v18")
    for mt in range(4):
        A(f"v_xor_b32 v20, {mt}, v17")
        A(f"v_lshl_add_u32 v{12+mt}, v20, 5, v18")
    A("s_lshl_b32 s49, s80, 6")
    A("s_lshl_b32 s56, s3, 4")
    A("s_add_u32 s49, s49, s56")
    A("v_add_u32 v16, s49, v19")
    A("v_lshlrev_b32 v16, 10, v16")
    A("v_and_b32 v17, 1, v3")
    A("v_lshl_add_u32 v16, v17, 5, v16")
    A("v_lshrrev_b32 v17, 1, v3")
    A("v_lshl_add_u32 v16, v17, 4, v16")
    A("s_lshl_b32 s49, s81, 7")
    A("v_add_u32 v16, s49, v16")
    A("v_lshlrev_b32 v17, 3, v3")
    A("v_mov_b32 v44, 1")
    A("v_mov_b32 v45, v35")
    A("v_mov_b32 v46, v2")
    A("v_add_u32 v47, s50, v236")
    A("v_bfe_u32 v18, v1, 2, 2")
    A("v_lshl_add_u32 v18, v3, 2, v18")
    A("v_bfe_u32 v20, v18, 1, 2")
    A("v_xor_b32 v20, s3, v20")
    A("v_lshlrev_b32 v18, 7, v18")
    A("v_lshl_add_u32 v18, v20, 5, v18")
    A("v_and_b32 v20, 3, v1")
    A("v_lshl_add_u32 v18, v20, 3, v18")
    A(f"v_add_u32 v18, {L_CV}, v18")
    for k in range(1, 4):
        A(f"s_add_u32 s56, s3, {k}")
        A("s_and_b32 s56, s56, 3")
        A(f"s_lshl_b32 s56, s56, 15")
        A(f"s_add_u32 s56, s56, {(4-k)*4096}")
        A(f"v_add_u32 v{247+k}, s56, v236")
    A("s_lshl_b32 s56, s82, 1")
    A("s_lshr_b32 s57, s3, 1")
    A("s_add_u32 s56, s56, s57")
    A("s_lshl_b32 s56, s56, 10")
    A("s_lshl_b32 s57, s83, 3")
    A("s_add_u32 s56, s56, s57")
    A("s_and_b32 s57, s3, 1")
    A("s_lshl_b32 s57, s57, 2")
    A("s_add_u32 s56, s56, s57")
    A("v_lshlrev_b32 v238, 7, v1")
    A("v_and_b32 v239, 31, v1")
    A("v_lshlrev_b32 v239, 2, v239")
    spin(A, 46, F_NON, 1, 237, cmp='ne', val='0')
    A.wait_vm0()
    A("s_mov_b64 exec, 0xff")
    A(f"buffer_store_dword v237, v238, s[60:63], s56 offen {OPT.get('hst','sc1')}")
    A("s_mov_b64 exec, -1")
    stamp(A)
    if EARLY:
        for k in range(8): A(f"v_mov_b32 v{20+k}, v{48+k}")
    else:
        A("buffer_load_dwordx4 v[20:23], v16, s[40:43], 0 offen")
        A("buffer_load_dwordx4 v[24:27], v16, s[40:43], 0 offen offset:64")
        for mt in range(4):
            A(f"buffer_load_dwordx2 {v(240+2*mt,2)}, v17, s[64:67], s49 offen offset:{32*mt}")
    A(f"s_setprio {OPT.get('gprio', 1)}")
    spin(A, 45, F_PRE, 1, 28, sleep=1)
    NRG = int(OPT.get('NRG', 3))
    NH = LA + 1
    AF, ACC, AR, HB = 28, 48, 112, 112 + 16*NRG
    assert HB + 16*NH <= 236, HB + 16*NH
    def afr(j): return AR + 16*j if j < NRG else AF
    def trread2(j, mt):
        for hh in range(2):
            A(f"ds_read_b64_tr_b16 {v(afr(j)+4*mt+2*hh,2)}, v{12+mt} offset:{(j % NR)*4096 + hh*512}", tag=('a', j, mt))
    def hloads(j):
        hb = HB + 16 * (j % NH)
        def first():
            rstep(A, 58, j)
            A("s_lshl_b32 s58, s58, 12")
            A("s_add_u32 s58, s58, s48")
        fs = [first]
        for nt in range(4):
            fs.append(lambda nt=nt: A(f"buffer_load_dwordx4 {v(hb+4*nt,4)}, v{4+nt}, s[44:47], s58 offen {OPT.get('hld','sc1')}", tag=('h', j)))
        return fs
    def wloads(j):
        def first():
            rstep(A, 59, j)
            A("s_lshl_b32 s59, s59, 17")
            A("s_add_u32 s59, s59, s50")
            A(f"s_add_u32 m0, s50, {(j % NR)*4096}")
            A(f"buffer_load_dwordx4 v8, s[36:39], s59 offen lds", tag=('w', j))
        return [first] + [(lambda q=q: A(f"buffer_load_dwordx4 v{8+q}, s[36:39], s59 offen offset:{1024*q} lds", tag=('w', j))) for q in range(1, 4)]
    for j in range(NRG + 1):
        for mt in range(4): trread2(j, mt)
        if j >= 1:
            A.wait_lg(('a', j-1, 3))
            for f in wloads(j - 1 + NR): f()
    A.wait_lg0()
    for f in wloads(NRG + NR) if NRG + NR < NSTEP else []: f()
    nextw = NRG + NR + 1
    A("s_lshl_b32 s56, s80, 10")
    A("s_lshl_b32 s57, s81, 7")
    A("s_add_u32 s56, s56, s57")
    FINE = bool(OPT.get('fine'))
    def need(j):
        T = (128*j + 127) // 112
        mask = (1 << (2*T + 2)) - 1
        L = A.newlabel('nd')
        A(f"s_and_b32 s76, s75, {mask}")
        A(f"s_cbranch_scc0 {L}_d")
        A("s_mov_b32 s79, 0")
        A(f"{L}:")
        A("buffer_load_dword v238, v239, s[60:63], s74 offen sc1"); A.vm.pop()
        A("s_waitcnt vmcnt(0)")
        A("v_cmp_ne_u32 vcc, v237, v238")
        A("s_mov_b32 s75, vcc_lo")
        A(f"s_and_b32 s76, s75, {mask}")
        A(f"s_cbranch_scc0 {L}_d")
        A(f"s_sleep {OPT.get('hsleep', 3)}")
        A("s_add_u32 s79, s79, 1")
        A("s_cmp_lt_u32 s79, 0x4000")
        A(f"s_cbranch_scc1 {L}")
        A(f"{L}_d:")
    if FINE:
        A("s_mov_b32 s74, s56")
        A("s_mov_b32 s75, -1")
        need(int(OPT.get('first', 1)))
        stamp(A)
        for j in range(LA):
            need(j)
            for f in hloads(j): f()
    else:
        A("s_cmp_lg_u32 s3, 0")
        A("s_cbranch_scc1 K_g1")
        vm = list(A.vm)
        gpoll(A, 239, 60, 's56', 238, 237, int(OPT.get('hsleep', 4)))
        A.vm = vm
        A(f"ds_write_b32 v46, v44 offset:{F_HR}")
        A("K_g1:")
        spin(A, 46, F_HR, 1, 238, sleep=1)
        stamp(A)
        for j in range(LA):
            for f in hloads(j): f()
    if OPT.get('s2'): A("s_nop 0")
    for j in range(NSTEP):
        if j in (4, 9): stamp(A)
        fs = hloads(j + LA) if j + LA < NSTEP else []
        if nextw < NSTEP and j - 1 >= nextw - NR:
            fs = fs + wloads(nextw); nextw += 1
        if j == int(OPT.get('GO', 7)): A(f"ds_write_b32 v45, v44 offset:{F_GO}", tag='go')
        if OPT.get('burst') == '2':
            while fs: fs.pop(0)()
        A.wait_vm(('h', j), ('w', j + 1))
        if FINE and j + LA < NSTEP:
            if j >= LA and j - LA + 2*LA < NSTEP:
                A(f"v_cmp_ne_u32 vcc, v237, v{251 + (j % 3)}")
                A("s_and_b32 s75, s75, vcc_lo")
            need(j + LA)
            if j + 2*LA < NSTEP:
                A(f"buffer_load_dword v{251 + ((j + LA) % 3)}, v239, s[60:63], s74 offen sc1", tag=('h', j + LA))
        hb = HB + 16 * (j % NH)
        af = afr(j)
        if OPT.get('burst', '1') == '1':
            while fs: fs.pop(0)()
        if j + 1 < NSTEP:
            for mt in range(4):
                A.wait_lg(('a', j, mt))
                for nt in range(4):
                    acc = ACC + 16*nt + 4*mt
                    A(f"v_mfma_f32_16x16x32_bf16 {v(acc,4)}, {v(af+4*mt,4)}, {v(hb+4*nt,4)}, {'0' if j == 0 else v(acc,4)}")
                    if fs and nt < 3: fs.pop(0)()
                if j + 1 > NRG: trread2(j + 1, mt)
            while fs: fs.pop(0)()
        else:
            A.wait_lg0()
            pend = []
            for nt in (1, 2, 3, 0):
                for mt in range(4):
                    acc = ACC + 16*nt + 4*mt
                    A(f"v_mfma_f32_16x16x32_bf16 {v(acc,4)}, {v(af+4*mt,4)}, {v(hb+4*nt,4)}, {v(acc,4)}")
                    if len(pend) >= 4:
                        a2, o2 = pend.pop(0)
                        A(f"ds_write_b128 v47, {v(a2,4)} offset:{o2}")
                    if nt: pend.append((acc, (4*nt+mt)*1024))
            for a2, o2 in pend: A(f"ds_write_b128 v47, {v(a2,4)} offset:{o2}")
    assert nextw >= NSTEP
    A(f"ds_write_b32 v45, v44 offset:{F_RED}")
    stamp(A)
    BB, XX, SS, T = 176, 192, 208, 128
    for mt in range(4):
        for k in range(2):
            A(f"v_lshlrev_b32 v{BB+4*mt+2*k}, 16, v{240+2*mt+k}")
            A(f"v_and_b32 v{BB+4*mt+2*k+1}, 0xffff0000, v{240+2*mt+k}")
    for r in range(0, 16, 2):
        A(f"v_pk_add_f32 {v(ACC+r,2)}, {v(ACC+r,2)}, {v(BB+r,2)}")
    for k in range(8):
        A(f"v_lshlrev_b32 v{XX+2*k}, 16, v{20+k}")
        A(f"v_and_b32 v{XX+2*k+1}, 0xffff0000, v{20+k}")
    A(f"v_mov_b32 v232, {f2u(-LOG2E)}")
    A(f"v_mov_b32 v234, 1.0")
    spin(A, 46, F_RED, 4, 8)
    PR = 128
    for k in range(1, 4):
        for mt in range(4):
            A(f"ds_read_b128 {v(PR+16*(k-1)+4*mt,4)}, v{247+k} offset:{mt*1024}", tag=('p', k))
    for k in range(1, 4):
        A.wait_lg(('p', k))
        for r in range(0, 16, 2):
            A(f"v_pk_add_f32 {v(ACC+r,2)}, {v(ACC+r,2)}, {v(PR+16*(k-1)+r,2)}")
    for r in range(0, 16, 2):
        A(f"v_pk_mul_f32 {v(T+r,2)}, {v(ACC+r,2)}, {v(232,2)} op_sel_hi:[1,0]")
    for r in range(16): A(f"v_exp_f32 v{T+r}, v{T+r}")
    for r in range(0, 16, 2):
        A(f"v_pk_add_f32 {v(T+r,2)}, {v(T+r,2)}, {v(234,2)} op_sel_hi:[1,0]")
    for r in range(16): A(f"v_rcp_f32 v{T+r}, v{T+r}")
    for r in range(0, 16, 2):
        A(f"v_pk_mul_f32 {v(ACC+r,2)}, {v(ACC+r,2)}, {v(T+r,2)}")
    stamp(A)
    spin(A, 46, F_SR, 4, 8)
    stamp(A)
    for mt in range(4):
        A(f"ds_read_b64_tr_b16 {v(224+2*mt,2)}, v18 offset:{(mt>>1)*CVS + (mt&1)*2048}", tag='s')
    A.wait_lg('s')
    for mt in range(4):
        for k in range(2):
            A(f"v_lshlrev_b32 v{SS+4*mt+2*k}, 16, v{224+2*mt+k}")
            A(f"v_and_b32 v{SS+4*mt+2*k+1}, 0xffff0000, v{224+2*mt+k}")
    for r in range(0, 16, 2):
        A(f"v_pk_mul_f32 {v(ACC+r,2)}, {v(ACC+r,2)}, {v(SS+r,2)}")
    O = 160
    for r in range(0, 16, 2):
        A(f"v_cvt_pk_bf16_f32 v{O+r//2}, v{ACC+r}, v{ACC+r+1}")
    for pr in range(2):
        A(f"v_permlane16_swap_b32 v{O+4*pr}, v{O+4*pr+2}")
        A(f"v_permlane16_swap_b32 v{O+4*pr+1}, v{O+4*pr+3}")
    for k in range(8):
        A(f"v_lshlrev_b32 v{T+2*k}, 16, v{O+k}")
        A(f"v_and_b32 v{T+2*k+1}, 0xffff0000, v{O+k}")
    for k in range(8):
        A(f"v_pk_add_f32 {v(T+2*k,2)}, {v(T+2*k,2)}, {v(XX+2*k,2)}")
    for k in range(8):
        A(f"v_cvt_pk_bf16_f32 v{O+k}, v{T+2*k}, v{T+2*k+1}")
    A(f"buffer_store_dwordx4 {v(O,4)}, v16, s[52:55], 0 offen {OPT.get('sto','')}")
    A(f"buffer_store_dwordx4 {v(O+4,4)}, v16, s[52:55], 0 offen offset:64 {OPT.get('sto','')}")
    A("s_or_b32 s56, s2, s3")
    A("s_cmp_lg_u32 s56, 0")
    A("s_cbranch_scc1 K_g9")
    A("v_mov_b32 v238, 0")
    A("s_mov_b32 s56, 0x30000")
    A("s_mov_b64 exec, 1")
    A("buffer_store_dword v237, v238, s[60:63], s56 offen sc1")
    A("s_mov_b64 exec, -1")
    A("K_g9:")
    finish(A)

def build():
    A = Asm()
    A(f".globl {KN}\n.p2align 8\n.type {KN},@function")
    A(f"{KN}:")
    A("K_start:")
    prologue(A)
    loader(A)
    gemm(A)
    xwave(A)
    kgen(A)
    uload(A)
    conv(A)
    A("K_end:")
    A("s_endpgm")
    hdr = open('cdna_kernels/' + NAME + '.s.ref').read().split('; Override launch')[0] if os.path.exists('cdna_kernels/' + NAME + '.s.ref') else ''
    txt = hdr + f"; @launch grid=(256,1,1) block=(512,1,1) lds={L_SIZE}\n"
    txt += '.amdgcn_target "amdgcn-amd-amdhsa--gfx950"\n.text\n' + A.text() + 'CODE_END:\n.section .rodata,"a"\n'
    txt += f""".p2align 6
.amdhsa_kernel {KN}
  .amdhsa_next_free_vgpr 256
  .amdhsa_next_free_sgpr 102
  .amdhsa_accum_offset 256
  .amdhsa_group_segment_fixed_size 0
  .amdhsa_kernarg_size 136
  .amdhsa_user_sgpr_count 2
  .amdhsa_user_sgpr_kernarg_segment_ptr 1
  .amdhsa_system_sgpr_workgroup_id_x 1
.end_amdhsa_kernel
"""
    return txt

if __name__ == '__main__':
    out = sys.argv[1] if len(sys.argv) > 1 else f'cdna_kernels/{NAME}.s'
    open(out, 'w').write(build())
```

```python
import sys, os, struct
sys.path.insert(0, os.path.dirname(__file__))
from asmlib import Asm

NAME = 'recurrent_scan__ssm_conv_s4__mixer_channel_mlp__prompt'
KN = NAME + '_kernel'
WS_XN = 0
WS_H = 0x800000
WS_ST = 0x1000000
WS_FLAG = 0x1400000
WS_MB = 0x40000
FLSZ = 0xC0000
WS_DBG = 0x1800000
SRD3 = '0x00020000'
LOG2E = 1.4426950408889634
DEBUG = os.environ.get('KDEBUG', '0') == '1'
OPT = dict(kv.split('=') for kv in os.environ.get('KOPT', '').split(',') if kv)

def v(a, n=1): return f'v{a}' if n == 1 else f'v[{a}:{a+n-1}]'
def f2u(x): return '0x%08x' % struct.unpack('<I', struct.pack('<f', x))[0]
def srd(A, d, base, size, off=0):
    if off:
        A(f's_add_u32 s{d}, s{base}, {off}'); A(f's_addc_u32 s{d+1}, s{base+1}, 0')
    else:
        A(f's_mov_b32 s{d}, s{base}'); A(f's_mov_b32 s{d+1}, s{base+1}')
    A(f's_mov_b32 s{d+2}, {size}'); A(f's_mov_b32 s{d+3}, {SRD3}')
def bf16r(A, d, x, t):
    A(f'v_cvt_pk_bf16_f32 v{t}, v{x}, v{x}'); A(f'v_lshlrev_b32 v{d}, 16, v{t}')

def stamp(A, real=False):
    if not DEBUG: return
    A(f"{'s_memrealtime' if real else 's_memtime'} s[94:95]")
    A("s_waitcnt lgkmcnt(0)"); A.lg = []
    A(f"v_writelane_b32 v255, s94, {A.nst}")
    A.nst += 1
    assert A.nst <= 32
def finish(A):
    if DEBUG:
        A.wait_vm0()
        stamp(A); stamp(A, True)
        srd(A, 96, 24, 0x100000, WS_DBG)
        A("s_lshl_b32 s94, s2, 3"); A("s_add_u32 s94, s94, s3"); A("s_lshl_b32 s94, s94, 7")
        A("v_lshlrev_b32 v254, 2, v1")
        A(f"s_mov_b64 exec, {(1 << A.nst) - 1}")
        A("buffer_store_dword v255, v254, s[96:99], s94 offen")
    A("s_endpgm")

L_CV = 131072
CVS = 2 * 4160 + 4576
F = L_CV + 2 * CVS
F_FULL, F_DONE, F_XD, F_PRE, F_NON, F_KR, F_UR, F_XCH, F_CS, F_ST, F_SR, F_GO, F_RED = 0, 32, 48, 64, 80, 84, 92, 112, 128, 144, 160, 176, 192
F_HR, F_XR, F_XT = 100, 104, 108
F_FX = 208
F_PF = 240
F_G2 = 256
L_CS = F + 288
L_ST = L_CS + 448
L_S2 = L_ST + 1024
L_B1 = L_S2 + 1024
L_SIZE = L_B1 + 256
SPARE = 28672
NR = 7

XROWS = [(0,0),(0,1),(0,2),(0,3),(1,0),(1,1),(1,2),(1,3),(2,0),(2,2),(4,0),(6,0),(3,0),(3,2),(5,0),(7,0),
         (8,0),(10,0),(12,0),(14,0),(9,0),(11,0),(13,0),(15,0),(16,0)]

def spin(A, areg, off, n, t, sleep=0, cmp='eq', val='1'):
    L = A.newlabel('sp')
    A(f"{L}:")
    if n == 1: A(f"ds_read_b32 v{t}, v{areg} offset:{off}")
    elif n == 2: A(f"ds_read2_b32 {v(t,2)}, v{areg} offset0:{off[0]//4} offset1:{off[1]//4}")
    else: A(f"ds_read_b128 {v(t,4)}, v{areg} offset:{off}")
    A("s_waitcnt lgkmcnt(0)")
    if n == 2: A(f"v_min_u32 v{t}, v{t}, v{t+1}")
    if n == 4:
        A(f"v_min_u32 v{t}, v{t}, v{t+1}"); A(f"v_min3_u32 v{t}, v{t}, v{t+2}, v{t+3}")
    A(f"v_cmp_{cmp}_u32 vcc, {val}, v{t}")
    A(f"s_cbranch_vccnz {L}_d")
    if sleep: A(f"s_sleep {sleep * int(OPT.get('sm', 1))}")
    A("s_add_u32 s72, s72, 1")
    A("s_cmp_lt_u32 s72, 0x80000")
    A(f"s_cbranch_scc1 {L}")
    A(f"{L}_d:")
    A.lg = []

def gpoll(A, vaddr, srdr, soff, t, nonce, sleep):
    L = A.newlabel('gp')
    A("s_mov_b32 s79, 0")
    A(f"{L}:")
    A(f"buffer_load_dword v{t}, v{vaddr}, s[{srdr}:{srdr+3}], {soff} offen sc1")
    A("s_waitcnt vmcnt(0)")
    A(f"v_cmp_ne_u32 vcc, v{nonce}, v{t}")
    A(f"s_cbranch_vccz {L}_d")
    A(f"s_sleep {sleep}")
    A("s_add_u32 s79, s79, 1")
    A("s_cmp_lt_u32 s79, 0x4000")
    A(f"s_cbranch_scc1 {L}")
    A(f"{L}_d:")
    A.vm = []

def prologue(A):
    A("s_cmp_ge_u32 s2, 256")
    A("s_cbranch_scc1 K_end")
    A.nst = 0
    A("s_load_dwordx16 s[4:19], s[0:1], 0")
    A("s_load_dwordx4 s[20:23], s[0:1], 80")
    A("s_load_dwordx2 s[24:25], s[0:1], 128")
    A("s_load_dwordx4 s[84:87], s[0:1], 96")
    A("s_load_dwordx4 s[88:91], s[0:1], 112")
    A("s_load_dwordx2 s[92:93], s[0:1], 64")
    A("s_getpc_b64 s[40:41]")
    A("K_pc:")
    A("s_sub_u32 s40, s40, K_pc-K_start")
    A("s_subb_u32 s41, s41, 0")
    A("s_mov_b32 s42, CODE_END-K_start")
    A(f"s_mov_b32 s43, {SRD3}")
    A("v_lshlrev_b32 v5, 7, v0")
    if OPT.get('cpf', 'part') == 'part':
        A("s_and_b32 s44, s2, 0x18")
        A("s_lshl_b32 s44, s44, 10")
        A("v_and_b32 v5, 0x1fff, v5")
        A("v_lshrrev_b32 v6, 6, v0")
        A("v_lshl_add_u32 v5, v6, 15, v5")
        A("buffer_load_dword v254, v5, s[40:43], s44 offen")
    else:
        A("buffer_load_dword v254, v5, s[40:43], 0 offen")
    A("v_lshrrev_b32 v2, 6, v0")
    A("v_and_b32 v1, 63, v0")
    A("v_mov_b32 v3, 0")
    A("v_readfirstlane_b32 s3, v2")
    A("v_min_u32 v4, 35, v1")
    A("v_lshlrev_b32 v4, 3, v4")
    A(f"v_add_u32 v4, {F}, v4")
    A("v_mov_b32 v6, 0\nv_mov_b32 v7, 0")
    A("ds_write_b64 v4, v[6:7]")
    A("s_mov_b32 s72, 0")
    A("s_and_b32 s26, s2, 7")
    A("s_lshr_b32 s27, s2, 3")
    A("s_lshl_b32 s28, s26, 5")
    A("s_add_u32 s28, s28, s27")
    m1, m2 = OPT.get('map', 'ab')
    A("s_lshr_b32 s29, s26, 1")
    A("s_and_b32 s30, s26, 1")
    if m1 == 'a':
        A("s_lshl_b32 s82, s29, 2"); A("s_and_b32 s31, s27, 3"); A("s_add_u32 s82, s82, s31")
        A("s_lshl_b32 s83, s30, 3"); A("s_lshr_b32 s31, s27, 2"); A("s_add_u32 s83, s83, s31")
    elif m1 == 'c':
        A("s_lshr_b32 s82, s26, 2"); A("s_lshl_b32 s82, s82, 3"); A("s_and_b32 s31, s27, 7"); A("s_add_u32 s82, s82, s31")
        A("s_and_b32 s83, s26, 3"); A("s_lshl_b32 s83, s83, 2"); A("s_lshr_b32 s31, s27, 3"); A("s_add_u32 s83, s83, s31")
    else:
        A("s_lshl_b32 s82, s26, 1"); A("s_and_b32 s31, s27, 1"); A("s_add_u32 s82, s82, s31")
        A("s_lshr_b32 s83, s27, 1")
    if m2 == 'a':
        A("s_lshl_b32 s80, s29, 3"); A("s_and_b32 s31, s27, 7"); A("s_add_u32 s80, s80, s31")
        A("s_lshl_b32 s81, s30, 2"); A("s_lshr_b32 s31, s27, 3"); A("s_add_u32 s81, s81, s31")
    else:
        A("s_lshl_b32 s80, s26, 2"); A("s_and_b32 s31, s27, 3"); A("s_add_u32 s80, s80, s31")
        A("s_lshr_b32 s81, s27, 2")
    A(f"s_mul_i32 s78, s81, {OPT.get('rmul', 7)}")
    A("s_lshr_b32 s78, s78, 2")
    stamp(A, True); stamp(A)
    A("s_waitcnt lgkmcnt(0)")
    A("s_barrier")
    stamp(A)
    A.reset_counters()
    A("s_cmp_lt_u32 s3, 4")
    A("s_cbranch_scc1 K_gemm")
    A("s_cmp_eq_u32 s3, 4")
    A("s_cbranch_scc1 K_x")
    A("s_cmp_lt_u32 s3, 7")
    A("s_cbranch_scc1 K_kgen")

def w2_voffs(A, d, t):
    A(f"v_lshrrev_b32 v{t}, 3, v1")
    A(f"v_and_b32 v{t+1}, 7, v1")
    A(f"v_bfe_u32 v{t+2}, v1, 4, 1")
    A(f"v_lshlrev_b32 v{t+2}, 1, v{t+2}")
    A(f"v_xor_b32 v{t+1}, v{t+1}, v{t+2}")
    A(f"v_lshlrev_b32 v{t}, 10, v{t}")
    A("s_lshl_b32 s49, s81, 7")
    A(f"v_add_u32 v{t}, s49, v{t}")
    for q in range(4):
        A(f"v_xor_b32 v{t+2}, {4*(q&1)}, v{t+1}")
        A(f"v_lshl_add_u32 v{d+q}, v{t+2}, 4, v{t}")
        if q: A(f"v_add_u32 v{d+q}, {q*(8192-1024)}, v{d+q}")

def p1_voffs(A, d, t):
    A(f"v_and_b32 v{t}, 15, v1")
    A(f"v_lshrrev_b32 v{t+1}, 4, v1")
    A("s_mul_i32 s53, s83, 224")
    A("s_and_b32 s53, s53, 0xffffffc0")
    A(f"v_mul_u32_u24 v{t+2}, 3584, v{t+1}")
    A(f"v_add_u32 v{t+2}, s53, v{t+2}")
    A(f"v_lshlrev_b32 v{t+3}, 1, v{t+1}")
    A(f"v_xor_b32 v{t+3}, v{t+3}, v{t}")
    for q in range(4):
        A(f"v_xor_b32 v{t+4}, {8*((q>>1)&1)}, v{t+3}")
        A(f"v_lshl_add_u32 v{d+q}, v{t+4}, 4, v{t+2}")
        if q: A(f"v_add_u32 v{d+q}, {q*(4*3584-1024)}, v{d+q}")
    A(f"v_lshrrev_b32 v{t+2}, 3, v1")
    A(f"v_and_b32 v{t+4}, 7, v1")
    A(f"v_xor_b32 v{t+3}, v{t+1}, v{t+4}")
    A("s_lshl_b32 s52, s82, 7")
    A(f"v_add_u32 v{t+2}, s52, v{t+2}")
    A(f"v_lshlrev_b32 v{t+2}, 10, v{t+2}")
    for q in range(4):
        A(f"v_xor_b32 v{t+4}, {4*(q&1)}, v{t+3}")
        A(f"v_lshl_add_u32 v{d+4+q}, v{t+4}, 4, v{t+2}")
        if q: A(f"v_add_u32 v{d+4+q}, {q*(8192-1024)}, v{d+4+q}")

NG = int(OPT.get('NG', 0))

def rstep(A, d, j):
    A(f"s_add_u32 s{d}, s78, {j}")
    A(f"s_sub_u32 s77, s{d}, 14")
    A(f"s_cmp_ge_u32 s{d}, 14")
    A(f"s_cselect_b32 s{d}, s77, s{d}")

def wait_free(A, n):
    if OPT.get('free'): return
    L1 = A.newlabel('fr')
    A(f"{L1}:")
    A(f"ds_read_b128 v[20:23], v17 offset:{F_DONE}")
    A("s_waitcnt lgkmcnt(0)")
    A("v_min_u32 v20, v20, v21")
    A("v_min3_u32 v20, v20, v22, v23")
    A(f"v_cmp_le_u32 vcc, {n}, v20")
    A(f"s_cbranch_vccnz {L1}_d"); A(f"s_sleep {OPT.get('fsleep', 2)}")
    A("s_add_u32 s72, s72, 1"); A("s_cmp_lt_u32 s72, 0x80000"); A(f"s_cbranch_scc1 {L1}"); A(f"{L1}_d:")
    A.lg = []

def p1_stream(A, isx):
    A("s_setprio 3")
    if isx: srd(A, 36, 4, 2097152)
    else: srd(A, 36, 20, 1835008)
    p1_voffs(A, 8, 2)
    A("v_mov_b32 v16, 1")
    A(f"v_mov_b32 v17, {F}")
    if OPT.get('iso') in ('1', 'nord'):
        for u in range(8): A(f"ds_write_b32 v17, v16 offset:{(F_FX if isx else F_FULL) + 4*u}")
        A("s_endpgm")
    PQ = int(OPT.get('PQ', 2))
    def issue(u, then=None):
        base = (u % 4) * 32768
        for qq in range(4):
            if then is not None and qq == PQ: post(then)
            A(f"s_mov_b32 m0, {(base + qq*4096 + (16384 if isx else 0)) if not OPT.get('dmaaway') else L_CV + qq*4096}")
            A(f"s_mov_b32 s57, {128*u + 32768*qq if isx else (64*u + 16*qq)*3584}")
            for q in range(4):
                A(f"buffer_load_dwordx4 v{(12 if isx else 8)+q}, s[36:39], s57 offen offset:{1024*q} lds", tag=('u', u))
    def post(u):
        A.wait_vm(('u', u))
        A(f"ds_write_b32 v17, v16 offset:{(F_FX if isx else F_FULL) + 4*u}")
    issue(0); issue(1, 0)
    if not isx:
        srd(A, 40, 22, 3584)
        A("v_lshlrev_b32 v18, 2, v1")
        A("s_mul_i32 s53, s83, 224")
        A(f"s_mov_b32 m0, {L_B1}")
        A("buffer_load_dword v18, s[40:43], s53 offen lds", tag='b1')
    GA = OPT.get('ga', '0') == '1'
    if GA:
        post(1); wait_free(A, 1); issue(4)
    for u in range(5 if GA else 2, 8):
        if u >= 4 and not OPT.get('oldpost'):
            L = A.newlabel('ad')
            A(f"ds_read_b128 v[20:23], v17 offset:{F_DONE}")
            A("s_waitcnt lgkmcnt(0)")
            A("v_min_u32 v20, v20, v21")
            A("v_min3_u32 v20, v20, v22, v23")
            A(f"v_cmp_le_u32 vcc, {u-3}, v20")
            A(f"s_cbranch_vccnz {L}")
            A("s_waitcnt vmcnt(0)")
            A(f"ds_write_b32 v17, v16 offset:{(F_FX if isx else F_FULL) + 4*(u-1)}")
            wait_free(A, u - 3)
            A(f"{L}:")
            issue(u, u-1)
        else:
            if u >= 4: wait_free(A, u - 3)
            issue(u, u-1)
    post(7)
    if OPT.get('iso'):
        n = A.nst; finish(A); A.nst = n

def loader(A):
    A.reset_counters(); A.nst = 3
    p1_stream(A, False)
    srd(A, 40, 84, 1835008)
    w2_voffs(A, 8, 4)
    stamp(A)
    A(f"s_setprio {OPT.get('lprio', 1)}")
    for w in range(4):
        wait_free(A, 5 + w)
        for j in range(NR):
            A(f"s_mov_b32 m0, {w*32768 + j*4096}")
            rstep(A, 57, j)
            A("s_lshl_b32 s57, s57, 17")
            A(f"s_add_u32 s57, s57, {w*32768}")
            for q in range(4):
                A(f"buffer_load_dwordx4 v{8+q}, s[40:43], s57 offen offset:{1024*q} lds", tag=('w', w))
        if w:
            A.wait_vm(('w', w-1)); A(f"ds_write_b32 v17, v16 offset:{F_PRE + 4*(w-1)}")
    A.wait_vm(('w', 3)); A(f"ds_write_b32 v17, v16 offset:{F_PRE + 12}")
    stamp(A)
    A("s_branch K_conv")

def xwave(A):
    if OPT.get('al'): A(".p2align 6")
    A("K_x:")
    if OPT.get('iso') == 'ldx': OPT['xonly'] = 1
    if OPT.get('sx'): A("s_nop 0")
    if OPT.get('iso') and OPT.get('iso') not in ('ldx', 'ldxk'): A("s_endpgm")
    A.reset_counters(); A.nst = 3
    A(f"s_setprio {OPT.get('x0prio', 3)}")
    srd(A, 32, 4, 2097152)
    srd(A, 36, 24, 2097152, WS_XN)
    srd(A, 44, 24, FLSZ, WS_FLAG)
    A("v_lshlrev_b32 v2, 4, v1")
    A("v_mov_b32 v60, 0")
    A("s_mov_b32 s40, 0x30000")
    A("buffer_load_dword v61, v60, s[44:47], s40 offen sc1", tag='e')
    A("s_lshl_b32 s29, s28, 13")
    A("v_add_u32 v3, 4096, v2")
    X = 160
    for t in range(8):
        A(f"buffer_load_dwordx4 {v(X+4*t,4)}, v{2 + t//4}, s[32:35], s29 offen offset:{(t%4)*1024}", tag=('x', t))
    A(f"v_mov_b32 v6, {F}")
    A("s_lshl_b32 s31, s28, 2")
    A("s_load_dword s63, s[18:19], s31")
    A("s_lshl_b32 s31, s28, 9")
    A("s_add_u32 s31, s31, 256")
    A("v_lshlrev_b32 v4, 2, v1")
    for i in range(6):
        srd(A, 40, 6 + 2*i, 131072)
        A(f"buffer_load_dword v{52+i}, v4, s[40:43], s31 offen", tag='p')
    A("v_mov_b32 v4, 0x3f803f80")
    S, Q = 64, 72
    A.wait_vm('e')
    A(f"s_setprio {OPT.get('lnprio', 1)}")
    A("v_add_u32 v61, 1, v61")
    A("v_max_u32 v61, 1, v61")
    A(f"ds_write_b32 v6, v61 offset:{F_NON}")
    for t in range(8):
        A.wait_vm(('x', t))
        for k in range(4):
            A(f"v_dot2_f32_bf16 v{S+t}, v{X+4*t+k}, v4, {'0' if k == 0 else 'v%d' % (S+t)}")
            A(f"v_dot2_f32_bf16 v{Q+t}, v{X+4*t+k}, v{X+4*t+k}, {'0' if k == 0 else 'v%d' % (Q+t)}")
    for B in (S, Q):
        for t in range(4): A(f"v_permlane32_swap_b32 v{B+t}, v{B+t+4}")
    for B in (S, Q):
        for t in range(4): A(f"v_add_f32 v{B+t}, v{B+t}, v{B+t+4}")
    for B in (S, Q):
        for t in range(2): A(f"v_permlane16_swap_b32 v{B+t}, v{B+t+2}")
    for B in (S, Q):
        for t in range(2): A(f"v_add_f32 v{B+t}, v{B+t}, v{B+t+2}")
    for sh in (8, 4, 2, 1):
        for r in (S, S+1, Q, Q+1):
            A(f"v_add_f32_dpp v{r}, v{r}, v{r} row_ror:{sh} row_mask:0xf bank_mask:0xf")
    seqs = []
    for t in range(2):
        m, q, G = S+t, Q+t, 80 + 4*t
        t1, t2, t3, t4 = 88+4*t, 89+4*t, 90+4*t, 91+4*t
        L = []
        def br(d, x): L.extend([f'v_cvt_pk_bf16_f32 v{t4}, v{x}, v{x}', f'v_lshlrev_b32 v{d}, 16, v{t4}'])
        L.append(f"v_mul_f32 v{m}, {f2u(1/512)}, v{m}")
        L.append(f"v_mul_f32 v{q}, {f2u(1/512)}, v{q}")
        L.append(f"v_fma_f32 v{q}, -v{m}, v{m}, v{q}")
        L.append(f"v_max_f32 v{q}, 0, v{q}")
        br(t1, q)
        L.append(f"v_add_f32 v{t1}, {f2u(1e-5)}, v{t1}")
        br(t1, t1)
        L.append(f"v_sqrt_f32 v{t1}, v{t1}")
        L.append(f"v_cvt_pk_bf16_f32 v{G}, v{m}, v{t1}")
        L.append(f"v_and_b32 v{t1}, 0xffff0000, v{G}")
        L.append(f"v_rcp_f32 v{t2}, v{t1}")
        L.append(f"v_lshlrev_b32 v{t3}, 16, v{G}")
        L.append(f"v_sub_f32 v{m}, v{m}, v{t3}")
        L.append(f"v_mul_f32 v{m}, v{m}, v{t2}")
        L.append(f"v_mul_f32 v{q}, v{q}, v{t2}")
        L.append(f"v_mul_f32 v{q}, v{q}, v{t2}")
        br(q, q)
        L.append(f"v_add_f32 v{q}, {f2u(1e-5)}, v{q}")
        br(q, q)
        L.append(f"v_sqrt_f32 v{q}, v{q}")
        L.append(f"v_mov_b32 v{G+1}, v61")
        L.append(f"v_cvt_pk_bf16_f32 v{G+2}, v{m}, v{q}")
        L.append(f"v_mov_b32 v{G+3}, v61")
        seqs.append(L)
    for x, y in zip(*seqs): A(x); A(y)
    A("v_and_b32 v8, 15, v1")
    A("v_lshlrev_b32 v8, 11, v8")
    A("v_lshrrev_b32 v9, 4, v1")
    A("v_lshl_add_u32 v8, v9, 5, v8")
    A("s_lshr_b32 s41, s28, 4")
    A("s_lshl_b32 s41, s41, 15")
    A("s_and_b32 s42, s28, 15")
    A("s_lshl_b32 s42, s42, 7")
    A("s_add_u32 s41, s41, s42")
    A(f"s_add_u32 s41, s41, {WS_MB}")
    for t in range(2):
        A(f"buffer_store_dwordx4 {v(80+4*t,4)}, v8, s[44:47], s41 offen offset:{16*t} sc1")
    stamp(A)
    for t in range(2):
        for rho in range(4):
            A(f"v_readlane_b32 s{64 + t + 2*rho}, v{90+4*t}, {16*rho}")
            A(f"v_readlane_b32 s{48 + t + 2*rho}, v{89+4*t}, {16*rho}")
    FF, O = 96, 112
    for i in range(4):
        for h, t in enumerate((7 - 2*i, 6 - 2*i)):
            for k in range(4):
                lo, hi, x = FF + 8*h + 2*k, FF + 8*h + 2*k + 1, X + 4*t + k
                A(f"v_lshlrev_b32 v{lo}, 16, v{x}")
                A(f"v_and_b32 v{hi}, 0xffff0000, v{x}")
                A(f"v_subrev_f32 v{lo}, s{64+t}, v{lo}")
                A(f"v_subrev_f32 v{hi}, s{64+t}, v{hi}")
                if not OPT.get('fastln'):
                    A(f"v_cvt_pk_bf16_f32 v{x}, v{lo}, v{hi}")
                    A(f"v_lshlrev_b32 v{lo}, 16, v{x}")
                    A(f"v_and_b32 v{hi}, 0xffff0000, v{x}")
                A(f"v_mul_f32 v{lo}, s{48+t}, v{lo}")
                A(f"v_mul_f32 v{hi}, s{48+t}, v{hi}")
        for dl in range(8):
            A(f"v_cvt_pk_bf16_f32 v{O+4*dl+i}, v{FF+dl}, v{FF+8+dl}")
    for dl in range(8):
        A(f"buffer_store_dwordx4 {v(O+4*dl,4)}, v{2 + dl//4}, s[36:39], s29 offen offset:{1024*(dl%4)} sc1")
    A("s_lshl_b32 s42, s28, 2")
    A("s_add_u32 s42, s42, 0x8000")
    if OPT.get('latepf'): spin(A, 6, F_DONE, 4, 12, sleep=1, cmp='le', val='2')
    elif OPT.get('iso') != 'ldx': spin(A, 6, F_PF, 1, 9, sleep=1)
    A.wait_vm0()
    A("s_mov_b64 exec, 1")
    A("buffer_store_dword v61, v60, s[44:47], s42 offen sc1")
    A("s_mov_b64 exec, -1")
    stamp(A)
    if OPT.get('iso') == 'ldx': A("s_endpgm")
    A("s_mov_b32 s29, 1")
    A("s_branch K_k6")

def kgen(A):
    if OPT.get('al'): A(".p2align 6")
    A("K_kgen:")
    if OPT.get('sk'): A("s_nop 0")
    A.reset_counters(); A.nst = 3
    A("s_cmp_eq_u32 s3, 5")
    A("s_cbranch_scc1 K_k5")
    p1_stream(A, True)
    stamp(A)
    srd(A, 36, 24, 2097152, WS_XN)
    srd(A, 44, 24, FLSZ, WS_FLAG)
    A(f"v_mov_b32 v6, {F}")
    A("v_lshlrev_b32 v2, 4, v1")
    spin(A, 6, F_NON, 1, 61, sleep=1, cmp='ne', val='0')
    A("s_lshl_b32 s41, s82, 4")
    A("s_add_u32 s41, s41, s83")
    A("s_lshl_b32 s41, s41, 11")
    A(f"s_add_u32 s41, s41, {WS_MB}")
    A("s_mov_b32 s79, 0")
    A("K_x2:")
    A("buffer_load_dwordx4 v[64:67], v2, s[44:47], s41 offen sc1")
    A("buffer_load_dwordx4 v[68:71], v2, s[44:47], s41 offen offset:1024 sc1")
    A("s_waitcnt vmcnt(0)")
    A("v_xor_b32 v72, v61, v65")
    A("v_xor_b32 v73, v61, v67")
    A("v_xor_b32 v74, v61, v69")
    A("v_xor_b32 v75, v61, v71")
    A("v_or3_b32 v72, v72, v73, v74")
    A("v_or_b32 v72, v72, v75")
    A("v_cmp_ne_u32 vcc, 0, v72")
    A("s_cbranch_vccz K_x3")
    A("s_sleep 6")
    A("s_add_u32 s79, s79, 1")
    A("s_cmp_lt_u32 s79, 0x4000")
    A("s_cbranch_scc1 K_x2")
    A("K_x3:")
    A.reset_counters()
    A(f"s_setprio {OPT.get('xprio', 3)}")
    for i in range(2):
        g, o = 64 + 4*i, 72 + 8*i
        A(f"v_and_b32 v{o+4}, 0xffff0000, v{g}")
        A(f"v_lshlrev_b32 v{o+5}, 16, v{g}")
        A(f"v_and_b32 v{o+6}, 0xffff0000, v{g+2}")
        A(f"v_lshlrev_b32 v{o+7}, 16, v{g+2}")
        A(f"v_rcp_f32 v{o}, v{o+4}")
        A(f"v_rcp_f32 v{o+3}, v{o+6}")
        A(f"v_fma_f32 v{o+2}, -v{o+7}, v{o+4}, -v{o+5}")
        A(f"v_mul_f32 v{o+3}, v{o+3}, v{o}")
    A("v_lshlrev_b32 v8, 3, v1")
    A(f"v_add_u32 v8, {L_ST}, v8")
    A("v_mov_b32 v7, 1")
    for i in range(2):
        A(f"ds_write_b64 v8, {v(74+8*i,2)} offset:{1024 + 512*i}")
    A(f"ds_write_b32 v6, v7 offset:{F_ST}")
    stamp(A)
    A("s_branch K_uload")
    A("K_k5:")
    if OPT.get('iso') and OPT.get('iso') != 'ldxk': A("s_endpgm")
    A.reset_counters(); A.nst = 3
    A("s_setprio 3")
    A("s_mov_b32 s29, 0")
    A("s_lshl_b32 s31, s28, 2")
    A("s_load_dword s63, s[18:19], s31")
    A("s_lshl_b32 s31, s28, 9")
    A("v_lshlrev_b32 v2, 2, v1")
    for i in range(6):
        srd(A, 32, 6 + 2*i, 131072)
        A(f"buffer_load_dword v{52+i}, v2, s[32:35], s31 offen", tag='p')
    srd(A, 36, 20, 0 if (OPT.get('now1t') or OPT.get('gt')) else 1835008)
    A("v_lshlrev_b32 v5, 4, v1")
    A("s_mul_i32 s40, s2, 7168")
    for i in range(7):
        if i == 4: A("s_add_u32 s40, s40, 4096")
        A(f"buffer_load_dwordx4 {v(208+4*i,4)}, v5, s[36:39], s40 offen offset:{1024*(i%4)}", tag='t')
    if not OPT.get('latepf'):
        srd(A, 40, 24, 2097152, WS_ST)
        A("s_lshl_b32 s44, s28, 13")
        A("v_mov_b32 v8, -1\nv_mov_b32 v9, -1\nv_mov_b32 v10, -1\nv_mov_b32 v11, -1")
        for i in range(8):
            if i == 4: A("s_add_u32 s44, s44, 4096")
            A(f"buffer_store_dwordx4 v[8:11], v5, s[40:43], s44 offen offset:{1024*(i%4)} sc1", tag='t')
    A("K_k6:")
    A(f"v_mov_b32 v3, {F}")
    A(f"s_mul_i32 s54, s29, {CVS}")
    A(f"s_add_u32 s54, s54, {L_CV}")
    A("s_lshl_b32 s61, s29, 16")
    A(f"s_add_u32 s61, s61, {SPARE}")
    A("s_mov_b32 s45, 32768")
    WA, RA = 244, 252
    A("v_and_b32 v5, 31, v1")
    A("v_lshlrev_b32 v5, 7, v5")
    A("v_lshrrev_b32 v6, 5, v1")
    A("v_mul_u32_u24 v6, s45, v6")
    A("v_add3_u32 v5, v5, v6, s61")
    A("v_and_b32 v6, 7, v1")
    for c in range(8):
        A(f"v_xor_b32 v7, {c}, v6")
        A(f"v_lshl_add_u32 v{WA+c}, v7, 4, v5")
    A("v_bfe_u32 v5, v1, 2, 2")
    A("v_lshrrev_b32 v6, 5, v1")
    A("v_lshlrev_b32 v6, 2, v6")
    A("v_lshrrev_b32 v7, 1, v5")
    A("v_add_u32 v6, v6, v7")
    A("v_and_b32 v5, 1, v5")
    A("v_lshlrev_b32 v5, 2, v5")
    A("v_bfe_u32 v7, v1, 4, 1")
    A("v_lshl_add_u32 v5, v7, 1, v5")
    A("v_bfe_u32 v7, v1, 1, 1")
    A("v_add_u32 v5, v5, v7")
    A("v_and_b32 v7, 1, v1")
    A("v_lshlrev_b32 v7, 3, v7")
    A("v_add_u32 v7, s61, v7")
    for hh in range(2):
        if hh: A("v_add_u32 v6, 2, v6")
        A(f"v_xor_b32 v15, v5, v6")
        A(f"v_lshl_add_u32 v15, v15, 4, v7")
        A(f"v_lshl_add_u32 v{RA+hh}, v6, 7, v15")
        A(f"v_add_u32 v{18+hh}, s45, v{RA+hh}")
    A("s_waitcnt lgkmcnt(0)")
    A("s_lshl_b32 s62, s29, 4")
    A("s_lshr_b32 s60, s63, s62")
    A("s_lshl_b32 s60, s60, 16")
    A(f"v_mov_b32 v14, {f2u(LOG2E)}")
    A("v_mul_f32 v14, s60, v14")
    A("v_exp_f32 v14, v14")
    bf16r(A, 14, 14, 15)
    XV, PKB = 60, 112
    A.wait_vm('p')
    A(f"s_setprio {OPT.get('chprio', 1)}")
    A.nst = 5
    stamp(A)
    Z = {1: (20, 22), 2: (24, 26), 3: (28, 30), 8: (32, 34), 256: (36, 38), 4: (41, 43), 128: (21, 23)}
    def smul(d, x, y):
        A(f"v_mul_f32 v{d[0]}, v{x[0]}, v{y[0]}")
        A(f"v_mul_f32 v{d[1]}, v{x[0]}, v{y[1]}")
        A(f"v_fma_f32 v{d[0]}, -v{x[1]}, v{y[1]}, v{d[0]}")
        A(f"v_fmac_f32 v{d[1]}, v{x[1]}, v{y[0]}")
    def cm2(l):
        for d, x, m in l:
            A(f"v_pk_mul_f32 {v(d,2)}, {v(x,2)}, {v(m[0],2)} op_sel_hi:[1,0]")
            A(f"v_pk_mul_f32 {v(d+2,2)}, {v(x,2)}, {v(m[1],2)} op_sel_hi:[1,0]")
        for d, x, m in l:
            A(f"v_pk_fma_f32 {v(d,2)}, {v(x+2,2)}, {v(m[1],2)}, {v(d,2)} op_sel_hi:[1,0,1] neg_lo:[0,1,0] neg_hi:[0,1,0]")
            A(f"v_pk_fma_f32 {v(d+2,2)}, {v(x+2,2)}, {v(m[0],2)}, {v(d+2,2)} op_sel_hi:[1,0,1]")
    pairs = [(a, 0) for a in range(0, 17, 2)] + [(0, 1), (0, 2), (0, 3), (2, 2)]
    XP = {ae: XV + 4*i for i, ae in enumerate(pairs)}
    def xre(row):
        a, e = XROWS[row]
        return XP[(a & ~1, e)] + (a & 1)
    for half in range(2):
        PW, PX = PKB + 64*half, PKB + 64*half + 32
        for i in range(6):
            if half == 0: A(f"v_lshlrev_b32 v{8+i}, 16, v{52+i}")
            else: A(f"v_and_b32 v{8+i}, 0xffff0000, v{52+i}")
        for i in range(4): A(f"v_mul_f32 v{8+i}, v14, v{8+i}")
        A(f"v_mul_f32 v8, {f2u(LOG2E)}, v8")
        A(f"v_mul_f32 v9, 0.15915494, v9")
        zs = ((4, 25, 27), (1, 29, 31), (128, 33, 35))
        for o, e, f in zs:
            A(f"v_mul_f32 v{e}, {f2u(float(o))}, v8"); A(f"v_mul_f32 v{f}, {f2u(float(o))}, v9")
        for o, e, f in zs:
            A(f"v_exp_f32 v{e}, v{e}"); A(f"v_fract_f32 v{f}, v{f}")
        for o, e, f in zs:
            A(f"v_cos_f32 v{Z[o][0]}, v{f}"); A(f"v_sin_f32 v{Z[o][1]}, v{f}")
        for o, e, f in zs:
            A(f"v_mul_f32 v{Z[o][0]}, v{e}, v{Z[o][0]}"); A(f"v_mul_f32 v{Z[o][1]}, v{e}, v{Z[o][1]}")
        y0, y1 = (XP[(0,0)], XP[(0,0)]+2), (XP[(0,0)]+1, XP[(0,0)]+3)
        smul(Z[8], Z[4], Z[4]); smul(y0, (12, 13), (10, 11)); smul(Z[256], Z[128], Z[128]); smul(Z[2], Z[1], Z[1])
        smul(y1, y0, Z[128]); smul(Z[3], Z[2], Z[1])
        A("v_mov_b32 v40, 1.0"); A("v_mov_b32 v42, 0")
        if half == 1:
            A.wait_vm0()
            A("v_mov_b32 v4, 1")
            A("s_lshl_b32 s44, s29, 2")
            A("v_add_u32 v5, s44, v3")
            A(f"ds_write_b32 v5, v4 offset:{F_PF}")
        xs = [(XP[(a+2, 0)], XP[(a, 0)], Z[256]) for a in range(0, 16, 2)] + [(XP[(a, e)], XP[(a, 0)], Z[e]) for (a, e) in pairs[9:]]
        cur = 40
        for i in range(16):
            A(f"v_cvt_pk_bf16_f32 v{PW+i}, v{cur}, v{cur+1}")
            A(f"v_cvt_pk_bf16_f32 v{PW+16+i}, v{cur+2}, v{cur+3}")
            nxt = 44 if cur == 40 else 40
            l = ([(nxt, cur, Z[8])] if i < 15 else []) + ([xs.pop(0)] if xs else [])
            cm2(l); cur = nxt
        for i in range(13):
            r0, r1 = xre(2*i), xre(min(2*i+1, 24))
            A(f"v_cvt_pk_bf16_f32 v{PX+i}, v{r0}, v{r1}")
            A(f"v_cvt_pk_bf16_f32 v{PX+16+i}, -v{r0+2}, -v{r1+2}")
    stamp(A)
    A(f"s_setprio {OPT.get('kprio', 2)}")
    A("v_mov_b32 v48, v18\nv_mov_b32 v49, v19")
    if not OPT.get('now2t') and OPT.get('gt') != '2':
        A("s_cmp_eq_u32 s29, 0")
        A("s_mov_b32 s36, s84"); A("s_mov_b32 s37, s85")
        A("s_cselect_b32 s38, 1835008, 0")
        A(f"s_mov_b32 s39, {SRD3}")
        A("v_lshlrev_b32 v5, 4, v1")
        A("s_mul_i32 s40, s2, 7168")
        for i in range(7):
            if i == 4: A("s_add_u32 s40, s40, 4096")
            A(f"buffer_load_dwordx4 {v(60+4*i,4)}, v5, s[36:39], s40 offen offset:{1024*(i%4)}", tag='t')
        A.wait_vm0()
    if OPT.get('l2pf'):
        spin(A, 3, F_DONE, 4, 4, sleep=3, cmp='le', val=str(OPT.get('l2pf')))
        A("s_mul_i32 s40, s27, 57344")
        if OPT.get('dense'):
            for i in range(56):
                A(f"buffer_load_dwordx4 {v(60+4*(i%8),4)}, v5, s[36:39], s40 offen offset:{1024*(i%4)}")
                if i % 4 == 3: A("s_add_u32 s40, s40, 4096")
        else:
            A("v_lshlrev_b32 v5, 7, v1")
            for i in range(7):
                A(f"buffer_load_dword v{60+i}, v5, s[36:39], s40 offen")
                A("s_add_u32 s40, s40, 8192")
        A.wait_vm0()
    if OPT.get('iso'): A("s_endpgm")
    spin(A, 3, F_DONE, 4, 4, sleep=3, cmp='le', val='8')
    FA, FB, D = 16, 60, 92
    def flush(PK):
        for part in range(2):
            for q in range(4):
                A(f"ds_write_b128 v{WA+4*part+q}, {v(PK+16*part+4*q,4)}", tag='w')
    def frags(Fr, tag):
        for st in range(8):
            for hh in range(2):
                A(f"ds_read_b64_tr_b16 {v(Fr+4*st+2*hh,2)}, v{(RA if st < 4 else 48)+hh} offset:{(st&3)*1024}", tag=(tag, st))
    for half in range(2):
        flush(PKB + 64*half); frags(FB, 'fb')
        flush(PKB + 64*half + 32); frags(FA, 'fa')
        for st in range(8):
            A.wait_lg(('fa', st))
            A(f"v_mfma_f32_32x32x16_bf16 {v(D,16)}, {v(FA+4*st,4)}, {v(FB+4*st,4)}, {'0' if (st == 0 and half == 0) else v(D,16)}")
    stamp(A)
    A("v_lshrrev_b32 v7, 5, v1")
    A("v_lshlrev_b32 v2, 4, v1")
    A("v_mov_b32 v112, 0\nv_mov_b32 v113, 0\nv_mov_b32 v114, 0\nv_mov_b32 v115, 0")
    A("v_bfe_u32 v11, v1, 1, 1")
    A("v_mul_u32_u24 v11, 4160, v11")
    A("v_and_b32 v12, 1, v1")
    A("v_lshl_add_u32 v11, v12, 4, v11")
    A("v_add_u32 v11, s54, v11")
    A("ds_write_b128 v11, v[112:115]")
    A("s_add_u32 s61, s54, 32")
    A("v_and_b32 v10, 31, v1")
    A("v_lshlrev_b32 v10, 3, v10")
    A("v_lshl_add_u32 v10, v7, 8, v10")
    A("v_add_u32 v10, s61, v10")
    T = 16
    def dup(dst, r): A(f"v_cvt_pk_bf16_f32 v{dst}, v{r}, v{r}")
    A("s_mov_b32 s64, 0x55555555\ns_mov_b32 s65, 0x55555555")
    A("s_mov_b32 s66, 0x11111111\ns_mov_b32 s67, 0x11111111")
    for r in range(8, 13):
        dup(T + 2*(r-8), D + r); dup(T + 2*(r-8) + 1, D + r)
    for r in (6, 7): dup(T + 10 + (r-6), D + r)
    for r in (4, 5): dup(T + 12 + (r-4), D + r)
    A(f"v_cvt_pk_bf16_f32 v{T+14}, v{D}, v{D+1}")
    A(f"v_cvt_pk_bf16_f32 v{T+15}, v{D+2}, v{D+3}")
    A("s_mov_b64 exec, 1")
    A(f"ds_write_b64 v10, {v(T+8,2)} offset:{2*(2048-4)}")
    A("s_mov_b64 exec, s[64:65]")
    for r in range(8, 12):
        o = 1024 + 256*(r-8)
        A(f"ds_write_b64 v10, {v(T+2*(r-8),2)} offset:{2*(o-4)}")
        A(f"ds_write_b64 v10, {v(T+2*(r-8),2)} offset:{2*o}")
    A("s_mov_b64 exec, s[66:67]")
    for r in range(8, 12):
        A(f"ds_write_b16 v10, v{T+2*(r-8)} offset:{2*(1024 + 256*(r-8) + 4)}")
    A("s_mov_b64 exec, -1")
    for r in (6, 7):
        o = 512 + 256*(r-6)
        A(f"ds_write_b32 v10, v{T+10+(r-6)} offset:{2*(o-2)}")
        A(f"ds_write_b32 v10, v{T+10+(r-6)} offset:{2*o}")
    A("s_mov_b64 exec, s[64:65]")
    for r in (6, 7):
        A(f"ds_write_b16 v10, v{T+10+(r-6)} offset:{2*(512 + 256*(r-6) + 2)}")
    A("s_mov_b64 exec, -1")
    A(f"ds_write_b16 v10, v{T+12} offset:{2*(256-1)}")
    A(f"ds_write_b32 v10, v{T+12} offset:{2*256}")
    A(f"ds_write_b16 v10, v{T+13} offset:{2*(256+2)}")
    A(f"ds_write_b64 v10, {v(T+14,2)}")
    A("s_add_u32 s61, s54, 28")
    A("v_add_u32 v4, s61, v2")
    for i in range(4):
        A(f"ds_read_b32 v{112+8*i+3}, v4 offset:{1024*i}", tag=('k', i))
        A(f"ds_read_b128 {v(112+8*i+4,4)}, v4 offset:{1024*i+4}", tag=('k', i))
    for i in range(4):
        A.wait_lg(('k', i))
        for k in range(4):
            A(f"v_alignbit_b32 v{144+4*i+k}, v{112+8*i+4+k}, v{112+8*i+3+k}, 16")
    for i in range(4):
        A(f"ds_write_b128 v4, {v(144+4*i,4)} offset:{1024*i + 4 + 4160}")
    A("v_mov_b32 v5, 1")
    A("s_lshl_b32 s61, s29, 2")
    A("v_add_u32 v6, s61, v3")
    A(f"ds_write_b32 v6, v5 offset:{F_KR}")
    stamp(A)
    A("s_branch K_conv")

def uload(A):
    A("K_uload:")
    A.reset_counters(); A.nst = 8
    A(f"s_setprio {OPT.get('uprio', 3)}")
    A(f"v_mov_b32 v3, {F}")
    A("v_lshlrev_b32 v4, 4, v1")
    A("s_mov_b32 s56, 0x8000")
    A("s_mov_b32 s79, 0")
    A("K_u2:")
    A("buffer_load_dwordx4 v[8:11], v4, s[44:47], s56 offen sc1")
    A("s_waitcnt vmcnt(0)")
    for r in range(4): A(f"v_xor_b32 v{8+r}, v61, v{8+r}")
    A("v_or3_b32 v8, v8, v9, v10")
    A("v_or_b32 v8, v8, v11")
    A("v_cmp_ne_u32 vcc, 0, v8")
    A("s_cbranch_vccz K_u3")
    A(f"s_sleep {OPT.get('xsleep', 8)}")
    A("s_add_u32 s79, s79, 1")
    A("s_cmp_lt_u32 s79, 0x4000")
    A("s_cbranch_scc1 K_u2")
    A("K_u3:")
    stamp(A)
    A("v_sub_u32 v5, 63, v1")
    A("v_lshlrev_b32 v5, 13, v5")
    A("s_and_b32 s56, s28, 3")
    A("s_lshl_b32 s56, s56, 11")
    A("s_lshr_b32 s57, s28, 2")
    A("s_lshl_b32 s57, s57, 4")
    A("s_add_u32 s56, s56, s57")
    A("v_add_u32 v5, s56, v5")
    for c in range(2):
        for q in range(4):
            A(f"s_mov_b32 m0, {L_CV + c*CVS + 2*4160 + 1024*q}")
            A(f"s_mov_b32 s56, {((3-q) << 19) + 1024*c}")
            A(f"buffer_load_dwordx4 v5, s[36:39], s56 offen sc1 lds")
    A("v_mov_b32 v8, 0\nv_mov_b32 v9, 0\nv_mov_b32 v10, 0\nv_mov_b32 v11, 0")
    A("v_min_u32 v7, 29, v1")
    A("v_lshlrev_b32 v7, 4, v7")
    A(f"v_add_u32 v7, {L_CV + 2*4160 + 4096}, v7")
    A("ds_write_b128 v7, v[8:11]")
    A(f"ds_write_b128 v7, v[8:11] offset:{CVS}")
    A("v_mov_b32 v8, 1\nv_mov_b32 v9, 1")
    A("s_waitcnt vmcnt(0) lgkmcnt(0)")
    A(f"ds_write2_b32 v3, v8, v9 offset0:{F_UR//4} offset1:{F_UR//4+1}")

def conv(A):
    A("K_conv:")
    A.reset_counters(); A.nst = 10
    A("s_sub_u32 s48, s3, 4")
    A("s_lshr_b32 s49, s48, 1")
    A("s_and_b32 s50, s48, 1")
    A("s_lshl_b32 s51, s28, 1")
    A("s_add_u32 s51, s51, s49")
    A("s_lshl_b32 s52, s28, 2")
    A("s_load_dword s53, s[92:93], s52")
    A(f"s_mul_i32 s54, s49, {CVS}")
    A(f"s_add_u32 s54, s54, {L_CV}")
    A("v_and_b32 v2, 15, v1")
    A("v_lshrrev_b32 v3, 4, v1")
    A("v_lshlrev_b32 v4, 4, v1")
    A("v_mov_b32 v17, 1")
    A("s_lshl_b32 s56, s48, 2")
    A(f"s_add_u32 s56, s56, {F}")
    A("v_mov_b32 v18, s56")
    A("v_xor_b32 v19, 4, v18")
    A("s_lshl_b32 s56, s49, 2")
    A(f"s_add_u32 s56, s56, {F}")
    A("v_mov_b32 v22, s56")
    A("v_lshrrev_b32 v6, 1, v2")
    A("v_lshlrev_b32 v6, 2, v6")
    A("v_lshl_add_u32 v6, v3, 4, v6")
    A("v_and_b32 v7, 1, v2")
    A("v_sub_u32 v7, 1, v7")
    A("v_mul_u32_u24 v7, 4160, v7")
    A("v_add_u32 v6, v6, v7")
    A("s_lshl_b32 s56, s50, 8")
    A("s_add_u32 s56, s56, s54")
    A("s_add_u32 s57, s56, 4")
    A("v_add_u32 v12, s57, v6")
    for qq in range(1, 4): A(f"v_add_u32 v{12+qq}, {1024*qq}, v12")
    A("v_lshlrev_b32 v6, 4, v3")
    A("v_lshlrev_b32 v7, 5, v2")
    A("v_sub_u32 v6, v6, v7")
    A(f"s_add_u32 s57, s56, {2*4160 + 480}")
    A("v_add_u32 v16, s57, v6")
    A("v_lshlrev_b32 v8, 5, v2")
    A("v_lshl_add_u32 v8, v3, 3, v8")
    A("s_lshl_b32 s56, s50, 11")
    A(f"s_add_u32 s57, s54, {2*4160 + 4088 - 1536}")
    A("s_sub_u32 s57, s57, s56")
    A("v_sub_u32 v8, s57, v8")
    A("s_lshl_b32 s56, s48, 15")
    A(f"s_add_u32 s56, s56, {SPARE}")
    A("v_add_u32 v6, s56, v4")
    A("v_xor_b32 v7, 0x8000, v6")
    srd(A, 40, 24, 2097152, WS_ST)
    srd(A, 44, 24, FLSZ, WS_FLAG)
    spin(A, 22, (F_KR, F_UR), 2, 20, sleep=1)
    A(f"v_mov_b32 v23, {F}")
    A(f"ds_read_b32 v61, v23 offset:{F_NON}")
    A("s_lshl_b32 s56, s49, 4")
    A("s_lshr_b32 s53, s53, s56")
    A("s_lshl_b32 s53, s53, 16")
    stamp(A)
    ACC, FR = 24, 64
    def reads(pl):
        b = FR + 64 * (pl % 2)
        fs = []
        for k in range(8):
            o = 128*(k & 1) + 16*pl
            fs.append(lambda k=k, o=o: A(f"ds_read2_b32 {v(b+4*k,2)}, v{12+k//2} offset0:{o} offset1:{o+1}"))
            fs.append(lambda k=k, o=o: A(f"ds_read2_b32 {v(b+4*k+2,2)}, v{12+k//2} offset0:{o+2} offset1:{o+3}"))
            fs.append(lambda k=k: A(f"ds_read_b128 {v(b+32+4*k,4)}, v16 offset:{3584 - 512*k + 64*pl}"))
        return fs
    XN, T, P1 = 192, 200, 216
    for a in range(4):
        A(f"ds_read_b64 {v(XN+2*a,2)}, v8 offset:{1536 - 512*a}", tag='xn')
    for f in reads(0): f()
    A.wait_lg('xn')
    for a in range(4):
        A(f"v_and_b32 v{T+4*a}, 0xffff0000, v{XN+2*a+1}")
        A(f"v_lshlrev_b32 v{T+4*a+1}, 16, v{XN+2*a+1}")
        A(f"v_and_b32 v{T+4*a+2}, 0xffff0000, v{XN+2*a}")
        A(f"v_lshlrev_b32 v{T+4*a+3}, 16, v{XN+2*a}")
    for r in range(16): A(f"v_mul_f32 v{T+r}, s53, v{T+r}")
    for k in range(8): A(f"v_cvt_pk_bf16_f32 v{P1+k}, v{T+2*k}, v{T+2*k+1}")
    for k in range(8):
        A(f"v_lshlrev_b32 v{T+2*k}, 16, v{P1+k}")
        A(f"v_and_b32 v{T+2*k+1}, 0xffff0000, v{P1+k}")
    A(f"s_setprio {OPT.get('cprio2', 0)}")
    if OPT.get('s3'): A("s_nop 0")
    for pl in range(4):
        A.wait_lg0()
        fs = reads(pl + 1) if pl < 3 else []
        b = FR + 64 * (pl % 2)
        first = set()
        for q in range(8):
            for w in range(8 - q):
                ib = q + w
                c = '0' if (pl == 0 and ib not in first) else v(ACC+4*ib, 4)
                first.add(ib)
                A(f"v_mfma_f32_16x16x32_bf16 {v(ACC+4*ib,4)}, {v(b+4*q,4)}, {v(b+32+4*w,4)}, {c}")
                if fs: fs.pop(0)()
    stamp(A)
    A("s_setprio 3")
    FF = 64
    A("s_cmp_eq_u32 s50, 0")
    A("s_cbranch_scc1 K_x0")
    for ph, lab in ((1, None), (0, 'K_x0')):
        if lab: A(f"{lab}:")
        send, keep = (4, 0) if ph == 0 else (0, 4)
        for a in range(4):
            A(f"ds_write_b128 v6, {v(ACC+4*(send+a),4)} offset:{1024*a}")
        A(f"ds_write_b32 v18, v17 offset:{F_XCH}")
        for r in range(16):
            A(f"v_mov_b32 v{FF+r}, v{ACC+4*keep+r}")
        if not lab: A("s_branch K_xe")
    A("K_xe:")
    A("v_and_b32 v8, 1, v3")
    A("v_lshlrev_b32 v8, 9, v8")
    A("v_lshl_add_u32 v8, v2, 5, v8")
    A("v_lshrrev_b32 v9, 1, v3")
    A("v_lshl_add_u32 v8, v9, 4, v8")
    A("s_lshl_b32 s56, s51, 12")
    A("s_lshl_b32 s57, s50, 11")
    A("s_add_u32 s56, s56, s57")
    spin(A, 19, F_XCH, 1, 20)
    R = 80
    for a in range(4):
        A(f"ds_read_b128 {v(R+4*a,4)}, v7 offset:{1024*a}", tag='r')
    A.wait_lg('r')
    for r in range(16): A(f"v_add_f32 v{FF+r}, v{FF+r}, v{R+r}")
    for k in range(8): A(f"v_cvt_pk_bf16_f32 v{P1+k}, v{FF+2*k}, v{FF+2*k+1}")
    for k in range(8):
        A(f"v_lshlrev_b32 v{FF+2*k}, 16, v{P1+k}")
        A(f"v_and_b32 v{FF+2*k+1}, 0xffff0000, v{P1+k}")
    for r in range(16): A(f"v_add_f32 v{FF+r}, v{FF+r}, v{T+r}")
    for k in range(8): A(f"v_cvt_pk_bf16_f32 v{P1+k}, v{FF+2*k}, v{FF+2*k+1}")
    for pr in range(2):
        A(f"v_permlane16_swap_b32 v{P1+4*pr}, v{P1+4*pr+2}")
        A(f"v_permlane16_swap_b32 v{P1+4*pr+1}, v{P1+4*pr+3}")
    for pr in range(2):
        A(f"buffer_store_dwordx4 {v(P1+4*pr,4)}, v8, s[40:43], s56 offen offset:{1024*pr} sc1")
    A("v_lshrrev_b32 v8, 3, v1")
    A("v_and_b32 v9, 7, v1")
    A("v_lshlrev_b32 v10, 12, v8")
    A("v_lshl_add_u32 v10, v9, 4, v10")
    A("v_bfe_u32 v11, v8, 1, 2")
    A("v_lshlrev_b32 v11, 1, v11")
    A("v_xor_b32 v11, v11, v9")
    A("v_lshlrev_b32 v11, 4, v11")
    A("v_lshl_add_u32 v11, v8, 7, v11")
    A("s_lshl_b32 s57, s50, 11")
    A("s_add_u32 s57, s57, s54")
    A("v_add_u32 v11, s57, v11")
    stamp(A)
    A("s_lshl_b32 s56, s81, 6")
    A("s_lshl_b32 s57, s48, 4")
    A("s_add_u32 s56, s56, s57")
    A("s_lshl_b32 s56, s56, 12")
    A("s_lshl_b32 s57, s80, 7")
    A("s_add_u32 s56, s56, s57")
    A("s_add_u32 s59, s56, 32768")
    spin(A, 18, F_GO, 1, 20, sleep=4)
    A("s_mov_b32 s79, 0")
    A("K_sp:")
    A("buffer_load_dwordx4 v[64:67], v10, s[40:43], s56 offen sc1")
    A("buffer_load_dwordx4 v[68:71], v10, s[40:43], s59 offen sc1")
    A("s_waitcnt vmcnt(0)")
    A("v_max3_u32 v12, v64, v65, v66")
    A("v_max3_u32 v13, v67, v68, v69")
    A("v_max3_u32 v12, v12, v70, v71")
    A("v_max_u32 v12, v12, v13")
    A("v_cmp_eq_u32 vcc, -1, v12")
    A("s_cbranch_vccz K_spd")
    A(f"s_sleep {OPT.get('ssleep', 4)}")
    A("s_add_u32 s79, s79, 1")
    A("s_cmp_lt_u32 s79, 0x1000")
    A("s_cbranch_scc1 K_sp")
    A("K_spd:")
    stamp(A)
    A("ds_write_b128 v11, v[64:67]")
    A("ds_write_b128 v11, v[68:71] offset:1024")
    A(f"ds_write_b32 v18, v17 offset:{F_SR}")
    finish(A)

def gemm(A):
    if OPT.get('al'): A(".p2align 6")
    A("K_gemm:")
    if OPT.get('sg'): A("s_nop 0")
    A.reset_counters(); A.nst = 3
    if OPT.get('gt'):
        A("s_setprio 3")
        A("s_cmp_lt_u32 s3, 2")
        A("s_cselect_b32 s32, s20, s84"); A("s_cselect_b32 s33, s21, s85")
        A("s_mov_b32 s34, 1835008" if OPT.get('gt') == '2' else "s_cselect_b32 s34, 1835008, 0")
        A(f"s_mov_b32 s35, {SRD3}")
        A("v_lshlrev_b32 v6, 4, v1")
        A("s_mul_i32 s36, s2, 7168")
        A("s_and_b32 s37, s3, 1")
        A("s_mul_i32 s37, s37, 3072")
        A("s_add_u32 s36, s36, s37")
        for i in range(4):
            A(f"buffer_load_dwordx4 v[244:247], v6, s[32:35], s36 offen offset:{1024*i}")
        A.reset_counters()
    A("s_setprio 2")
    GA = OPT.get('ga', '0') == '1' and OPT.get('iso') not in ('1', 'nord')
    if GA:
        srd(A, 32, 4, 2097152)
        srd(A, 36, 20, 1835008)
        p1_voffs(A, 144, 4)
        A("s_lshl_b32 s54, s3, 12")
        A(f"s_mul_i32 s57, s3, {16*3584}")
        A("s_lshl_b32 s56, s3, 15")
        for u in (2, 3):
            A(f"s_add_u32 m0, s54, {u*32768}")
            A(f"s_add_u32 s55, s57, {u*64*3584}")
            for q in range(4):
                A(f"buffer_load_dwordx4 v{144+q}, s[36:39], s55 offen offset:{1024*q} lds", tag=('u', u))
            A(f"s_add_u32 m0, s54, {u*32768 + 16384}")
            A(f"s_add_u32 s55, s56, {u*128}")
            for q in range(4):
                A(f"buffer_load_dwordx4 v{148+q}, s[32:35], s55 offen offset:{1024*q} lds", tag=('u', u))
    if OPT.get('tlb', '0') == '1':
        A("s_cmp_lg_u32 s3, 0")
        A("s_cbranch_scc1 K_t1")
        srd(A, 32, 24, 0x1600000)
        A("v_lshlrev_b32 v6, 21, v1")
        A("s_lshl_b32 s36, s2, 7")
        A("buffer_load_dword v253, v6, s[32:35], s36 offen")
        A("v_mov_b32 v6, 0")
        A("s_mov_b64 exec, 1")
        for ptr, sz in ((88, 2097152), (84, 1835008), (86, 1024), (92, 1024)):
            srd(A, 32, ptr, sz)
            A(f"buffer_load_dword v253, v6, s[32:35], 0 offen")
        A("s_mov_b64 exec, -1")
        A("K_t1:")
        A.reset_counters()
    A("v_and_b32 v19, 15, v1")
    A("v_lshrrev_b32 v3, 4, v1")
    srd(A, 40, 22, 3584)
    srd(A, 44, 24, 7340032, WS_H)
    A("v_bfe_u32 v6, v1, 2, 2")
    A("v_and_b32 v9, 1, v3")
    A("v_lshl_or_b32 v9, v9, 2, v6")
    A("v_lshl_add_u32 v10, v3, 3, v6")
    A("v_lshlrev_b32 v10, 8, v10")
    A("v_and_b32 v11, 3, v1")
    A("v_lshl_add_u32 v10, v11, 3, v10")
    A("s_and_b32 s68, s83, 1")
    AB, B1, ONES, FL, AF, ACC, XR = 12, 20, 36, 40, 44, 72, 128
    MN0, RE, BF, ACS, ARS, AQS, SA, C1, C2, C3, CSA, TM = 144, 148, 164, 192, 200, 208, 216, 220, 222, 224, 226, 236
    A("s_mul_i32 s53, s83, 224")
    A("v_lshlrev_b32 v7, 3, v3")
    for tau in range(7):
        A(f"s_lshl_b32 s59, s3, 1")
        A(f"s_add_u32 s59, s59, {tau}")
        A(f"s_sub_u32 s67, s59, 7")
        A(f"s_cmp_ge_u32 s59, 7")
        A(f"s_cselect_b32 s{60+tau}, s67, s59")
        A(f"s_add_u32 s59, s{60+tau}, s68")
        A(f"v_xor_b32 v11, s59, v9")
        A(f"v_lshl_add_u32 v{AB+tau}, v11, 5, v10")
        A(f"s_lshl_b32 s59, s{60+tau}, 6")
        A(f"s_add_u32 s59, s59, {L_CS}")
        A(f"v_lshl_add_u32 v{CSA+tau}, v3, 4, s59")
        A(f"s_lshl_b32 s59, s{60+tau}, 5")
        A(f"s_add_u32 s59, s59, {L_B1}")
        A(f"v_add_u32 v{B1+2*tau}, s59, v7")
    A("v_lshrrev_b32 v6, 1, v19")
    A("v_xor_b32 v6, v6, v3")
    A("v_lshlrev_b32 v6, 4, v6")
    A("v_lshl_add_u32 v6, v19, 7, v6")
    A("s_lshl_b32 s59, s3, 12")
    A("s_add_u32 s59, s59, 16384")
    A("v_add_u32 v4, s59, v6")
    A("v_xor_b32 v5, 64, v4")
    for i in range(4): A(f"v_mov_b32 v{ONES+i}, 0x3f803f80")
    A("v_mov_b32 v34, 1")
    A(f"s_lshl_b32 s59, s3, 2")
    A(f"s_add_u32 s59, s59, {F}")
    A("v_mov_b32 v35, s59")
    A(f"v_mov_b32 v2, {F}")
    MN = 152
    k0 = -2.0 * LOG2E * 0.7978845608028654
    A(f"v_mov_b32 v{C1}, {f2u(k0*0.044715)}")
    A(f"v_mov_b32 v{C2}, {f2u(k0)}")
    A(f"v_mov_b32 v{C3}, 1.0")
    A("s_lshl_b32 s59, s3, 8")
    A(f"s_add_u32 s59, s59, {L_S2}")
    A("v_lshl_add_u32 v160, v19, 3, s59")
    A("s_lshl_b32 s52, s82, 3")
    A("s_lshl_b32 s53, s3, 1")
    A("s_add_u32 s52, s52, s53")
    A("s_mul_i32 s52, s52, 57344")
    A("s_mul_i32 s53, s83, 3584")
    A("s_add_u32 s52, s52, s53")
    A("v_lshrrev_b32 v8, 1, v3")
    A("v_lshlrev_b32 v8, 8, v8")
    A("v_lshl_add_u32 v8, v19, 4, v8")
    A("v_add_u32 v8, s52, v8")
    A("v_and_b32 v10, 1, v3")
    A("v_cmp_eq_u32 vcc, 1, v10")
    for pr in range(4):
        A(f"s_lshl_b32 s59, s{60+2*pr}, 9")
        if pr < 3: A(f"s_lshl_b32 s67, s{60+2*pr+1}, 9")
        else: A(f"s_add_u32 s67, s59, 57344")
        A(f"v_mov_b32 v10, s59")
        A(f"v_mov_b32 v11, s67")
        A(f"v_cndmask_b32 v10, v10, v11, vcc")
        A(f"v_add_u32 v{SA+pr}, v10, v8")
    A("s_mov_b32 s59, 57344")
    EARLY = OPT.get('xearly', '0') == '1'
    if EARLY:
        srd(A, 32, 4, 2097152)
        srd(A, 36, 86, 1024)
        A("s_lshl_b32 s49, s80, 6")
        A("s_lshl_b32 s56, s3, 4")
        A("s_add_u32 s49, s49, s56")
        A("v_add_u32 v6, s49, v19")
        A("v_lshlrev_b32 v6, 10, v6")
        A("v_and_b32 v8, 1, v3")
        A("v_lshl_add_u32 v6, v8, 5, v6")
        A("v_lshrrev_b32 v8, 1, v3")
        A("v_lshl_add_u32 v6, v8, 4, v6")
        A("s_lshl_b32 s49, s81, 7")
        A("s_setprio 0")
        A("buffer_load_dwordx4 v[244:247], v6, s[32:35], s49 offen")
        A("buffer_load_dwordx4 v[248:251], v6, s[32:35], s49 offen offset:64")
        for mt in range(4):
            A(f"buffer_load_dwordx2 {v(144+2*mt,2)}, v7, s[36:39], s49 offen offset:{32*mt}")
        A("s_setprio 2")
    DN = 206
    for u in range(9): A(f"v_mov_b32 v{DN+u}, {u+1}")
    def full_issue(u):
        if OPT.get('nofl'): return
        if GA and u in (2, 3): return
        A(f"ds_read2_b32 {v(FL,2)}, v2 offset0:{u} offset1:{F_FX//4 + u}", tag=('fu', u))
    def full_eval(u):
        if OPT.get('nofl'): return
        if GA and u in (2, 3):
            spin(A, 2, F_G2 + 16*(u-2), 4, FL); return
        L1, L2 = A.newlabel('fu'), A.newlabel('fu')
        A.wait_lg(('fu', u))
        A(f"v_and_b32 v{FL}, v{FL}, v{FL+1}")
        A(f"v_cmp_eq_u32 vcc, 1, v{FL}")
        A(f"s_cbranch_vccnz {L2}")
        A(f"{L1}:")
        A(f"ds_read2_b32 {v(FL,2)}, v2 offset0:{u} offset1:{F_FX//4 + u}")
        A.lg.pop()
        A("s_waitcnt lgkmcnt(0)")
        A(f"v_and_b32 v{FL}, v{FL}, v{FL+1}")
        A(f"v_cmp_eq_u32 vcc, 1, v{FL}")
        A(f"s_cbranch_vccnz {L2}")
        A("s_add_u32 s72, s72, 1"); A("s_cmp_lt_u32 s72, 0x80000"); A(f"s_cbranch_scc1 {L1}")
        A(f"{L2}:")
    def trread(j, tau, hh):
        if (OPT.get('iso') == 'nord' or OPT.get('nord')) and j > 0: return
        if OPT.get('halfrd') and j > 0 and hh: return
        off = ((j//2) % 2) * 32768 + (j % 2) * 8192 + hh * 1024
        A(f"ds_read_b64_tr_b16 {v(AF+4*tau+2*hh,2)}, v{AB+tau} offset:{off}", tag=('a', j, tau))
    def xread(j, nt):
        off = ((j//2) % 2) * 32768 + nt * 2048
        A(f"ds_read_b128 {v(XR+8*(j%2)+4*nt,4)}, v{4 + j%2} offset:{off}", tag=('x', j))
    if not OPT.get('free'): spin(A, 2, (F_FULL, F_FX), 2, FL, sleep=1)
    if OPT.get('latepf'):
        srd(A, 32, 24, 2097152, WS_ST)
        A("s_lshl_b32 s36, s28, 13"); A("s_lshl_b32 s37, s3, 11"); A("s_add_u32 s36, s36, s37")
        A("v_mov_b32 v8, -1\nv_mov_b32 v9, -1\nv_mov_b32 v10, -1\nv_mov_b32 v11, -1")
        A("v_lshlrev_b32 v6, 4, v1")
        for i in range(2): A(f"buffer_store_dwordx4 v[8:11], v6, s[32:35], s36 offen offset:{1024*i} sc1", tag='pf')
    stamp(A)
    xread(0, 0); xread(0, 1)
    for tau in range(7):
        for hh in range(2): trread(0, tau, hh)
    for j in range(16):
        if j in (4, 8, 12): stamp(A)
        sl = XR + 8*(j % 2)
        def mf(acc, a, b):
            A(f"v_mfma_f32_16x16x32_bf16 {v(acc,4)}, {v(a,4)}, {v(b,4)}, {'0' if j == 0 else v(acc,4)}")
        flip = (j < 15 and (j + 1) % 4 == 0)
        A.wait_lg(('x', j), ('a', j, 0), ('a', j, 1))
        for tau in range(7):
            if tau % 2 == 0 and tau: A.wait_lg(('a', j, tau), ('a', j, min(tau+1, 6)))
            mf(ACC + 8*tau, AF + 4*tau, sl)
            if tau == 0:
                if j > 0: trread(j, 6, 0)
                if j % 2 == 1 and j < 15:
                    full_eval((j+1)//2)
                if flip: A(f"v_xor_b32 v4, 0x10000, v4"); A(f"v_xor_b32 v5, 0x10000, v5")
            elif j < 15: trread(j+1, tau-1, 0)
            if flip: A(f"v_xor_b32 v{AB+tau}, 0x10000, v{AB+tau}")
            if tau == 6 and j == 3 and OPT.get('latepf'): A.wait_vm('pf')
            dset = [int(c) for c in OPT.get('dset', '01234567')]
            if OPT.get('dpos', 'a') == 'a':
                if tau == 6 and j % 2 == 1 and j//2 in dset:
                    A(f"ds_write_b32 v35, v{DN + j//2} offset:{F_DONE}", tag='dn')
            elif tau == int(OPT.get('dpos')) and j % 2 == 0 and j > 0 and j//2 - 1 in dset:
                A(f"ds_write_b32 v35, v{DN + j//2 - 1} offset:{F_DONE}", tag='dn')
            if OPT.get('dpos', 'a') != 'a' and j == 15 and tau == 6:
                A(f"ds_write_b32 v35, v{DN + 7} offset:{F_DONE}", tag='dn')
            if GA and tau == 3 and j in (2, 4):
                A.wait_vm(('u', j//2 + 1))
                A(f"ds_write_b32 v35, v34 offset:{F_G2 + 16*(j//2 - 1)}", tag='g2')
            if tau == 5 and j % 2 == 0 and j < 14:
                full_issue(j//2 + 1)
            mf(ACC + 8*tau + 4, AF + 4*tau, sl + 4)
            if OPT.get('hpt') and j == int(OPT.get('hpt')):
                A(f"buffer_load_dwordx4 v[244:247], v{SA + (0,1,2,3,0,1,2)[tau]}, s[44:47], {'0' if tau < 4 else 's59'} offen")
            if j == 9:
                A(f"ds_read_b64 {v(B1+2*tau,2)}, v{B1+2*tau}", tag='b1')
            if j in (10, 12, 13, 14):
                if j == 10 and tau == 0: A.wait_lg('b1')
                kk = {10: 0, 12: 1, 13: 2, 14: 3}[j]
                if kk % 2 == 0: A(f"v_lshlrev_b32 v{BF+4*tau+kk}, 16, v{B1+2*tau+kk//2}")
                else: A(f"v_and_b32 v{BF+4*tau+kk}, 0xffff0000, v{B1+2*tau+kk//2}")
            if tau == 0:
                if j > 0: trread(j, 6, 1)
            elif j < 15: trread(j+1, tau-1, 1)
            if tau < 2:
                mf(ACS + 4*tau, AF + 4*tau, ONES)
                if j < 15: xread(j+1, tau)
            if j == 15 and tau == 4:
                for t2 in range(2):
                    A(f"ds_write_b128 v{CSA+t2}, {v(ACS+4*t2,4)}", tag='cw')
                A(f"ds_write_b32 v35, v34 offset:{F_CS}", tag='fl')
    stamp(A)
    if OPT.get('iso'):
        n = A.nst; finish(A); A.nst = n
    L = A.newlabel('ep')
    A(f"{L}:")
    A(f"ds_read_b128 {v(FL,4)}, v2 offset:{F_CS}")
    A(f"ds_read_b32 v6, v2 offset:{F_ST}")
    A("s_waitcnt lgkmcnt(0)")
    A(f"v_min3_u32 v{FL}, v{FL}, v{FL+1}, v6")
    A(f"v_min3_u32 v{FL}, v{FL}, v{FL+2}, v{FL+3}")
    A(f"v_cmp_eq_u32 vcc, 1, v{FL}")
    A(f"s_cbranch_vccnz {L}_d")
    A("s_add_u32 s72, s72, 1"); A("s_cmp_lt_u32 s72, 0x80000"); A(f"s_cbranch_scc1 {L}")
    A(f"{L}_d:")
    A.lg = []
    for nt in range(2):
        A(f"ds_read_b64 {v(MN+4*nt,2)}, v160 offset:{128*nt}", tag='mn')
    CS = 44
    for tau in range(7):
        A(f"ds_read_b128 {v(CS+4*tau,4)}, v{CSA+tau}", tag=('cs', tau))
    A.wait_lg('mn')
    for nt in range(2): A(f"v_mov_b32 v{MN+4*nt+2}, v{MN+4*nt+1}")
    stamp(A)
    OUT = 192
    if OPT.get('s1'): A("s_nop 0")
    bc = "op_sel_hi:[1,0,1]"
    groups = [((0,0),(1,0)), ((2,0),(3,0)), ((4,0),(5,0)), ((6,0),(6,1)), ((0,1),(1,1)), ((2,1),(3,1)), ((4,1),(5,1))]
    for gi, grp in enumerate(groups):
        o = OUT + 4 * (gi % 4)
        chains = []
        for ti, (tau, nt) in enumerate(grp):
            A.wait_lg(('cs', tau))
            for pr in range(2):
                a = ACC + 8*tau + 4*nt + 2*pr
                t = TM + 2*(2*ti + pr)
                chains.append([
                    f"v_pk_fma_f32 {v(a,2)}, {v(CS+4*tau+2*pr,2)}, {v(MN+4*nt,2)}, {v(a,2)} {bc}",
                    f"v_pk_fma_f32 {v(a,2)}, {v(a,2)}, {v(MN+4*nt+2,2)}, {v(BF+4*tau+2*pr,2)} {bc}",
                    f"v_pk_mul_f32 {v(t,2)}, {v(a,2)}, {v(a,2)}",
                    f"v_pk_fma_f32 {v(t,2)}, {v(t,2)}, {v(C1,2)}, {v(C2,2)} op_sel_hi:[1,0,0]",
                    f"v_pk_mul_f32 {v(t,2)}, {v(t,2)}, {v(a,2)}",
                    f"v_exp_f32 v{t}, v{t}",
                    f"v_exp_f32 v{t+1}, v{t+1}",
                    f"v_pk_add_f32 {v(t,2)}, {v(t,2)}, {v(C3,2)} op_sel_hi:[1,0]",
                    f"v_rcp_f32 v{t}, v{t}",
                    f"v_rcp_f32 v{t+1}, v{t+1}",
                    f"v_pk_mul_f32 {v(t,2)}, {v(t,2)}, {v(a,2)}",
                    f"v_cvt_pk_bf16_f32 v{o+2*ti+pr}, v{t}, v{t+1}"])
        for ins in zip(*chains):
            for x in ins: A(x)
        A(f"v_permlane16_swap_b32 v{o}, v{o+2}")
        A(f"v_permlane16_swap_b32 v{o+1}, v{o+3}")
        so = 's59' if (grp[0][1] == 1) else '0'
        A(f"buffer_store_dwordx4 {v(o,4)}, v{SA+grp[0][0]//2}, s[44:47], {so} offen {OPT.get('hst','sc1')}", tag='hs')
    stamp(A)
    LA = int(OPT.get('LA', 3))
    NSTEP = 14
    A(f"ds_read_b32 v237, v2 offset:{F_NON}")
    if EARLY:
        A("s_waitcnt vmcnt(7)")
        for k in range(8): A(f"v_mov_b32 v{48+k}, v{244+k}")
        for k in range(8): A(f"v_mov_b32 v{240+k}, v{144+k}")
    srd(A, 36, 84, 1835008)
    srd(A, 40, 4, 2097152)
    srd(A, 64, 86, 1024)
    srd(A, 52, 88, 2097152)
    srd(A, 60, 24, FLSZ, WS_FLAG)
    A("v_lshlrev_b32 v236, 4, v1")
    for l in range(4):
        A(f"s_add_u32 s49, s3, {l}")
        A("s_and_b32 s49, s49, 3")
        A("s_mul_i32 s49, s49, 57344")
        A(f"v_add_u32 v{4+l}, s49, v236")
    A(f"s_mul_i32 s48, s80, {4*57344}")
    A("s_lshl_b32 s49, s3, 10")
    A("s_add_u32 s48, s48, s49")
    w2_voffs(A, 8, 12)
    A("s_lshl_b32 s50, s3, 15")
    A("v_bfe_u32 v16, v1, 2, 2")
    A("v_lshrrev_b32 v17, 1, v16")
    A("v_and_b32 v18, 1, v3")
    A("v_lshl_or_b32 v17, v18, 1, v17")
    A("v_lshl_add_u32 v18, v3, 3, v16")
    A("v_lshlrev_b32 v18, 7, v18")
    A("v_and_b32 v20, 3, v1")
    A("v_lshl_add_u32 v18, v20, 3, v18")
    A("v_add_u32 v18, s50, v18")
    for mt in range(4):
        A(f"v_xor_b32 v20, {mt}, v17")
        A(f"v_lshl_add_u32 v{12+mt}, v20, 5, v18")
    A("s_lshl_b32 s49, s80, 6")
    A("s_lshl_b32 s56, s3, 4")
    A("s_add_u32 s49, s49, s56")
    A("v_add_u32 v16, s49, v19")
    A("v_lshlrev_b32 v16, 10, v16")
    A("v_and_b32 v17, 1, v3")
    A("v_lshl_add_u32 v16, v17, 5, v16")
    A("v_lshrrev_b32 v17, 1, v3")
    A("v_lshl_add_u32 v16, v17, 4, v16")
    A("s_lshl_b32 s49, s81, 7")
    A("v_add_u32 v16, s49, v16")
    A("v_lshlrev_b32 v17, 3, v3")
    A("v_mov_b32 v44, 1")
    A("v_mov_b32 v45, v35")
    A("v_mov_b32 v46, v2")
    A("v_add_u32 v47, s50, v236")
    A("v_bfe_u32 v18, v1, 2, 2")
    A("v_lshl_add_u32 v18, v3, 2, v18")
    A("v_bfe_u32 v20, v18, 1, 2")
    A("v_xor_b32 v20, s3, v20")
    A("v_lshlrev_b32 v18, 7, v18")
    A("v_lshl_add_u32 v18, v20, 5, v18")
    A("v_and_b32 v20, 3, v1")
    A("v_lshl_add_u32 v18, v20, 3, v18")
    A(f"v_add_u32 v18, {L_CV}, v18")
    for k in range(1, 4):
        A(f"s_add_u32 s56, s3, {k}")
        A("s_and_b32 s56, s56, 3")
        A(f"s_lshl_b32 s56, s56, 15")
        A(f"s_add_u32 s56, s56, {(4-k)*4096}")
        A(f"v_add_u32 v{247+k}, s56, v236")
    A("s_lshl_b32 s56, s82, 1")
    A("s_lshr_b32 s57, s3, 1")
    A("s_add_u32 s56, s56, s57")
    A("s_lshl_b32 s56, s56, 10")
    A("s_lshl_b32 s57, s83, 3")
    A("s_add_u32 s56, s56, s57")
    A("s_and_b32 s57, s3, 1")
    A("s_lshl_b32 s57, s57, 2")
    A("s_add_u32 s56, s56, s57")
    A("v_lshlrev_b32 v238, 7, v1")
    A("v_and_b32 v239, 31, v1")
    A("v_lshlrev_b32 v239, 2, v239")
    spin(A, 46, F_NON, 1, 237, cmp='ne', val='0')
    A.wait_vm0()
    A("s_mov_b64 exec, 0xff")
    A(f"buffer_store_dword v237, v238, s[60:63], s56 offen {OPT.get('hst','sc1')}")
    A("s_mov_b64 exec, -1")
    stamp(A)
    if EARLY:
        for k in range(8): A(f"v_mov_b32 v{20+k}, v{48+k}")
    else:
        A("buffer_load_dwordx4 v[20:23], v16, s[40:43], 0 offen")
        A("buffer_load_dwordx4 v[24:27], v16, s[40:43], 0 offen offset:64")
        for mt in range(4):
            A(f"buffer_load_dwordx2 {v(240+2*mt,2)}, v17, s[64:67], s49 offen offset:{32*mt}")
    A(f"s_setprio {OPT.get('gprio', 1)}")
    spin(A, 45, F_PRE, 1, 28, sleep=1)
    NRG = int(OPT.get('NRG', 3))
    NH = LA + 1
    AF, ACC, AR, HB = 28, 48, 112, 112 + 16*NRG
    assert HB + 16*NH <= 236, HB + 16*NH
    def afr(j): return AR + 16*j if j < NRG else AF
    def trread2(j, mt):
        for hh in range(2):
            A(f"ds_read_b64_tr_b16 {v(afr(j)+4*mt+2*hh,2)}, v{12+mt} offset:{(j % NR)*4096 + hh*512}", tag=('a', j, mt))
    def hloads(j):
        hb = HB + 16 * (j % NH)
        def first():
            rstep(A, 58, j)
            A("s_lshl_b32 s58, s58, 12")
            A("s_add_u32 s58, s58, s48")
        fs = [first]
        for nt in range(4):
            fs.append(lambda nt=nt: A(f"buffer_load_dwordx4 {v(hb+4*nt,4)}, v{4+nt}, s[44:47], s58 offen {OPT.get('hld','sc1')}", tag=('h', j)))
        return fs
    def wloads(j):
        def first():
            rstep(A, 59, j)
            A("s_lshl_b32 s59, s59, 17")
            A("s_add_u32 s59, s59, s50")
            A(f"s_add_u32 m0, s50, {(j % NR)*4096}")
            A(f"buffer_load_dwordx4 v8, s[36:39], s59 offen lds", tag=('w', j))
        return [first] + [(lambda q=q: A(f"buffer_load_dwordx4 v{8+q}, s[36:39], s59 offen offset:{1024*q} lds", tag=('w', j))) for q in range(1, 4)]
    for j in range(NRG + 1):
        for mt in range(4): trread2(j, mt)
        if j >= 1:
            A.wait_lg(('a', j-1, 3))
            for f in wloads(j - 1 + NR): f()
    A.wait_lg0()
    for f in wloads(NRG + NR) if NRG + NR < NSTEP else []: f()
    nextw = NRG + NR + 1
    A("s_lshl_b32 s56, s80, 10")
    A("s_lshl_b32 s57, s81, 7")
    A("s_add_u32 s56, s56, s57")
    FINE = bool(OPT.get('fine'))
    def need(j):
        T = (128*j + 127) // 112
        mask = (1 << (2*T + 2)) - 1
        L = A.newlabel('nd')
        A(f"s_and_b32 s76, s75, {mask}")
        A(f"s_cbranch_scc0 {L}_d")
        A("s_mov_b32 s79, 0")
        A(f"{L}:")
        A("buffer_load_dword v238, v239, s[60:63], s74 offen sc1"); A.vm.pop()
        A("s_waitcnt vmcnt(0)")
        A("v_cmp_ne_u32 vcc, v237, v238")
        A("s_mov_b32 s75, vcc_lo")
        A(f"s_and_b32 s76, s75, {mask}")
        A(f"s_cbranch_scc0 {L}_d")
        A(f"s_sleep {OPT.get('hsleep', 3)}")
        A("s_add_u32 s79, s79, 1")
        A("s_cmp_lt_u32 s79, 0x4000")
        A(f"s_cbranch_scc1 {L}")
        A(f"{L}_d:")
    if FINE:
        A("s_mov_b32 s74, s56")
        A("s_mov_b32 s75, -1")
        need(int(OPT.get('first', 1)))
        stamp(A)
        for j in range(LA):
            need(j)
            for f in hloads(j): f()
    else:
        A("s_cmp_lg_u32 s3, 0")
        A("s_cbranch_scc1 K_g1")
        vm = list(A.vm)
        gpoll(A, 239, 60, 's56', 238, 237, int(OPT.get('hsleep', 4)))
        A.vm = vm
        A(f"ds_write_b32 v46, v44 offset:{F_HR}")
        A("K_g1:")
        spin(A, 46, F_HR, 1, 238, sleep=1)
        stamp(A)
        for j in range(LA):
            for f in hloads(j): f()
    if OPT.get('s2'): A("s_nop 0")
    for j in range(NSTEP):
        if j in (4, 9): stamp(A)
        fs = hloads(j + LA) if j + LA < NSTEP else []
        if nextw < NSTEP and j - 1 >= nextw - NR:
            fs = fs + wloads(nextw); nextw += 1
        if j == int(OPT.get('GO', 7)): A(f"ds_write_b32 v45, v44 offset:{F_GO}", tag='go')
        if OPT.get('burst') == '2':
            while fs: fs.pop(0)()
        A.wait_vm(('h', j), ('w', j + 1))
        if FINE and j + LA < NSTEP:
            if j >= LA and j - LA + 2*LA < NSTEP:
                A(f"v_cmp_ne_u32 vcc, v237, v{251 + (j % 3)}")
                A("s_and_b32 s75, s75, vcc_lo")
            need(j + LA)
            if j + 2*LA < NSTEP:
                A(f"buffer_load_dword v{251 + ((j + LA) % 3)}, v239, s[60:63], s74 offen sc1", tag=('h', j + LA))
        hb = HB + 16 * (j % NH)
        af = afr(j)
        if OPT.get('burst', '1') == '1':
            while fs: fs.pop(0)()
        if j + 1 < NSTEP:
            for mt in range(4):
                A.wait_lg(('a', j, mt))
                for nt in range(4):
                    acc = ACC + 16*nt + 4*mt
                    A(f"v_mfma_f32_16x16x32_bf16 {v(acc,4)}, {v(af+4*mt,4)}, {v(hb+4*nt,4)}, {'0' if j == 0 else v(acc,4)}")
                    if fs and nt < 3: fs.pop(0)()
                if j + 1 > NRG: trread2(j + 1, mt)
            while fs: fs.pop(0)()
        else:
            A.wait_lg0()
            pend = []
            for nt in (1, 2, 3, 0):
                for mt in range(4):
                    acc = ACC + 16*nt + 4*mt
                    A(f"v_mfma_f32_16x16x32_bf16 {v(acc,4)}, {v(af+4*mt,4)}, {v(hb+4*nt,4)}, {v(acc,4)}")
                    if len(pend) >= 4:
                        a2, o2 = pend.pop(0)
                        A(f"ds_write_b128 v47, {v(a2,4)} offset:{o2}")
                    if nt: pend.append((acc, (4*nt+mt)*1024))
            for a2, o2 in pend: A(f"ds_write_b128 v47, {v(a2,4)} offset:{o2}")
    assert nextw >= NSTEP
    A(f"ds_write_b32 v45, v44 offset:{F_RED}")
    stamp(A)
    BB, XX, SS, T = 176, 192, 208, 128
    for mt in range(4):
        for k in range(2):
            A(f"v_lshlrev_b32 v{BB+4*mt+2*k}, 16, v{240+2*mt+k}")
            A(f"v_and_b32 v{BB+4*mt+2*k+1}, 0xffff0000, v{240+2*mt+k}")
    for r in range(0, 16, 2):
        A(f"v_pk_add_f32 {v(ACC+r,2)}, {v(ACC+r,2)}, {v(BB+r,2)}")
    for k in range(8):
        A(f"v_lshlrev_b32 v{XX+2*k}, 16, v{20+k}")
        A(f"v_and_b32 v{XX+2*k+1}, 0xffff0000, v{20+k}")
    A(f"v_mov_b32 v232, {f2u(-LOG2E)}")
    A(f"v_mov_b32 v234, 1.0")
    spin(A, 46, F_RED, 4, 8)
    PR = 128
    for k in range(1, 4):
        for mt in range(4):
            A(f"ds_read_b128 {v(PR+16*(k-1)+4*mt,4)}, v{247+k} offset:{mt*1024}", tag=('p', k))
    for k in range(1, 4):
        A.wait_lg(('p', k))
        for r in range(0, 16, 2):
            A(f"v_pk_add_f32 {v(ACC+r,2)}, {v(ACC+r,2)}, {v(PR+16*(k-1)+r,2)}")
    for r in range(0, 16, 2):
        A(f"v_pk_mul_f32 {v(T+r,2)}, {v(ACC+r,2)}, {v(232,2)} op_sel_hi:[1,0]")
    for r in range(16): A(f"v_exp_f32 v{T+r}, v{T+r}")
    for r in range(0, 16, 2):
        A(f"v_pk_add_f32 {v(T+r,2)}, {v(T+r,2)}, {v(234,2)} op_sel_hi:[1,0]")
    for r in range(16): A(f"v_rcp_f32 v{T+r}, v{T+r}")
    for r in range(0, 16, 2):
        A(f"v_pk_mul_f32 {v(ACC+r,2)}, {v(ACC+r,2)}, {v(T+r,2)}")
    stamp(A)
    spin(A, 46, F_SR, 4, 8)
    stamp(A)
    for mt in range(4):
        A(f"ds_read_b64_tr_b16 {v(224+2*mt,2)}, v18 offset:{(mt>>1)*CVS + (mt&1)*2048}", tag='s')
    A.wait_lg('s')
    for mt in range(4):
        for k in range(2):
            A(f"v_lshlrev_b32 v{SS+4*mt+2*k}, 16, v{224+2*mt+k}")
            A(f"v_and_b32 v{SS+4*mt+2*k+1}, 0xffff0000, v{224+2*mt+k}")
    for r in range(0, 16, 2):
        A(f"v_pk_mul_f32 {v(ACC+r,2)}, {v(ACC+r,2)}, {v(SS+r,2)}")
    O = 160
    for r in range(0, 16, 2):
        A(f"v_cvt_pk_bf16_f32 v{O+r//2}, v{ACC+r}, v{ACC+r+1}")
    for pr in range(2):
        A(f"v_permlane16_swap_b32 v{O+4*pr}, v{O+4*pr+2}")
        A(f"v_permlane16_swap_b32 v{O+4*pr+1}, v{O+4*pr+3}")
    for k in range(8):
        A(f"v_lshlrev_b32 v{T+2*k}, 16, v{O+k}")
        A(f"v_and_b32 v{T+2*k+1}, 0xffff0000, v{O+k}")
    for k in range(8):
        A(f"v_pk_add_f32 {v(T+2*k,2)}, {v(T+2*k,2)}, {v(XX+2*k,2)}")
    for k in range(8):
        A(f"v_cvt_pk_bf16_f32 v{O+k}, v{T+2*k}, v{T+2*k+1}")
    A(f"buffer_store_dwordx4 {v(O,4)}, v16, s[52:55], 0 offen {OPT.get('sto','')}")
    A(f"buffer_store_dwordx4 {v(O+4,4)}, v16, s[52:55], 0 offen offset:64 {OPT.get('sto','')}")
    A("s_or_b32 s56, s2, s3")
    A("s_cmp_lg_u32 s56, 0")
    A("s_cbranch_scc1 K_g9")
    A("v_mov_b32 v238, 0")
    A("s_mov_b32 s56, 0x30000")
    A("s_mov_b64 exec, 1")
    A("buffer_store_dword v237, v238, s[60:63], s56 offen sc1")
    A("s_mov_b64 exec, -1")
    A("K_g9:")
    finish(A)

def build():
    A = Asm()
    A(f".globl {KN}\n.p2align 8\n.type {KN},@function")
    A(f"{KN}:")
    A("K_start:")
    prologue(A)
    loader(A)
    gemm(A)
    xwave(A)
    kgen(A)
    uload(A)
    conv(A)
    A("K_end:")
    A("s_endpgm")
    hdr = open('cdna_kernels/' + NAME + '.s.ref').read().split('; Override launch')[0] if os.path.exists('cdna_kernels/' + NAME + '.s.ref') else ''
    txt = hdr + f"; @launch grid=(256,1,1) block=(512,1,1) lds={L_SIZE}\n"
    txt += '.amdgcn_target "amdgcn-amd-amdhsa--gfx950"\n.text\n' + A.text() + 'CODE_END:\n.section .rodata,"a"\n'
    txt += f""".p2align 6
.amdhsa_kernel {KN}
  .amdhsa_next_free_vgpr 256
  .amdhsa_next_free_sgpr 102
  .amdhsa_accum_offset 256
  .amdhsa_group_segment_fixed_size 0
  .amdhsa_kernarg_size 136
  .amdhsa_user_sgpr_count 2
  .amdhsa_user_sgpr_kernarg_segment_ptr 1
  .amdhsa_system_sgpr_workgroup_id_x 1
.end_amdhsa_kernel
"""
    return txt

if __name__ == '__main__':
    out = sys.argv[1] if len(sys.argv) > 1 else f'cdna_kernels/{NAME}.s'
    open(out, 'w').write(build())
```
